```python
import torch

def _softmax(x, axis=-1):
    return torch.softmax(x, dim=axis)

def _gelu(x):
    return torch.nn.functional.gelu(x, approximate='tanh')

def _silu(x):
    return torch.nn.functional.silu(x)

def _sigmoid(x):
    return torch.sigmoid(x)

def _layernorm(x, axis=-1, eps=1e-05):
    m = x.mean(dim=axis, keepdim=True)
    v = x.var(dim=axis, keepdim=True, unbiased=False)
    return (x - m) / torch.sqrt(v + eps)

def _scatter_add(tgt, idx, src, axis=0):
    return tgt.clone().index_add_(axis, idx, src)

def _segment_sum(src, seg, n):
    out = torch.zeros((n,) + src.shape[1:], dtype=src.dtype)
    return out.index_add_(0, seg, src)

def _pad(x, pw):
    flat = tuple((v for pair in reversed(pw) for v in pair))
    return torch.nn.functional.pad(x, flat)
kernel_name = 'sequential_preLN__memory_aug_recurrent_mem_tr__dense_activation_gelu__prompt'

def setup_inputs():

    _w = lambda a: (lambda t: t.to(torch.bfloat16) if t.is_floating_point() else t)(torch.as_tensor(a))

    def _A_setup():
        B, S, Dm = (1, 2048, 448)
        H, Dh = (16, 256)
        M, seg = (8, 32)
        seg = min(seg, S)
        S = S // seg * seg
        return {'x': _w((lambda *s: torch.randn(*s, dtype=torch.bfloat16) * 0.05)(B, S, Dm)), 'mem0': _w((lambda *s: torch.randn(*s, dtype=torch.bfloat16) * 0.2)(B, M, Dm)), 'Wq': _w((lambda *s: torch.randn(*s, dtype=torch.bfloat16) * 1.6)(Dm, H, Dh) * Dm ** (-0.5)), 'Wk': _w((lambda *s: torch.randn(*s, dtype=torch.bfloat16) * 1.6)(Dm, H, Dh) * Dm ** (-0.5)), 'Wv': _w((lambda *s: torch.randn(*s, dtype=torch.bfloat16) * 0.2)(Dm, H, Dh) * Dm ** (-0.5)), 'Wo': _w((lambda *s: torch.randn(*s, dtype=torch.bfloat16) * 0.2)(H, Dh, Dm) * (H * Dh) ** (-0.5)), 'seg_len': seg}
    _A_in = _A_setup()

    def _B_setup():
        B, S, D, F = (1, 2048, 448, 1792)
        return {'x': _w((lambda *s: torch.randn(*s, dtype=torch.bfloat16) * 0.05)(B, S, D)), 'w1': _w((lambda *s: torch.randn(*s, dtype=torch.bfloat16) * 0.4)(D, F) * D ** (-0.5)), 'b1': _w((lambda *s: torch.randn(*s, dtype=torch.bfloat16) * 12.8)(F) * 0.01), 'w2': _w((lambda *s: torch.randn(*s, dtype=torch.bfloat16) * 0.2)(F, D) * F ** (-0.5)), 'b2': _w((lambda *s: torch.randn(*s, dtype=torch.bfloat16) * 1.6)(D) * 0.01)}
    _B_in = _B_setup()
    return {'A_x': _A_in['x'], 'A_mem0': _A_in['mem0'], 'A_Wq': _A_in['Wq'], 'A_Wk': _A_in['Wk'], 'A_Wv': _A_in['Wv'], 'A_Wo': _A_in['Wo'], 'A_seg_len': _A_in['seg_len'], 'B_x': _B_in['x'], 'B_w1': _B_in['w1'], 'B_b1': _B_in['b1'], 'B_w2': _B_in['w2'], 'B_b2': _B_in['b2']}

def reference(A_x, A_mem0, A_Wq, A_Wk, A_Wv, A_Wo, A_seg_len, B_x, B_w1, B_b1, B_w2, B_b2):

    def _A_ref(x, mem0, Wq, Wk, Wv, Wo, seg_len):
        B, S, Dm = x.shape
        H, Dh = (Wq.shape[1], Wq.shape[2])
        M = mem0.shape[1]
        scale = Dh ** (-0.5)
        n_seg = S // seg_len
        L = M + seg_len
        idx = torch.arange(L)
        mask = (idx[:, None] < M) | (idx[:, None] >= idx[None, :])
        mem = mem0
        outs = []
        for s in range(n_seg):
            xs = x[:, s * seg_len:(s + 1) * seg_len, :].clone()
            h = torch.concatenate([mem, xs], axis=1)
            q = torch.einsum('btd,dhe->bhte', h, Wq)
            k = torch.einsum('btd,dhe->bhte', h, Wk)
            v = torch.einsum('btd,dhe->bhte', h, Wv)
            scores = torch.einsum('bhqe,bhke->bhqk', q, k) * scale
            scores = torch.where(mask[None, None], scores, -1000000000.0)
            p = _softmax(scores, axis=-1)
            o = torch.einsum('bhqk,bhke->bhqe', p, v)
            o = torch.einsum('bhte,hed->btd', o, Wo)
            mem = o[:, :M, :].clone()
            outs.append(o[:, M:, :])
        return torch.concatenate(outs, axis=1)

    def _B_ref(x, w1, b1, w2, b2):
        h = torch.einsum('bsd,df->bsf', x, w1) + b1
        h = _gelu(h)
        return torch.einsum('bsf,fd->bsd', h, w2) + b2
    x = A_x
    h = x + _A_ref(_layernorm(x, axis=-1), A_mem0, A_Wq, A_Wk, A_Wv, A_Wo, A_seg_len)
    h2 = h + _B_ref(_layernorm(h, axis=-1), B_w1, B_b1, B_w2, B_b2)
    return h2
```

```python
def v(i, n=1):
    return f"v{i}" if n == 1 else f"v[{i}:{i + n - 1}]"


def acc(i, n=1):
    return f"a{i}" if n == 1 else f"a[{i}:{i + n - 1}]"


def s(i, n=1):
    return f"s{i}" if n == 1 else f"s[{i}:{i + n - 1}]"


class Asm:
    def __init__(self):
        self.lines = []
        self.ds = []
        self.vm = []
        self.uid = 0

    def __call__(self, text):
        for t in text.split("\n"):
            t = t.strip()
            if t:
                self.lines.append(t.replace(" offset:0 ", " ").removesuffix(" offset:0"))

    def raw(self, text):
        self.lines.append(text)

    def label(self, name):
        self.lines.append(name + ":")

    def newlabel(self, stem):
        self.uid += 1
        return f"L{stem}_{self.uid}"

    def comment(self, text):
        self.lines.append("    ; " + text)

    def nop(self, states):
        while states > 0:
            n = min(states, 16)
            self(f"s_nop {n - 1}")
            states -= n

    def dsop(self, text, tag=None):
        self(text)
        self.ds.append(tag)

    def wait_ds(self, tag):
        if tag not in self.ds:
            return
        last = max(i for i, t in enumerate(self.ds) if t == tag)
        left = len(self.ds) - 1 - last
        self(f"s_waitcnt lgkmcnt({min(left, 15)})")
        self.ds = self.ds[len(self.ds) - min(left, 15):] if left else []

    def wait_ds_all(self):
        self("s_waitcnt lgkmcnt(0)")
        self.ds = []

    def vmop(self, text, tag=None):
        if len(self.vm) >= 62:
            self("s_waitcnt vmcnt(54)")
            self.vm = self.vm[-54:]
        self(text)
        self.vm.append(tag)

    def wait_vm(self, tag):
        if tag not in self.vm:
            return
        left = len(self.vm) - 1 - max(i for i, t in enumerate(self.vm) if t == tag)
        self(f"s_waitcnt vmcnt({left})")
        self.vm = self.vm[len(self.vm) - left:] if left else []

    def wait_vm_all(self):
        self("s_waitcnt vmcnt(0)")
        self.vm = []

    def text(self):
        return "\n".join(self.lines) + "\n"


def interleave(a, main, fill):
    for f in fill.get(-1, []):
        f()
    for i, m in enumerate(main):
        m()
        for f in fill.get(i, []):
            f()
```

```python
NSEG = 64
NCLONE = 4
NFFN = 3

MEM_SZ = 7168
PB_SZ = 10240
PX_SZ = 40960
XT_SEG = 28672
H1_SEG = 114688
Y_SEG = 458752
AL_HEAD = 401408
BL_CU = 458752

WS = {}
_off = 0


def _region(name, size):
    global _off
    WS[name] = _off
    _off += (size + 4095) // 4096 * 4096


_region("ARR", 4096)
_region("YF", NSEG * 14 * 4 * 4)
_region("YR", (NSEG + 2) * 128)
_region("HF", 2 * NSEG * 14 * 4 * 4)
_region("BELL", 4096)
POISON_BEGIN = _off
_region("MEML", NSEG * MEM_SZ)
_region("MEMG", NSEG * MEM_SZ)
_region("PB", NSEG * PB_SZ)
_region("PX", NSEG * PX_SZ)
_region("HT", NSEG * XT_SEG)
POISON_END = _off
_region("XT", NSEG * XT_SEG + 4096)
_region("XP", NSEG * XT_SEG)
_region("AL", 16 * AL_HEAD)
_region("BL", 14 * BL_CU)
_region("H1T", NSEG * H1_SEG)
_region("YL", NSEG * Y_SEG)
_region("DBG", 4 << 20)
WS_USED = _off
WS_BYTES = 268435456


def d32(g, e):
    return 16 * (g >> 1) + 4 * (g & 1) + 8 * ((e >> 1) & 1) + 2 * (e >> 2) + (e & 1)
```

```python
from asmlib import v, acc, s
from layout import *
from roles_rec import *
from roles_pre import srd, f32, row_sum4, ln_scalars, ln_apply
from roles_tok import mfma

GELU_C1 = -2.0 * 1.4426950408889634 * 0.7978845608028654
GELU_C2 = GELU_C1 * 0.044715


def unpack(a, dst, src, n):
    for i in range(n):
        a(f"v_lshlrev_b32 {v(dst + 2 * i)}, 16, {v(src + i)}")
        a(f"v_and_b32 {v(dst + 2 * i + 1)}, 0xffff0000, {v(src + i)}")


def gen_f1(a, w, cfg):
    L16, DA, TRA, SA, T0, T1, MEAN, M2, TM = range(1, 10)
    OTH, BIAS, PK, F, XO, ACC = 12, 16, 24, 52, 108, 132
    HN, STAT, STAGE = 0, 28672, 32768
    sH, sO, sF, sC1, sC2 = range(S_T0, S_T0 + 5)
    qt0, ks0 = w >> 1, 7 * (w & 1)
    W = lambda ab, ks: acc(8 * ks + 4 * ab, 4)

    a.label(f"F1_W{w}")
    srd(a, S_X, 64, 448 * 3584)
    srd(a, S_AUX, 72, 3584)
    a(f"v_lshlrev_b32 {v(L16)}, 4, v0")
    a(f"v_lshrrev_b32 {v(T0)}, 2, v0")
    a(f"v_mul_u32_u24 {v(DA)}, 3584, {v(T0)}")
    a(f"v_and_b32 {v(T1)}, 3, v0")
    a(f"v_lshl_add_u32 {v(DA)}, {v(T1)}, 4, {v(DA)}")
    a(f"v_lshrrev_b32 {v(TRA)}, 4, v0")
    a(f"v_lshlrev_b32 {v(SA)}, 4, {v(TRA)}")
    a(f"v_lshlrev_b32 {v(TRA)}, 3, {v(TRA)}")
    a(f"v_and_b32 {v(T0)}, 3, {v(T0)}")
    a(f"v_add_u32 {v(TRA)}, {v(TRA)}, {v(T0)}")
    a(f"v_lshlrev_b32 {v(TRA)}, 6, {v(TRA)}")
    a(f"v_lshl_add_u32 {v(TRA)}, {v(T1)}, 4, {v(TRA)}")
    a(f"v_add_u32 {v(TRA)}, {STAGE + w * 28672}, {v(TRA)}")
    a(f"s_lshl_b32 {s(S_TMP)}, {s(S_LOC)}, 8")
    a(f"s_add_u32 {s(S_TMP)}, {s(S_TMP)}, {64 * w}")
    a("s_waitcnt lgkmcnt(0)")
    a(f"buffer_load_dwordx4 {v(PK, 4)}, {v(SA)}, {s(S_AUX, 4)}, {s(S_TMP)} offen")
    for i in range(28):
        a(f"s_mov_b32 m0, {STAGE + w * 28672 + i * 1024}")
        a(f"s_add_u32 {s(S_TMP + 1)}, {s(S_TMP)}, {i * 16 * 3584}")
        a(f"buffer_load_dwordx4 {v(DA)}, {s(S_X, 4)}, {s(S_TMP + 1)} offen lds")
    a(f"v_and_b32 {v(SA)}, 15, v0")
    a(f"v_lshlrev_b32 {v(SA)}, 3, {v(SA)}")
    a(f"v_add_u32 {v(SA)}, {STAT}, {v(SA)}")
    a(f"s_mul_i32 {s(sH)}, {s(S_GRP)}, {XT_SEG}")
    a(f"s_add_u32 {s(sH)}, {s(sH)}, {WS['HT'] + qt0 * 14336 + ks0 * 1024}")
    a(f"s_mul_i32 {s(sO)}, {s(S_GRP)}, {H1_SEG}")
    a(f"s_lshl_b32 {s(S_TMP + 1)}, {s(S_LOC)}, 12")
    a(f"s_add_u32 {s(sO)}, {s(sO)}, {s(S_TMP + 1)}")
    a(f"s_add_u32 {s(sO)}, {s(sO)}, {WS['H1T'] + w * 1024}")
    a(f"s_mul_i32 {s(sF)}, {s(S_GRP)}, 224")
    a(f"s_lshl_b32 {s(S_TMP + 1)}, {s(S_LOC)}, 4")
    a(f"s_add_u32 {s(sF)}, {s(sF)}, {s(S_TMP + 1)}")
    a(f"s_add_u32 {s(sF)}, {s(sF)}, {WS['HF'] + 4 * w}")
    a(f"s_mov_b32 {s(sC1)}, {f32(GELU_C1)}")
    a(f"s_mov_b32 {s(sC2)}, {f32(GELU_C2)}")
    a(f"s_mov_b32 {s(S_STEP)}, {s(S_GRP)}")
    a("s_waitcnt vmcnt(0)")
    unpack(a, BIAS, PK, 4)
    for ks in range(14):
        for ab in range(2):
            for q in range(2):
                a(f"ds_read_b64_tr_b16 {acc(8 * ks + 4 * ab + 2 * q, 2)}, {v(TRA)} offset:{ks * 2048 + q * 256 + ab * 8}")
        if ks % 3 == 2:
            a("s_waitcnt lgkmcnt(0)")
    a("s_waitcnt lgkmcnt(0)")

    top = f"F1_SEG{w}"
    a.label(top)
    a.ds = []
    a(f"s_add_u32 {s(S_TMP)}, {s(sH)}, 4096")
    stamp(a, cfg, 0)
    poll(a, [f"buffer_load_dwordx4 {v(PK + 4 * i, 4)}, {v(L16)}, {WS_SRD}, {s(S_TMP if i >= 4 else sH)} offen offset:{(i % 4) * 1024} sc1" for i in range(7)],
         range(PK, PK + 28), T0)
    stamp(a, cfg, 1)
    unpack(a, F, PK, 28)
    a(f"v_pk_add_f32 {v(TM + 1, 2)}, {v(F, 2)}, {v(F + 2, 2)}")
    for i in range(2, 28):
        a(f"v_pk_add_f32 {v(TM + 1, 2)}, {v(TM + 1, 2)}, {v(F + 2 * i, 2)}")
    a(f"v_add_f32 {v(MEAN)}, {v(TM + 1)}, {v(TM + 2)}")
    row_sum4(a, MEAN, TM)
    a(f"v_mul_f32 {v(T0 + 1)}, {f32(-1 / 224)}, {v(MEAN)}")
    a(f"v_mul_f32 {v(MEAN)}, {f32(1 / 224)}, {v(MEAN)}")
    for i in range(28):
        a(f"v_pk_add_f32 {v(XO, 2)}, {v(F + 2 * i, 2)}, {v(T0 + 1, 2)} op_sel_hi:[1,0]")
        if i:
            a(f"v_pk_fma_f32 {v(TM + 1, 2)}, {v(XO, 2)}, {v(XO, 2)}, {v(TM + 1, 2)}")
        else:
            a(f"v_pk_mul_f32 {v(TM + 1, 2)}, {v(XO, 2)}, {v(XO, 2)}")
    a(f"v_add_f32 {v(M2)}, {v(TM + 1)}, {v(TM + 2)}")
    row_sum4(a, M2, TM)
    a(f"v_mov_b32 {v(OTH)}, {v(MEAN)}")
    a(f"v_mov_b32 {v(OTH + 1)}, {v(M2)}")
    a.dsop(f"ds_write_b64 {v(SA)}, {v(OTH, 2)} offset:{128 * w}")
    a.wait_ds_all()
    a("s_barrier")
    a.dsop(f"ds_read_b64 {v(OTH + 2, 2)}, {v(SA)} offset:{128 * (w ^ 1)}")
    a.wait_ds_all()
    a(f"v_sub_f32 {v(TM)}, {v(MEAN)}, {v(OTH + 2)}")
    a(f"v_add_f32 {v(MEAN)}, {v(MEAN)}, {v(OTH + 2)}")
    a(f"v_mul_f32 {v(MEAN)}, 0.5, {v(MEAN)}")
    a(f"v_add_f32 {v(M2)}, {v(M2)}, {v(OTH + 3)}")
    a(f"v_mul_f32 {v(TM)}, {v(TM)}, {v(TM)}")
    a(f"v_fmac_f32 {v(M2)}, {f32(112.0)}, {v(TM)}")
    a(f"v_mul_f32 {v(M2)}, {f32(1 / 448)}, {v(M2)}")
    ln_scalars(a, MEAN, M2)
    for i in range(7):
        for j in range(4):
            ln_apply(a, PK + 4 * i + j, F + 8 * i + 2 * j, F + 8 * i + 2 * j + 1, MEAN, M2)
        a.dsop(f"ds_write_b128 {v(L16)}, {v(PK + 4 * i, 4)} offset:{HN + qt0 * 14336 + (ks0 + i) * 1024}")
    a.wait_ds_all()
    a("s_barrier")
    stamp(a, cfg, 2)

    def read_x(ks):
        for qt in range(2):
            a.dsop(f"ds_read_b128 {v(XO + 8 * (ks % 3) + 4 * qt, 4)}, {v(L16)} offset:{HN + qt * 14336 + ks * 1024}", ("x", ks))
    read_x(0)
    read_x(1)
    for ks in range(14):
        a.wait_ds(("x", ks))
        for n_, (qt, ab) in enumerate((qt, ab) for qt in range(2) for ab in range(2)):
            mfma(a, ACC + 8 * qt + 4 * ab, W(ab, ks), v(XO + 8 * (ks % 3) + 4 * qt, 4), ks == 0)
            if n_ == 0 and ks + 2 < 14:
                read_x(ks + 2)
    stamp(a, cfg, 3)
    a.nop(6)
    for qt in range(2):
        U, E = ACC + 8 * qt, F
        for i in range(0, 8, 2):
            a(f"v_pk_add_f32 {v(U + i, 2)}, {v(U + i, 2)}, {v(BIAS + i, 2)}")
            a(f"v_pk_mul_f32 {v(E + i, 2)}, {v(U + i, 2)}, {v(U + i, 2)}")
        for i in range(8):
            a(f"v_mov_b32 {v(T0)}, {s(sC1)}") if i == 0 and qt == 0 else None
            a(f"v_fma_f32 {v(E + i)}, {v(E + i)}, {s(sC2)}, {v(T0)}")
        for i in range(0, 8, 2):
            a(f"v_pk_mul_f32 {v(E + i, 2)}, {v(E + i, 2)}, {v(U + i, 2)}")
        for i in range(8):
            a(f"v_exp_f32 {v(E + i)}, {v(E + i)}")
        for i in range(8):
            a(f"v_add_f32 {v(E + i)}, 1.0, {v(E + i)}")
        for i in range(8):
            a(f"v_rcp_f32 {v(E + i)}, {v(E + i)}")
        for i in range(0, 8, 2):
            a(f"v_pk_mul_f32 {v(U + i, 2)}, {v(U + i, 2)}, {v(E + i, 2)}")
        for i in range(4):
            a(f"v_cvt_pk_bf16_f32 {v(PK + 4 * qt + i)}, {v(U + 2 * i)}, {v(U + 2 * i + 1)}")
        if qt:
            a(f"s_add_u32 {s(S_TMP)}, {s(sO)}, 57344")
        local_stores(a, [f"buffer_store_dwordx4 {v(PK + 4 * qt, 4)}, {v(L16)}, {WS_SRD}, {s(S_TMP if qt else sO)} offen"])
    a(f"v_mov_b32 {v(T0)}, 1")
    a("s_waitcnt vmcnt(0)")
    local_stores(a, [f"buffer_store_dword {v(T0)}, off, {WS_SRD}, {s(sF)}"])
    stamp(a, cfg, 4)
    flush_stamps(a, cfg, 5, 16 + w, T0)
    for r, step in ((sH, XT_SEG), (sO, H1_SEG), (sF, 224), (S_STEP, 1)):
        a(f"s_add_u32 {s(r)}, {s(r)}, {step * NFFN}")
    a(f"s_cmp_lt_u32 {s(S_STEP)}, {NSEG}")
    a(f"s_cbranch_scc1 {top}")
    a("s_endpgm")


def gen_f2(a, w, cfg):
    L16, DA, TRA, FA, PWA, PRA, HA, OA, T0, T1 = range(1, 11)
    HR, BIAS, XO, ACC = 12, 16, 20, 76
    PART, STAGE = 0, 20480
    sTT, sCG, sH1, sF, sH, sO = range(S_T0, S_T0 + 6)
    W = lambda ct, ks: acc(16 * ks + 4 * ct, 4)

    a.label(f"F2_W{w}")
    srd(a, S_X, 80, 1792 * 896)
    srd(a, S_AUX, 88, 896)
    srd(a, S_OUT, 96, 2048 * 896)
    a(f"s_sub_u32 {s(S_LOC)}, {s(S_LOC)}, 14")
    a(f"s_and_b32 {s(sTT)}, {s(S_LOC)}, 1")
    a(f"s_lshr_b32 {s(sCG)}, {s(S_LOC)}, 1")
    a(f"v_lshlrev_b32 {v(L16)}, 4, v0")
    a(f"v_lshrrev_b32 {v(T0)}, 3, v0")
    a(f"v_mul_u32_u24 {v(DA)}, 896, {v(T0)}")
    a(f"v_and_b32 {v(T1)}, 7, v0")
    a(f"v_lshl_add_u32 {v(DA)}, {v(T1)}, 4, {v(DA)}")
    a(f"v_lshrrev_b32 {v(T1)}, 4, v0")
    a(f"v_bfe_u32 {v(T0)}, v0, 2, 2")
    a(f"v_lshl_add_u32 {v(TRA)}, {v(T1)}, 3, {v(T0)}")
    a(f"v_lshlrev_b32 {v(TRA)}, 7, {v(TRA)}")
    a(f"v_and_b32 {v(T0)}, 3, v0")
    a(f"v_lshl_add_u32 {v(TRA)}, {v(T0)}, 3, {v(TRA)}")
    a(f"v_add_u32 {v(TRA)}, {STAGE + w * 28672}, {v(TRA)}")
    a(f"v_min_u32 {v(FA)}, 13, v0")
    a(f"v_lshlrev_b32 {v(FA)}, 2, {v(FA)}")
    a(f"v_and_b32 {v(T0)}, 15, v0")
    a(f"v_mul_u32_u24 {v(PWA)}, 272, {v(T0)}")
    a(f"v_lshl_add_u32 {v(PWA)}, {v(T1)}, 4, {v(PWA)}")
    a(f"v_add_u32 {v(PWA)}, {PART + w * 4352}, {v(PWA)}")
    a(f"v_add_u32 {v(T1)}, {4 * w}, {v(T1)}")
    a(f"v_mul_u32_u24 {v(PRA)}, 272, {v(T1)}")
    a(f"v_lshl_add_u32 {v(PRA)}, {v(T0)}, 4, {v(PRA)}")
    a(f"v_mul_u32_u24 {v(OA)}, 896, {v(T1)}")
    a(f"v_lshl_add_u32 {v(OA)}, {v(T0)}, 3, {v(OA)}")
    a(f"v_lshlrev_b32 {v(HA)}, 4, {v(T1)}")
    a(f"v_lshrrev_b32 {v(T1)}, 1, {v(T0)}")
    a(f"v_lshl_add_u32 {v(HA)}, {v(T1)}, 8, {v(HA)}")
    a(f"v_and_b32 {v(T1)}, 1, {v(T0)}")
    a(f"v_lshl_add_u32 {v(HA)}, {v(T1)}, 3, {v(HA)}")
    a(f"v_lshlrev_b32 {v(T0)}, 3, {v(T0)}")
    a(f"s_lshl_b32 {s(S_TMP)}, {s(sCG)}, 7")
    a("s_waitcnt lgkmcnt(0)")
    a(f"buffer_load_dwordx2 {v(HR, 2)}, {v(T0)}, {s(S_AUX, 4)}, {s(S_TMP)} offen")
    a(f"s_add_u32 {s(S_TMP)}, {s(S_TMP)}, {448 * w * 896}")
    for half in range(2):
        for i in range(28):
            a(f"s_mov_b32 m0, {STAGE + w * 28672 + i * 1024}")
            a(f"s_add_u32 {s(S_TMP + 1)}, {s(S_TMP)}, {(half * 224 + i * 8) * 896}")
            a(f"buffer_load_dwordx4 {v(DA)}, {s(S_X, 4)}, {s(S_TMP + 1)} offen lds")
        a("s_waitcnt vmcnt(0)")
        for k in range(7):
            for ct in range(4):
                for q in range(2):
                    a(f"ds_read_b64_tr_b16 {acc(16 * (7 * half + k) + 4 * ct + 2 * q, 2)}, {v(TRA)} offset:{k * 4096 + q * 512 + ct * 32}")
            a("s_waitcnt lgkmcnt(0)")
    unpack(a, BIAS, HR, 2)
    a(f"s_mul_i32 {s(sH1)}, {s(S_GRP)}, {H1_SEG}")
    a(f"s_mul_i32 {s(S_TMP)}, {s(sTT)}, 57344")
    a(f"s_add_u32 {s(sH1)}, {s(sH1)}, {s(S_TMP)}")
    a(f"s_add_u32 {s(sH1)}, {s(sH1)}, {WS['H1T'] + w * 14336}")
    a(f"s_mul_i32 {s(sF)}, {s(S_GRP)}, 224")
    a(f"s_add_u32 {s(sF)}, {s(sF)}, {WS['HF'] + w * 56}")
    a(f"s_mul_i32 {s(sO)}, {s(S_GRP)}, {XT_SEG}")
    a(f"s_mul_i32 {s(S_TMP)}, {s(sTT)}, 14336")
    a(f"s_add_u32 {s(sO)}, {s(sO)}, {s(S_TMP)}")
    a(f"s_lshl_b32 {s(S_TMP)}, {s(sCG)}, 11")
    a(f"s_add_u32 {s(sH)}, {s(sO)}, {s(S_TMP)}")
    a(f"s_add_u32 {s(sH)}, {s(sH)}, {WS['HT']}")
    a(f"s_lshl_b32 {s(S_TMP)}, {s(sCG)}, 7")
    a(f"s_add_u32 {s(sO)}, {s(sO)}, {s(S_TMP)}")
    a(f"s_mov_b32 {s(S_STEP)}, {s(S_GRP)}")

    top = f"F2_SEG{w}"
    a.label(top)
    a.ds, a.vm = [], []
    a("s_barrier")
    a(f"v_mov_b32 {v(T0)}, 0")
    stamp(a, cfg, 0)
    wait_flag(a, T0, f"buffer_load_dword {v(T0)}, {v(FA)}, {WS_SRD}, {s(sF)} offen sc1", sleep=1)
    stamp(a, cfg, 1)
    a(f"s_mov_b32 {s(S_TMP)}, {s(sH1)}")
    for ks in range(14):
        if ks and ks % 4 == 0:
            a(f"s_add_u32 {s(S_TMP)}, {s(S_TMP)}, 4096")
        a.vmop(f"buffer_load_dwordx4 {v(XO + 4 * ks, 4)}, {v(L16)}, {WS_SRD}, {s(S_TMP)} offen offset:{(ks % 4) * 1024} sc1", ks)
    a.vmop(f"buffer_load_dwordx2 {v(HR, 2)}, {v(HA)}, {WS_SRD}, {s(sH)} offen sc1", "h")
    for ks in range(14):
        a.wait_vm(ks)
        for ct in range(4):
            mfma(a, ACC + 4 * ct, W(ct, ks), v(XO + 4 * ks, 4), ks == 0)
    a.nop(5)
    for ct in range(4):
        a.dsop(f"ds_write_b128 {v(PWA)}, {v(ACC + 4 * ct, 4)} offset:{64 * ct}")
    a.wait_vm("h")
    unpack(a, XO, HR, 2)
    a.wait_ds_all()
    a("s_barrier")
    for wv in range(4):
        a.dsop(f"ds_read_b128 {v(ACC + 4 * wv, 4)}, {v(PRA)} offset:{PART + wv * 4352}")
    a.wait_ds_all()
    for i in (0, 2):
        a(f"v_pk_add_f32 {v(ACC + i, 2)}, {v(ACC + i, 2)}, {v(ACC + 4 + i, 2)}")
        a(f"v_pk_add_f32 {v(ACC + 8 + i, 2)}, {v(ACC + 8 + i, 2)}, {v(ACC + 12 + i, 2)}")
        a(f"v_pk_add_f32 {v(ACC + i, 2)}, {v(ACC + i, 2)}, {v(ACC + 8 + i, 2)}")
        a(f"v_pk_add_f32 {v(ACC + i, 2)}, {v(ACC + i, 2)}, {v(BIAS + i, 2)}")
        a(f"v_cvt_pk_bf16_f32 {v(ACC + i + 1)}, {v(ACC + i)}, {v(ACC + i + 1)}")
        a(f"v_lshlrev_b32 {v(ACC + i)}, 16, {v(ACC + i + 1)}")
        a(f"v_and_b32 {v(ACC + i + 1)}, 0xffff0000, {v(ACC + i + 1)}")
        a(f"v_pk_add_f32 {v(ACC + i, 2)}, {v(ACC + i, 2)}, {v(XO + i, 2)}")
        a(f"v_cvt_pk_bf16_f32 {v(HR + i // 2)}, {v(ACC + i)}, {v(ACC + i + 1)}")
    a(f"buffer_store_dwordx2 {v(HR, 2)}, {v(OA)}, {s(S_OUT, 4)}, {s(sO)} offen")
    stamp(a, cfg, 2)
    flush_stamps(a, cfg, 3, 20 + w, T0)
    for r, step in ((sH1, H1_SEG), (sF, 224), (sH, XT_SEG), (sO, XT_SEG), (S_STEP, 1)):
        a(f"s_add_u32 {s(r)}, {s(r)}, {step * NFFN}")
    a(f"s_cmp_lt_u32 {s(S_STEP)}, {NSEG}")
    a(f"s_cbranch_scc1 {top}")
    a("s_endpgm")
```

```python
from asmlib import v, acc, s
from layout import *
from roles_rec import S_WS, S_X, S_OUT, S_AUX, S_WAVE, S_T0, S_TMP, WS_SRD

LDS_PRE = 143360
W_BYTES = 448 * 4096 * 2
SCALE = 0.0625 * 1.4426950408889634


def f32(x):
    import struct
    return hex(struct.unpack("<I", struct.pack("<f", x))[0])


def srd(a, base, arg, nbytes):
    a(f"s_load_dwordx2 {s(base, 2)}, s[0:1], {arg}")
    a(f"s_mov_b32 {s(base + 2)}, {nbytes}")
    a(f"s_mov_b32 {s(base + 3)}, 0x00020000")


def row_sum4(a, x, tmp):
    for op in ("v_permlane32_swap_b32", "v_permlane16_swap_b32"):
        a(f"v_mov_b32 {v(tmp)}, {v(x)}")
        a.nop(2)
        a(f"{op} {v(tmp)}, {v(x)}")
        a(f"v_add_f32 {v(x)}, {v(x)}, {v(tmp)}")


def round_bf16(a, x):
    a(f"v_cvt_pk_bf16_f32 {v(x)}, {v(x)}, {v(x)}")
    a(f"v_and_b32 {v(x)}, 0xffff0000, {v(x)}")


def ln_scalars(a, mean, var):
    round_bf16(a, mean)
    round_bf16(a, var)
    a(f"v_add_f32 {v(var)}, {f32(1e-5)}, {v(var)}")
    round_bf16(a, var)
    a(f"v_sqrt_f32 {v(var)}, {v(var)}")
    a.nop(1)
    round_bf16(a, var)
    a(f"v_rcp_f32 {v(var)}, {v(var)}")
    a.nop(1)


def ln_apply(a, dst, lo, hi, mean, inv):
    a(f"v_sub_f32 {v(lo)}, {v(lo)}, {v(mean)}")
    a(f"v_sub_f32 {v(hi)}, {v(hi)}, {v(mean)}")
    a(f"v_cvt_pk_bf16_f32 {v(hi)}, {v(lo)}, {v(hi)}")
    a(f"v_lshlrev_b32 {v(lo)}, 16, {v(hi)}")
    a(f"v_and_b32 {v(hi)}, 0xffff0000, {v(hi)}")
    a(f"v_mul_f32 {v(lo)}, {v(lo)}, {v(inv)}")
    a(f"v_mul_f32 {v(hi)}, {v(hi)}, {v(inv)}")
    a(f"v_cvt_pk_bf16_f32 {v(dst)}, {v(lo)}, {v(hi)}")


def left_operand_addr(a, reg, t0, t1):
    a(f"v_bfe_u32 {v(t0)}, v0, 3, 1")
    a(f"v_lshlrev_b32 {v(reg)}, 4, {v(t0)}")
    a(f"v_bfe_u32 {v(t0)}, v0, 2, 1")
    a(f"v_lshl_add_u32 {v(reg)}, {v(t0)}, 2, {v(reg)}")
    a(f"v_bfe_u32 {v(t0)}, v0, 1, 1")
    a(f"v_lshl_add_u32 {v(reg)}, {v(t0)}, 3, {v(reg)}")
    a(f"v_and_b32 {v(t0)}, 1, v0")
    a(f"v_add_u32 {v(reg)}, {v(reg)}, {v(t0)}")
    a(f"v_lshlrev_b32 {v(reg)}, 13, {v(reg)}")
    a(f"v_lshrrev_b32 {v(t1)}, 4, v0")
    a(f"v_lshl_add_u32 {v(reg)}, {v(t1)}, 4, {v(reg)}")


def gen_pre(a, cfg, descriptor):
    name = "prep_kernel"
    sH, sK, sL, sR, sO, sSC = range(S_T0, S_T0 + 6)
    sLT = S_T0 + 6
    L16, LA, RA, T0, T1 = 1, 2, 3, 4, 5
    a.raw(f".globl {name}\n.p2align 8\n.type {name},@function")
    a.label(name)
    a("s_cmp_ge_u32 s2, 256")
    a("s_cbranch_scc0 PRE_GO")
    a("s_endpgm")
    a.label("PRE_GO")
    srd(a, S_WS, 112, POISON_END)
    srd(a, S_AUX, 8, MEM_SZ)
    a("v_lshrrev_b32 v1, 6, v0")
    a("v_and_b32 v0, 63, v0")
    a(f"v_readfirstlane_b32 {s(S_WAVE)}, v1")
    a(f"v_lshlrev_b32 {v(L16)}, 4, v0")
    a(f"s_and_b32 {s(sH)}, s2, 7")
    a(f"s_lshr_b32 {s(sK)}, s2, 3")
    a(f"s_cmp_lt_u32 {s(sK)}, 14")
    a("s_cbranch_scc0 PRE_NOTA")
    srd(a, S_X, 16, W_BYTES)
    srd(a, S_OUT, 24, W_BYTES)
    a("s_branch PRE_RESET")
    a.label("PRE_NOTA")
    a(f"s_cmp_lt_u32 {s(sK)}, 28")
    a("s_cbranch_scc0 PRE_NOTB")
    srd(a, S_X, 32, W_BYTES)
    srd(a, S_OUT, 40, W_BYTES)
    a("s_branch PRE_RESET")
    a.label("PRE_NOTB")
    srd(a, S_X, 0, 2048 * 896)
    srd(a, S_OUT, 0, 2048 * 896)
    a.label("PRE_RESET")
    a(f"s_lshl_b32 {s(S_TMP)}, s2, 2")
    a(f"s_add_u32 {s(S_TMP)}, {s(S_TMP)}, {s(S_WAVE)}")
    for r in range(4):
        a(f"v_mov_b32 {v(8 + r)}, -1")
        a(f"v_mov_b32 {v(12 + r)}, -1")
    a("s_waitcnt lgkmcnt(0)")
    gch = (WS['MEMG'] - WS['MEML']) // 1024
    a(f"s_sub_u32 {s(S_TMP + 1)}, {s(S_TMP)}, {gch}")
    a(f"s_min_u32 {s(S_TMP + 1)}, {s(S_TMP + 1)}, {s(S_TMP)}")
    a(f"s_cmp_lt_u32 {s(S_TMP + 1)}, 7")
    a("s_cbranch_scc0 PRE_NOMEM")
    a(f"v_and_b32 {v(T0)}, 7, v0")
    a(f"v_mul_u32_u24 {v(T0)}, 896, {v(T0)}")
    a(f"v_lshrrev_b32 {v(T1)}, 3, v0")
    a(f"v_lshl_add_u32 {v(T0)}, {v(T1)}, 4, {v(T0)}")
    a(f"s_lshl_b32 {s(S_TMP + 1)}, {s(S_TMP + 1)}, 7")
    a(f"buffer_load_dwordx4 {v(12, 4)}, {v(T0)}, {s(S_AUX, 4)}, {s(S_TMP + 1)} offen")
    a("s_waitcnt vmcnt(0)")
    for r in range(4):
        a(f"v_min_u32 {v(12 + r)}, -2, {v(12 + r)}")
    a.label("PRE_NOMEM")
    a(f"s_lshl_b32 {s(S_TMP + 1)}, {s(S_TMP)}, 10")
    a(f"s_add_u32 {s(S_TMP + 2)}, {s(S_TMP + 1)}, {POISON_BEGIN}")
    for i in range(-(-(POISON_END - POISON_BEGIN) // (1 << 20))):
        a(f"buffer_store_dwordx4 {v(8 if i else 12, 4)}, {v(L16)}, {WS_SRD}, {s(S_TMP + 2)} offen")
        a(f"s_add_u32 {s(S_TMP + 2)}, {s(S_TMP + 2)}, {1 << 20}")
    a(f"s_sub_u32 {s(S_TMP + 1)}, {s(S_TMP + 1)}, {(1 << 20) - ZERO_END}")
    a("s_cbranch_scc1 PRE_NOZERO")
    for r in range(4):
        a(f"v_mov_b32 {v(16 + r)}, 0")
    a(f"buffer_store_dwordx4 {v(16, 4)}, {v(L16)}, {WS_SRD}, {s(S_TMP + 1)} offen")
    a.label("PRE_NOZERO")
    a(f"s_mov_b32 {s(S_WS + 2)}, {WS_BYTES}")
    a(f"s_cmp_lt_u32 {s(sK)}, 28")
    a("s_cbranch_scc0 PRE_LN")
    a(f"s_cmp_lt_u32 {s(sK)}, 14")
    a(f"s_cselect_b32 {s(S_TMP + 3)}, 0, 14")
    a(f"s_sub_u32 {s(sK)}, {s(sK)}, {s(S_TMP + 3)}")
    a(f"s_lshl_b32 {s(sH)}, {s(sH)}, 1")
    a(f"s_cmp_ge_u32 {s(sK)}, 7")
    a(f"s_cselect_b32 {s(S_TMP)}, 1, 0")
    a(f"s_add_u32 {s(sH)}, {s(sH)}, {s(S_TMP)}")
    a(f"s_mul_i32 {s(S_TMP)}, {s(S_TMP)}, 7")
    a(f"s_sub_u32 {s(sK)}, {s(sK)}, {s(S_TMP)}")
    left_operand_addr(a, LA, T0, T1)
    a(f"s_lshl_b32 {s(sL)}, {s(sK)}, 19")
    a(f"s_lshl_b32 {s(S_TMP)}, {s(sH)}, 9")
    a(f"s_add_u32 {s(sL)}, {s(sL)}, {s(S_TMP)}")
    for t in range(4):
        a(f"s_add_u32 {s(sLT + t)}, {s(sL)}, {(32 * (t >> 1) + 2 * (t & 1)) * 8192}")
    LOP = lambda t, ks: acc(4 * (ks * 4 + t), 4)

    def load_left(ks):
        for t in range(4):
            a.vmop(f"buffer_load_dwordx4 {LOP(t, ks)}, {v(LA)}, {s(S_X, 4)}, {s(sLT + t)} offen offset:{ks * 64}", ("l", ks))

    def finish(accs, out, scale, soff):
        for hi in range(2):
            for ab in range(2):
                c = accs + 4 * (2 * hi + ab)
                if scale:
                    for r in range(4):
                        a(f"v_mul_f32 {v(c + r)}, {s(sSC)}, {v(c + r)}")
                a(f"v_cvt_pk_bf16_f32 {v(out + 4 * hi + 2 * ab)}, {v(c)}, {v(c + 1)}")
                a(f"v_cvt_pk_bf16_f32 {v(out + 4 * hi + 2 * ab + 1)}, {v(c + 2)}, {v(c + 3)}")
            a.vmop(f"buffer_store_dwordx4 {v(out + 4 * hi, 4)}, {v(L16)}, {WS_SRD}, {s(soff)} offen offset:{1024 * hi}")

    a(f"s_cmp_lg_u32 {s(S_TMP + 3)}, 0")
    a("s_cbranch_scc1 PRE_B")

    a.vm = [None] * 7
    ROP = lambda j, ks: acc(128 + 4 * (j * 8 + ks), 4) if j < 4 else v(160 + 4 * ((j - 4) * 8 + ks), 4)
    a(f"v_and_b32 {v(RA)}, 15, v0")
    a(f"v_lshlrev_b32 {v(RA)}, 13, {v(RA)}")
    a(f"v_lshl_add_u32 {v(RA)}, {v(T1)}, 4, {v(RA)}")
    a(f"s_mul_i32 {s(sR)}, {s(S_WAVE)}, {112 * 8192}")
    a(f"s_lshl_b32 {s(S_TMP)}, {s(sH)}, 9")
    a(f"s_add_u32 {s(sR)}, {s(sR)}, {s(S_TMP)}")
    a(f"s_mul_i32 {s(sO)}, {s(sH)}, {AL_HEAD}")
    a(f"s_mul_i32 {s(S_TMP)}, {s(S_WAVE)}, 100352")
    a(f"s_add_u32 {s(sO)}, {s(sO)}, {s(S_TMP)}")
    a(f"s_lshl_b32 {s(S_TMP)}, {s(sK)}, 11")
    a(f"s_add_u32 {s(sO)}, {s(sO)}, {s(S_TMP)}")
    a(f"s_add_u32 {s(sO)}, {s(sO)}, {WS['AL']}")
    a(f"s_mov_b32 {s(sSC)}, {f32(SCALE)}")

    def load_right(j):
        for ks in range(8):
            a.vmop(f"buffer_load_dwordx4 {ROP(j, ks)}, {v(RA)}, {s(S_OUT, 4)}, {s(sR)} offen offset:{ks * 64}", ("r", j, ks))
        a(f"s_add_u32 {s(sR)}, {s(sR)}, {16 * 8192}")
    load_right(0)
    for ks in range(8):
        load_left(ks)
    load_right(1)
    for j in range(7):
        if j + 2 < 7:
            load_right(j + 2)
        A0 = 16 + 16 * (j & 1)
        for ks in range(8):
            a.wait_vm(("r", j, ks))
            a.wait_vm(("l", ks))
            for t in range(4):
                a(f"v_mfma_f32_16x16x32_bf16 {v(A0 + 4 * t, 4)}, {LOP(t, ks)}, {ROP(j, ks)}, " + (v(A0 + 4 * t, 4) if ks else "0"))
            if ks == 0 and j:
                finish(16 + 16 * ((j - 1) & 1), 48 + 8 * (j & 1), True, sO)
                a(f"s_add_u32 {s(sO)}, {s(sO)}, 14336")
    a.nop(8)
    finish(16, 48 + 8, True, sO)
    a("s_endpgm")

    a.label("PRE_B")
    a.vm = [None] * 7
    DA, TRA, ACC, BT, OUT = 8, 15, 16, 128, 144
    a(f"s_mov_b32 {s(S_TMP)}, {-(-(1 << 32) // 14)}")
    for i in range(7):
        a(f"v_add_u32 {v(T0)}, {64 * i}, v0")
        a(f"v_mul_hi_u32 {v(DA + i)}, {v(T0)}, {s(S_TMP)}")
        a(f"v_mul_u32_u24 {v(RA)}, 14, {v(DA + i)}")
        a(f"v_sub_u32 {v(T0)}, {v(T0)}, {v(RA)}")
        a(f"v_mul_u32_u24 {v(DA + i)}, 896, {v(DA + i)}")
        a(f"v_lshl_add_u32 {v(DA + i)}, {v(T0)}, 4, {v(DA + i)}")
    a(f"v_bfe_u32 {v(T0)}, v0, 2, 2")
    a(f"v_lshl_add_u32 {v(T0)}, {v(T1)}, 3, {v(T0)}")
    a(f"v_mul_u32_u24 {v(TRA)}, 224, {v(T0)}")
    a(f"v_and_b32 {v(T0)}, 3, v0")
    a(f"v_lshl_add_u32 {v(TRA)}, {v(T0)}, 3, {v(TRA)}")
    a(f"s_mul_i32 {s(sSC)}, {s(S_WAVE)}, 35840")
    a(f"v_add_u32 {v(TRA)}, {s(sSC)}, {v(TRA)}")
    a(f"s_mul_i32 {s(sR)}, {s(sH)}, 229376")
    a(f"s_mul_i32 {s(S_TMP)}, {s(S_WAVE)}, 224")
    a(f"s_add_u32 {s(sR)}, {s(sR)}, {s(S_TMP)}")

    def stage(ks):
        for i in range(7):
            a(f"s_add_u32 m0, {s(sSC)}, {(ks % 5) * 7168 + i * 1024}")
            a.nop(1)
            a.vmop(f"buffer_load_dwordx4 {v(DA + i)}, {s(S_OUT, 4)}, {s(sR)} offen lds", ("r", ks))
        a(f"s_add_u32 {s(sR)}, {s(sR)}, {32 * 896}")
    for ks in range(5):
        stage(ks)
        load_left(ks)
    a(f"s_lshr_b32 {s(sO)}, {s(sH)}, 2")
    a(f"s_mul_i32 {s(sO)}, {s(sO)}, 114688")
    a(f"s_and_b32 {s(S_TMP)}, {s(sH)}, 3")
    a(f"s_mul_i32 {s(S_TMP)}, {s(S_TMP)}, 28672")
    a(f"s_add_u32 {s(sO)}, {s(sO)}, {s(S_TMP)}")
    a(f"s_lshl_b32 {s(S_TMP)}, {s(sK)}, 11")
    a(f"s_add_u32 {s(sO)}, {s(sO)}, {s(S_TMP)}")
    a(f"s_add_u32 {s(sO)}, {s(sO)}, {WS['BL']}")
    seq = [(ks, j) for ks in range(8) for j in range(7)]

    def read_right(i):
        ks, j = seq[i]
        if j == 0:
            a.wait_vm(("r", ks))
        for q in range(2):
            a.dsop(f"ds_read_b64_tr_b16 {v(BT + 4 * (i % 4) + 2 * q, 2)}, {v(TRA)} offset:{(ks % 5) * 7168 + j * 32 + 896 * q}", ("b", i))
    for i in range(3):
        read_right(i)
    for i, (ks, j) in enumerate(seq):
        if i + 3 < len(seq):
            read_right(i + 3)
        if j == 4 and 1 <= ks <= 3:
            stage(ks + 4)
            load_left(ks + 4)
        a.wait_vm(("l", ks))
        a.wait_ds(("b", i))
        for t in range(4):
            c = v(ACC + 16 * j + 4 * t, 4)
            a(f"v_mfma_f32_16x16x32_bf16 {c}, {LOP(t, ks)}, {v(BT + 4 * (i % 4), 4)}, " + (c if ks else "0"))
    a.nop(4)
    for j in range(7):
        a(f"s_mul_i32 {s(S_TMP)}, {s(S_WAVE)}, 7")
        a(f"s_add_u32 {s(S_TMP)}, {s(S_TMP)}, {j}")
        a(f"s_lshr_b32 {s(S_TMP + 1)}, {s(S_TMP)}, 1")
        a(f"s_mul_i32 {s(S_TMP + 1)}, {s(S_TMP + 1)}, {BL_CU}")
        a(f"s_and_b32 {s(S_TMP)}, {s(S_TMP)}, 1")
        a(f"s_mul_i32 {s(S_TMP)}, {s(S_TMP)}, 14336")
        a(f"s_add_u32 {s(S_TMP)}, {s(S_TMP)}, {s(S_TMP + 1)}")
        a(f"s_add_u32 {s(S_TMP)}, {s(S_TMP)}, {s(sO)}")
        finish(ACC + 16 * j, OUT + 8 * j, False, S_TMP)
    a("s_endpgm")

    a.label("PRE_LN")
    a.vm = []
    PK, F, SUM, VAR, TM = 16, 80, 8, 9, 10
    a(f"s_lshl_b32 {s(sH)}, {s(sH)}, 2")
    a(f"s_add_u32 {s(sH)}, {s(sH)}, {s(sK)}")
    a(f"s_sub_u32 {s(sH)}, {s(sH)}, 28")
    a(f"s_lshl_b32 {s(sH)}, {s(sH)}, 2")
    a(f"s_add_u32 {s(sH)}, {s(sH)}, {s(S_WAVE)}")
    a(f"s_mul_i32 {s(sL)}, {s(sH)}, 14336")
    a(f"v_and_b32 {v(LA)}, 15, v0")
    a(f"v_mul_u32_u24 {v(LA)}, 896, {v(LA)}")
    a(f"v_lshrrev_b32 {v(T1)}, 4, v0")
    a(f"v_lshl_add_u32 {v(LA)}, {v(T1)}, 4, {v(LA)}")
    for ks in range(14):
        a.vmop(f"buffer_load_dwordx4 {v(PK + 4 * ks, 4)}, {v(LA)}, {s(S_X, 4)}, {s(sL)} offen offset:{ks * 64}", ks)
    a(f"v_mov_b32 {v(SUM)}, 0")
    a(f"v_mov_b32 {v(VAR)}, 0")
    for i in range(56):
        a.wait_vm(i // 4)
        a(f"v_lshlrev_b32 {v(F + 2 * i)}, 16, {v(PK + i)}")
        a(f"v_and_b32 {v(F + 2 * i + 1)}, 0xffff0000, {v(PK + i)}")
        a(f"v_add_f32 {v(SUM)}, {v(SUM)}, {v(F + 2 * i)}")
        a(f"v_add_f32 {v(VAR)}, {v(VAR)}, {v(F + 2 * i + 1)}")
    a(f"v_add_f32 {v(SUM)}, {v(SUM)}, {v(VAR)}")
    row_sum4(a, SUM, TM)
    a(f"v_mul_f32 {v(SUM)}, {f32(1 / 448)}, {v(SUM)}")
    a(f"v_mov_b32 {v(VAR)}, 0")
    a(f"v_mov_b32 {v(T0)}, 0")
    for i in range(56):
        a(f"v_sub_f32 {v(TM)}, {v(F + 2 * i)}, {v(SUM)}")
        a(f"v_sub_f32 {v(TM + 1)}, {v(F + 2 * i + 1)}, {v(SUM)}")
        a(f"v_fmac_f32 {v(VAR)}, {v(TM)}, {v(TM)}")
        a(f"v_fmac_f32 {v(T0)}, {v(TM + 1)}, {v(TM + 1)}")
    a(f"v_add_f32 {v(VAR)}, {v(VAR)}, {v(T0)}")
    row_sum4(a, VAR, TM)
    a(f"v_mul_f32 {v(VAR)}, {f32(1 / 448)}, {v(VAR)}")
    ln_scalars(a, SUM, VAR)
    a(f"s_add_u32 {s(sR)}, {s(sL)}, {WS['XT']}")
    a(f"s_add_u32 {s(sO)}, {s(sL)}, {WS['XP']}")
    for ks in range(14):
        p = PK + 4 * ks
        for i in range(4):
            ln_apply(a, p + i, F + 8 * ks + 2 * i, F + 8 * ks + 2 * i + 1, SUM, VAR)
        if ks and ks % 4 == 0:
            a(f"s_add_u32 {s(sR)}, {s(sR)}, 4096")
            a(f"s_add_u32 {s(sO)}, {s(sO)}, 4096")
        a(f"buffer_store_dwordx4 {v(p, 4)}, {v(L16)}, {WS_SRD}, {s(sR)} offen offset:{(ks % 4) * 1024}")
        q = F + 8 * ks
        for i, src in enumerate((0, 2, 1, 3)):
            a(f"v_mov_b32 {v(q + i)}, {v(p + src)}")
        a.nop(1)
        a(f"v_permlane16_swap_b32 {v(q)}, {v(q + 1)}")
        a(f"v_permlane16_swap_b32 {v(q + 2)}, {v(q + 3)}")
        a(f"buffer_store_dwordx4 {v(q, 4)}, {v(L16)}, {WS_SRD}, {s(sO)} offen offset:{(ks % 4) * 1024}")
    a("s_endpgm")
    return descriptor(name, 512, 256)
```

```python
from asmlib import Asm, v, acc, s, interleave
from layout import *

S_WS = 4
S_X = 8
S_OUT = 12
S_AUX = 16
S_WAVE = 20
S_GRP = 21
S_LOC = 22
S_SLOW = 23
S_TO = 24
S_STEP = 25
S_T0 = 26
S_TMP = 40
S_CLK = 48

IOTA = [0, 2, 1, 3]
WS_SRD = s(S_WS, 4)


def wblock(b, vbase, hi=None):
    n = 8 if hi is None else 4
    o = 0 if hi is None else 4 * hi
    return acc(8 * b + o, n) if b < 32 else v(vbase + 8 * (b - 32) + o, n)


def smf(a, d, x, w, idx, upper=False):
    a(f"v_smfmac_f32_16x16x64_bf16 {v(d, 4)}, {v(x, 4)}, {w}, {v(idx)}" + (" abid:1" if upper else ""))


def stream_load(a, dests, vaddr, soff, window=48):
    for i, d in enumerate(dests):
        if i and i % 4 == 0:
            a(f"s_add_u32 {s(soff)}, {s(soff)}, 4096")
        if i >= window and (i - window) % 8 == 0:
            a(f"s_waitcnt vmcnt({window - 8})")
        a(f"buffer_load_dwordx4 {d}, {v(vaddr)}, {WS_SRD}, {s(soff)} offen offset:{(i % 4) * 1024}")


def any_poison(a, regs, tmp):
    regs = list(regs)
    a(f"v_max3_u32 {v(tmp)}, {v(regs[0])}, {v(regs[1])}, {v(regs[2])}")
    rest = regs[3:]
    while len(rest) >= 2:
        a(f"v_max3_u32 {v(tmp)}, {v(tmp)}, {v(rest[0])}, {v(rest[1])}")
        rest = rest[2:]
    if rest:
        a(f"v_max_u32 {v(tmp)}, {v(tmp)}, {v(rest[0])}")
    a(f"v_cmp_eq_u32 vcc, -1, {v(tmp)}")


def poll(a, loads, regs, tmp):
    top, done = a.newlabel("poll"), a.newlabel("got")
    a.label(top)
    for l in loads:
        a(l)
    a("s_waitcnt vmcnt(0)")
    any_poison(a, regs, tmp)
    a(f"s_cbranch_vccz {done}")
    a(f"s_sub_u32 {s(S_TO)}, {s(S_TO)}, 1")
    a(f"s_cbranch_scc0 {top}")
    a("s_endpgm")
    a.label(done)


def poll_deep(a, loads, regs, tmp, under=(), depth=2):
    spin, done = a.newlabel("spin"), a.newlabel("got")
    for _ in range(depth - 1):
        for l in loads:
            a(l)
    a.label(spin)
    for l in loads:
        a(l)
    a(f"s_waitcnt vmcnt({len(loads) * (depth - 1)})")
    any_poison(a, regs, tmp)
    for f in under:
        f()
    a(f"s_cbranch_vccz {done}")
    a(f"s_sub_u32 {s(S_TO)}, {s(S_TO)}, 1")
    a(f"s_cbranch_scc0 {spin}")
    a("s_endpgm")
    a.label(done)


def wait_flag(a, reg, load, sleep=2):
    top, done = a.newlabel("flag"), a.newlabel("set")
    a.label(top)
    a(f"v_cmp_eq_u32 vcc, 0, {v(reg)}")
    a(f"s_cbranch_vccz {done}")
    a(f"s_sleep {sleep}")
    a(load)
    a("s_waitcnt vmcnt(0)")
    a(f"s_sub_u32 {s(S_TO)}, {s(S_TO)}, 1")
    a(f"s_cbranch_scc0 {top}")
    a("s_endpgm")
    a.label(done)


def local_stores(a, stores, scc_set=False):
    slow, done = a.newlabel("wt"), a.newlabel("st")
    if not scc_set:
        a(f"s_cmp_lg_u32 {s(S_SLOW)}, 0")
    a(f"s_cbranch_scc1 {slow}")
    for st in stores:
        a(st)
    a(f"s_branch {done}")
    a.label(slow)
    for st in stores:
        a(st + " sc1")
    a.label(done)


def index_reg(a, reg, tmp):
    a(f"v_and_b32 {v(tmp)}, 8, v0")
    a(f"v_cmp_eq_u32 vcc, 0, {v(tmp)}")
    a(f"v_mov_b32 {v(tmp)}, 0x88884444")
    a(f"v_mov_b32 {v(reg)}, 0xddddeeee")
    a(f"v_cndmask_b32 {v(reg)}, {v(reg)}, {v(tmp)}, vcc")


def iota_reg(a, reg, tmp):
    a(f"v_bfe_u32 {v(reg)}, v0, 5, 1")
    a(f"v_bfe_u32 {v(tmp)}, v0, 4, 1")
    a(f"v_lshl_add_u32 {v(reg)}, {v(tmp)}, 1, {v(reg)}")


def stamp(a, cfg, k):
    if cfg.get("stamps", 0) >> k & 1:
        a(f"{'s_memrealtime' if cfg.get('rt') else 's_memtime'} {s(S_CLK + 2 * k, 2)}")


def flush_stamps(a, cfg, n, slot, tmp):
    if not cfg.get("stamps"):
        return
    a("s_waitcnt lgkmcnt(0)")
    a.ds = []
    a(f"s_lshl_b32 {s(S_TMP)}, {s(S_STEP)}, 6")
    a(f"s_add_u32 {s(S_TMP)}, {s(S_TMP)}, {WS['DBG'] + slot * 4096}")
    skip = a.newlabel("nostamp")
    a(f"s_cmp_lg_u32 {s(S_LOC)}, {cfg.get('stamp_loc', 0)}")
    a(f"s_cbranch_scc1 {skip}")
    for k in range(n):
        a(f"v_mov_b32 {v(tmp)}, {s(S_CLK + 2 * k)}")
        a(f"buffer_store_dword {v(tmp)}, off, {WS_SRD}, {s(S_TMP)} offset:{4 * k}")
    a(f"v_mov_b32 {v(tmp)}, {s(S_TO)}")
    a(f"buffer_store_dword {v(tmp)}, off, {WS_SRD}, {s(S_TMP)} offset:60")
    a(f"s_add_u32 {s(S_TMP + 1)}, {s(S_STEP)}, -1")
    a(f"s_cmp_lt_u32 {s(S_TMP + 1)}, {cfg.get('last_step', 61)}")
    a(f"s_cbranch_scc1 {skip}")
    a(f"s_memrealtime {s(S_CLK + 28, 2)}")
    a("s_waitcnt lgkmcnt(0)")
    a(f"v_mov_b32 {v(tmp)}, {s(S_CLK + 28)}")
    a(f"buffer_store_dword {v(tmp)}, off, {WS_SRD}, {s(S_TMP)} offset:56")
    a(f"v_mov_b32 {v(tmp)}, {s(S_CLK + 30)}")
    a(f"buffer_store_dword {v(tmp)}, off, {WS_SRD}, {s(S_TMP)} offset:52")
    a.label(skip)


def keep_stamps(a, cfg, n, base):
    if cfg.get("stamps"):
        a(f"s_mov_b32 m0, {s(S_STEP)}")
        for k in range(n):
            a(f"v_writelane_b32 {v(base + k)}, {s(S_CLK + 2 * k)}, m0")


def dump_stamps(a, cfg, n, base, slot, lane16):
    if not cfg.get("stamps"):
        return
    skip = a.newlabel("nodump")
    a(f"s_cmp_lg_u32 {s(S_LOC)}, {cfg.get('stamp_loc', 0)}")
    a(f"s_cbranch_scc1 {skip}")
    a(f"v_lshlrev_b32 {v(lane16)}, 2, {v(lane16)}")
    a(f"s_mov_b32 {s(S_TMP)}, {WS['DBG'] + slot * 4096}")
    for k in range(n):
        a(f"buffer_store_dword {v(base + k)}, {v(lane16)}, {WS_SRD}, {s(S_TMP)} offen offset:{4 * k}")
    a.label(skip)


def gen_s1(a, w, cfg):
    L16, XKA, MKA, TWA, TRA, SWA, SRA, SRM, PTA, PMA, IDX, T0, T1 = range(1, 14)
    TACC, MA, MK, XK, WV = 16, 44, 72, 88, 120
    MEMIMG, TBUF, SBUF = 0, 8192 + 2048 * w, 16384
    sMEM, sP, sPM, sX0, sX1, sY, sR, sRDY = range(S_T0, S_T0 + 8)
    p0 = cfg.get('ypieces', 3)
    blk = lambda j, k: wblock(j * 7 + k, WV)
    own = [2 * w, 2 * w + 1] if w < 3 else [5, 6]
    share = own if w < 3 else [6]
    others = [k for k in range(7) if k not in own]
    T = lambda j, r=0: TACC + 4 * j + r
    TOP0, TOP1 = T(0), T(1)
    T1D = T(6)
    SC = [MA + 4 * own[0], MA + 4 * own[1], 12]

    a.label(f"S1_W{w}")
    a(f"v_lshlrev_b32 {v(L16)}, 4, v0")
    a(f"s_mul_i32 {s(S_TMP)}, {s(S_LOC)}, {AL_HEAD}")
    a(f"s_add_u32 {s(S_TMP)}, {s(S_TMP)}, {WS['AL'] + w * 100352}")
    stream_load(a, [wblock(b, WV, hi) for b in range(49) for hi in range(2)], L16, S_TMP)
    a(f"v_and_b32 {v(T0)}, 15, v0")
    a(f"v_lshrrev_b32 {v(T1)}, 4, v0")
    a(f"v_add_u32 {v(MKA)}, {14 * w}, {v(T1)}")
    a(f"v_lshrrev_b32 {v(XKA)}, 2, {v(MKA)}")
    a(f"v_lshlrev_b32 {v(XKA)}, 10, {v(XKA)}")
    a(f"v_and_b32 {v(SWA)}, 3, {v(MKA)}")
    a(f"v_lshl_add_u32 {v(SWA)}, {v(SWA)}, 4, {v(T0)}")
    a(f"v_lshl_add_u32 {v(XKA)}, {v(SWA)}, 4, {v(XKA)}")
    a(f"v_and_b32 {v(SWA)}, 7, v0")
    a(f"v_lshlrev_b32 {v(SWA)}, 4, {v(SWA)}")
    a(f"v_lshl_add_u32 {v(MKA)}, {v(MKA)}, 7, {v(SWA)}")
    iota_reg(a, PTA, PMA)
    a(f"v_lshlrev_b32 {v(TWA)}, 2, {v(PTA)}")
    a(f"v_lshl_add_u32 {v(TWA)}, {v(T0)}, 4, {v(TWA)}")
    a(f"v_add_u32 {v(TWA)}, {TBUF}, {v(TWA)}")
    a(f"v_mul_u32_u24 {v(SWA)}, 1536, {v(PTA)}")
    a(f"v_lshl_add_u32 {v(SWA)}, {v(T0)}, 4, {v(SWA)}")
    a(f"v_add_u32 {v(SWA)}, {SBUF + (w >> 1) * 256 + (w & 1) * 8}, {v(SWA)}")
    a(f"v_bfe_u32 {v(TRA)}, v0, 2, 2")
    a(f"v_lshl_add_u32 {v(TRA)}, {v(T1)}, 3, {v(TRA)}")
    a(f"v_lshlrev_b32 {v(TRA)}, 5, {v(TRA)}")
    a(f"v_and_b32 {v(PMA)}, 3, v0")
    a(f"v_lshl_add_u32 {v(TRA)}, {v(PMA)}, 3, {v(TRA)}")
    a(f"v_add_u32 {v(TRA)}, {TBUF}, {v(TRA)}")
    a(f"v_lshrrev_b32 {v(T1)}, 5, v0")
    a(f"v_bfe_u32 {v(SRA)}, v0, 4, 1")
    a(f"v_lshlrev_b32 {v(SRA)}, 9, {v(SRA)}")
    a(f"v_lshl_add_u32 {v(SRA)}, {v(T1)}, 8, {v(SRA)}")
    a(f"v_lshl_add_u32 {v(SRA)}, {v(T0)}, 4, {v(SRA)}")
    a(f"v_add_u32 {v(SRA)}, {SBUF + w * 1536}, {v(SRA)}")
    a(f"v_and_b32 {v(SRM)}, 7, v0")
    a(f"v_lshlrev_b32 {v(SRM)}, 4, {v(SRM)}")
    a(f"v_lshl_add_u32 {v(SRM)}, {v(T1)}, 8, {v(SRM)}")
    a(f"v_add_u32 {v(SRM)}, {SBUF + w * 1536 + 1024}, {v(SRM)}")
    a(f"v_add_u32 {v(T1)}, {2 * w}, {v(T1)}")
    a(f"v_bfe_u32 {v(PTA)}, v0, 3, 2")
    a(f"v_lshlrev_b32 {v(PTA)}, 7, {v(PTA)}")
    a(f"v_lshl_add_u32 {v(PTA)}, {v(T1)}, 4, {v(PTA)}")
    a(f"v_and_b32 {v(T0)}, 7, v0")
    a(f"v_lshl_add_u32 {v(PTA)}, {v(T0)}, 1, {v(PTA)}")
    a(f"v_bfe_u32 {v(PMA)}, v0, 1, 1")
    a(f"v_lshlrev_b32 {v(PMA)}, 7, {v(PMA)}")
    a(f"v_lshl_add_u32 {v(PMA)}, {v(T1)}, 4, {v(PMA)}")
    a(f"v_bfe_u32 {v(T0)}, v0, 2, 1")
    a(f"v_lshl_add_u32 {v(PMA)}, {v(T0)}, 3, {v(PMA)}")
    a(f"v_and_b32 {v(T0)}, 1, v0")
    a(f"v_lshlrev_b32 {v(T0)}, 30, {v(T0)}")
    a(f"v_or_b32 {v(PTA)}, {v(PTA)}, {v(T0)}")
    a(f"v_or_b32 {v(PMA)}, {v(PMA)}, {v(T0)}")
    index_reg(a, IDX, T0)
    a(f"v_mov_b32 {v(T0)}, 0")
    a(f"v_lshlrev_b32 {v(T1)}, 2, v0")
    a(f"ds_write_b32 {v(T1)}, {v(T0)} offset:{TBUF + 7 * 256}")
    a(f"ds_write_b32 {v(T1)}, {v(T0)} offset:{MEMIMG + 7168}")
    a(f"s_mul_i32 {s(sMEM)}, {s(S_SLOW)}, {WS['MEMG'] - WS['MEML']}")
    a(f"s_add_u32 {s(sMEM)}, {s(sMEM)}, {WS['MEML'] + own[0] * 1024}")
    a(f"s_lshl_b32 {s(sP)}, {s(S_LOC)}, 9")
    a(f"s_add_u32 {s(sP)}, {s(sP)}, {WS['PB']}")
    a(f"s_lshr_b32 {s(sPM)}, {s(S_LOC)}, 1")
    a(f"s_lshl_b32 {s(sPM)}, {s(sPM)}, 8")
    a(f"s_and_b32 {s(S_TMP)}, {s(S_LOC)}, 1")
    a(f"s_lshl_b32 {s(S_TMP)}, {s(S_TMP)}, 2")
    a(f"s_add_u32 {s(sPM)}, {s(sPM)}, {s(S_TMP)}")
    a(f"s_add_u32 {s(sPM)}, {s(sPM)}, {WS['PB'] + 8192}")
    a(f"s_mov_b32 {s(S_X)}, {s(S_WS)}")
    a(f"s_or_b32 {s(S_X + 1)}, {s(S_WS + 1)}, 0x80000")
    a(f"s_mov_b32 {s(S_X + 2)}, {(8 - p0) * 128}")
    a(f"s_mov_b32 {s(S_X + 3)}, 0x00020000")
    a(f"s_lshl_b32 {s(sY)}, {s(S_LOC)}, 15")
    a(f"s_add_u32 {s(sY)}, {s(sY)}, {WS['YL'] + Y_SEG + w * 8192 + p0 * 1024}")
    a(f"s_mov_b32 {s(sR)}, {WS['YR'] + 128}")
    a(f"s_mov_b32 {s(S_TMP + 7)}, 0x3e800000")
    a(f"s_mov_b32 {s(sX0)}, {WS['XT']}")
    a(f"s_mov_b32 {s(sX1)}, {WS['XT'] + 14336}")
    a(f"s_mov_b32 {s(S_STEP)}, 0")
    a("s_waitcnt vmcnt(0) lgkmcnt(0)")

    T0 = JUNK = 0
    top = f"S1_STEP{w}"
    a.label(top)
    a(f"buffer_load_dword {v(MK)}, off, {WS_SRD}, {s(sR)} sc1")
    for kt in range(2):
        for q in range(4):
            a(f"buffer_load_dwordx4 {v(XK + 16 * kt + 4 * q, 4)}, {v(XKA)}, {WS_SRD}, {s(sX1 if kt else sX0)} offen offset:{q * 1024}")
    for r in range(32):
        a(f"v_mov_b32 {v(12 + r)}, 0")
    stamp(a, cfg, 0)
    pa = [(j, k) for k in own for j in range(7)]
    poll_deep(a, [f"buffer_load_dwordx4 {v(MA + 4 * own[i], 4)}, {v(L16)}, {WS_SRD}, {s(sMEM)} offen offset:{1024 * i} sc1" for i in range(2)],
              range(MA + 4 * own[0], MA + 4 * own[0] + 8), T0,
              [lambda k=k: a.dsop(f"ds_write_b128 {v(L16)}, {v(MA + 4 * k, 4)} offset:{MEMIMG + 1024 * k}") for k in share],
              cfg.get("depth1", 2))
    stamp(a, cfg, 1)
    nh = cfg.get("nhead", 3)
    for n_, (j, k) in enumerate(pa[:nh]):
        smf(a, T(j), MA + 4 * k, blk(j, k), IDX)
        if n_ == 0:
            a(f"v_readfirstlane_b32 {s(sRDY)}, {v(MK)}")
    a.wait_ds_all()
    stamp(a, cfg, 5)
    a("s_barrier")
    stamp(a, cfg, 6)
    for n_, (j, k) in enumerate(pa[nh:]):
        if n_ < len(others):
            a.dsop(f"ds_read_b128 {v(MA + 4 * others[n_], 4)}, {v(L16)} offset:{MEMIMG + 1024 * others[n_]}", ("ma", others[n_]))
        smf(a, T(j), MA + 4 * k, blk(j, k), IDX)
        if n_ == 9:
            a("s_waitcnt vmcnt(0)")
        if n_ == 9 and cfg.get("assist", 1):
            skip = a.newlabel("noy")
            a(f"s_cmp_lt_u32 {s(S_LOC)}, 14")
            a(f"s_cselect_b32 {s(sRDY)}, {s(sRDY)}, 0")
            a(f"s_cmp_eq_u32 {s(sRDY)}, 0")
            a(f"s_cbranch_scc1 {skip}")
            a(f"buffer_load_dword {v(JUNK)}, {v(L16)}, {s(S_X, 4)}, {s(sY)} idxen sc1")
            a.label(skip)
        if 5 <= n_ < 9:
            a.dsop(f"ds_read_b128 {v(MK + 4 * (n_ - 5), 4)}, {v(MKA)} offset:{MEMIMG + 512 * (n_ - 5)}", "mk")

    def post(j):
        return [lambda: a(f"v_permlane32_swap_b32 {v(T(j, 0))}, {v(T(j, 2))}"),
                lambda: a(f"v_permlane32_swap_b32 {v(T(j, 1))}, {v(T(j, 3))}"),
                lambda: (a(f"v_add_f32 {v(T(j, 0))}, {v(T(j, 0))}, {v(T(j, 2))}"),
                         a(f"v_add_f32 {v(T(j, 1))}, {v(T(j, 1))}, {v(T(j, 3))}")),
                lambda: a(f"v_cvt_pk_bf16_f32 {v(T(j, 0))}, {v(T(j, 0))}, {v(T(j, 1))}"),
                lambda: a.dsop(f"ds_write_b32 {v(TWA)}, {v(T(j, 0))} offset:{256 * j}")]

    main, fill = [], {}
    for j in range(7):
        for k in others:
            def mm(j=j, k=k):
                if j == 0:
                    a.wait_ds(("ma", k))
                smf(a, T(j), MA + 4 * k, blk(j, k), IDX)
            main.append(mm)
    for j in range(6):
        for i, f in enumerate(post(j)):
            fill.setdefault(5 * (j + 1) + 2 + i, []).append(f)
    for q, gap in enumerate((0, 1, 2, 3, 4, 5, 6, 6)):
        fill.setdefault(gap, []).append(lambda q=q: a(f"v_mov_b32 {v(SC[0] + q)}, 0"))
    for q in range(2):
        fill.setdefault(26 + 5 * q, []).append(lambda q=q: a.dsop(f"ds_read_b64_tr_b16 {v(TOP0 + 2 * q, 2)}, {v(TRA)} offset:{128 * q}", "t0"))
    stamp(a, cfg, 7)
    fill.setdefault(4, []).append(lambda: stamp(a, cfg, 8))
    fill.setdefault(24, []).append(lambda: stamp(a, cfg, 9))
    fill.setdefault(34, []).append(lambda: stamp(a, cfg, 10))
    tail = [f for i in sorted(fill) if i >= 35 for f in fill[i]]
    interleave(a, main, {i: f for i, f in fill.items() if i < 35})
    a.wait_ds("t0")
    keys = [XK, XK + 16, MK]
    for t in range(3):
        smf(a, SC[t], TOP0, v(keys[t], 8), IDX, True)
        if t < len(tail):
            tail[t]()
    for f in post(6):
        f()
    for q in range(2):
        a.dsop(f"ds_read_b64_tr_b16 {v(TOP1 + 2 * q, 2)}, {v(TRA)} offset:{1024 + 128 * q}", "t1")
    stamp(a, cfg, 2)
    a.wait_ds("t1")
    for t in range(3):
        smf(a, SC[t], TOP1, v(keys[t] + 8, 8), IDX, True)
    a.nop(2)
    for t in range(3):
        a(f"v_permlane32_swap_b32 {v(SC[t])}, {v(SC[t] + 2)}")
        a(f"v_permlane32_swap_b32 {v(SC[t] + 1)}, {v(SC[t] + 3)}")
        a(f"v_add_f32 {v(SC[t])}, {v(SC[t])}, {v(SC[t] + 2)}")
        a(f"v_add_f32 {v(SC[t] + 1)}, {v(SC[t] + 1)}, {v(SC[t] + 3)}")
        a.dsop(f"ds_write_b64 {v(SWA)}, {v(SC[t], 2)} offset:{512 * t}")
    a.wait_ds_all()
    a("s_barrier")
    stamp(a, cfg, 3)
    R, Q = T(3), T(4)
    a.dsop(f"ds_read_b128 {v(R, 4)}, {v(SRA)}", "r")
    a.dsop(f"ds_read_b128 {v(Q, 4)}, {v(SRM)}", "q")
    a.wait_ds("r")
    a(f"v_pk_add_f32 {v(R, 2)}, {v(R, 2)}, {v(R + 2, 2)}")
    a.wait_ds("q")
    a(f"v_pk_add_f32 {v(Q, 2)}, {v(Q, 2)}, {v(Q + 2, 2)}")
    a.nop(1)
    a(f"v_permlane32_swap_b32 {v(R)}, {v(R + 1)}")
    a(f"v_permlane32_swap_b32 {v(Q)}, {v(Q + 1)}")
    A_, B_, M, M2 = R, Q, R + 2, R + 3
    a(f"v_add_f32 {v(A_)}, {v(R)}, {v(R + 1)}")
    a(f"v_add_f32 {v(B_)}, {v(Q)}, {v(Q + 1)}")

    def reduce32(op, under=()):
        under = list(under)
        for ctl in ("quad_perm:[1,0,3,2]", "quad_perm:[2,3,0,1]", "row_half_mirror", "row_mirror"):
            if under:
                a(under.pop(0))
                a.nop(1)
            else:
                a.nop(2)
            a(f"{op}_dpp {v(M)}, {v(M)}, {v(M)} {ctl} row_mask:0xf bank_mask:0xf")
        a(f"v_mov_b32 {v(M2)}, {v(M)}")
        a.nop(2)
        a(f"v_permlane16_swap_b32 {v(M2)}, {v(M)}")
        a(f"{op} {v(M)}, {v(M)}, {v(M2)}")

    a(f"v_max_f32 {v(M)}, {v(A_)}, {v(B_)}")
    reduce32("v_max_f32")
    a(f"v_sub_f32 {v(A_)}, {v(A_)}, {v(M)}")
    a(f"v_sub_f32 {v(B_)}, {v(B_)}, {v(M)}")
    a(f"v_exp_f32 {v(A_)}, {v(A_)}")
    a(f"v_exp_f32 {v(B_)}, {v(B_)}")
    a.nop(1)
    a(f"v_fma_f32 {v(M)}, {v(B_)}, {s(S_TMP + 7)}, {v(A_)}")
    reduce32("v_add_f32", [f"v_mov_b32_dpp {v(R + 1)}, {v(A_)} quad_perm:[1,0,3,2] row_mask:0xf bank_mask:0xf",
                           f"v_mov_b32_dpp {v(Q + 1)}, {v(B_)} quad_perm:[1,0,3,2] row_mask:0xf bank_mask:0xf"])
    a(f"v_rcp_f32 {v(M)}, {v(M)}")
    a(f"s_cmp_lg_u32 {s(S_SLOW)}, 0")
    a(f"v_pk_mul_f32 {v(R, 2)}, {v(R, 2)}, {v(M, 2)} op_sel_hi:[1,0] clamp")
    a(f"v_pk_mul_f32 {v(Q, 2)}, {v(Q, 2)}, {v(M, 2)} op_sel_hi:[1,0] clamp")
    a(f"v_cvt_pk_bf16_f32 {v(A_)}, {v(R)}, {v(R + 1)}")
    a(f"v_cvt_pk_bf16_f32 {v(B_)}, {v(Q)}, {v(Q + 1)}")
    local_stores(a, [f"buffer_store_dword {v(A_)}, {v(PTA)}, {WS_SRD}, {s(sP)} offen",
                     f"buffer_store_dword {v(B_)}, {v(PMA)}, {WS_SRD}, {s(sPM)} offen"], scc_set=True)
    stamp(a, cfg, 4)
    a(f"s_add_u32 {s(sR)}, {s(sR)}, 128")
    a(f"s_add_u32 {s(sY)}, {s(sY)}, {Y_SEG}")
    flush_stamps(a, cfg, 11, w, T1D)
    a(f"s_add_u32 {s(sMEM)}, {s(sMEM)}, {MEM_SZ}")
    a(f"s_add_u32 {s(sP)}, {s(sP)}, {PB_SZ}")
    a(f"s_add_u32 {s(sPM)}, {s(sPM)}, {PB_SZ}")
    a(f"s_add_u32 {s(sX0)}, {s(sX0)}, {XT_SEG}")
    a(f"s_add_u32 {s(sX1)}, {s(sX1)}, {XT_SEG}")
    a(f"s_add_u32 {s(S_STEP)}, {s(S_STEP)}, 1")
    a(f"s_cmp_lt_u32 {s(S_STEP)}, {NSEG - 1}")
    a(f"s_cbranch_scc1 {top}")
    a("s_endpgm")


class BRes:
    WL = 49152
    WV = 176

    def __init__(self, a, w, L16, IDX, MA, WT, ACC, ZW):
        self.a, self.w, self.L16, self.IDX, self.MA, self.WT, self.ACC, self.ZW = a, w, L16, IDX, MA, WT, ACC, ZW

    def blk(self, t, k, hi=None):
        return wblock(t * 7 + k, self.WV, hi)

    def lds_off(self, t, k, hi):
        return (t - 6) * 14336 + k * 2048 + hi * 1024

    def load(self, sloc, lbase):
        a, w = self.a, self.w
        a(f"s_mul_i32 {s(S_TMP)}, {s(sloc)}, {BL_CU}")
        a(f"s_add_u32 {s(S_TMP)}, {s(S_TMP)}, {WS['BL'] + w * 114688}")
        a(f"s_add_u32 {s(S_TMP + 1)}, {s(S_TMP)}, {6 * 14336}")
        for i in range(28):
            a(f"s_mov_b32 m0, {self.WL + w * 28672 + i * 1024}")
            a(f"s_add_u32 {s(S_TMP + 2)}, {s(S_TMP + 1)}, {i * 1024}")
            a(f"buffer_load_dwordx4 {v(self.L16)}, {WS_SRD}, {s(S_TMP + 2)} offen lds")
        stream_load(a, [wblock(b, self.WV, hi) for b in range(42) for hi in range(2)], self.L16, S_TMP, window=24)
        a(f"v_add_u32 {v(lbase)}, {self.WL + w * 28672}, {v(self.L16)}")
        self.lbase = lbase

    def read_block(self, i, order, half=None):
        t, k = 6 + i // 7, order[i % 7]
        for hi in (range(2) if half is None else [half]):
            self.a.dsop(f"ds_read_b128 {v(self.WT + 8 * (i % 3) + 4 * hi, 4)}, {v(self.lbase)} offset:{self.lds_off(t, k, hi)}", ("wt", i))

    def zero_acc(self):
        for r in range(32):
            self.a(f"v_mov_b32 {v(self.ACC + r)}, 0")

    def cvt(self, t, slot):
        d = self.ZW + 8 * (t & 1) + 2 * (t >> 1)
        c = self.ACC + 4 * slot
        return [lambda: self.a(f"v_cvt_pk_bf16_f32 {v(d)}, {v(c)}, {v(c + 1)}"),
                lambda: self.a(f"v_cvt_pk_bf16_f32 {v(d + 1)}, {v(c + 2)}, {v(c + 3)}")]

    def mem_values(self, order, extra):
        a = self.a
        groups = ([0, 1, 2, 6], [3, 4, 5, 7])
        main, fill = [], {k: list(x) for k, x in extra.items()}
        for gi, tiles in enumerate(groups):
            for ki, k in enumerate(order):
                for ti, t in enumerate(tiles):
                    def mm(gi=gi, ki=ki, k=k, ti=ti, t=t):
                        if ti == 0 and gi == 0:
                            a.wait_ds(("ma", k))
                        if t >= 6:
                            a.wait_ds(("wt", gi * 7 + ki))
                            wr = v(self.WT + 8 * ((gi * 7 + ki) % 3), 8)
                        else:
                            wr = self.blk(t, k)
                        smf(a, self.ACC + 4 * (gi * 4 + ti), self.MA + 4 * k, wr, self.IDX)
                    main.append(mm)
                i = gi * 7 + ki
                if i + 3 < 14:
                    for hi in range(2):
                        fill.setdefault(len(main) + hi, []).append(lambda i=i, hi=hi: self.read_block(i + 3, order, hi))
        cv = [f for ti, t in enumerate(groups[0]) for f in self.cvt(t, ti)]
        for f, gap in zip(cv, (30, 31, 34, 35, 38, 39, 42, 43)):
            fill.setdefault(gap, []).append(f)
        interleave(a, main, fill)
        a.nop(3)
        for ti, t in enumerate(groups[1]):
            for f in self.cvt(t, 4 + ti):
                f()


def gen_s2(a, w, cfg):
    if cfg.get("quiet2"):
        cfg = {k: x for k, x in cfg.items() if k != "stamps"}
    L16, LB, PMA, PWA, PRA, MOA, IDX, FLG, T0, T1 = range(1, 11)
    MA, YB, ZW, PA, WT, ACC, O = 16, 44, 76, 92, 104, 128, 160
    MEMIMG, PART = 0, 8192
    sMEM, sP, sPM, sY, sY1, sF, sO = range(S_T0, S_T0 + 7)
    own = [2 * w, 2 * w + 1] if w < 3 else [6]
    order = own + [k for k in range(7) if k not in own]
    B = BRes(a, w, L16, IDX, MA, WT, ACC, ZW)
    ct_out = w & 1

    a.label(f"S2_W{w}")
    a(f"s_sub_u32 {s(S_LOC)}, {s(S_LOC)}, 16")
    a(f"v_lshlrev_b32 {v(L16)}, 4, v0")
    B.load(S_LOC, LB)
    a(f"v_and_b32 {v(T0)}, 15, v0")
    a(f"v_lshrrev_b32 {v(T1)}, 5, v0")
    a(f"v_lshlrev_b32 {v(PMA)}, 4, {v(T0)}")
    a(f"v_lshl_add_u32 {v(PMA)}, {v(T1)}, 8, {v(PMA)}")
    iota_reg(a, PWA, T1)
    a(f"v_lshlrev_b32 {v(PWA)}, 7, {v(PWA)}")
    a(f"v_lshl_add_u32 {v(PWA)}, {v(T0)}, 2, {v(PWA)}")
    a(f"v_add_u32 {v(PWA)}, {PART + w * 1024}, {v(PWA)}")
    a(f"v_lshlrev_b32 {v(PRA)}, 3, v0")
    a(f"v_add_u32 {v(PRA)}, {PART + ct_out * 512}, {v(PRA)}")
    a(f"v_lshrrev_b32 {v(T0)}, 3, v0")
    a(f"v_lshlrev_b32 {v(MOA)}, 4, {v(T0)}")
    a(f"v_bfe_u32 {v(T0)}, v0, 2, 1")
    a(f"v_lshl_add_u32 {v(MOA)}, {v(T0)}, 7, {v(MOA)}")
    a(f"v_and_b32 {v(T0)}, 3, v0")
    a(f"v_lshl_add_u32 {v(MOA)}, {v(T0)}, 2, {v(MOA)}")
    index_reg(a, IDX, T0)
    a(f"s_mul_i32 {s(sMEM)}, {s(S_SLOW)}, {WS['MEMG'] - WS['MEML']}")
    a(f"s_add_u32 {s(sMEM)}, {s(sMEM)}, {WS['MEML'] + own[0] * 1024}")
    a(f"s_mov_b32 {s(sP)}, {WS['PB'] + w * 2048}")
    a(f"s_mov_b32 {s(sPM)}, {WS['PB'] + 8192 + w * 512}")
    a(f"s_lshl_b32 {s(sY)}, {s(S_LOC)}, 15")
    a(f"s_add_u32 {s(sY)}, {s(sY)}, {WS['YL'] + w * 8192}")
    a(f"s_add_u32 {s(sY1)}, {s(sY)}, 4096")
    a(f"s_lshl_b32 {s(sF)}, {s(S_LOC)}, 4")
    a(f"s_add_u32 {s(sF)}, {s(sF)}, {WS['YF'] + w * 4}")
    a(f"s_lshl_b32 {s(sO)}, {s(S_LOC)}, 9")
    a(f"s_add_u32 {s(sO)}, {s(sO)}, {WS['MEML' if w < 2 else 'MEMG'] + MEM_SZ + ct_out * 256}")
    a(f"s_mov_b32 {s(S_STEP)}, 0")
    flag_load = f"buffer_load_dword {v(FLG)}, off, {WS_SRD}, {s(sF)} sc1"
    a(flag_load)
    a("s_waitcnt vmcnt(0)")
    wait_flag(a, FLG, flag_load)

    top = f"S2_STEP{w}"
    a.label(top)
    a.ds = []
    for i in range(3):
        B.read_block(i, order)
    for r in range(8):
        a(f"v_mov_b32 {v(O + r)}, 0")
    B.zero_acc()
    stamp(a, cfg, 0)
    poll_deep(a, [f"buffer_load_dwordx4 {v(MA + 4 * k, 4)}, {v(L16)}, {WS_SRD}, {s(sMEM)} offen offset:{1024 * i} sc1" for i, k in enumerate(own)],
              range(MA + 4 * own[0], MA + 4 * own[0] + 4 * len(own)), T0,
              [lambda k=k: a.dsop(f"ds_write_b128 {v(L16)}, {v(MA + 4 * k, 4)} offset:{MEMIMG + 1024 * k}") for k in own],
              cfg.get("depth3", 2))
    stamp(a, cfg, 1)
    a(f"s_add_u32 {s(sF)}, {s(sF)}, 224")
    a.wait_ds_all()
    a("s_barrier")
    keep_stamps(a, cfg, 6, 168)
    for k in order[len(own):]:
        a.dsop(f"ds_read_b128 {v(MA + 4 * k, 4)}, {v(L16)} offset:{MEMIMG + 1024 * k}", ("ma", k))
    yl = [f"buffer_load_dwordx4 {v(YB + 4 * i, 4)}, {v(L16)}, {WS_SRD}, {s(sY1 if i >= 4 else sY)} offen offset:{(i % 4) * 1024} sc1" for i in range(8)]
    yl = ([flag_load] if cfg.get("noy", 0) < 2 else []) + ([] if cfg.get("noy") else yl)
    extra = {}
    for i, x in enumerate(yl):
        extra.setdefault(i * cfg.get("ygap", 1) - 1, []).append(lambda x=x: a(x))
    B.mem_values(order, extra)
    stamp(a, cfg, 2)
    a("s_waitcnt vmcnt(0)")
    wait_flag(a, FLG, flag_load)
    stamp(a, cfg, 3)
    poll_deep(a, [f"buffer_load_dwordx4 {v(PA, 4)}, {v(L16)}, {WS_SRD}, {s(sP)} offen sc1",
                  f"buffer_load_dwordx4 {v(PA + 4, 4)}, {v(L16)}, {WS_SRD}, {s(sP)} offen offset:1024 sc1",
                  f"buffer_load_dwordx4 {v(PA + 8, 4)}, {v(PMA)}, {WS_SRD}, {s(sPM)} offen sc1"],
              range(PA, PA + 12), T0, (), cfg.get("depth2", 2))
    stamp(a, cfg, 4)
    for ct in range(2):
        for x, z in ((PA, YB), (PA + 4, YB + 16), (PA + 8, ZW)):
            smf(a, O + 4 * ct, x, v(z + 8 * ct, 8), IDX)
    for ct in range(2):
        o = O + 4 * ct
        if ct:
            a.nop(2)
        a(f"v_permlane32_swap_b32 {v(o)}, {v(o + 2)}")
        a(f"v_permlane32_swap_b32 {v(o + 1)}, {v(o + 3)}")
        a(f"v_add_f32 {v(o)}, {v(o)}, {v(o + 2)}")
        a(f"v_add_f32 {v(o + 1)}, {v(o + 1)}, {v(o + 3)}")
        a.dsop(f"ds_write2_b32 {v(PWA)}, {v(o)}, {v(o + 1)} offset0:{128 * ct} offset1:{128 * ct + 16}")
    a.wait_ds_all()
    a("s_barrier")
    for wv in range(4):
        a.dsop(f"ds_read_b64 {v(O + 2 * wv, 2)}, {v(PRA)} offset:{1024 * wv}", ("p", wv))
    a.wait_ds(("p", 1))
    a(f"v_pk_add_f32 {v(O, 2)}, {v(O, 2)}, {v(O + 2, 2)}")
    a.wait_ds(("p", 3))
    a(f"v_pk_add_f32 {v(O + 4, 2)}, {v(O + 4, 2)}, {v(O + 6, 2)}")
    a(f"v_pk_add_f32 {v(O, 2)}, {v(O, 2)}, {v(O + 4, 2)}")
    a(f"v_cvt_pk_bf16_f32 {v(O)}, {v(O)}, {v(O + 1)}")
    a(f"v_min_u32 {v(O)}, -2, {v(O)}")
    a(f"buffer_store_dword {v(O)}, {v(MOA)}, {WS_SRD}, {s(sO)} offen" + (" sc1" if w >= 2 else ""))
    stamp(a, cfg, 5)
    a(f"s_add_u32 {s(sMEM)}, {s(sMEM)}, {MEM_SZ}")
    a(f"s_add_u32 {s(sO)}, {s(sO)}, {MEM_SZ}")
    a(f"s_add_u32 {s(sP)}, {s(sP)}, {PB_SZ}")
    a(f"s_add_u32 {s(sPM)}, {s(sPM)}, {PB_SZ}")
    if not cfg.get("samey"):
        a(f"s_add_u32 {s(sY)}, {s(sY)}, {Y_SEG}")
        a(f"s_add_u32 {s(sY1)}, {s(sY1)}, {Y_SEG}")
    a(f"s_add_u32 {s(S_STEP)}, {s(S_STEP)}, 1")
    a(f"s_cmp_lt_u32 {s(S_STEP)}, {NSEG - 1}")
    a(f"s_cbranch_scc1 {top}")
    dump_stamps(a, cfg, 6, 168, 4 + w, L16)
    a("s_endpgm")


def gen_wm(a, cfg):
    L128, FLA, YA, T0, T1, JUNK = range(1, 7)
    sM, sA, sB, sY, sF, sU, sR = range(S_T0, S_T0 + 7)
    pieces = cfg.get("ypieces", 3)
    a.label("WM")
    a(f"s_sub_u32 {s(sU)}, {s(S_LOC)}, 30")
    a(f"s_lshl_b32 {s(sU)}, {s(sU)}, 2")
    a(f"s_add_u32 {s(sU)}, {s(sU)}, {s(S_WAVE)}")
    a(f"v_lshlrev_b32 {v(L128)}, 7, v0")
    a(f"v_min_u32 {v(FLA)}, 55, v0")
    a(f"v_lshlrev_b32 {v(FLA)}, 2, {v(FLA)}")
    a(f"v_lshrrev_b32 {v(YA)}, 3, v0")
    a(f"v_min_u32 {v(YA)}, 6, {v(YA)}")
    a(f"v_lshlrev_b32 {v(YA)}, 13, {v(YA)}")
    a(f"v_and_b32 {v(T0)}, 7, v0")
    a(f"v_lshl_add_u32 {v(YA)}, {v(T0)}, 7, {v(YA)}")
    a(f"s_mul_i32 {s(sY)}, {s(sU)}, {7 * 8192}")
    a(f"s_add_u32 {s(sY)}, {s(sY)}, {WS['YL'] + Y_SEG}")
    a(f"s_mov_b32 {s(sF)}, {WS['YF'] + 224}")
    a(f"s_mov_b32 {s(sR)}, {WS['YR'] + 2 * 128}")
    a(f"s_mul_i32 {s(sM)}, {s(S_SLOW)}, {WS['MEMG'] - WS['MEML']}")
    a(f"s_add_u32 {s(sM)}, {s(sM)}, {WS['MEML']}")
    a(f"s_mul_i32 {s(sA)}, {s(sU)}, 7168")
    a(f"s_add_u32 {s(sA)}, {s(sA)}, {WS['XT'] + XT_SEG}")
    a(f"s_mov_b32 {s(sB)}, {XT_SEG}")
    a(f"s_cmp_lt_u32 {s(sU)}, 4")
    a("s_cbranch_scc1 WM_GO")
    a(f"s_add_u32 {s(sA)}, {s(sM)}, {MEM_SZ}")
    a(f"s_mov_b32 {s(sB)}, {MEM_SZ}")
    a(f"s_cmp_eq_u32 {s(sU)}, 4")
    a("s_cbranch_scc1 WM_GO")
    a(f"s_and_b32 {s(sA)}, {s(sU)}, 1")
    a(f"s_lshl_b32 {s(sA)}, {s(sA)}, 11")
    a(f"s_add_u32 {s(sA)}, {s(sA)}, {WS['PB']}")
    a(f"s_mov_b32 {s(sB)}, {PB_SZ}")
    a.label("WM_GO")
    a(f"buffer_load_dword {v(JUNK)}, {v(L128)}, {WS_SRD}, {s(sA)} offen sc1")
    a(f"s_add_u32 {s(sA)}, {s(sA)}, {s(sB)}")
    a(f"s_mov_b32 {s(S_STEP)}, 0")
    a.label("WM_STEP")
    a(f"buffer_load_dword {v(T0)}, off, {WS_SRD}, {s(sM)} sc1")
    a("s_waitcnt vmcnt(0)")
    a(f"v_cmp_eq_u32 vcc, -1, {v(T0)}")
    a("s_cbranch_vccz WM_RUN")
    a("s_sleep 3")
    a(f"s_sub_u32 {s(S_TO)}, {s(S_TO)}, 1")
    a("s_cbranch_scc0 WM_STEP")
    a("s_endpgm")
    a.label("WM_RUN")
    a(f"buffer_load_dword {v(T0)}, {v(FLA)}, {WS_SRD}, {s(sF)} offen sc1")
    a(f"buffer_load_dword {v(T1)}, {v(FLA)}, {WS_SRD}, {s(sF)} offen offset:224 sc1")
    a(f"buffer_load_dword {v(JUNK)}, {v(L128)}, {WS_SRD}, {s(sA)} offen sc1")
    a("s_waitcnt vmcnt(1)")
    a(f"v_cmp_eq_u32 vcc, 0, {v(T1)}")
    a("s_cbranch_vccnz WM_NORDY")
    a(f"s_cmp_lg_u32 {s(sU)}, 7")
    a("s_cbranch_scc1 WM_NORDY")
    a(f"buffer_store_dword {v(T1)}, off, {WS_SRD}, {s(sR)}")
    a.label("WM_NORDY")
    a(f"v_cmp_eq_u32 vcc, 0, {v(T0)}")
    a("s_cbranch_vccnz WM_NOY")
    for i in range(pieces):
        if i == 4:
            a(f"s_add_u32 {s(S_TMP)}, {s(sY)}, 4096")
        a(f"buffer_load_dword {v(JUNK)}, {v(YA)}, {WS_SRD}, {s(sY if i < 4 else S_TMP)} offen offset:{(i % 4) * 1024} sc1")
    a.label("WM_NOY")
    a(f"s_add_u32 {s(sA)}, {s(sA)}, {s(sB)}")
    a(f"s_add_u32 {s(sM)}, {s(sM)}, {MEM_SZ}")
    a(f"s_add_u32 {s(sY)}, {s(sY)}, {Y_SEG}")
    a(f"s_add_u32 {s(sF)}, {s(sF)}, 224")
    a(f"s_add_u32 {s(sR)}, {s(sR)}, 128")
    a(f"s_add_u32 {s(S_STEP)}, {s(S_STEP)}, 1")
    a(f"s_cmp_lt_u32 {s(S_STEP)}, {NSEG - 2}")
    a("s_cbranch_scc1 WM_STEP")
    a("s_endpgm")
```

```python
from asmlib import v, acc, s, interleave
from layout import *
from roles_rec import *
from roles_pre import srd, f32

MASKED = -1e9 * 1.4426950408889634


def mfma(a, d, x, y, first):
    a(f"v_mfma_f32_16x16x32_bf16 {v(d, 4)}, {x}, {y}, " + ("0" if first else v(d, 4)))


def dma_rows(a, w, l16, soff, lds, pad):
    for i in range(7):
        b = 7 * w + i
        a(f"s_mov_b32 m0, {lds + b * 1024 + (pad if b >= 14 else 0)}")
        a(f"s_add_u32 {s(S_TMP)}, {s(soff)}, {b * 1024}")
        a(f"buffer_load_dwordx4 {v(l16)}, {WS_SRD}, {s(S_TMP)} offen lds")


def gen_ta(a, w, cfg):
    L16, KA, MKA, XWA, XRA, MWA, MRA, PTA, PMA, T0, T1 = range(1, 12)
    TACC, XO, TP, WV = 16, 72, 88, 120
    XPI, XTI, XS, MS = 0, 28672, 58368, 76800
    sXP, sXT, sMEM, sP, sPM = range(S_T0, S_T0 + 5)
    sMASK = S_T0 + 6
    blk = lambda j, ks: wblock(j * 7 + (ks >> 1), WV, ks & 1)
    T = lambda tt, j: TACC + 4 * (7 * tt + j)
    KO, SX, SM, MK, SCO = 16, 32, 44, 52, 68

    a.label(f"TA_W{w}")
    a(f"v_lshlrev_b32 {v(L16)}, 4, v0")
    a(f"s_mul_i32 {s(S_TMP)}, {s(S_LOC)}, {AL_HEAD}")
    a(f"s_add_u32 {s(S_TMP)}, {s(S_TMP)}, {WS['AL'] + w * 100352}")
    stream_load(a, [wblock(b, WV, hi) for b in range(49) for hi in range(2)], L16, S_TMP)
    a(f"v_and_b32 {v(T0)}, 15, v0")
    a(f"v_lshrrev_b32 {v(T1)}, 4, v0")
    a(f"v_lshrrev_b32 {v(MKA)}, 5, v0")
    a(f"v_add_u32 {v(MKA)}, {14 * w}, {v(MKA)}")
    a(f"v_lshrrev_b32 {v(KA)}, 2, {v(MKA)}")
    a(f"v_lshlrev_b32 {v(KA)}, 10, {v(KA)}")
    a(f"v_and_b32 {v(XWA)}, 3, {v(MKA)}")
    a(f"v_lshl_add_u32 {v(KA)}, {v(XWA)}, 8, {v(KA)}")
    a(f"v_lshl_add_u32 {v(KA)}, {v(T0)}, 4, {v(KA)}")
    a(f"v_and_b32 {v(XWA)}, 1, {v(T1)}")
    a(f"v_lshl_add_u32 {v(KA)}, {v(XWA)}, 3, {v(KA)}")
    a(f"v_add_u32 {v(KA)}, {XTI}, {v(KA)}")
    a(f"v_lshlrev_b32 {v(MKA)}, 7, {v(MKA)}")
    a(f"v_lshl_add_u32 {v(MKA)}, {v(XWA)}, 3, {v(MKA)}")
    a(f"v_and_b32 {v(XRA)}, 7, v0")
    a(f"v_lshl_add_u32 {v(MKA)}, {v(XRA)}, 4, {v(MKA)}")
    a(f"v_mul_u32_u24 {v(MWA)}, 144, {v(T0)}")
    a(f"v_lshl_add_u32 {v(MRA)}, {v(T1)}, 4, {v(MWA)}")
    a(f"v_lshl_add_u32 {v(MWA)}, {v(XWA)}, 4, {v(MWA)}")
    a(f"v_add_u32 {v(XWA)}, {XS + w * 4608}, {v(MRA)}")
    a(f"v_add_u32 {v(MWA)}, {MS + w * 32}, {v(MWA)}")
    a(f"v_lshrrev_b32 {v(T0)}, 3, v0")
    a(f"v_add_u32 {v(T0)}, {8 * w}, {v(T0)}")
    a(f"v_and_b32 {v(T1)}, 7, v0")
    a(f"v_mul_u32_u24 {v(MRA)}, 144, {v(T0)}")
    a(f"v_lshl_add_u32 {v(XRA)}, {v(T1)}, 4, {v(MRA)}")
    a(f"v_add_u32 {v(XRA)}, {XS}, {v(XRA)}")
    a(f"v_lshl_add_u32 {v(MRA)}, {v(T1)}, 2, {v(MRA)}")
    a(f"v_add_u32 {v(MRA)}, {MS}, {v(MRA)}")
    a(f"v_lshlrev_b32 {v(PTA)}, 2, {v(T1)}")
    a(f"v_sub_u32 {v(PTA)}, {v(T0)}, {v(PTA)}")
    for r in range(4):
        a(f"v_cmp_le_i32 {s(sMASK + 2 * r, 2)}, {r}, {v(PTA)}")
    a(f"v_and_b32 {v(T0)}, 15, {v(T0)}")
    a(f"v_lshlrev_b32 {v(T0)}, 4, {v(T0)}")
    a(f"v_bfe_u32 {v(PMA)}, v0, 1, 1")
    a(f"v_lshl_add_u32 {v(T0)}, {v(PMA)}, 2, {v(T0)}")
    a(f"v_bfe_u32 {v(T1)}, v0, 2, 1")
    a(f"v_lshl_add_u32 {v(PMA)}, {v(T1)}, 8, {v(T0)}")
    a(f"v_lshl_add_u32 {v(PTA)}, {v(T1)}, 9, {v(T0)}")
    a(f"v_and_b32 {v(T1)}, 1, v0")
    a(f"v_lshl_add_u32 {v(PTA)}, {v(T1)}, 8, {v(PTA)}")
    a(f"v_lshlrev_b32 {v(T1)}, 30, {v(T1)}")
    a(f"v_or_b32 {v(PMA)}, {v(PMA)}, {v(T1)}")
    a(f"v_mov_b32 {v(T0)}, 0")
    a(f"v_lshlrev_b32 {v(T1)}, 2, v0")
    a(f"ds_write_b32 {v(T1)}, {v(T0)} offset:{XTI + 28672 + 256 * w}")
    for tt in range(2):
        a(f"v_mov_b32 {v(TP + 16 * tt + 14)}, 0")
        a(f"v_mov_b32 {v(TP + 16 * tt + 15)}, 0")
    a(f"s_mul_i32 {s(sXP)}, {s(S_GRP)}, {XT_SEG}")
    a(f"s_add_u32 {s(sXT)}, {s(sXP)}, {WS['XT']}")
    a(f"s_add_u32 {s(sXP)}, {s(sXP)}, {WS['XP']}")
    a(f"s_mul_i32 {s(sMEM)}, {s(S_GRP)}, {MEM_SZ}")
    a(f"s_add_u32 {s(sMEM)}, {s(sMEM)}, {WS['MEMG']}")
    a(f"s_mul_i32 {s(sP)}, {s(S_GRP)}, {PX_SZ}")
    a(f"s_add_u32 {s(sP)}, {s(sP)}, {WS['PX']}")
    a(f"s_lshr_b32 {s(sPM)}, {s(S_LOC)}, 1")
    a(f"s_lshl_b32 {s(sPM)}, {s(sPM)}, 10")
    a(f"s_and_b32 {s(S_TMP)}, {s(S_LOC)}, 1")
    a(f"s_lshl_b32 {s(S_TMP)}, {s(S_TMP)}, 3")
    a(f"s_add_u32 {s(sPM)}, {s(sPM)}, {s(S_TMP)}")
    a(f"s_add_u32 {s(sPM)}, {s(sPM)}, {s(sP)}")
    a(f"s_add_u32 {s(sPM)}, {s(sPM)}, {32768 + (w >> 1) * 512}")
    a(f"s_lshl_b32 {s(S_TMP)}, {s(S_LOC)}, 11")
    a(f"s_add_u32 {s(sP)}, {s(sP)}, {s(S_TMP)}")
    a(f"s_add_u32 {s(sP)}, {s(sP)}, {(w >> 1) * 1024}")
    a(f"s_mov_b32 {s(S_TMP + 7)}, {f32(MASKED)}")
    a(f"s_mov_b32 {s(S_STEP)}, {s(S_GRP)}")

    top = f"TA_SEG{w}"
    a.label(top)
    a.ds = []
    dma_rows(a, w, L16, sXP, XPI, 0)
    dma_rows(a, w, L16, sXT, XTI, 0)
    a("s_waitcnt vmcnt(0) lgkmcnt(0)")
    a("s_barrier")

    def read_x(ks):
        for tt in range(2):
            a.dsop(f"ds_read_b128 {v(XO + 8 * (ks & 1) + 4 * tt, 4)}, {v(L16)} offset:{XPI + tt * 14336 + ks * 1024}", ("x", ks))
    read_x(0)
    for ks in range(14):
        a.wait_ds(("x", ks))
        for n_, (tt, j) in enumerate((tt, j) for j in range(7) for tt in range(2)):
            mfma(a, T(tt, j), blk(j, ks), v(XO + 8 * (ks & 1) + 4 * tt, 4), ks == 0)
            if n_ == 1 and ks + 1 < 14:
                read_x(ks + 1)
    a.nop(2)
    for j in range(7):
        for tt in range(2):
            a(f"v_cvt_pk_bf16_f32 {v(TP + 16 * tt + 2 * j)}, {v(T(tt, j))}, {v(T(tt, j) + 1)}")
            a(f"v_cvt_pk_bf16_f32 {v(TP + 16 * tt + 2 * j + 1)}, {v(T(tt, j) + 2)}, {v(T(tt, j) + 3)}")

    def read_k(p):
        for kt in range(2):
            for q in range(2):
                a.dsop(f"ds_read_b64 {v(KO + 8 * (p & 1) + 4 * kt + 2 * q, 2)}, {v(KA)} offset:{kt * 14336 + p * 1024 + q * 512}", ("k", p))
    read_k(0)
    read_k(1)
    for p in range(4):
        a.wait_ds(("k", p))
        for t, (kt, qt) in enumerate(((0, 0), (0, 1), (1, 1))):
            mfma(a, SX + 4 * t, v(KO + 8 * (p & 1) + 4 * kt, 4), v(TP + 16 * qt + 4 * p, 4), p == 0)
        if p + 2 < 4:
            read_k(p + 2)
    a(f"v_mov_b32 {v(MK + 14)}, 0")
    a(f"v_mov_b32 {v(MK + 15)}, 0")
    a.nop(6)
    for t, (kt, qt) in enumerate(((0, 0), (0, 1), (1, 1))):
        a.dsop(f"ds_write_b128 {v(XWA)}, {v(SX + 4 * t, 4)} offset:{qt * 2304 + kt * 64}")
    a.wait_ds_all()
    a("s_barrier")
    for wv in range(4):
        a.dsop(f"ds_read_b128 {v(KO + 4 * wv, 4)}, {v(XRA)} offset:{wv * 4608}")
    a.wait_ds_all()
    for r in range(4):
        a(f"v_add_f32 {v(KO + r)}, {v(KO + r)}, {v(KO + 4 + r)}")
        a(f"v_add_f32 {v(KO + 8 + r)}, {v(KO + 8 + r)}, {v(KO + 12 + r)}")
        a(f"v_add_f32 {v(KO + r)}, {v(KO + r)}, {v(KO + 8 + r)}")
        a(f"v_mov_b32 {v(SCO + r)}, {s(S_TMP + 7)}")
        a(f"v_cndmask_b32 {v(SCO + r)}, {v(SCO + r)}, {v(KO + r)}, {s(sMASK + 2 * r, 2)}")
    M, E, M1 = KO, KO + 1, KO + 2
    a(f"v_max3_f32 {v(SX)}, {v(SCO)}, {v(SCO + 1)}, {v(SCO + 2)}")
    a(f"v_max_f32 {v(SX)}, {v(SX)}, {v(SCO + 3)}")
    stamp(a, cfg, 0)
    poll(a, [f"buffer_load_dwordx2 {v(MK + 2 * j, 2)}, {v(MKA)}, {WS_SRD}, {s(sMEM)} offen offset:{256 * j} sc1" for j in range(7)],
         range(MK, MK + 14), T0)
    stamp(a, cfg, 1)
    for p in range(4):
        for qt in range(2):
            mfma(a, SM + 4 * qt, v(MK + 4 * p, 4), v(TP + 16 * qt + 4 * p, 4), p == 0)
    a.nop(7)
    for qt in range(2):
        a.dsop(f"ds_write_b128 {v(MWA)}, {v(SM + 4 * qt, 4)} offset:{qt * 2304}")
    a.wait_ds_all()
    a("s_barrier")
    a.dsop(f"ds_read2_b32 {v(KO + 4, 2)}, {v(MRA)} offset0:0 offset1:8")
    a.dsop(f"ds_read2_b32 {v(KO + 6, 2)}, {v(MRA)} offset0:16 offset1:24")
    a.wait_ds_all()
    a(f"v_pk_add_f32 {v(KO + 4, 2)}, {v(KO + 4, 2)}, {v(KO + 6, 2)}")
    a(f"v_add_f32 {v(E)}, {v(KO + 4)}, {v(KO + 5)}")
    a(f"v_max_f32 {v(M)}, {v(SX)}, {v(E)}")

    def reduce8(op):
        for ctl in ("quad_perm:[1,0,3,2]", "quad_perm:[2,3,0,1]", "row_half_mirror"):
            a.nop(2)
            a(f"{op}_dpp {v(M)}, {v(M)}, {v(M)} {ctl} row_mask:0xf bank_mask:0xf")
    reduce8("v_max_f32")
    for x in (E, SCO, SCO + 1, SCO + 2, SCO + 3):
        a(f"v_sub_f32 {v(x)}, {v(x)}, {v(M)}")
    for x in (E, SCO, SCO + 1, SCO + 2, SCO + 3):
        a(f"v_exp_f32 {v(x)}, {v(x)}")
    a(f"v_add_f32 {v(M)}, {v(E)}, {v(SCO)}")
    a(f"v_add_f32 {v(M1)}, {v(SCO + 1)}, {v(SCO + 2)}")
    a(f"v_add_f32 {v(M)}, {v(M)}, {v(SCO + 3)}")
    a(f"v_add_f32 {v(M)}, {v(M)}, {v(M1)}")
    a(f"v_mov_b32_dpp {v(M1)}, {v(E)} quad_perm:[1,0,3,2] row_mask:0xf bank_mask:0xf")
    reduce8("v_add_f32")
    a(f"v_rcp_f32 {v(M)}, {v(M)}")
    a(f"s_cmp_lg_u32 {s(S_SLOW)}, 0")
    for x in (SCO, SCO + 1, SCO + 2, SCO + 3, E, M1):
        a(f"v_mul_f32 {v(x)}, {v(x)}, {v(M)} clamp")
    a(f"v_cvt_pk_bf16_f32 {v(SCO)}, {v(SCO)}, {v(SCO + 1)}")
    a(f"v_cvt_pk_bf16_f32 {v(SCO + 2)}, {v(SCO + 2)}, {v(SCO + 3)}")
    a(f"v_cvt_pk_bf16_f32 {v(E)}, {v(E)}, {v(M1)}")
    local_stores(a, [f"buffer_store_dword {v(SCO)}, {v(PTA)}, {WS_SRD}, {s(sP)} offen",
                     f"buffer_store_dword {v(SCO + 2)}, {v(PTA)}, {WS_SRD}, {s(sP)} offen offset:8",
                     f"buffer_store_dword {v(E)}, {v(PMA)}, {WS_SRD}, {s(sPM)} offen"], scc_set=True)
    stamp(a, cfg, 2)
    flush_stamps(a, cfg, 3, 8 + w, T0)
    for r, step in ((sXP, XT_SEG), (sXT, XT_SEG), (sMEM, MEM_SZ), (sP, PX_SZ), (sPM, PX_SZ), (S_STEP, 1)):
        a(f"s_add_u32 {s(r)}, {s(r)}, {step * NCLONE}")
    a(f"s_cmp_lt_u32 {s(S_STEP)}, {NSEG}")
    a(f"s_cbranch_scc1 {top}")
    a("s_endpgm")


def gen_tb(a, w, cfg):
    L16, LB, XA, PMA, PW0, PW1, PRA, XRA, HA, IDX, T0, T1 = range(1, 13)
    XR = 14
    MA, YB, ZW, WT, ACC = 16, 44, 76, 92, 116
    XPI, PART, MEMIMG = 0, 28800, 28800
    sXP, sYO, sF, sYS, sY, sMEM, sP, sPM, sXR, sH = range(S_T0, S_T0 + 10)
    own = [2 * w, 2 * w + 1] if w < 3 else [6]
    order = own + [k for k in range(7) if k not in own]
    B = BRes(a, w, L16, IDX, MA, WT, ACC, ZW)
    PXQ = [MA + 4 * i for i in range(7)] + [WT + 4 * i for i in range(5)]

    a.label(f"TB_W{w}")
    srd(a, S_X, 0, 2048 * 896)
    a(f"s_sub_u32 {s(S_LOC)}, {s(S_LOC)}, 16")
    a(f"v_lshlrev_b32 {v(L16)}, 4, v0")
    B.load(S_LOC, LB)
    a(f"v_and_b32 {v(T0)}, 15, v0")
    a(f"v_lshrrev_b32 {v(T1)}, 4, v0")
    a(f"v_bfe_u32 {v(XA)}, v0, 3, 1")
    a(f"v_mul_u32_u24 {v(XA)}, {14336 + 32}, {v(XA)}")
    a(f"v_lshl_add_u32 {v(XA)}, {v(T1)}, 8, {v(XA)}")
    a(f"v_bfe_u32 {v(PMA)}, v0, 2, 1")
    a(f"v_lshl_add_u32 {v(XA)}, {v(PMA)}, 6, {v(XA)}")
    a(f"v_bfe_u32 {v(PMA)}, v0, 1, 1")
    a(f"v_lshl_add_u32 {v(XA)}, {v(PMA)}, 7, {v(XA)}")
    a(f"v_and_b32 {v(PMA)}, 1, v0")
    a(f"v_lshl_add_u32 {v(XA)}, {v(PMA)}, 4, {v(XA)}")
    a(f"v_and_b32 {v(PMA)}, 31, v0")
    a(f"v_lshlrev_b32 {v(PMA)}, 4, {v(PMA)}")
    a(f"v_mul_u32_u24 {v(PW0)}, 576, {v(T1)}")
    a(f"v_lshl_add_u32 {v(PW0)}, {v(T0)}, 2, {v(PW0)}")
    a(f"v_add_u32 {v(PW0)}, {PART + w * 4608}, {v(PW0)}")
    a(f"v_add_u32 {v(PW1)}, 2304, {v(PW0)}")
    a(f"v_lshrrev_b32 {v(T0)}, 3, v0")
    a(f"v_add_u32 {v(T0)}, {8 * w}, {v(T0)}")
    a(f"v_and_b32 {v(T1)}, 7, v0")
    a(f"v_mul_u32_u24 {v(PRA)}, 144, {v(T0)}")
    a(f"v_lshl_add_u32 {v(PRA)}, {v(T1)}, 4, {v(PRA)}")
    a(f"v_add_u32 {v(PRA)}, {PART}, {v(PRA)}")
    a(f"v_mul_u32_u24 {v(XRA)}, 896, {v(T0)}")
    a(f"v_lshl_add_u32 {v(XRA)}, {v(T1)}, 3, {v(XRA)}")
    a(f"v_and_b32 {v(HA)}, 15, {v(T0)}")
    a(f"v_lshlrev_b32 {v(HA)}, 4, {v(HA)}")
    a(f"v_lshrrev_b32 {v(T0)}, 1, {v(T1)}")
    a(f"v_lshl_add_u32 {v(HA)}, {v(T0)}, 8, {v(HA)}")
    a(f"v_and_b32 {v(T0)}, 1, {v(T1)}")
    a(f"v_lshl_add_u32 {v(HA)}, {v(T0)}, 3, {v(HA)}")
    index_reg(a, IDX, T0)
    a(f"s_mul_i32 {s(sXP)}, {s(S_GRP)}, {XT_SEG}")
    a(f"s_lshl_b32 {s(S_TMP)}, {s(S_LOC)}, 10")
    a(f"s_add_u32 {s(sH)}, {s(sXP)}, {s(S_TMP)}")
    a(f"s_add_u32 {s(sH)}, {s(sH)}, {WS['HT'] + (w >> 1) * 14336}")
    a(f"s_lshl_b32 {s(S_TMP)}, {s(S_LOC)}, 6")
    a(f"s_add_u32 {s(sXR)}, {s(sXP)}, {s(S_TMP)}")
    a(f"s_add_u32 {s(sXP)}, {s(sXP)}, {WS['XP']}")
    a(f"s_mul_i32 {s(sY)}, {s(S_GRP)}, {Y_SEG}")
    a(f"s_lshl_b32 {s(S_TMP)}, {s(S_LOC)}, 15")
    a(f"s_add_u32 {s(sY)}, {s(sY)}, {s(S_TMP)}")
    a(f"s_add_u32 {s(sY)}, {s(sY)}, {WS['YL'] + w * 8192}")
    a(f"s_mov_b32 {s(sYO)}, {s(sY)}")
    a(f"s_mul_i32 {s(sF)}, {s(S_GRP)}, 224")
    a(f"s_lshl_b32 {s(S_TMP)}, {s(S_LOC)}, 4")
    a(f"s_add_u32 {s(sF)}, {s(sF)}, {s(S_TMP)}")
    a(f"s_add_u32 {s(sF)}, {s(sF)}, {WS['YF'] + 4 * w}")
    a(f"s_mul_i32 {s(sMEM)}, {s(S_GRP)}, {MEM_SZ}")
    a(f"s_add_u32 {s(sMEM)}, {s(sMEM)}, {WS['MEMG'] + own[0] * 1024}")
    a(f"s_mul_i32 {s(sP)}, {s(S_GRP)}, {PX_SZ}")
    a(f"s_add_u32 {s(sPM)}, {s(sP)}, {WS['PX'] + 32768 + w * 2048}")
    a(f"s_add_u32 {s(sP)}, {s(sP)}, {WS['PX'] + w * 8192}")
    a(f"s_mov_b32 {s(S_STEP)}, {s(S_GRP)}")
    a(f"s_mov_b32 {s(sYS)}, {s(S_GRP)}")
    a("s_waitcnt lgkmcnt(0)")

    top, pv = f"TB_TOP{w}", f"TB_PV{w}"
    a.label(top)
    a(f"s_cmp_lt_u32 {s(sYS)}, {NSEG}")
    a(f"s_cbranch_scc0 {pv}")
    a.ds = []
    dma_rows(a, w, L16, sXP, XPI, 32)
    a("s_waitcnt vmcnt(0)")
    a("s_barrier")
    for ah in range(2):
        def read_op(ks):
            for ab in range(2):
                a.dsop(f"ds_read_b128 {v(MA + 8 * (ks % 3) + 4 * ab, 4)}, {v(XA)} offset:{ks * 1024 + 32 * ab}", ("x", ks))
            if ah:
                for ct in range(2):
                    a.dsop(f"ds_read_b128 {v(WT + 8 * (ks % 3) + 4 * ct, 4)}, {v(LB)} offset:{B.lds_off(6 + ct, ks >> 1, ks & 1)}", ("x", ks))
        read_op(0)
        read_op(1)
        for ks in range(14):
            a.wait_ds(("x", ks))
            for n_, (t, ab) in enumerate((t, ab) for t in range(4) for ab in range(2)):
                tile = 4 * ah + t
                wr = B.blk(tile, ks >> 1, ks & 1) if tile < 6 else v(WT + 8 * (ks % 3) + 4 * (tile - 6), 4)
                mfma(a, ACC + 8 * t + 4 * ab, v(MA + 8 * (ks % 3) + 4 * ab, 4), wr, ks == 0)
                if n_ == 1 and ks + 2 < 14:
                    read_op(ks + 2)
        a.nop(2)
        if ah:
            a(f"s_add_u32 {s(S_TMP)}, {s(sYO)}, 4096")
        for t in range(4):
            o = YB + 16 * ah + 4 * t
            for i in range(4):
                a(f"v_cvt_pk_bf16_f32 {v(o + i)}, {v(ACC + 8 * t + 2 * i)}, {v(ACC + 8 * t + 2 * i + 1)}")
            a(f"buffer_store_dwordx4 {v(o, 4)}, {v(L16)}, {WS_SRD}, {s(S_TMP if ah else sYO)} offen offset:{(t & 1) * 2048 + (t >> 1) * 1024} sc1")
    a(f"v_mov_b32 {v(T0)}, 1")
    a("s_waitcnt vmcnt(0)")
    a(f"buffer_store_dword {v(T0)}, off, {WS_SRD}, {s(sF)} sc1")
    a(f"s_add_u32 {s(sXP)}, {s(sXP)}, {XT_SEG * NCLONE}")
    a(f"s_add_u32 {s(sYO)}, {s(sYO)}, {Y_SEG * NCLONE}")
    a(f"s_add_u32 {s(sF)}, {s(sF)}, {224 * NCLONE}")
    a(f"s_add_u32 {s(sYS)}, {s(sYS)}, {NCLONE}")
    a(f"s_cmp_lt_u32 {s(sYS)}, {2 * NCLONE}")
    a(f"s_cbranch_scc0 {pv}")
    a("s_barrier")
    a(f"s_branch {top}")

    a.label(pv)
    a.ds = []
    a("s_barrier")
    a(f"s_add_u32 {s(S_TMP)}, {s(sY)}, 4096")
    for i in range(8):
        a(f"buffer_load_dwordx4 {v(YB + 4 * i, 4)}, {v(L16)}, {WS_SRD}, {s(S_TMP if i >= 4 else sY)} offen offset:{(i % 4) * 1024} sc1")
    a(f"buffer_load_dwordx2 {v(XR, 2)}, {v(XRA)}, {s(S_X, 4)}, {s(sXR)} offen")
    for i in range(3):
        B.read_block(i, order)
    B.zero_acc()
    stamp(a, cfg, 0)
    poll(a, [f"buffer_load_dwordx4 {v(MA + 4 * k, 4)}, {v(L16)}, {WS_SRD}, {s(sMEM)} offen offset:{1024 * i} sc1" for i, k in enumerate(own)],
         range(MA + 4 * own[0], MA + 4 * own[0] + 4 * len(own)), T0)
    stamp(a, cfg, 1)
    for k in own:
        a.dsop(f"ds_write_b128 {v(L16)}, {v(MA + 4 * k, 4)} offset:{MEMIMG + 1024 * k}")
    a.wait_ds_all()
    a("s_barrier")
    for k in order[len(own):]:
        a.dsop(f"ds_read_b128 {v(MA + 4 * k, 4)}, {v(L16)} offset:{MEMIMG + 1024 * k}", ("ma", k))
    B.mem_values(order, {})
    a("s_barrier")
    a(f"s_add_u32 {s(S_TMP)}, {s(sP)}, 4096")
    loads = [f"buffer_load_dwordx4 {v(PXQ[i], 4)}, {v(L16)}, {WS_SRD}, {s(S_TMP if i >= 4 else sP)} offen offset:{(i % 4) * 1024} sc1" for i in range(8)]
    loads += [f"buffer_load_dwordx4 {v(PXQ[8 + i], 4)}, {v(PMA)}, {WS_SRD}, {s(sPM)} offen offset:{i * 512} sc1" for i in range(4)]
    stamp(a, cfg, 2)
    poll(a, loads, [q + r for q in PXQ for r in range(4)], T0)
    stamp(a, cfg, 3)
    O = lambda qt, ct: ACC + 8 * qt + 4 * ct
    for hl in range(4):
        for qt in range(2):
            for ct in range(2):
                mfma(a, O(qt, ct), v(PXQ[2 * hl + qt], 4), v(YB + 16 * (hl >> 1) + 8 * ct + 4 * (hl & 1), 4), hl == 0)
    for hp in range(2):
        for qt in range(2):
            for ct in range(2):
                mfma(a, O(qt, ct), v(PXQ[8 + 2 * hp + qt], 4), v(ZW + 8 * ct + 4 * hp, 4), False)
    a.nop(7)
    for qt in range(2):
        for r in range(4):
            a.dsop(f"ds_write2_b32 {v(PW1 if qt else PW0)}, {v(O(qt, 0) + r)}, {v(O(qt, 1) + r)} offset0:{36 * r} offset1:{36 * r + 16}")
    a.wait_ds_all()
    a("s_barrier")
    for wv in range(4):
        a.dsop(f"ds_read_b128 {v(ACC + 4 * wv, 4)}, {v(PRA)} offset:{wv * 4608}")
    a(f"v_lshlrev_b32 {v(ACC + 16)}, 16, {v(XR)}")
    a(f"v_and_b32 {v(ACC + 17)}, 0xffff0000, {v(XR)}")
    a(f"v_lshlrev_b32 {v(ACC + 18)}, 16, {v(XR + 1)}")
    a(f"v_and_b32 {v(ACC + 19)}, 0xffff0000, {v(XR + 1)}")
    a.wait_ds_all()
    for i in (0, 2):
        a(f"v_pk_add_f32 {v(ACC + i, 2)}, {v(ACC + i, 2)}, {v(ACC + 4 + i, 2)}")
        a(f"v_pk_add_f32 {v(ACC + 8 + i, 2)}, {v(ACC + 8 + i, 2)}, {v(ACC + 12 + i, 2)}")
        a(f"v_pk_add_f32 {v(ACC + i, 2)}, {v(ACC + i, 2)}, {v(ACC + 8 + i, 2)}")
        a(f"v_cvt_pk_bf16_f32 {v(ACC + i + 1)}, {v(ACC + i)}, {v(ACC + i + 1)}")
        a(f"v_lshlrev_b32 {v(ACC + i)}, 16, {v(ACC + i + 1)}")
        a(f"v_and_b32 {v(ACC + i + 1)}, 0xffff0000, {v(ACC + i + 1)}")
        a(f"v_pk_add_f32 {v(ACC + i, 2)}, {v(ACC + i, 2)}, {v(ACC + 16 + i, 2)}")
        a(f"v_cvt_pk_bf16_f32 {v(ACC + 20 + i // 2)}, {v(ACC + i)}, {v(ACC + i + 1)}")
        a(f"v_min_u32 {v(ACC + 20 + i // 2)}, -2, {v(ACC + 20 + i // 2)}")
    a(f"buffer_store_dwordx2 {v(ACC + 20, 2)}, {v(HA)}, {WS_SRD}, {s(sH)} offen sc1")
    stamp(a, cfg, 4)
    flush_stamps(a, cfg, 5, 12 + w, T0)
    for r, step in ((sY, Y_SEG), (sMEM, MEM_SZ), (sP, PX_SZ), (sPM, PX_SZ), (sXR, XT_SEG), (sH, XT_SEG), (S_STEP, 1)):
        a(f"s_add_u32 {s(r)}, {s(r)}, {step * NCLONE}")
    a(f"s_cmp_lt_u32 {s(S_STEP)}, {NSEG}")
    a(f"s_cbranch_scc1 {top}")
    a("s_endpgm")
```

```python
import sys
from asmlib import Asm, v, s
from layout import *
from roles_rec import *

NAME = "sequential_preLN__memory_aug_recurrent_mem_tr__dense_activation_gelu__prompt"
HEADER = open("cdna_kernels/" + NAME + ".s.ref").read().split("; Override launch")[0]
LDS_MAIN = 163840
LDS_MAIL = 49136


def descriptor(name, vgpr, accum):
    return f""".section .rodata,"a"
.p2align 6
.amdhsa_kernel {name}
  .amdhsa_next_free_vgpr {vgpr}
  .amdhsa_next_free_sgpr 102
  .amdhsa_accum_offset {accum}
  .amdhsa_group_segment_fixed_size 0
  .amdhsa_kernarg_size 120
  .amdhsa_user_sgpr_count 2
  .amdhsa_user_sgpr_kernarg_segment_ptr 1
  .amdhsa_system_sgpr_workgroup_id_x 1
  .amdhsa_float_denorm_mode_32 3
.end_amdhsa_kernel
"""


def gen_main(a, cfg):
    name = NAME + "_kernel"
    a.raw(f".globl {name}\n.p2align 8\n.type {name},@function")
    a.label(name)
    a("s_cmp_ge_u32 s2, 256")
    a("s_cbranch_scc0 MAIN_GO")
    a("s_endpgm")
    a.label("MAIN_GO")
    if cfg.get("stamps"):
        a(f"s_memrealtime {s(S_CLK + 30, 2)}")
    a(f"s_load_dwordx2 {s(S_WS, 2)}, s[0:1], 112")
    a("v_lshrrev_b32 v1, 6, v0")
    a("v_and_b32 v0, 63, v0")
    a(f"v_readfirstlane_b32 {s(S_WAVE)}, v1")
    a(f"s_getreg_b32 {s(S_GRP)}, hwreg(HW_REG_XCC_ID, 0, 3)")
    a(f"s_mov_b32 {s(S_WS + 2)}, {WS_BYTES}")
    a(f"s_mov_b32 {s(S_WS + 3)}, 0x00020000")
    a(f"s_mov_b32 {s(S_TO)}, 0x200000")
    a(f"v_mov_b32 v4, {LDS_MAIL}")
    a("s_waitcnt lgkmcnt(0)")
    a(f"s_cmp_lg_u32 {s(S_WAVE)}, 0")
    a("s_cbranch_scc1 MAIN_MAIL")
    a(f"s_lshl_b32 {s(S_TMP)}, {s(S_GRP)}, 7")
    a("v_mov_b32 v1, 1")
    a("s_mov_b64 exec, 1")
    a(f"buffer_atomic_add v1, off, {WS_SRD}, {s(S_TMP)} offset:{WS['CNT']} sc0")
    a("s_mov_b64 exec, -1")
    a("v_and_b32 v2, 7, v0")
    a("v_lshlrev_b32 v2, 7, v2")
    a("s_waitcnt vmcnt(0)")
    a(f"v_readfirstlane_b32 {s(S_LOC)}, v1")
    a.label("MAIN_CENSUS")
    a(f"buffer_load_dword v3, v2, {WS_SRD}, 0 offen offset:{WS['CNT']} sc1")
    a("s_waitcnt vmcnt(0)")
    a("v_cmp_ne_u32 vcc, 32, v3")
    a(f"s_mov_b32 {s(S_SLOW)}, 0")
    a("s_cbranch_vccz MAIN_DECIDED")
    a(f"s_mov_b32 {s(S_TMP)}, 0")
    for i in range(8):
        a(f"v_readlane_b32 {s(S_TMP + 1)}, v3, {i}")
        a("s_nop 0")
        a(f"s_add_u32 {s(S_TMP)}, {s(S_TMP)}, {s(S_TMP + 1)}")
    a(f"s_mov_b32 {s(S_SLOW)}, 1")
    a(f"s_cmp_ge_u32 {s(S_TMP)}, 256")
    a("s_cbranch_scc1 MAIN_DECIDED")
    a("s_sleep 1")
    a(f"s_sub_u32 {s(S_TO)}, {s(S_TO)}, 1")
    a("s_cbranch_scc0 MAIN_CENSUS")
    a(f"s_mov_b32 {s(S_SLOW)}, 2")
    a.label("MAIN_DECIDED")
    if cfg.get("force_slow"):
        a(f"s_mov_b32 {s(S_SLOW)}, 1")
    a(f"v_mov_b32 v2, {s(S_LOC)}")
    a(f"v_mov_b32 v3, {s(S_SLOW)}")
    a("ds_write_b64 v4, v[2:3]")
    a("s_waitcnt lgkmcnt(0)")
    a.label("MAIN_MAIL")
    a("s_barrier")
    a("ds_read_b64 v[2:3], v4")
    a("s_waitcnt lgkmcnt(0)")
    a(f"v_readfirstlane_b32 {s(S_LOC)}, v2")
    a(f"v_readfirstlane_b32 {s(S_SLOW)}, v3")
    a("s_barrier")
    a("s_nop 3")
    a(f"s_cmp_lt_u32 {s(S_SLOW)}, 2")
    a("s_cbranch_scc1 MAIN_ALIVE")
    a("s_endpgm")
    a.label("MAIN_ALIVE")
    a(f"s_and_b32 {s(S_TMP)}, s2, 7")
    a(f"s_lshr_b32 {s(S_TMP + 1)}, s2, 3")
    a(f"s_cmp_lg_u32 {s(S_SLOW)}, 0")
    a(f"s_cselect_b32 {s(S_GRP)}, {s(S_TMP)}, {s(S_GRP)}")
    a(f"s_cselect_b32 {s(S_LOC)}, {s(S_TMP + 1)}, {s(S_LOC)}")

    def per_wave(stem):
        for w in range(3):
            a(f"s_cmp_eq_u32 {s(S_WAVE)}, {w}")
            a(f"s_cbranch_scc1 {stem}_W{w}")
        a(f"s_branch {stem}_W3")

    roles = cfg["roles"]
    a(f"s_cmp_eq_u32 {s(S_GRP)}, 0")
    a("s_cbranch_scc0 MAIN_NOTREC")
    a(f"s_cmp_lt_u32 {s(S_LOC)}, 16")
    a("s_cbranch_scc0 MAIN_NOTS1")
    per_wave("S1")
    a.label("MAIN_NOTS1")
    a(f"s_cmp_lt_u32 {s(S_LOC)}, 30")
    a("s_cbranch_scc0 WM")
    per_wave("S2")
    a.label("MAIN_NOTREC")
    if "T" in roles:
        a(f"s_cmp_le_u32 {s(S_GRP)}, {NCLONE}")
        a("s_cbranch_scc0 MAIN_NOTTOK")
        a(f"s_sub_u32 {s(S_GRP)}, {s(S_GRP)}, 1")
        a(f"s_cmp_lt_u32 {s(S_LOC)}, 16")
        a("s_cbranch_scc0 MAIN_NOTTA")
        per_wave("TA")
        a.label("MAIN_NOTTA")
        a(f"s_cmp_lt_u32 {s(S_LOC)}, 30")
        a("s_cbranch_scc0 MAIN_IDLE")
        per_wave("TB")
        a.label("MAIN_NOTTOK")
    if "F" in roles:
        a(f"s_cmp_le_u32 {s(S_GRP)}, {NCLONE}")
        a("s_cbranch_scc1 MAIN_IDLE")
        a(f"s_sub_u32 {s(S_GRP)}, {s(S_GRP)}, {NCLONE + 1}")
        a(f"s_cmp_lt_u32 {s(S_LOC)}, 14")
        a("s_cbranch_scc0 MAIN_NOTF1")
        per_wave("F1")
        a.label("MAIN_NOTF1")
        a(f"s_cmp_lt_u32 {s(S_LOC)}, 28")
        a("s_cbranch_scc0 MAIN_IDLE")
        per_wave("F2")
    a.label("MAIN_IDLE")
    a("s_endpgm")
    gen_wm(a, cfg)
    for w in range(4):
        gen_s1(a, w, cfg)
    for w in range(4):
        gen_s2(a, w, cfg)
    if "T" in roles:
        from roles_tok import gen_ta, gen_tb
        for w in range(4):
            gen_ta(a, w, cfg)
        for w in range(4):
            gen_tb(a, w, cfg)
    if "F" in roles:
        from roles_ffn import gen_f1, gen_f2
        for w in range(4):
            gen_f1(a, w, cfg)
        for w in range(4):
            gen_f2(a, w, cfg)
    return descriptor(name, 512, 256)


def generate(cfg):
    a = Asm()
    launches = []
    desc = ""
    a.raw('.amdgcn_target "amdgcn-amd-amdhsa--gfx950"\n.text')
    if "P" in cfg["roles"]:
        from roles_pre import gen_pre, LDS_PRE
        desc += gen_pre(a, cfg, descriptor)
        launches.append(f"; @launch kernel=prep_kernel grid=(256,1,1) block=(256,1,1) lds={LDS_PRE}")
    desc += gen_main(a, cfg)
    launches.append(f"; @launch kernel={NAME}_kernel grid=(256,1,1) block=(256,1,1) lds={LDS_MAIN}")
    return HEADER + "\n".join(launches) + "\n" + a.text() + desc


if __name__ == "__main__":
    out = sys.argv[1]
    cfg = {"roles": sys.argv[2] if len(sys.argv) > 2 else "PTF"}
    for opt in sys.argv[3:]:
        k, _, val = opt.partition("=")
        cfg[k] = int(val) if val else 1
    open(out, "w").write(generate(cfg))
    import subprocess
    r = subprocess.run(["clang", "-x", "assembler", "-target", "amdgcn-amd-amdhsa", "-mcpu=gfx950", "-c", out, "-o", "gen_check.o"], capture_output=True, text=True)
    if r.returncode:
        print(r.stderr[:1500])
        sys.exit(1)
```

```python
from asmlib import v, acc, s
from layout import *
from roles_rec import *
from roles_pre import srd, f32, row_sum4, ln_scalars, ln_apply
from roles_tok import mfma

GELU_C1 = -2.0 * 1.4426950408889634 * 0.7978845608028654
GELU_C2 = GELU_C1 * 0.044715


def unpack(a, dst, src, n):
    for i in range(n):
        a(f"v_lshlrev_b32 {v(dst + 2 * i)}, 16, {v(src + i)}")
        a(f"v_and_b32 {v(dst + 2 * i + 1)}, 0xffff0000, {v(src + i)}")


def gen_f1(a, w, cfg):
    L16, DA, TRA, SA, T0, T1, MEAN, M2, TM = range(1, 10)
    OTH, BIAS, PK, F, XO, ACC = 12, 16, 24, 52, 108, 132
    HN, STAT, STAGE = 0, 28672, 32768
    sH, sO, sF, sC1, sC2 = range(S_T0, S_T0 + 5)
    qt0, ks0 = w >> 1, 7 * (w & 1)
    W = lambda ab, ks: acc(8 * ks + 4 * ab, 4)

    a.label(f"F1_W{w}")
    srd(a, S_X, 64, 448 * 3584)
    srd(a, S_AUX, 72, 3584)
    a(f"v_lshlrev_b32 {v(L16)}, 4, v0")
    a(f"v_lshrrev_b32 {v(T0)}, 2, v0")
    a(f"v_mul_u32_u24 {v(DA)}, 3584, {v(T0)}")
    a(f"v_and_b32 {v(T1)}, 3, v0")
    a(f"v_lshl_add_u32 {v(DA)}, {v(T1)}, 4, {v(DA)}")
    a(f"v_lshrrev_b32 {v(TRA)}, 4, v0")
    a(f"v_lshlrev_b32 {v(SA)}, 4, {v(TRA)}")
    a(f"v_lshlrev_b32 {v(TRA)}, 3, {v(TRA)}")
    a(f"v_and_b32 {v(T0)}, 3, {v(T0)}")
    a(f"v_add_u32 {v(TRA)}, {v(TRA)}, {v(T0)}")
    a(f"v_lshlrev_b32 {v(TRA)}, 6, {v(TRA)}")
    a(f"v_lshl_add_u32 {v(TRA)}, {v(T1)}, 4, {v(TRA)}")
    a(f"v_add_u32 {v(TRA)}, {STAGE + w * 28672}, {v(TRA)}")
    a(f"s_lshl_b32 {s(S_TMP)}, {s(S_LOC)}, 8")
    a(f"s_add_u32 {s(S_TMP)}, {s(S_TMP)}, {64 * w}")
    a("s_waitcnt lgkmcnt(0)")
    a(f"buffer_load_dwordx4 {v(PK, 4)}, {v(SA)}, {s(S_AUX, 4)}, {s(S_TMP)} offen")
    for i in range(28):
        a(f"s_mov_b32 m0, {STAGE + w * 28672 + i * 1024}")
        a(f"s_add_u32 {s(S_TMP + 1)}, {s(S_TMP)}, {i * 16 * 3584}")
        a(f"buffer_load_dwordx4 {v(DA)}, {s(S_X, 4)}, {s(S_TMP + 1)} offen lds")
    a(f"v_and_b32 {v(SA)}, 15, v0")
    a(f"v_lshlrev_b32 {v(SA)}, 3, {v(SA)}")
    a(f"v_add_u32 {v(SA)}, {STAT}, {v(SA)}")
    a(f"s_mul_i32 {s(sH)}, {s(S_GRP)}, {XT_SEG}")
    a(f"s_add_u32 {s(sH)}, {s(sH)}, {WS['HT'] + qt0 * 14336 + ks0 * 1024}")
    a(f"s_mul_i32 {s(sO)}, {s(S_GRP)}, {H1_SEG}")
    a(f"s_lshl_b32 {s(S_TMP + 1)}, {s(S_LOC)}, 12")
    a(f"s_add_u32 {s(sO)}, {s(sO)}, {s(S_TMP + 1)}")
    a(f"s_add_u32 {s(sO)}, {s(sO)}, {WS['H1T'] + w * 1024}")
    a(f"s_mul_i32 {s(sF)}, {s(S_GRP)}, 224")
    a(f"s_lshl_b32 {s(S_TMP + 1)}, {s(S_LOC)}, 4")
    a(f"s_add_u32 {s(sF)}, {s(sF)}, {s(S_TMP + 1)}")
    a(f"s_add_u32 {s(sF)}, {s(sF)}, {WS['HF'] + 4 * w}")
    a(f"s_mov_b32 {s(sC1)}, {f32(GELU_C1)}")
    a(f"s_mov_b32 {s(sC2)}, {f32(GELU_C2)}")
    a(f"s_mov_b32 {s(S_STEP)}, {s(S_GRP)}")
    a("s_waitcnt vmcnt(0)")
    unpack(a, BIAS, PK, 4)
    for ks in range(14):
        for ab in range(2):
            for q in range(2):
                a(f"ds_read_b64_tr_b16 {acc(8 * ks + 4 * ab + 2 * q, 2)}, {v(TRA)} offset:{ks * 2048 + q * 256 + ab * 8}")
        if ks % 3 == 2:
            a("s_waitcnt lgkmcnt(0)")
    a("s_waitcnt lgkmcnt(0)")
    wait_tasks(a, "Z2", T0, OTH)

    top = f"F1_SEG{w}"
    a.label(top)
    a.ds = []
    a(f"s_add_u32 {s(S_TMP)}, {s(sH)}, 4096")
    stamp(a, cfg, 0)
    poll(a, [f"buffer_load_dwordx4 {v(PK + 4 * i, 4)}, {v(L16)}, {WS_SRD}, {s(S_TMP if i >= 4 else sH)} offen offset:{(i % 4) * 1024} sc1" for i in range(7)],
         range(PK, PK + 28), T0, cfg.get('psleep', 0))
    stamp(a, cfg, 1)
    unpack(a, F, PK, 28)
    a(f"v_pk_add_f32 {v(TM + 1, 2)}, {v(F, 2)}, {v(F + 2, 2)}")
    for i in range(2, 28):
        a(f"v_pk_add_f32 {v(TM + 1, 2)}, {v(TM + 1, 2)}, {v(F + 2 * i, 2)}")
    a(f"v_add_f32 {v(MEAN)}, {v(TM + 1)}, {v(TM + 2)}")
    row_sum4(a, MEAN, TM)
    a(f"v_mul_f32 {v(T0 + 1)}, {f32(-1 / 224)}, {v(MEAN)}")
    a(f"v_mul_f32 {v(MEAN)}, {f32(1 / 224)}, {v(MEAN)}")
    for i in range(28):
        a(f"v_pk_add_f32 {v(XO, 2)}, {v(F + 2 * i, 2)}, {v(T0 + 1, 2)} op_sel_hi:[1,0]")
        if i:
            a(f"v_pk_fma_f32 {v(TM + 1, 2)}, {v(XO, 2)}, {v(XO, 2)}, {v(TM + 1, 2)}")
        else:
            a(f"v_pk_mul_f32 {v(TM + 1, 2)}, {v(XO, 2)}, {v(XO, 2)}")
    a(f"v_add_f32 {v(M2)}, {v(TM + 1)}, {v(TM + 2)}")
    row_sum4(a, M2, TM)
    a(f"v_mov_b32 {v(OTH)}, {v(MEAN)}")
    a(f"v_mov_b32 {v(OTH + 1)}, {v(M2)}")
    a.dsop(f"ds_write_b64 {v(SA)}, {v(OTH, 2)} offset:{128 * w}")
    a.wait_ds_all()
    a("s_barrier")
    a.dsop(f"ds_read_b64 {v(OTH + 2, 2)}, {v(SA)} offset:{128 * (w ^ 1)}")
    a.wait_ds_all()
    a(f"v_sub_f32 {v(TM)}, {v(MEAN)}, {v(OTH + 2)}")
    a(f"v_add_f32 {v(MEAN)}, {v(MEAN)}, {v(OTH + 2)}")
    a(f"v_mul_f32 {v(MEAN)}, 0.5, {v(MEAN)}")
    a(f"v_add_f32 {v(M2)}, {v(M2)}, {v(OTH + 3)}")
    a(f"v_mul_f32 {v(TM)}, {v(TM)}, {v(TM)}")
    a(f"v_fmac_f32 {v(M2)}, {f32(112.0)}, {v(TM)}")
    a(f"v_mul_f32 {v(M2)}, {f32(1 / 448)}, {v(M2)}")
    ln_scalars(a, MEAN, M2)
    for i in range(7):
        for j in range(4):
            ln_apply(a, PK + 4 * i + j, F + 8 * i + 2 * j, F + 8 * i + 2 * j + 1, MEAN, M2)
        a.dsop(f"ds_write_b128 {v(L16)}, {v(PK + 4 * i, 4)} offset:{HN + qt0 * 14336 + (ks0 + i) * 1024}")
    a.wait_ds_all()
    a("s_barrier")
    stamp(a, cfg, 2)

    def read_x(ks):
        for qt in range(2):
            a.dsop(f"ds_read_b128 {v(XO + 8 * (ks % 3) + 4 * qt, 4)}, {v(L16)} offset:{HN + qt * 14336 + ks * 1024}", ("x", ks))
    read_x(0)
    read_x(1)
    for ks in range(14):
        a.wait_ds(("x", ks))
        for n_, (qt, ab) in enumerate((qt, ab) for qt in range(2) for ab in range(2)):
            mfma(a, ACC + 8 * qt + 4 * ab, W(ab, ks), v(XO + 8 * (ks % 3) + 4 * qt, 4), ks == 0)
            if n_ == 0 and ks + 2 < 14:
                read_x(ks + 2)
    stamp(a, cfg, 3)
    a.nop(6)
    for qt in range(2):
        U, E = ACC + 8 * qt, F
        for i in range(0, 8, 2):
            a(f"v_pk_add_f32 {v(U + i, 2)}, {v(U + i, 2)}, {v(BIAS + i, 2)}")
            a(f"v_pk_mul_f32 {v(E + i, 2)}, {v(U + i, 2)}, {v(U + i, 2)}")
        for i in range(8):
            a(f"v_mov_b32 {v(T0)}, {s(sC1)}") if i == 0 and qt == 0 else None
            a(f"v_fma_f32 {v(E + i)}, {v(E + i)}, {s(sC2)}, {v(T0)}")
        for i in range(0, 8, 2):
            a(f"v_pk_mul_f32 {v(E + i, 2)}, {v(E + i, 2)}, {v(U + i, 2)}")
        for i in range(8):
            a(f"v_exp_f32 {v(E + i)}, {v(E + i)}")
        for i in range(8):
            a(f"v_add_f32 {v(E + i)}, 1.0, {v(E + i)}")
        for i in range(8):
            a(f"v_rcp_f32 {v(E + i)}, {v(E + i)}")
        for i in range(0, 8, 2):
            a(f"v_pk_mul_f32 {v(U + i, 2)}, {v(U + i, 2)}, {v(E + i, 2)}")
        for i in range(4):
            a(f"v_cvt_pk_bf16_f32 {v(PK + 4 * qt + i)}, {v(U + 2 * i)}, {v(U + 2 * i + 1)}")
        if qt:
            a(f"s_add_u32 {s(S_TMP)}, {s(sO)}, 57344")
        local_stores(a, [f"buffer_store_dwordx4 {v(PK + 4 * qt, 4)}, {v(L16)}, {WS_SRD}, {s(S_TMP if qt else sO)} offen"])
    a(f"v_mov_b32 {v(T0)}, {s(S_TAG)}")
    a("s_waitcnt vmcnt(0)")
    local_stores(a, [f"buffer_store_dword {v(T0)}, off, {WS_SRD}, {s(sF)}"])
    stamp(a, cfg, 4)
    flush_stamps(a, cfg, 5, 16 + w, T0)
    for r, step in ((sH, XT_SEG), (sO, H1_SEG), (sF, 224), (S_STEP, 1)):
        a(f"s_add_u32 {s(r)}, {s(r)}, {step * NFFN}")
    a(f"s_cmp_lt_u32 {s(S_STEP)}, {NSEG}")
    a(f"s_cbranch_scc1 {top}")
    a("s_endpgm")


def gen_f2(a, w, cfg):
    L16, DA, TRA, FA, PWA, PRA, HA, OA, T0, T1 = range(1, 11)
    HR, BIAS, XO, ACC = 12, 16, 20, 76
    PART, STAGE = 0, 20480
    sTT, sCG, sH1, sF, sH, sO = range(S_T0, S_T0 + 6)
    W = lambda ct, ks: acc(16 * ks + 4 * ct, 4)

    a.label(f"F2_W{w}")
    srd(a, S_X, 80, 1792 * 896)
    srd(a, S_AUX, 88, 896)
    srd(a, S_OUT, 96, 2048 * 896)
    a(f"s_sub_u32 {s(S_LOC)}, {s(S_LOC)}, 14")
    a(f"s_and_b32 {s(sTT)}, {s(S_LOC)}, 1")
    a(f"s_lshr_b32 {s(sCG)}, {s(S_LOC)}, 1")
    a(f"v_lshlrev_b32 {v(L16)}, 4, v0")
    a(f"v_lshrrev_b32 {v(T0)}, 3, v0")
    a(f"v_mul_u32_u24 {v(DA)}, 896, {v(T0)}")
    a(f"v_and_b32 {v(T1)}, 7, v0")
    a(f"v_lshl_add_u32 {v(DA)}, {v(T1)}, 4, {v(DA)}")
    a(f"v_lshrrev_b32 {v(T1)}, 4, v0")
    a(f"v_bfe_u32 {v(T0)}, v0, 2, 2")
    a(f"v_lshl_add_u32 {v(TRA)}, {v(T1)}, 3, {v(T0)}")
    a(f"v_lshlrev_b32 {v(TRA)}, 7, {v(TRA)}")
    a(f"v_and_b32 {v(T0)}, 3, v0")
    a(f"v_lshl_add_u32 {v(TRA)}, {v(T0)}, 3, {v(TRA)}")
    a(f"v_add_u32 {v(TRA)}, {STAGE + w * 28672}, {v(TRA)}")
    a(f"v_min_u32 {v(FA)}, 13, v0")
    a(f"v_lshlrev_b32 {v(FA)}, 2, {v(FA)}")
    a(f"v_and_b32 {v(T0)}, 15, v0")
    a(f"v_mul_u32_u24 {v(PWA)}, 272, {v(T0)}")
    a(f"v_lshl_add_u32 {v(PWA)}, {v(T1)}, 4, {v(PWA)}")
    a(f"v_add_u32 {v(PWA)}, {PART + w * 4352}, {v(PWA)}")
    a(f"v_add_u32 {v(T1)}, {4 * w}, {v(T1)}")
    a(f"v_mul_u32_u24 {v(PRA)}, 272, {v(T1)}")
    a(f"v_lshl_add_u32 {v(PRA)}, {v(T0)}, 4, {v(PRA)}")
    a(f"v_mul_u32_u24 {v(OA)}, 896, {v(T1)}")
    a(f"v_lshl_add_u32 {v(OA)}, {v(T0)}, 3, {v(OA)}")
    a(f"v_lshlrev_b32 {v(HA)}, 4, {v(T1)}")
    a(f"v_lshrrev_b32 {v(T1)}, 1, {v(T0)}")
    a(f"v_lshl_add_u32 {v(HA)}, {v(T1)}, 8, {v(HA)}")
    a(f"v_and_b32 {v(T1)}, 1, {v(T0)}")
    a(f"v_lshl_add_u32 {v(HA)}, {v(T1)}, 3, {v(HA)}")
    a(f"v_lshlrev_b32 {v(T0)}, 3, {v(T0)}")
    a(f"s_lshl_b32 {s(S_TMP)}, {s(sCG)}, 7")
    a("s_waitcnt lgkmcnt(0)")
    a(f"buffer_load_dwordx2 {v(HR, 2)}, {v(T0)}, {s(S_AUX, 4)}, {s(S_TMP)} offen")
    a(f"s_add_u32 {s(S_TMP)}, {s(S_TMP)}, {448 * w * 896}")
    for half in range(2):
        for i in range(28):
            a(f"s_mov_b32 m0, {STAGE + w * 28672 + i * 1024}")
            a(f"s_add_u32 {s(S_TMP + 1)}, {s(S_TMP)}, {(half * 224 + i * 8) * 896}")
            a(f"buffer_load_dwordx4 {v(DA)}, {s(S_X, 4)}, {s(S_TMP + 1)} offen lds")
        a("s_waitcnt vmcnt(0)")
        for k in range(7):
            for ct in range(4):
                for q in range(2):
                    a(f"ds_read_b64_tr_b16 {acc(16 * (7 * half + k) + 4 * ct + 2 * q, 2)}, {v(TRA)} offset:{k * 4096 + q * 512 + ct * 32}")
            a("s_waitcnt lgkmcnt(0)")
    unpack(a, BIAS, HR, 2)
    a(f"s_mul_i32 {s(sH1)}, {s(S_GRP)}, {H1_SEG}")
    a(f"s_mul_i32 {s(S_TMP)}, {s(sTT)}, 57344")
    a(f"s_add_u32 {s(sH1)}, {s(sH1)}, {s(S_TMP)}")
    a(f"s_add_u32 {s(sH1)}, {s(sH1)}, {WS['H1T'] + w * 14336}")
    a(f"s_mul_i32 {s(sF)}, {s(S_GRP)}, 224")
    a(f"s_add_u32 {s(sF)}, {s(sF)}, {WS['HF'] + w * 56}")
    a(f"s_mul_i32 {s(sO)}, {s(S_GRP)}, {XT_SEG}")
    a(f"s_mul_i32 {s(S_TMP)}, {s(sTT)}, 14336")
    a(f"s_add_u32 {s(sO)}, {s(sO)}, {s(S_TMP)}")
    a(f"s_lshl_b32 {s(S_TMP)}, {s(sCG)}, 11")
    a(f"s_add_u32 {s(sH)}, {s(sO)}, {s(S_TMP)}")
    a(f"s_add_u32 {s(sH)}, {s(sH)}, {WS['HT']}")
    a(f"s_lshl_b32 {s(S_TMP)}, {s(sCG)}, 7")
    a(f"s_add_u32 {s(sO)}, {s(sO)}, {s(S_TMP)}")
    a(f"s_mov_b32 {s(S_STEP)}, {s(S_GRP)}")

    top = f"F2_SEG{w}"
    a.label(top)
    a.ds, a.vm = [], []
    a("s_barrier")
    stamp(a, cfg, 0)
    wait_flag(a, T0, f"buffer_load_dword {v(T0)}, {v(FA)}, {WS_SRD}, {s(sF)} offen sc1", sleep=max(1, cfg.get('psleep', 0)), landed=False)
    stamp(a, cfg, 1)
    a(f"s_mov_b32 {s(S_TMP)}, {s(sH1)}")
    for ks in range(14):
        if ks and ks % 4 == 0:
            a(f"s_add_u32 {s(S_TMP)}, {s(S_TMP)}, 4096")
        a.vmop(f"buffer_load_dwordx4 {v(XO + 4 * ks, 4)}, {v(L16)}, {WS_SRD}, {s(S_TMP)} offen offset:{(ks % 4) * 1024} sc1", ks)
    a.vmop(f"buffer_load_dwordx2 {v(HR, 2)}, {v(HA)}, {WS_SRD}, {s(sH)} offen sc1", "h")
    for ks in range(14):
        a.wait_vm(ks)
        for ct in range(4):
            mfma(a, ACC + 4 * ct, W(ct, ks), v(XO + 4 * ks, 4), ks == 0)
    a.nop(5)
    for ct in range(4):
        a.dsop(f"ds_write_b128 {v(PWA)}, {v(ACC + 4 * ct, 4)} offset:{64 * ct}")
    a.wait_vm("h")
    unpack(a, XO, HR, 2)
    a.wait_ds_all()
    a("s_barrier")
    for wv in range(4):
        a.dsop(f"ds_read_b128 {v(ACC + 4 * wv, 4)}, {v(PRA)} offset:{PART + wv * 4352}")
    a.wait_ds_all()
    for i in (0, 2):
        a(f"v_pk_add_f32 {v(ACC + i, 2)}, {v(ACC + i, 2)}, {v(ACC + 4 + i, 2)}")
        a(f"v_pk_add_f32 {v(ACC + 8 + i, 2)}, {v(ACC + 8 + i, 2)}, {v(ACC + 12 + i, 2)}")
        a(f"v_pk_add_f32 {v(ACC + i, 2)}, {v(ACC + i, 2)}, {v(ACC + 8 + i, 2)}")
        a(f"v_pk_add_f32 {v(ACC + i, 2)}, {v(ACC + i, 2)}, {v(BIAS + i, 2)}")
        a(f"v_cvt_pk_bf16_f32 {v(ACC + i + 1)}, {v(ACC + i)}, {v(ACC + i + 1)}")
        a(f"v_lshlrev_b32 {v(ACC + i)}, 16, {v(ACC + i + 1)}")
        a(f"v_and_b32 {v(ACC + i + 1)}, 0xffff0000, {v(ACC + i + 1)}")
        a(f"v_pk_add_f32 {v(ACC + i, 2)}, {v(ACC + i, 2)}, {v(XO + i, 2)}")
        a(f"v_cvt_pk_bf16_f32 {v(HR + i // 2)}, {v(ACC + i)}, {v(ACC + i + 1)}")
    a(f"buffer_store_dwordx2 {v(HR, 2)}, {v(OA)}, {s(S_OUT, 4)}, {s(sO)} offen")
    stamp(a, cfg, 2)
    flush_stamps(a, cfg, 3, 20 + w, T0)
    for r, step in ((sH1, H1_SEG), (sF, 224), (sH, XT_SEG), (sO, XT_SEG), (S_STEP, 1)):
        a(f"s_add_u32 {s(r)}, {s(r)}, {step * NFFN}")
    a(f"s_cmp_lt_u32 {s(S_STEP)}, {NSEG}")
    a(f"s_cbranch_scc1 {top}")
    a("s_endpgm")


def gen_reset(a, cfg):
    L16, T0, T1, P0, P1 = 1, 2, 3, 8, 12
    nw = NFFN * 128
    srd(a, S_AUX, 8, MEM_SZ)
    a(f"v_lshlrev_b32 {v(L16)}, 4, v0")
    a(f"s_lshl_b32 {s(S_TMP + 4)}, {s(S_GRP)}, 5")
    a(f"s_add_u32 {s(S_TMP + 4)}, {s(S_TMP + 4)}, {s(S_LOC)}")
    a(f"s_lshl_b32 {s(S_TMP)}, {s(S_TMP + 4)}, 2")
    a(f"s_add_u32 {s(S_TMP)}, {s(S_TMP)}, {s(S_WAVE)}")
    for r in range(4):
        a(f"v_mov_b32 {v(P0 + r)}, -1")
    a(f"v_and_b32 {v(T0)}, 7, v0")
    a(f"v_mul_u32_u24 {v(T0)}, 896, {v(T0)}")
    a(f"v_lshrrev_b32 {v(T1)}, 3, v0")
    a(f"v_lshl_add_u32 {v(T0)}, {v(T1)}, 4, {v(T0)}")
    a(f"s_mov_b32 {s(S_WS + 2)}, {POISON_END}")
    a(f"s_lshl_b32 {s(S_TMP + 2)}, {s(S_TMP)}, 10")
    a(f"s_add_u32 {s(S_TMP + 2)}, {s(S_TMP + 2)}, {POISON_BEGIN}")
    a("s_waitcnt lgkmcnt(0)")
    gch = (WS['MEMG'] - WS['MEML']) // 1024
    a(f"v_mov_b32 {v(T1)}, {s(S_TAG)}")
    a(f"s_lshl_b32 {s(S_TMP + 4)}, {s(S_TMP + 4)}, 2")

    def announce(at):
        a("s_waitcnt vmcnt(0)")
        a("s_barrier")
        a(f"buffer_store_dword {v(T1)}, off, {WS_SRD}, {s(S_TMP + 4)} offset:{WS['ARR'] + at} sc1")
    early = -(-(WS['PX'] - POISON_BEGIN) // (nw * 1024))
    for i in range(-(-(POISON_END - POISON_BEGIN) // (nw * 1024))):
        if i == early:
            announce(1024)
            wait_first_y(a, T0, seg=NCLONE - 1)
        first = [c for c in (0, gch) if c // nw == i]
        src = P0
        if first:
            assert (first[0] + 6) // nw == i
            skip = a.newlabel("nomem")
            src = P1 + 4 * i
            for r in range(4):
                a(f"v_mov_b32 {v(src + r)}, -1")
            a(f"s_sub_u32 {s(S_TMP + 1)}, {s(S_TMP)}, {first[0] % nw}")
            a(f"s_cmp_lt_u32 {s(S_TMP + 1)}, 7")
            a(f"s_cbranch_scc0 {skip}")
            a(f"s_lshl_b32 {s(S_TMP + 1)}, {s(S_TMP + 1)}, 7")
            a(f"buffer_load_dwordx4 {v(src, 4)}, {v(T0)}, {s(S_AUX, 4)}, {s(S_TMP + 1)} offen")
            a("s_waitcnt vmcnt(0)")
            for r in range(4):
                a(f"v_min_u32 {v(src + r)}, -2, {v(src + r)}")
            a.label(skip)
        a(f"buffer_store_dwordx4 {v(src, 4)}, {v(L16)}, {WS_SRD}, {s(S_TMP + 2)} offen sc1")
        a(f"s_add_u32 {s(S_TMP + 2)}, {s(S_TMP + 2)}, {nw * 1024}")
    a(f"s_mov_b32 {s(S_WS + 2)}, {WS_BYTES}")
    announce(1536)
```

```python
from asmlib import v, acc, s
from layout import *
from roles_rec import S_WS, S_X, S_OUT, S_AUX, S_WAVE, S_T0, S_TMP, WS_SRD

W_BYTES = 448 * 4096 * 2
SCALE = 0.0625 * 1.4426950408889634


def f32(x):
    import struct
    return hex(struct.unpack("<I", struct.pack("<f", x))[0])


def srd(a, base, arg, nbytes):
    a(f"s_load_dwordx2 {s(base, 2)}, s[0:1], {arg}")
    a(f"s_mov_b32 {s(base + 2)}, {nbytes}")
    a(f"s_mov_b32 {s(base + 3)}, 0x00020000")


def row_sum4(a, x, tmp):
    for op in ("v_permlane32_swap_b32", "v_permlane16_swap_b32"):
        a(f"v_mov_b32 {v(tmp)}, {v(x)}")
        a.nop(2)
        a(f"{op} {v(tmp)}, {v(x)}")
        a(f"v_add_f32 {v(x)}, {v(x)}, {v(tmp)}")


def round_bf16(a, x):
    a(f"v_cvt_pk_bf16_f32 {v(x)}, {v(x)}, {v(x)}")
    a(f"v_and_b32 {v(x)}, 0xffff0000, {v(x)}")


def ln_scalars(a, mean, var):
    round_bf16(a, mean)
    round_bf16(a, var)
    a(f"v_add_f32 {v(var)}, {f32(1e-5)}, {v(var)}")
    round_bf16(a, var)
    a(f"v_sqrt_f32 {v(var)}, {v(var)}")
    a.nop(1)
    round_bf16(a, var)
    a(f"v_rcp_f32 {v(var)}, {v(var)}")
    a.nop(1)


def ln_apply(a, dst, lo, hi, mean, inv):
    a(f"v_sub_f32 {v(lo)}, {v(lo)}, {v(mean)}")
    a(f"v_sub_f32 {v(hi)}, {v(hi)}, {v(mean)}")
    a(f"v_cvt_pk_bf16_f32 {v(hi)}, {v(lo)}, {v(hi)}")
    a(f"v_lshlrev_b32 {v(lo)}, 16, {v(hi)}")
    a(f"v_and_b32 {v(hi)}, 0xffff0000, {v(hi)}")
    a(f"v_mul_f32 {v(lo)}, {v(lo)}, {v(inv)}")
    a(f"v_mul_f32 {v(hi)}, {v(hi)}, {v(inv)}")
    a(f"v_cvt_pk_bf16_f32 {v(dst)}, {v(lo)}, {v(hi)}")


def gen_pre(a, cfg):
    sH, sK, sL, sR, sO, sSC, sLB = range(S_T0, S_T0 + 7)
    L16, T0, T1, T2 = 1, 2, 3, 4
    RA, DA, DL = 8, 12, 20
    LEFT, RING = 0, 32768
    a(f"v_lshlrev_b32 {v(L16)}, 4, v0")
    a(f"s_and_b32 {s(sH)}, s2, 7")
    a(f"s_lshr_b32 {s(sK)}, s2, 3")
    a(f"s_cmp_lt_u32 {s(sK)}, 14")
    a("s_cbranch_scc0 PRE_NOTA")
    srd(a, S_X, 16, W_BYTES)
    srd(a, S_OUT, 24, W_BYTES)
    a("s_branch PRE_PROD")
    a.label("PRE_NOTA")
    a(f"s_cmp_lt_u32 {s(sK)}, 28")
    a("s_cbranch_scc0 PRE_LN")
    srd(a, S_X, 32, W_BYTES)
    srd(a, S_OUT, 40, W_BYTES)

    a.label("PRE_PROD")
    a.vm = []
    a(f"s_cmp_lt_u32 {s(sK)}, 14")
    a(f"s_cselect_b32 {s(sSC)}, 0, 14")
    a(f"s_sub_u32 {s(sK)}, {s(sK)}, {s(sSC)}")
    a(f"s_lshl_b32 {s(sH)}, {s(sH)}, 1")
    a(f"s_cmp_ge_u32 {s(sK)}, 7")
    a(f"s_cselect_b32 {s(S_TMP)}, 1, 0")
    a(f"s_add_u32 {s(sH)}, {s(sH)}, {s(S_TMP)}")
    a(f"s_mul_i32 {s(S_TMP)}, {s(S_TMP)}, 7")
    a(f"s_sub_u32 {s(sK)}, {s(sK)}, {s(S_TMP)}")
    a(f"v_lshrrev_b32 {v(T1)}, 5, v0")
    a(f"v_and_b32 {v(T2)}, 31, v0")
    for i in range(8):
        a(f"v_add_u32 {v(T0)}, {2 * i}, {v(T1)}")
        a(f"v_xor_b32 {v(DA + i)}, {v(T2)}, {v(T0)}")
        a(f"v_lshlrev_b32 {v(DA + i)}, 4, {v(DA + i)}")
        m = 2 * i
        d0 = 16 * (m >> 3) + 4 * ((m >> 2) & 1) + 8 * ((m >> 1) & 1)
        a(f"v_add_u32 {v(DL + i)}, {d0}, {v(T1)}")
        a(f"v_lshl_add_u32 {v(DL + i)}, {v(DL + i)}, 13, {v(DA + i)}")
        a(f"v_lshl_add_u32 {v(DA + i)}, {v(T0)}, 13, {v(DA + i)}")
    a(f"s_lshl_b32 {s(sL)}, {s(sK)}, 19")
    a(f"s_lshl_b32 {s(S_TMP)}, {s(sH)}, 9")
    a(f"s_add_u32 {s(sL)}, {s(sL)}, {s(S_TMP)}")
    a(f"s_lshr_b32 {s(S_TMP)}, {s(S_WAVE)}, 1")
    a(f"s_lshl_b32 {s(S_TMP)}, {s(S_TMP)}, 18")
    a(f"s_add_u32 {s(sL)}, {s(sL)}, {s(S_TMP)}")
    a(f"s_and_b32 {s(S_TMP)}, {s(S_WAVE)}, 1")
    a(f"s_lshl_b32 {s(S_TMP)}, {s(S_TMP)}, 14")
    a(f"s_add_u32 {s(sL)}, {s(sL)}, {s(S_TMP)}")
    a(f"s_lshl_b32 {s(sLB)}, {s(S_WAVE)}, 13")
    a("s_waitcnt lgkmcnt(0)")
    for i in range(8):
        a(f"s_add_u32 m0, {s(sLB)}, {LEFT + i * 1024}")
        a.nop(1)
        a.vmop(f"buffer_load_dwordx4 {v(DL + i)}, {s(S_X, 4)}, {s(sL)} offen lds", "l")
    a(f"v_and_b32 {v(T0)}, 15, v0")
    a(f"v_lshrrev_b32 {v(T1)}, 4, v0")
    for q in range(4):
        a(f"v_add_u32 {v(T2)}, {4 * q}, {v(T1)}")
        a(f"v_xor_b32 {v(T2)}, {v(T2)}, {v(T0)}")
        a(f"v_lshlrev_b32 {v(T2)}, 4, {v(T2)}")
        a(f"v_lshl_add_u32 {v(RA + q)}, {v(T0)}, 9, {v(T2)}")
    LOP = lambda t, ks: acc(4 * (ks * 4 + t), 4)

    def read_left():
        a.wait_vm("l")
        a("s_barrier")
        for ks in range(8):
            for t in range(4):
                a.dsop(f"ds_read_b128 {LOP(t, ks)}, {v(RA + (ks & 3))} offset:{LEFT + t * 8192 + (ks >> 2) * 256}", ("l", ks))
            if ks % 2:
                a.wait_ds(("l", ks - 1))

    def finish(accs, out, scale, soff):
        for hi in range(2):
            for ab in range(2):
                c = accs + 4 * (2 * hi + ab)
                if scale:
                    for r in range(4):
                        a(f"v_mul_f32 {v(c + r)}, {s(sSC)}, {v(c + r)}")
                a(f"v_cvt_pk_bf16_f32 {v(out + 4 * hi + 2 * ab)}, {v(c)}, {v(c + 1)}")
                a(f"v_cvt_pk_bf16_f32 {v(out + 4 * hi + 2 * ab + 1)}, {v(c + 2)}, {v(c + 3)}")
            a.vmop(f"buffer_store_dwordx4 {v(out + 4 * hi, 4)}, {v(L16)}, {WS_SRD}, {s(soff)} offen offset:{1024 * hi} sc1")

    a(f"s_cmp_lg_u32 {s(sSC)}, 0")
    a("s_cbranch_scc1 PRE_B")
    vm_common = list(a.vm)

    ACC, OUT, BO, RB = 32, 64, 80, 144
    a(f"s_mul_i32 {s(sR)}, {s(S_WAVE)}, {112 * 8192}")
    a(f"s_lshl_b32 {s(S_TMP)}, {s(sH)}, 9")
    a(f"s_add_u32 {s(sR)}, {s(sR)}, {s(S_TMP)}")
    a(f"s_lshl_b32 {s(sLB)}, {s(S_WAVE)}, 15")
    a(f"s_add_u32 {s(sLB)}, {s(sLB)}, {RING}")

    def stage_a(j):
        for i in range(8):
            a(f"s_add_u32 m0, {s(sLB)}, {(j % 4) * 8192 + i * 1024}")
            a.nop(1)
            a.vmop(f"buffer_load_dwordx4 {v(DA + i)}, {s(S_OUT, 4)}, {s(sR)} offen lds", ("r", j))
        a(f"s_add_u32 {s(sR)}, {s(sR)}, {16 * 8192}")
    for j in range(4):
        stage_a(j)
    for q in range(4):
        a(f"v_add_u32 {v(RB + q)}, {s(sLB)}, {v(RA + q)}")
    a(f"s_mul_i32 {s(sO)}, {s(sH)}, {AL_HEAD}")
    a(f"s_mul_i32 {s(S_TMP)}, {s(S_WAVE)}, 100352")
    a(f"s_add_u32 {s(sO)}, {s(sO)}, {s(S_TMP)}")
    a(f"s_lshl_b32 {s(S_TMP)}, {s(sK)}, 11")
    a(f"s_add_u32 {s(sO)}, {s(sO)}, {s(S_TMP)}")
    a(f"s_add_u32 {s(sO)}, {s(sO)}, {WS['AL']}")
    a(f"s_mov_b32 {s(sSC)}, {f32(SCALE)}")
    read_left()

    def read_a(j, ks):
        if ks == 0:
            a.wait_vm(("r", j))
        a.dsop(f"ds_read_b128 {v(BO + 32 * (j & 1) + 4 * ks, 4)}, {v(RB + (ks & 3))} offset:{(j % 4) * 8192 + (ks >> 2) * 256}", ("b", j, ks))
    for ks in range(8):
        read_a(0, ks)
    for j in range(7):
        A0 = ACC + 16 * (j & 1)
        for ks in range(8):
            a.wait_ds(("l", ks))
            a.wait_ds(("b", j, ks))
            if ks == 7 and j + 4 < 7:
                stage_a(j + 4)
            for t in range(4):
                a(f"v_mfma_f32_16x16x32_bf16 {v(A0 + 4 * t, 4)}, {LOP(t, ks)}, {v(BO + 32 * (j & 1) + 4 * ks, 4)}, " + (v(A0 + 4 * t, 4) if ks else "0"))
                if t == 0 and j + 1 < 7:
                    read_a(j + 1, ks)
            if ks == 0 and j:
                finish(ACC + 16 * ((j - 1) & 1), OUT + 8 * (j & 1), True, sO)
                a(f"s_add_u32 {s(sO)}, {s(sO)}, 14336")
    a.nop(8)
    finish(ACC, OUT + 8, True, sO)
    a("s_branch PRE_DONE")

    a.label("PRE_B")
    a.vm, a.ds = vm_common, []
    TRA, ACC, BT, OUT = 5, 32, 144, 160
    a(f"s_mov_b32 {s(S_TMP)}, {-(-(1 << 32) // 14)}")
    for i in range(7):
        a(f"v_add_u32 {v(T0)}, {64 * i}, v0")
        a(f"v_mul_hi_u32 {v(DA + i)}, {v(T0)}, {s(S_TMP)}")
        a(f"v_mul_u32_u24 {v(T2)}, 14, {v(DA + i)}")
        a(f"v_sub_u32 {v(T0)}, {v(T0)}, {v(T2)}")
        a(f"v_mul_u32_u24 {v(DA + i)}, 896, {v(DA + i)}")
        a(f"v_lshl_add_u32 {v(DA + i)}, {v(T0)}, 4, {v(DA + i)}")
    a(f"s_mul_i32 {s(sLB)}, {s(S_WAVE)}, 28672")
    a(f"s_add_u32 {s(sLB)}, {s(sLB)}, {RING}")
    a(f"s_mul_i32 {s(sR)}, {s(sH)}, 229376")
    a(f"s_mul_i32 {s(S_TMP)}, {s(S_WAVE)}, 224")
    a(f"s_add_u32 {s(sR)}, {s(sR)}, {s(S_TMP)}")

    def stage_b(ks):
        for i in range(7):
            a(f"s_add_u32 m0, {s(sLB)}, {(ks % 4) * 7168 + i * 1024}")
            a.nop(1)
            a.vmop(f"buffer_load_dwordx4 {v(DA + i)}, {s(S_OUT, 4)}, {s(sR)} offen lds", ("r", ks))
        a(f"s_add_u32 {s(sR)}, {s(sR)}, {32 * 896}")
    for ks in range(4):
        stage_b(ks)
    a(f"v_bfe_u32 {v(T0)}, v0, 2, 2")
    a(f"v_lshl_add_u32 {v(T0)}, {v(T1)}, 3, {v(T0)}")
    a(f"v_mul_u32_u24 {v(TRA)}, 224, {v(T0)}")
    a(f"v_and_b32 {v(T0)}, 3, v0")
    a(f"v_lshl_add_u32 {v(TRA)}, {v(T0)}, 3, {v(TRA)}")
    a(f"v_add_u32 {v(TRA)}, {s(sLB)}, {v(TRA)}")
    a(f"s_lshr_b32 {s(sO)}, {s(sH)}, 2")
    a(f"s_mul_i32 {s(sO)}, {s(sO)}, 114688")
    a(f"s_and_b32 {s(S_TMP)}, {s(sH)}, 3")
    a(f"s_mul_i32 {s(S_TMP)}, {s(S_TMP)}, 28672")
    a(f"s_add_u32 {s(sO)}, {s(sO)}, {s(S_TMP)}")
    a(f"s_lshl_b32 {s(S_TMP)}, {s(sK)}, 11")
    a(f"s_add_u32 {s(sO)}, {s(sO)}, {s(S_TMP)}")
    a(f"s_add_u32 {s(sO)}, {s(sO)}, {WS['BL']}")
    read_left()
    seq = [(ks, j) for ks in range(4) for j in range(7)] + [(ks, j) for j in range(7) for ks in range(4, 8)]

    def read_b(i):
        ks, j = seq[i]
        if j == 0:
            a.wait_vm(("r", ks))
        for q in range(2):
            a.dsop(f"ds_read_b64_tr_b16 {v(BT + 4 * (i % 4) + 2 * q, 2)}, {v(TRA)} offset:{(ks % 4) * 7168 + j * 32 + 896 * q}", ("b", i))
    for i in range(3):
        read_b(i)

    def finish_b(j):
        a(f"s_mul_i32 {s(S_TMP)}, {s(S_WAVE)}, 7")
        a(f"s_add_u32 {s(S_TMP)}, {s(S_TMP)}, {j}")
        a(f"s_lshr_b32 {s(S_TMP + 1)}, {s(S_TMP)}, 1")
        a(f"s_mul_i32 {s(S_TMP + 1)}, {s(S_TMP + 1)}, {BL_CU}")
        a(f"s_and_b32 {s(S_TMP)}, {s(S_TMP)}, 1")
        a(f"s_mul_i32 {s(S_TMP)}, {s(S_TMP)}, 14336")
        a(f"s_add_u32 {s(S_TMP)}, {s(S_TMP)}, {s(S_TMP + 1)}")
        a(f"s_add_u32 {s(S_TMP)}, {s(S_TMP)}, {s(sO)}")
        finish(ACC + 16 * j, OUT + 8 * j, False, S_TMP)
    for i, (ks, j) in enumerate(seq):
        a.wait_ds(("l", ks))
        a.wait_ds(("b", i))
        if j == 6 and ks < 4:
            stage_b(ks + 4)
        for t in range(4):
            c = v(ACC + 16 * j + 4 * t, 4)
            a(f"v_mfma_f32_16x16x32_bf16 {c}, {LOP(t, ks)}, {v(BT + 4 * (i % 4), 4)}, " + (c if ks else "0"))
            if t == 0 and i + 3 < len(seq):
                read_b(i + 3)
        if ks == 4 and j:
            finish_b(j - 1)
    a.nop(1)
    finish_b(6)
    a("s_branch PRE_DONE")

    a.label("PRE_LN")
    srd(a, S_X, 0, 2048 * 896)
    a.vm = []
    LA, PK, F, SUM, VAR, TM = 5, 16, 80, 8, 9, 10
    a(f"s_lshl_b32 {s(sH)}, {s(sH)}, 2")
    a(f"s_add_u32 {s(sH)}, {s(sH)}, {s(sK)}")
    a(f"s_sub_u32 {s(sH)}, {s(sH)}, 28")
    a(f"s_lshl_b32 {s(sH)}, {s(sH)}, 2")
    a(f"s_add_u32 {s(sH)}, {s(sH)}, {s(S_WAVE)}")
    a(f"s_mul_i32 {s(sL)}, {s(sH)}, 14336")
    a(f"v_and_b32 {v(LA)}, 15, v0")
    a(f"v_mul_u32_u24 {v(LA)}, 896, {v(LA)}")
    a(f"v_lshrrev_b32 {v(T1)}, 4, v0")
    a(f"v_lshl_add_u32 {v(LA)}, {v(T1)}, 4, {v(LA)}")
    a("s_waitcnt lgkmcnt(0)")
    for ks in range(14):
        a.vmop(f"buffer_load_dwordx4 {v(PK + 4 * ks, 4)}, {v(LA)}, {s(S_X, 4)}, {s(sL)} offen offset:{ks * 64}", ks)
    a(f"v_mov_b32 {v(SUM)}, 0")
    a(f"v_mov_b32 {v(VAR)}, 0")
    for i in range(56):
        a.wait_vm(i // 4)
        a(f"v_lshlrev_b32 {v(F + 2 * i)}, 16, {v(PK + i)}")
        a(f"v_and_b32 {v(F + 2 * i + 1)}, 0xffff0000, {v(PK + i)}")
        a(f"v_add_f32 {v(SUM)}, {v(SUM)}, {v(F + 2 * i)}")
        a(f"v_add_f32 {v(VAR)}, {v(VAR)}, {v(F + 2 * i + 1)}")
    a(f"v_add_f32 {v(SUM)}, {v(SUM)}, {v(VAR)}")
    row_sum4(a, SUM, TM)
    a(f"v_mul_f32 {v(SUM)}, {f32(1 / 448)}, {v(SUM)}")
    a(f"v_mov_b32 {v(VAR)}, 0")
    a(f"v_mov_b32 {v(T0)}, 0")
    for i in range(56):
        a(f"v_sub_f32 {v(TM)}, {v(F + 2 * i)}, {v(SUM)}")
        a(f"v_sub_f32 {v(TM + 1)}, {v(F + 2 * i + 1)}, {v(SUM)}")
        a(f"v_fmac_f32 {v(VAR)}, {v(TM)}, {v(TM)}")
        a(f"v_fmac_f32 {v(T0)}, {v(TM + 1)}, {v(TM + 1)}")
    a(f"v_add_f32 {v(VAR)}, {v(VAR)}, {v(T0)}")
    row_sum4(a, VAR, TM)
    a(f"v_mul_f32 {v(VAR)}, {f32(1 / 448)}, {v(VAR)}")
    ln_scalars(a, SUM, VAR)
    a(f"s_add_u32 {s(sR)}, {s(sL)}, {WS['XT']}")
    a(f"s_add_u32 {s(sO)}, {s(sL)}, {WS['XP']}")
    for ks in range(14):
        p = PK + 4 * ks
        for i in range(4):
            ln_apply(a, p + i, F + 8 * ks + 2 * i, F + 8 * ks + 2 * i + 1, SUM, VAR)
        if ks and ks % 4 == 0:
            a(f"s_add_u32 {s(sR)}, {s(sR)}, 4096")
            a(f"s_add_u32 {s(sO)}, {s(sO)}, 4096")
        a(f"buffer_store_dwordx4 {v(p, 4)}, {v(L16)}, {WS_SRD}, {s(sR)} offen offset:{(ks % 4) * 1024} sc1")
        q = F + 8 * ks
        for i, src in enumerate((0, 2, 1, 3)):
            a(f"v_mov_b32 {v(q + i)}, {v(p + src)}")
        a.nop(1)
        a(f"v_permlane16_swap_b32 {v(q)}, {v(q + 1)}")
        a(f"v_permlane16_swap_b32 {v(q + 2)}, {v(q + 3)}")
        a(f"buffer_store_dwordx4 {v(q, 4)}, {v(L16)}, {WS_SRD}, {s(sO)} offen offset:{(ks % 4) * 1024} sc1")
```

```python
from asmlib import Asm, v, acc, s, interleave
from layout import *

S_WS = 4
S_X = 8
S_OUT = 12
S_AUX = 16
S_WAVE = 20
S_GRP = 21
S_LOC = 22
S_SLOW = 23
S_TO = 24
S_STEP = 25
S_T0 = 26
S_TMP = 40
S_TAG = 88
S_CLK = 48

IOTA = [0, 2, 1, 3]
WS_SRD = s(S_WS, 4)


def wblock(b, vbase, hi=None):
    n = 8 if hi is None else 4
    o = 0 if hi is None else 4 * hi
    return acc(8 * b + o, n) if b < 32 else v(vbase + 8 * (b - 32) + o, n)


def smf(a, d, x, w, idx, upper=False):
    a(f"v_smfmac_f32_16x16x64_bf16 {v(d, 4)}, {v(x, 4)}, {w}, {v(idx)}" + (" abid:1" if upper else ""))


def stream_load(a, dests, vaddr, soff, window=48):
    for i, d in enumerate(dests):
        if i and i % 4 == 0:
            a(f"s_add_u32 {s(soff)}, {s(soff)}, 4096")
        if i >= window and (i - window) % 8 == 0:
            a(f"s_waitcnt vmcnt({window - 8})")
        a(f"buffer_load_dwordx4 {d}, {v(vaddr)}, {WS_SRD}, {s(soff)} offen offset:{(i % 4) * 1024}")


def any_poison(a, regs, tmp):
    regs = list(regs)
    a(f"v_max3_u32 {v(tmp)}, {v(regs[0])}, {v(regs[1])}, {v(regs[2])}")
    rest = regs[3:]
    while len(rest) >= 2:
        a(f"v_max3_u32 {v(tmp)}, {v(tmp)}, {v(rest[0])}, {v(rest[1])}")
        rest = rest[2:]
    if rest:
        a(f"v_max_u32 {v(tmp)}, {v(tmp)}, {v(rest[0])}")
    a(f"v_cmp_eq_u32 vcc, -1, {v(tmp)}")


def poll(a, loads, regs, tmp):
    top, done = a.newlabel("poll"), a.newlabel("got")
    a.label(top)
    for l in loads:
        a(l)
    a("s_waitcnt vmcnt(0)")
    any_poison(a, regs, tmp)
    a(f"s_cbranch_vccz {done}")
    a(f"s_sub_u32 {s(S_TO)}, {s(S_TO)}, 1")
    a(f"s_cbranch_scc0 {top}")
    a("s_endpgm")
    a.label(done)


def poll_deep(a, loads, regs, tmp, under=(), depth=2):
    spin, done = a.newlabel("spin"), a.newlabel("got")
    for _ in range(depth - 1):
        for l in loads:
            a(l)
    a.label(spin)
    for l in loads:
        a(l)
    a(f"s_waitcnt vmcnt({len(loads) * (depth - 1)})")
    any_poison(a, regs, tmp)
    for f in under:
        f()
    a(f"s_cbranch_vccz {done}")
    a(f"s_sub_u32 {s(S_TO)}, {s(S_TO)}, 1")
    a(f"s_cbranch_scc0 {spin}")
    a("s_endpgm")
    a.label(done)


def wait_flag(a, reg, load, sleep=2, landed=True):
    top, first, done = a.newlabel("flag"), a.newlabel("first"), a.newlabel("set")
    if not landed:
        a(f"s_branch {first}")
    a.label(top)
    a(f"v_cmp_ne_u32 vcc, {s(S_TAG)}, {v(reg)}")
    a(f"s_cbranch_vccz {done}")
    a(f"s_sleep {sleep}")
    a.label(first)
    a(load)
    a("s_waitcnt vmcnt(0)")
    a(f"s_sub_u32 {s(S_TO)}, {s(S_TO)}, 1")
    a(f"s_cbranch_scc0 {top}")
    a("s_endpgm")
    a.label(done)


def wait_tasks(a, kind, t0, t1, w=0):
    if kind == "A":
        a(f"v_min_u32 {v(t0)}, 6, v0")
        a(f"v_lshlrev_b32 {v(t0)}, 5, {v(t0)}")
        a(f"s_and_b32 {s(S_TMP)}, {s(S_LOC)}, 1")
        a(f"s_mul_i32 {s(S_TMP)}, {s(S_TMP)}, 224")
        a(f"s_lshr_b32 {s(S_TMP + 1)}, {s(S_LOC)}, 1")
        a(f"s_lshl_b32 {s(S_TMP + 1)}, {s(S_TMP + 1)}, 2")
        a(f"s_add_u32 {s(S_TMP)}, {s(S_TMP)}, {s(S_TMP + 1)}")
    elif kind == "B":
        a(f"v_lshrrev_b32 {v(t0)}, 1, v0")
        a(f"v_min_u32 {v(t0)}, 13, {v(t0)}")
        a(f"v_lshlrev_b32 {v(t0)}, 5, {v(t0)}")
        a(f"v_and_b32 {v(t1)}, 1, v0")
        a(f"v_lshl_add_u32 {v(t0)}, {v(t1)}, 2, {v(t0)}")
        a(f"s_mov_b32 {s(S_TMP)}, {448 + 8 * w}")
    elif kind == "L":
        a(f"v_and_b32 {v(t0)}, 31, v0")
        a(f"v_lshlrev_b32 {v(t0)}, 2, {v(t0)}")
        a(f"s_mov_b32 {s(S_TMP)}, 896")
    else:
        a(f"v_min_u32 {v(t0)}, {63 if kind == 'LZ' else 47}, v0")
        a(f"v_lshlrev_b32 {v(t0)}, 3, {v(t0)}")
        top, done = a.newlabel("lz"), a.newlabel("lzok")
        a.label(top)
        a(f"buffer_load_dwordx2 {v(t1, 2)}, {v(t0)}, {WS_SRD}, 0 offen offset:{WS['ARR'] + (896 if kind == 'LZ' else 1536)} sc1")
        a("s_waitcnt vmcnt(0)")
        a(f"v_cmp_ne_u32 vcc, {s(S_TAG)}, {v(t1)}")
        a(f"v_cmp_ne_u32 {s(S_TMP, 2)}, {s(S_TAG)}, {v(t1 + 1)}")
        a(f"s_or_b64 vcc, vcc, {s(S_TMP, 2)}")
        a(f"s_cbranch_vccz {done}")
        a("s_sleep 4")
        a(f"s_sub_u32 {s(S_TO)}, {s(S_TO)}, 1")
        a(f"s_cbranch_scc0 {top}")
        a("s_endpgm")
        a.label(done)
        return
    wait_flag(a, t1, f"buffer_load_dword {v(t1)}, {v(t0)}, {WS_SRD}, {s(S_TMP)} offen offset:{WS['ARR']} sc1", sleep=4, landed=False)


def wait_first_y(a, tmp, seg_reg=None, seg=0):
    if seg_reg is not None:
        a(f"s_mul_i32 {s(S_TMP)}, {s(seg_reg)}, 224")
        a(f"s_add_u32 {s(S_TMP)}, {s(S_TMP)}, {WS['YF']}")
    else:
        a(f"s_mov_b32 {s(S_TMP)}, {WS['YF'] + 224 * seg}")
    wait_flag(a, tmp, f"buffer_load_dword {v(tmp)}, off, {WS_SRD}, {s(S_TMP)} sc1", sleep=8, landed=False)


def local_stores(a, stores, scc_set=False):
    slow, done = a.newlabel("wt"), a.newlabel("st")
    if not scc_set:
        a(f"s_cmp_lg_u32 {s(S_SLOW)}, 0")
    a(f"s_cbranch_scc1 {slow}")
    for st in stores:
        a(st)
    a(f"s_branch {done}")
    a.label(slow)
    for st in stores:
        a(st + " sc1")
    a.label(done)


def index_reg(a, reg, tmp):
    a(f"v_and_b32 {v(tmp)}, 8, v0")
    a(f"v_cmp_eq_u32 vcc, 0, {v(tmp)}")
    a(f"v_mov_b32 {v(tmp)}, 0x88884444")
    a(f"v_mov_b32 {v(reg)}, 0xddddeeee")
    a(f"v_cndmask_b32 {v(reg)}, {v(reg)}, {v(tmp)}, vcc")


def iota_reg(a, reg, tmp):
    a(f"v_bfe_u32 {v(reg)}, v0, 5, 1")
    a(f"v_bfe_u32 {v(tmp)}, v0, 4, 1")
    a(f"v_lshl_add_u32 {v(reg)}, {v(tmp)}, 1, {v(reg)}")


def stamp(a, cfg, k):
    if cfg.get("stamps", 0) >> k & 1:
        a(f"{'s_memrealtime' if cfg.get('rt') else 's_memtime'} {s(S_CLK + 2 * k, 2)}")


def flush_stamps(a, cfg, n, slot, tmp):
    if not cfg.get("stamps"):
        return
    a("s_waitcnt lgkmcnt(0)")
    a.ds = []
    a(f"s_lshl_b32 {s(S_TMP)}, {s(S_STEP)}, 6")
    a(f"s_add_u32 {s(S_TMP)}, {s(S_TMP)}, {WS['DBG'] + slot * 4096}")
    skip = a.newlabel("nostamp")
    a(f"s_cmp_lg_u32 {s(S_LOC)}, {cfg.get('stamp_loc', 0)}")
    a(f"s_cbranch_scc1 {skip}")
    for k in range(n):
        a(f"v_mov_b32 {v(tmp)}, {s(S_CLK + 2 * k)}")
        a(f"buffer_store_dword {v(tmp)}, off, {WS_SRD}, {s(S_TMP)} offset:{4 * k}")
    a(f"v_mov_b32 {v(tmp)}, {s(S_TO)}")
    a(f"buffer_store_dword {v(tmp)}, off, {WS_SRD}, {s(S_TMP)} offset:60")
    a(f"s_add_u32 {s(S_TMP + 1)}, {s(S_STEP)}, -1")
    a(f"s_cmp_lt_u32 {s(S_TMP + 1)}, {cfg.get('last_step', 61)}")
    a(f"s_cbranch_scc1 {skip}")
    a(f"s_memrealtime {s(S_CLK + 28, 2)}")
    a("s_waitcnt lgkmcnt(0)")
    a(f"v_mov_b32 {v(tmp)}, {s(S_CLK + 28)}")
    a(f"buffer_store_dword {v(tmp)}, off, {WS_SRD}, {s(S_TMP)} offset:56")
    a(f"v_mov_b32 {v(tmp)}, {s(S_CLK + 30)}")
    a(f"buffer_store_dword {v(tmp)}, off, {WS_SRD}, {s(S_TMP)} offset:52")
    a.label(skip)


def milestone(a, cfg, k, tmp):
    if not cfg.get("stamps"):
        return
    a("s_memrealtime s[92:93]")
    a("s_lshl_b32 s90, s2, 2")
    a(f"s_add_u32 s90, s90, {s(S_WAVE)}")
    a("s_lshl_b32 s90, s90, 5")
    a(f"s_add_u32 s90, s90, {WS['DBG'] + 0x28000}")
    a("s_waitcnt lgkmcnt(0)")
    a(f"v_mov_b32 {v(tmp)}, s92")
    a(f"buffer_store_dword {v(tmp)}, off, {WS_SRD}, s90 offset:{4 * k}")
    if k == 0:
        a(f"s_lshl_b32 s91, {s(S_GRP)}, 8")
        a(f"s_add_u32 s91, s91, {s(S_LOC)}")
        a(f"v_mov_b32 {v(tmp)}, s91")
        a(f"buffer_store_dword {v(tmp)}, off, {WS_SRD}, s90 offset:28")


def keep_stamps(a, cfg, n, base):
    if cfg.get("stamps"):
        a(f"s_mov_b32 m0, {s(S_STEP)}")
        for k in range(n):
            a(f"v_writelane_b32 {v(base + k)}, {s(S_CLK + 2 * k)}, m0")


def dump_stamps(a, cfg, n, base, slot, lane16):
    if not cfg.get("stamps"):
        return
    skip = a.newlabel("nodump")
    a(f"s_cmp_lg_u32 {s(S_LOC)}, {cfg.get('stamp_loc', 0)}")
    a(f"s_cbranch_scc1 {skip}")
    a(f"v_lshlrev_b32 {v(lane16)}, 2, {v(lane16)}")
    a(f"s_mov_b32 {s(S_TMP)}, {WS['DBG'] + slot * 4096}")
    for k in range(n):
        a(f"buffer_store_dword {v(base + k)}, {v(lane16)}, {WS_SRD}, {s(S_TMP)} offen offset:{4 * k}")
    a.label(skip)


def gen_s1(a, w, cfg):
    L16, XKA, MKA, TWA, TRA, SWA, SRA, SRM, PTA, PMA, IDX, T0, T1 = range(1, 14)
    TACC, MA, MK, XK, WV = 16, 44, 72, 88, 120
    MEMIMG, TBUF, SBUF = 0, 8192 + 2048 * w, 16384
    sMEM, sP, sPM, sX0, sX1, sY, sR, sRDY = range(S_T0, S_T0 + 8)
    p0 = cfg.get('ypieces', 3)
    blk = lambda j, k: wblock(j * 7 + k, WV)
    own = [2 * w, 2 * w + 1] if w < 3 else [5, 6]
    share = own if w < 3 else [6]
    others = [k for k in range(7) if k not in own]
    T = lambda j, r=0: TACC + 4 * j + r
    TOP0, TOP1 = T(0), T(1)
    T1D = T(6)
    SC = [MA + 4 * own[0], MA + 4 * own[1], 12]

    a.label(f"S1_W{w}")
    a(f"v_lshlrev_b32 {v(L16)}, 4, v0")
    wait_tasks(a, "A", T0, T1)
    a(f"s_mul_i32 {s(S_TMP)}, {s(S_LOC)}, {AL_HEAD}")
    a(f"s_add_u32 {s(S_TMP)}, {s(S_TMP)}, {WS['AL'] + w * 100352}")
    stream_load(a, [wblock(b, WV, hi) for b in range(49) for hi in range(2)], L16, S_TMP)
    a(f"v_and_b32 {v(T0)}, 15, v0")
    a(f"v_lshrrev_b32 {v(T1)}, 4, v0")
    a(f"v_add_u32 {v(MKA)}, {14 * w}, {v(T1)}")
    a(f"v_lshrrev_b32 {v(XKA)}, 2, {v(MKA)}")
    a(f"v_lshlrev_b32 {v(XKA)}, 10, {v(XKA)}")
    a(f"v_and_b32 {v(SWA)}, 3, {v(MKA)}")
    a(f"v_lshl_add_u32 {v(SWA)}, {v(SWA)}, 4, {v(T0)}")
    a(f"v_lshl_add_u32 {v(XKA)}, {v(SWA)}, 4, {v(XKA)}")
    a(f"v_and_b32 {v(SWA)}, 7, v0")
    a(f"v_lshlrev_b32 {v(SWA)}, 4, {v(SWA)}")
    a(f"v_lshl_add_u32 {v(MKA)}, {v(MKA)}, 7, {v(SWA)}")
    iota_reg(a, PTA, PMA)
    a(f"v_lshlrev_b32 {v(TWA)}, 2, {v(PTA)}")
    a(f"v_lshl_add_u32 {v(TWA)}, {v(T0)}, 4, {v(TWA)}")
    a(f"v_add_u32 {v(TWA)}, {TBUF}, {v(TWA)}")
    a(f"v_mul_u32_u24 {v(SWA)}, 1536, {v(PTA)}")
    a(f"v_lshl_add_u32 {v(SWA)}, {v(T0)}, 4, {v(SWA)}")
    a(f"v_add_u32 {v(SWA)}, {SBUF + (w >> 1) * 256 + (w & 1) * 8}, {v(SWA)}")
    a(f"v_bfe_u32 {v(TRA)}, v0, 2, 2")
    a(f"v_lshl_add_u32 {v(TRA)}, {v(T1)}, 3, {v(TRA)}")
    a(f"v_lshlrev_b32 {v(TRA)}, 5, {v(TRA)}")
    a(f"v_and_b32 {v(PMA)}, 3, v0")
    a(f"v_lshl_add_u32 {v(TRA)}, {v(PMA)}, 3, {v(TRA)}")
    a(f"v_add_u32 {v(TRA)}, {TBUF}, {v(TRA)}")
    a(f"v_lshrrev_b32 {v(T1)}, 5, v0")
    a(f"v_bfe_u32 {v(SRA)}, v0, 4, 1")
    a(f"v_lshlrev_b32 {v(SRA)}, 9, {v(SRA)}")
    a(f"v_lshl_add_u32 {v(SRA)}, {v(T1)}, 8, {v(SRA)}")
    a(f"v_lshl_add_u32 {v(SRA)}, {v(T0)}, 4, {v(SRA)}")
    a(f"v_add_u32 {v(SRA)}, {SBUF + w * 1536}, {v(SRA)}")
    a(f"v_and_b32 {v(SRM)}, 7, v0")
    a(f"v_lshlrev_b32 {v(SRM)}, 4, {v(SRM)}")
    a(f"v_lshl_add_u32 {v(SRM)}, {v(T1)}, 8, {v(SRM)}")
    a(f"v_add_u32 {v(SRM)}, {SBUF + w * 1536 + 1024}, {v(SRM)}")
    a(f"v_add_u32 {v(T1)}, {2 * w}, {v(T1)}")
    a(f"v_bfe_u32 {v(PTA)}, v0, 3, 2")
    a(f"v_lshlrev_b32 {v(PTA)}, 7, {v(PTA)}")
    a(f"v_lshl_add_u32 {v(PTA)}, {v(T1)}, 4, {v(PTA)}")
    a(f"v_and_b32 {v(T0)}, 7, v0")
    a(f"v_lshl_add_u32 {v(PTA)}, {v(T0)}, 1, {v(PTA)}")
    a(f"v_bfe_u32 {v(PMA)}, v0, 1, 1")
    a(f"v_lshlrev_b32 {v(PMA)}, 7, {v(PMA)}")
    a(f"v_lshl_add_u32 {v(PMA)}, {v(T1)}, 4, {v(PMA)}")
    a(f"v_bfe_u32 {v(T0)}, v0, 2, 1")
    a(f"v_lshl_add_u32 {v(PMA)}, {v(T0)}, 3, {v(PMA)}")
    a(f"v_and_b32 {v(T0)}, 1, v0")
    a(f"v_lshlrev_b32 {v(T0)}, 30, {v(T0)}")
    a(f"v_or_b32 {v(PTA)}, {v(PTA)}, {v(T0)}")
    a(f"v_or_b32 {v(PMA)}, {v(PMA)}, {v(T0)}")
    index_reg(a, IDX, T0)
    a(f"v_mov_b32 {v(T0)}, 0")
    a(f"v_lshlrev_b32 {v(T1)}, 2, v0")
    a(f"ds_write_b32 {v(T1)}, {v(T0)} offset:{TBUF + 7 * 256}")
    a(f"ds_write_b32 {v(T1)}, {v(T0)} offset:{MEMIMG + 7168}")
    a(f"s_mul_i32 {s(sMEM)}, {s(S_SLOW)}, {WS['MEMG'] - WS['MEML']}")
    a(f"s_add_u32 {s(sMEM)}, {s(sMEM)}, {WS['MEML'] + own[0] * 1024}")
    a(f"s_lshl_b32 {s(sP)}, {s(S_LOC)}, 9")
    a(f"s_add_u32 {s(sP)}, {s(sP)}, {WS['PB']}")
    a(f"s_lshr_b32 {s(sPM)}, {s(S_LOC)}, 1")
    a(f"s_lshl_b32 {s(sPM)}, {s(sPM)}, 8")
    a(f"s_and_b32 {s(S_TMP)}, {s(S_LOC)}, 1")
    a(f"s_lshl_b32 {s(S_TMP)}, {s(S_TMP)}, 2")
    a(f"s_add_u32 {s(sPM)}, {s(sPM)}, {s(S_TMP)}")
    a(f"s_add_u32 {s(sPM)}, {s(sPM)}, {WS['PB'] + 8192}")
    a(f"s_mov_b32 {s(S_X)}, {s(S_WS)}")
    a(f"s_or_b32 {s(S_X + 1)}, {s(S_WS + 1)}, 0x80000")
    a(f"s_mov_b32 {s(S_X + 2)}, {(8 - p0) * 128}")
    a(f"s_mov_b32 {s(S_X + 3)}, 0x00020000")
    a(f"s_lshl_b32 {s(sY)}, {s(S_LOC)}, 15")
    a(f"s_add_u32 {s(sY)}, {s(sY)}, {WS['YL'] + Y_SEG + w * 8192 + p0 * 1024}")
    a(f"s_mov_b32 {s(sR)}, {WS['YR'] + 128}")
    a(f"s_mov_b32 {s(S_TMP + 7)}, 0x3e800000")
    a(f"s_mov_b32 {s(sX0)}, {WS['XT']}")
    a(f"s_mov_b32 {s(sX1)}, {WS['XT'] + 14336}")
    a(f"s_mov_b32 {s(S_STEP)}, 0")
    a("s_waitcnt lgkmcnt(0)")
    a(f"v_lshrrev_b32 v0, 4, {v(L16)}")
    wait_tasks(a, "LZ", 14, 12)
    milestone(a, cfg, 1, T0)

    T0 = JUNK = 0
    top = f"S1_STEP{w}"
    a.label(top)
    a(f"buffer_load_dword {v(MK)}, off, {WS_SRD}, {s(sR)} sc1")
    for kt in range(2):
        for q in range(4):
            a(f"buffer_load_dwordx4 {v(XK + 16 * kt + 4 * q, 4)}, {v(XKA)}, {WS_SRD}, {s(sX1 if kt else sX0)} offen offset:{q * 1024}")
    for r in range(32):
        a(f"v_mov_b32 {v(12 + r)}, 0")
    stamp(a, cfg, 0)
    pa = [(j, k) for k in own for j in range(7)]
    poll_deep(a, [f"buffer_load_dwordx4 {v(MA + 4 * own[i], 4)}, {v(L16)}, {WS_SRD}, {s(sMEM)} offen offset:{1024 * i} sc1" for i in range(2)],
              range(MA + 4 * own[0], MA + 4 * own[0] + 8), T0,
              [lambda k=k: a.dsop(f"ds_write_b128 {v(L16)}, {v(MA + 4 * k, 4)} offset:{MEMIMG + 1024 * k}") for k in share],
              cfg.get("depth1", 2))
    stamp(a, cfg, 1)
    nh = cfg.get("nhead", 3)
    for n_, (j, k) in enumerate(pa[:nh]):
        smf(a, T(j), MA + 4 * k, blk(j, k), IDX)
        if n_ == 0:
            a(f"v_readfirstlane_b32 {s(sRDY)}, {v(MK)}")
    a.wait_ds_all()
    stamp(a, cfg, 5)
    a("s_barrier")
    stamp(a, cfg, 6)
    for n_, (j, k) in enumerate(pa[nh:]):
        if n_ < len(others):
            a.dsop(f"ds_read_b128 {v(MA + 4 * others[n_], 4)}, {v(L16)} offset:{MEMIMG + 1024 * others[n_]}", ("ma", others[n_]))
        smf(a, T(j), MA + 4 * k, blk(j, k), IDX)
        if n_ == 9:
            a("s_waitcnt vmcnt(0)")
        if n_ == 9 and cfg.get("assist", 1):
            skip = a.newlabel("noy")
            a(f"s_cmp_lt_u32 {s(S_LOC)}, 14")
            a(f"s_cselect_b32 {s(sRDY)}, {s(sRDY)}, 0")
            a(f"s_cmp_lg_u32 {s(sRDY)}, {s(S_TAG)}")
            a(f"s_cbranch_scc1 {skip}")
            a(f"buffer_load_dword {v(JUNK)}, {v(L16)}, {s(S_X, 4)}, {s(sY)} idxen sc1")
            a.label(skip)
        if 5 <= n_ < 9:
            a.dsop(f"ds_read_b128 {v(MK + 4 * (n_ - 5), 4)}, {v(MKA)} offset:{MEMIMG + 512 * (n_ - 5)}", "mk")

    def post(j):
        return [lambda: a(f"v_permlane32_swap_b32 {v(T(j, 0))}, {v(T(j, 2))}"),
                lambda: a(f"v_permlane32_swap_b32 {v(T(j, 1))}, {v(T(j, 3))}"),
                lambda: (a(f"v_add_f32 {v(T(j, 0))}, {v(T(j, 0))}, {v(T(j, 2))}"),
                         a(f"v_add_f32 {v(T(j, 1))}, {v(T(j, 1))}, {v(T(j, 3))}")),
                lambda: a(f"v_cvt_pk_bf16_f32 {v(T(j, 0))}, {v(T(j, 0))}, {v(T(j, 1))}"),
                lambda: a.dsop(f"ds_write_b32 {v(TWA)}, {v(T(j, 0))} offset:{256 * j}")]

    main, fill = [], {}
    for j in range(7):
        for k in others:
            def mm(j=j, k=k):
                if j == 0:
                    a.wait_ds(("ma", k))
                smf(a, T(j), MA + 4 * k, blk(j, k), IDX)
            main.append(mm)
    for j in range(6):
        for i, f in enumerate(post(j)):
            fill.setdefault(5 * (j + 1) + 2 + i, []).append(f)
    for q, gap in enumerate((0, 1, 2, 3, 4, 5, 6, 6)):
        fill.setdefault(gap, []).append(lambda q=q: a(f"v_mov_b32 {v(SC[0] + q)}, 0"))
    for q in range(2):
        fill.setdefault(26 + 5 * q, []).append(lambda q=q: a.dsop(f"ds_read_b64_tr_b16 {v(TOP0 + 2 * q, 2)}, {v(TRA)} offset:{128 * q}", "t0"))
    stamp(a, cfg, 7)
    fill.setdefault(4, []).append(lambda: stamp(a, cfg, 8))
    fill.setdefault(24, []).append(lambda: stamp(a, cfg, 9))
    fill.setdefault(34, []).append(lambda: stamp(a, cfg, 10))
    tail = [f for i in sorted(fill) if i >= 35 for f in fill[i]]
    interleave(a, main, {i: f for i, f in fill.items() if i < 35})
    a.wait_ds("t0")
    keys = [XK, XK + 16, MK]
    for t in range(3):
        smf(a, SC[t], TOP0, v(keys[t], 8), IDX, True)
        if t < len(tail):
            tail[t]()
    for f in post(6):
        f()
    for q in range(2):
        a.dsop(f"ds_read_b64_tr_b16 {v(TOP1 + 2 * q, 2)}, {v(TRA)} offset:{1024 + 128 * q}", "t1")
    stamp(a, cfg, 2)
    a.wait_ds("t1")
    for t in range(3):
        smf(a, SC[t], TOP1, v(keys[t] + 8, 8), IDX, True)
    a.nop(2)
    for t in range(3):
        a(f"v_permlane32_swap_b32 {v(SC[t])}, {v(SC[t] + 2)}")
        a(f"v_permlane32_swap_b32 {v(SC[t] + 1)}, {v(SC[t] + 3)}")
        a(f"v_add_f32 {v(SC[t])}, {v(SC[t])}, {v(SC[t] + 2)}")
        a(f"v_add_f32 {v(SC[t] + 1)}, {v(SC[t] + 1)}, {v(SC[t] + 3)}")
        a.dsop(f"ds_write_b64 {v(SWA)}, {v(SC[t], 2)} offset:{512 * t}")
    a.wait_ds_all()
    a("s_barrier")
    stamp(a, cfg, 3)
    R, Q = T(3), T(4)
    a.dsop(f"ds_read_b128 {v(R, 4)}, {v(SRA)}", "r")
    a.dsop(f"ds_read_b128 {v(Q, 4)}, {v(SRM)}", "q")
    a.wait_ds("r")
    a(f"v_pk_add_f32 {v(R, 2)}, {v(R, 2)}, {v(R + 2, 2)}")
    a.wait_ds("q")
    a(f"v_pk_add_f32 {v(Q, 2)}, {v(Q, 2)}, {v(Q + 2, 2)}")
    a.nop(1)
    a(f"v_permlane32_swap_b32 {v(R)}, {v(R + 1)}")
    a(f"v_permlane32_swap_b32 {v(Q)}, {v(Q + 1)}")
    A_, B_, M, M2 = R, Q, R + 2, R + 3
    a(f"v_add_f32 {v(A_)}, {v(R)}, {v(R + 1)}")
    a(f"v_add_f32 {v(B_)}, {v(Q)}, {v(Q + 1)}")

    def reduce32(op, under=()):
        under = list(under)
        for ctl in ("quad_perm:[1,0,3,2]", "quad_perm:[2,3,0,1]", "row_half_mirror", "row_mirror"):
            if under:
                a(under.pop(0))
                a.nop(1)
            else:
                a.nop(2)
            a(f"{op}_dpp {v(M)}, {v(M)}, {v(M)} {ctl} row_mask:0xf bank_mask:0xf")
        a(f"v_mov_b32 {v(M2)}, {v(M)}")
        a.nop(2)
        a(f"v_permlane16_swap_b32 {v(M2)}, {v(M)}")
        a(f"{op} {v(M)}, {v(M)}, {v(M2)}")

    a(f"v_max_f32 {v(M)}, {v(A_)}, {v(B_)}")
    reduce32("v_max_f32")
    a(f"v_sub_f32 {v(A_)}, {v(A_)}, {v(M)}")
    a(f"v_sub_f32 {v(B_)}, {v(B_)}, {v(M)}")
    a(f"v_exp_f32 {v(A_)}, {v(A_)}")
    a(f"v_exp_f32 {v(B_)}, {v(B_)}")
    a.nop(1)
    a(f"v_fma_f32 {v(M)}, {v(B_)}, {s(S_TMP + 7)}, {v(A_)}")
    reduce32("v_add_f32", [f"v_mov_b32_dpp {v(R + 1)}, {v(A_)} quad_perm:[1,0,3,2] row_mask:0xf bank_mask:0xf",
                           f"v_mov_b32_dpp {v(Q + 1)}, {v(B_)} quad_perm:[1,0,3,2] row_mask:0xf bank_mask:0xf"])
    a(f"v_rcp_f32 {v(M)}, {v(M)}")
    a(f"s_cmp_lg_u32 {s(S_SLOW)}, 0")
    a(f"v_pk_mul_f32 {v(R, 2)}, {v(R, 2)}, {v(M, 2)} op_sel_hi:[1,0] clamp")
    a(f"v_pk_mul_f32 {v(Q, 2)}, {v(Q, 2)}, {v(M, 2)} op_sel_hi:[1,0] clamp")
    a(f"v_cvt_pk_bf16_f32 {v(A_)}, {v(R)}, {v(R + 1)}")
    a(f"v_cvt_pk_bf16_f32 {v(B_)}, {v(Q)}, {v(Q + 1)}")
    local_stores(a, [f"buffer_store_dword {v(A_)}, {v(PTA)}, {WS_SRD}, {s(sP)} offen",
                     f"buffer_store_dword {v(B_)}, {v(PMA)}, {WS_SRD}, {s(sPM)} offen"], scc_set=True)
    stamp(a, cfg, 4)
    a(f"s_add_u32 {s(sR)}, {s(sR)}, 128")
    a(f"s_add_u32 {s(sY)}, {s(sY)}, {Y_SEG}")
    flush_stamps(a, cfg, 11, w, T1D)
    a(f"s_add_u32 {s(sMEM)}, {s(sMEM)}, {MEM_SZ}")
    a(f"s_add_u32 {s(sP)}, {s(sP)}, {PB_SZ}")
    a(f"s_add_u32 {s(sPM)}, {s(sPM)}, {PB_SZ}")
    a(f"s_add_u32 {s(sX0)}, {s(sX0)}, {XT_SEG}")
    a(f"s_add_u32 {s(sX1)}, {s(sX1)}, {XT_SEG}")
    a(f"s_add_u32 {s(S_STEP)}, {s(S_STEP)}, 1")
    a(f"s_cmp_lt_u32 {s(S_STEP)}, {NSEG - 1}")
    a(f"s_cbranch_scc1 {top}")
    a("s_endpgm")


class BRes:
    WL = 49152
    WV = 176

    def __init__(self, a, w, L16, IDX, MA, WT, ACC, ZW):
        self.a, self.w, self.L16, self.IDX, self.MA, self.WT, self.ACC, self.ZW = a, w, L16, IDX, MA, WT, ACC, ZW

    def blk(self, t, k, hi=None):
        return wblock(t * 7 + k, self.WV, hi)

    def lds_off(self, t, k, hi):
        return (t - 6) * 14336 + k * 2048 + hi * 1024

    def load(self, sloc, lbase):
        a, w = self.a, self.w
        a(f"s_mul_i32 {s(S_TMP)}, {s(sloc)}, {BL_CU}")
        a(f"s_add_u32 {s(S_TMP)}, {s(S_TMP)}, {WS['BL'] + w * 114688}")
        a(f"s_add_u32 {s(S_TMP + 1)}, {s(S_TMP)}, {6 * 14336}")
        a(f"s_add_u32 {s(S_TMP + 3)}, {s(S_TMP)}, {4 * 14336}")
        stream_load(a, [wblock(b, self.WV, hi) for b in range(28) for hi in range(2)], self.L16, S_TMP, window=40)
        for i in range(28):
            if i % 8 == 0:
                a("s_waitcnt vmcnt(40)")
            a(f"s_mov_b32 m0, {self.WL + w * 28672 + i * 1024}")
            a(f"s_add_u32 {s(S_TMP + 2)}, {s(S_TMP + 1)}, {i * 1024}")
            a(f"buffer_load_dwordx4 {v(self.L16)}, {WS_SRD}, {s(S_TMP + 2)} offen lds")
        dests = [wblock(b, self.WV, hi) for b in range(28, 42) for hi in range(2)]
        for i in range(0, 28, 4):
            a("s_waitcnt vmcnt(52)")
            stream_load(a, dests[i:i + 4], self.L16, S_TMP + 3)
            a(f"s_add_u32 {s(S_TMP + 3)}, {s(S_TMP + 3)}, 4096")
        a(f"v_add_u32 {v(lbase)}, {self.WL + w * 28672}, {v(self.L16)}")
        self.lbase = lbase

    def read_block(self, i, order, half=None):
        t, k = 6 + i // 7, order[i % 7]
        for hi in (range(2) if half is None else [half]):
            self.a.dsop(f"ds_read_b128 {v(self.WT + 8 * (i % 3) + 4 * hi, 4)}, {v(self.lbase)} offset:{self.lds_off(t, k, hi)}", ("wt", i))

    def zero_acc(self):
        for r in range(32):
            self.a(f"v_mov_b32 {v(self.ACC + r)}, 0")

    def cvt(self, t, slot):
        d = self.ZW + 8 * (t & 1) + 2 * (t >> 1)
        c = self.ACC + 4 * slot
        return [lambda: self.a(f"v_cvt_pk_bf16_f32 {v(d)}, {v(c)}, {v(c + 1)}"),
                lambda: self.a(f"v_cvt_pk_bf16_f32 {v(d + 1)}, {v(c + 2)}, {v(c + 3)}")]

    def mem_values(self, order, extra):
        a = self.a
        groups = ([0, 1, 2, 6], [3, 4, 5, 7])
        main, fill = [], {k: list(x) for k, x in extra.items()}
        for gi, tiles in enumerate(groups):
            for ki, k in enumerate(order):
                for ti, t in enumerate(tiles):
                    def mm(gi=gi, ki=ki, k=k, ti=ti, t=t):
                        if ti == 0 and gi == 0:
                            a.wait_ds(("ma", k))
                        if t >= 6:
                            a.wait_ds(("wt", gi * 7 + ki))
                            wr = v(self.WT + 8 * ((gi * 7 + ki) % 3), 8)
                        else:
                            wr = self.blk(t, k)
                        smf(a, self.ACC + 4 * (gi * 4 + ti), self.MA + 4 * k, wr, self.IDX)
                    main.append(mm)
                i = gi * 7 + ki
                if i + 3 < 14:
                    for hi in range(2):
                        fill.setdefault(len(main) + hi, []).append(lambda i=i, hi=hi: self.read_block(i + 3, order, hi))
        cv = [f for ti, t in enumerate(groups[0]) for f in self.cvt(t, ti)]
        for f, gap in zip(cv, (30, 31, 34, 35, 38, 39, 42, 43)):
            fill.setdefault(gap, []).append(f)
        interleave(a, main, fill)
        a.nop(3)
        for ti, t in enumerate(groups[1]):
            for f in self.cvt(t, 4 + ti):
                f()


def gen_s2(a, w, cfg):
    if cfg.get("quiet2"):
        cfg = {k: x for k, x in cfg.items() if k != "stamps"}
    L16, LB, PMA, PWA, PRA, MOA, IDX, FLG, T0, T1 = range(1, 11)
    MA, YB, ZW, PA, WT, ACC, O = 16, 44, 76, 92, 104, 128, 160
    MEMIMG, PART = 0, 8192
    sMEM, sP, sPM, sY, sY1, sF, sO = range(S_T0, S_T0 + 7)
    own = [2 * w, 2 * w + 1] if w < 3 else [6]
    order = own + [k for k in range(7) if k not in own]
    B = BRes(a, w, L16, IDX, MA, WT, ACC, ZW)
    ct_out = w & 1

    a.label(f"S2_W{w}")
    a(f"s_sub_u32 {s(S_LOC)}, {s(S_LOC)}, 16")
    a(f"v_lshlrev_b32 {v(L16)}, 4, v0")
    wait_tasks(a, "B", T0, T1, w)
    B.load(S_LOC, LB)
    a(f"v_and_b32 {v(T0)}, 15, v0")
    a(f"v_lshrrev_b32 {v(T1)}, 5, v0")
    a(f"v_lshlrev_b32 {v(PMA)}, 4, {v(T0)}")
    a(f"v_lshl_add_u32 {v(PMA)}, {v(T1)}, 8, {v(PMA)}")
    iota_reg(a, PWA, T1)
    a(f"v_lshlrev_b32 {v(PWA)}, 7, {v(PWA)}")
    a(f"v_lshl_add_u32 {v(PWA)}, {v(T0)}, 2, {v(PWA)}")
    a(f"v_add_u32 {v(PWA)}, {PART + w * 1024}, {v(PWA)}")
    a(f"v_lshlrev_b32 {v(PRA)}, 3, v0")
    a(f"v_add_u32 {v(PRA)}, {PART + ct_out * 512}, {v(PRA)}")
    a(f"v_lshrrev_b32 {v(T0)}, 3, v0")
    a(f"v_lshlrev_b32 {v(MOA)}, 4, {v(T0)}")
    a(f"v_bfe_u32 {v(T0)}, v0, 2, 1")
    a(f"v_lshl_add_u32 {v(MOA)}, {v(T0)}, 7, {v(MOA)}")
    a(f"v_and_b32 {v(T0)}, 3, v0")
    a(f"v_lshl_add_u32 {v(MOA)}, {v(T0)}, 2, {v(MOA)}")
    index_reg(a, IDX, T0)
    a(f"s_mul_i32 {s(sMEM)}, {s(S_SLOW)}, {WS['MEMG'] - WS['MEML']}")
    a(f"s_add_u32 {s(sMEM)}, {s(sMEM)}, {WS['MEML'] + own[0] * 1024}")
    a(f"s_mov_b32 {s(sP)}, {WS['PB'] + w * 2048}")
    a(f"s_mov_b32 {s(sPM)}, {WS['PB'] + 8192 + w * 512}")
    a(f"s_lshl_b32 {s(sY)}, {s(S_LOC)}, 15")
    a(f"s_add_u32 {s(sY)}, {s(sY)}, {WS['YL'] + w * 8192}")
    a(f"s_add_u32 {s(sY1)}, {s(sY)}, 4096")
    a(f"s_lshl_b32 {s(sF)}, {s(S_LOC)}, 4")
    a(f"s_add_u32 {s(sF)}, {s(sF)}, {WS['YF'] + w * 4}")
    a(f"s_lshl_b32 {s(sO)}, {s(S_LOC)}, 9")
    a(f"s_add_u32 {s(sO)}, {s(sO)}, {WS['MEML' if w < 2 else 'MEMG'] + MEM_SZ + ct_out * 256}")
    a(f"s_mov_b32 {s(S_STEP)}, 0")
    flag_load = f"buffer_load_dword {v(FLG)}, off, {WS_SRD}, {s(sF)} sc1"
    a(flag_load)
    wait_tasks(a, "LZ", T0, 12)
    milestone(a, cfg, 1, T0)
    wait_flag(a, FLG, flag_load)
    milestone(a, cfg, 2, T0)

    top = f"S2_STEP{w}"
    a.label(top)
    a.ds = []
    for i in range(3):
        B.read_block(i, order)
    for r in range(8):
        a(f"v_mov_b32 {v(O + r)}, 0")
    B.zero_acc()
    stamp(a, cfg, 0)
    poll_deep(a, [f"buffer_load_dwordx4 {v(MA + 4 * k, 4)}, {v(L16)}, {WS_SRD}, {s(sMEM)} offen offset:{1024 * i} sc1" for i, k in enumerate(own)],
              range(MA + 4 * own[0], MA + 4 * own[0] + 4 * len(own)), T0,
              [lambda k=k: a.dsop(f"ds_write_b128 {v(L16)}, {v(MA + 4 * k, 4)} offset:{MEMIMG + 1024 * k}") for k in own],
              cfg.get("depth3", 2))
    stamp(a, cfg, 1)
    a(f"s_add_u32 {s(sF)}, {s(sF)}, 224")
    a.wait_ds_all()
    a("s_barrier")
    keep_stamps(a, cfg, 6, 168)
    for k in order[len(own):]:
        a.dsop(f"ds_read_b128 {v(MA + 4 * k, 4)}, {v(L16)} offset:{MEMIMG + 1024 * k}", ("ma", k))
    yl = [f"buffer_load_dwordx4 {v(YB + 4 * i, 4)}, {v(L16)}, {WS_SRD}, {s(sY1 if i >= 4 else sY)} offen offset:{(i % 4) * 1024} sc1" for i in range(8)]
    yl = ([flag_load] if cfg.get("noy", 0) < 2 else []) + ([] if cfg.get("noy") else yl)
    extra = {}
    for i, x in enumerate(yl):
        extra.setdefault(i * cfg.get("ygap", 1) - 1, []).append(lambda x=x: a(x))
    B.mem_values(order, extra)
    stamp(a, cfg, 2)
    a("s_waitcnt vmcnt(0)")
    wait_flag(a, FLG, flag_load)
    stamp(a, cfg, 3)
    poll_deep(a, [f"buffer_load_dwordx4 {v(PA, 4)}, {v(L16)}, {WS_SRD}, {s(sP)} offen sc1",
                  f"buffer_load_dwordx4 {v(PA + 4, 4)}, {v(L16)}, {WS_SRD}, {s(sP)} offen offset:1024 sc1",
                  f"buffer_load_dwordx4 {v(PA + 8, 4)}, {v(PMA)}, {WS_SRD}, {s(sPM)} offen sc1"],
              range(PA, PA + 12), T0, (), cfg.get("depth2", 2))
    stamp(a, cfg, 4)
    for ct in range(2):
        for x, z in ((PA, YB), (PA + 4, YB + 16), (PA + 8, ZW)):
            smf(a, O + 4 * ct, x, v(z + 8 * ct, 8), IDX)
    for ct in range(2):
        o = O + 4 * ct
        if ct:
            a.nop(2)
        a(f"v_permlane32_swap_b32 {v(o)}, {v(o + 2)}")
        a(f"v_permlane32_swap_b32 {v(o + 1)}, {v(o + 3)}")
        a(f"v_add_f32 {v(o)}, {v(o)}, {v(o + 2)}")
        a(f"v_add_f32 {v(o + 1)}, {v(o + 1)}, {v(o + 3)}")
        a.dsop(f"ds_write2_b32 {v(PWA)}, {v(o)}, {v(o + 1)} offset0:{128 * ct} offset1:{128 * ct + 16}")
    a.wait_ds_all()
    a("s_barrier")
    for wv in range(4):
        a.dsop(f"ds_read_b64 {v(O + 2 * wv, 2)}, {v(PRA)} offset:{1024 * wv}", ("p", wv))
    a.wait_ds(("p", 1))
    a(f"v_pk_add_f32 {v(O, 2)}, {v(O, 2)}, {v(O + 2, 2)}")
    a.wait_ds(("p", 3))
    a(f"v_pk_add_f32 {v(O + 4, 2)}, {v(O + 4, 2)}, {v(O + 6, 2)}")
    a(f"v_pk_add_f32 {v(O, 2)}, {v(O, 2)}, {v(O + 4, 2)}")
    a(f"v_cvt_pk_bf16_f32 {v(O)}, {v(O)}, {v(O + 1)}")
    a(f"v_min_u32 {v(O)}, -2, {v(O)}")
    a(f"buffer_store_dword {v(O)}, {v(MOA)}, {WS_SRD}, {s(sO)} offen" + (" sc1" if w >= 2 else ""))
    stamp(a, cfg, 5)
    a(f"s_add_u32 {s(sMEM)}, {s(sMEM)}, {MEM_SZ}")
    a(f"s_add_u32 {s(sO)}, {s(sO)}, {MEM_SZ}")
    a(f"s_add_u32 {s(sP)}, {s(sP)}, {PB_SZ}")
    a(f"s_add_u32 {s(sPM)}, {s(sPM)}, {PB_SZ}")
    if not cfg.get("samey"):
        a(f"s_add_u32 {s(sY)}, {s(sY)}, {Y_SEG}")
        a(f"s_add_u32 {s(sY1)}, {s(sY1)}, {Y_SEG}")
    a(f"s_add_u32 {s(S_STEP)}, {s(S_STEP)}, 1")
    a(f"s_cmp_lt_u32 {s(S_STEP)}, {NSEG - 1}")
    a(f"s_cbranch_scc1 {top}")
    dump_stamps(a, cfg, 6, 168, 4 + w, L16)
    a("s_endpgm")


def gen_wm(a, cfg):
    L128, FLA, YA, T0, T1, JUNK = range(1, 7)
    sM, sA, sB, sY, sF, sU, sR = range(S_T0, S_T0 + 7)
    pieces = cfg.get("ypieces", 3)
    a.label("WM")
    a(f"s_sub_u32 {s(sU)}, {s(S_LOC)}, 30")
    a(f"s_lshl_b32 {s(sU)}, {s(sU)}, 2")
    a(f"s_add_u32 {s(sU)}, {s(sU)}, {s(S_WAVE)}")
    a(f"v_lshlrev_b32 {v(L128)}, 7, v0")
    a(f"v_min_u32 {v(FLA)}, 55, v0")
    a(f"v_lshlrev_b32 {v(FLA)}, 2, {v(FLA)}")
    a(f"v_lshrrev_b32 {v(YA)}, 3, v0")
    a(f"v_min_u32 {v(YA)}, 6, {v(YA)}")
    a(f"v_lshlrev_b32 {v(YA)}, 13, {v(YA)}")
    a(f"v_and_b32 {v(T0)}, 7, v0")
    a(f"v_lshl_add_u32 {v(YA)}, {v(T0)}, 7, {v(YA)}")
    a(f"s_mul_i32 {s(sY)}, {s(sU)}, {7 * 8192}")
    a(f"s_add_u32 {s(sY)}, {s(sY)}, {WS['YL'] + Y_SEG}")
    a(f"s_mov_b32 {s(sF)}, {WS['YF'] + 224}")
    a(f"s_mov_b32 {s(sR)}, {WS['YR'] + 2 * 128}")
    a(f"s_mul_i32 {s(sM)}, {s(S_SLOW)}, {WS['MEMG'] - WS['MEML']}")
    a(f"s_add_u32 {s(sM)}, {s(sM)}, {WS['MEML']}")
    a(f"s_mul_i32 {s(sA)}, {s(sU)}, 7168")
    a(f"s_add_u32 {s(sA)}, {s(sA)}, {WS['XT'] + XT_SEG}")
    a(f"s_mov_b32 {s(sB)}, {XT_SEG}")
    a(f"s_cmp_lt_u32 {s(sU)}, 4")
    a("s_cbranch_scc1 WM_GO")
    a(f"s_add_u32 {s(sA)}, {s(sM)}, {MEM_SZ}")
    a(f"s_mov_b32 {s(sB)}, {MEM_SZ}")
    a(f"s_cmp_eq_u32 {s(sU)}, 4")
    a("s_cbranch_scc1 WM_GO")
    a(f"s_and_b32 {s(sA)}, {s(sU)}, 1")
    a(f"s_lshl_b32 {s(sA)}, {s(sA)}, 11")
    a(f"s_add_u32 {s(sA)}, {s(sA)}, {WS['PB']}")
    a(f"s_mov_b32 {s(sB)}, {PB_SZ}")
    a.label("WM_GO")
    wait_tasks(a, "LZ", T0, 8)
    a(f"buffer_load_dword {v(JUNK)}, {v(L128)}, {WS_SRD}, {s(sA)} offen sc1")
    a(f"s_add_u32 {s(sA)}, {s(sA)}, {s(sB)}")
    a(f"s_mov_b32 {s(S_STEP)}, 0")
    a.label("WM_STEP")
    a(f"buffer_load_dword {v(T0)}, off, {WS_SRD}, {s(sM)} sc1")
    a("s_waitcnt vmcnt(0)")
    a(f"v_cmp_eq_u32 vcc, -1, {v(T0)}")
    a("s_cbranch_vccz WM_RUN")
    a("s_sleep 3")
    a(f"s_sub_u32 {s(S_TO)}, {s(S_TO)}, 1")
    a("s_cbranch_scc0 WM_STEP")
    a("s_endpgm")
    a.label("WM_RUN")
    a(f"buffer_load_dword {v(T0)}, {v(FLA)}, {WS_SRD}, {s(sF)} offen sc1")
    a(f"buffer_load_dword {v(T1)}, {v(FLA)}, {WS_SRD}, {s(sF)} offen offset:224 sc1")
    a(f"buffer_load_dword {v(JUNK)}, {v(L128)}, {WS_SRD}, {s(sA)} offen sc1")
    a("s_waitcnt vmcnt(1)")
    a(f"v_cmp_ne_u32 vcc, {s(S_TAG)}, {v(T1)}")
    a("s_cbranch_vccnz WM_NORDY")
    a(f"s_cmp_lg_u32 {s(sU)}, 7")
    a("s_cbranch_scc1 WM_NORDY")
    a(f"buffer_store_dword {v(T1)}, off, {WS_SRD}, {s(sR)}")
    a.label("WM_NORDY")
    a(f"v_cmp_ne_u32 vcc, {s(S_TAG)}, {v(T0)}")
    a("s_cbranch_vccnz WM_NOY")
    for i in range(pieces):
        if i == 4:
            a(f"s_add_u32 {s(S_TMP)}, {s(sY)}, 4096")
        a(f"buffer_load_dword {v(JUNK)}, {v(YA)}, {WS_SRD}, {s(sY if i < 4 else S_TMP)} offen offset:{(i % 4) * 1024} sc1")
    a.label("WM_NOY")
    a(f"s_add_u32 {s(sA)}, {s(sA)}, {s(sB)}")
    a(f"s_add_u32 {s(sM)}, {s(sM)}, {MEM_SZ}")
    a(f"s_add_u32 {s(sY)}, {s(sY)}, {Y_SEG}")
    a(f"s_add_u32 {s(sF)}, {s(sF)}, 224")
    a(f"s_add_u32 {s(sR)}, {s(sR)}, 128")
    a(f"s_add_u32 {s(S_STEP)}, {s(S_STEP)}, 1")
    a(f"s_cmp_lt_u32 {s(S_STEP)}, {NSEG - 2}")
    a("s_cbranch_scc1 WM_STEP")
    a("s_endpgm")
```

```python
from asmlib import v, acc, s, interleave
from layout import *
from roles_rec import *
from roles_pre import srd, f32

MASKED = -1e9 * 1.4426950408889634


def mfma(a, d, x, y, first):
    a(f"v_mfma_f32_16x16x32_bf16 {v(d, 4)}, {x}, {y}, " + ("0" if first else v(d, 4)))


def dma_rows(a, w, l16, soff, lds, pad):
    for i in range(7):
        b = 7 * w + i
        a(f"s_mov_b32 m0, {lds + b * 1024 + (pad if b >= 14 else 0)}")
        a(f"s_add_u32 {s(S_TMP)}, {s(soff)}, {b * 1024}")
        a(f"buffer_load_dwordx4 {v(l16)}, {WS_SRD}, {s(S_TMP)} offen lds")


def gen_ta(a, w, cfg):
    L16, KA, MKA, XWA, XRA, MWA, MRA, PTA, PMA, T0, T1 = range(1, 12)
    TACC, XO, TP, WV = 16, 72, 88, 120
    XPI, XTI, XS, MS = 0, 28672, 58368, 76800
    sXP, sXT, sMEM, sP, sPM = range(S_T0, S_T0 + 5)
    sMASK = S_T0 + 6
    blk = lambda j, ks: wblock(j * 7 + (ks >> 1), WV, ks & 1)
    T = lambda tt, j: TACC + 4 * (7 * tt + j)
    KO, SX, SM, MK, SCO = 16, 32, 44, 52, 68

    a.label(f"TA_W{w}")
    a(f"v_lshlrev_b32 {v(L16)}, 4, v0")
    wait_tasks(a, "A", T0, T1)
    wait_first_y(a, T0, S_GRP)
    a(f"s_mul_i32 {s(S_TMP)}, {s(S_LOC)}, {AL_HEAD}")
    a(f"s_add_u32 {s(S_TMP)}, {s(S_TMP)}, {WS['AL'] + w * 100352}")
    stream_load(a, [wblock(b, WV, hi) for b in range(49) for hi in range(2)], L16, S_TMP)
    a(f"v_and_b32 {v(T0)}, 15, v0")
    a(f"v_lshrrev_b32 {v(T1)}, 4, v0")
    a(f"v_lshrrev_b32 {v(MKA)}, 5, v0")
    a(f"v_add_u32 {v(MKA)}, {14 * w}, {v(MKA)}")
    a(f"v_lshrrev_b32 {v(KA)}, 2, {v(MKA)}")
    a(f"v_lshlrev_b32 {v(KA)}, 10, {v(KA)}")
    a(f"v_and_b32 {v(XWA)}, 3, {v(MKA)}")
    a(f"v_lshl_add_u32 {v(KA)}, {v(XWA)}, 8, {v(KA)}")
    a(f"v_lshl_add_u32 {v(KA)}, {v(T0)}, 4, {v(KA)}")
    a(f"v_and_b32 {v(XWA)}, 1, {v(T1)}")
    a(f"v_lshl_add_u32 {v(KA)}, {v(XWA)}, 3, {v(KA)}")
    a(f"v_add_u32 {v(KA)}, {XTI}, {v(KA)}")
    a(f"v_lshlrev_b32 {v(MKA)}, 7, {v(MKA)}")
    a(f"v_lshl_add_u32 {v(MKA)}, {v(XWA)}, 3, {v(MKA)}")
    a(f"v_and_b32 {v(XRA)}, 7, v0")
    a(f"v_lshl_add_u32 {v(MKA)}, {v(XRA)}, 4, {v(MKA)}")
    a(f"v_mul_u32_u24 {v(MWA)}, 144, {v(T0)}")
    a(f"v_lshl_add_u32 {v(MRA)}, {v(T1)}, 4, {v(MWA)}")
    a(f"v_lshl_add_u32 {v(MWA)}, {v(XWA)}, 4, {v(MWA)}")
    a(f"v_add_u32 {v(XWA)}, {XS + w * 4608}, {v(MRA)}")
    a(f"v_add_u32 {v(MWA)}, {MS + w * 32}, {v(MWA)}")
    a(f"v_lshrrev_b32 {v(T0)}, 3, v0")
    a(f"v_add_u32 {v(T0)}, {8 * w}, {v(T0)}")
    a(f"v_and_b32 {v(T1)}, 7, v0")
    a(f"v_mul_u32_u24 {v(MRA)}, 144, {v(T0)}")
    a(f"v_lshl_add_u32 {v(XRA)}, {v(T1)}, 4, {v(MRA)}")
    a(f"v_add_u32 {v(XRA)}, {XS}, {v(XRA)}")
    a(f"v_lshl_add_u32 {v(MRA)}, {v(T1)}, 2, {v(MRA)}")
    a(f"v_add_u32 {v(MRA)}, {MS}, {v(MRA)}")
    a(f"v_lshlrev_b32 {v(PTA)}, 2, {v(T1)}")
    a(f"v_sub_u32 {v(PTA)}, {v(T0)}, {v(PTA)}")
    for r in range(4):
        a(f"v_cmp_le_i32 {s(sMASK + 2 * r, 2)}, {r}, {v(PTA)}")
    a(f"v_and_b32 {v(T0)}, 15, {v(T0)}")
    a(f"v_lshlrev_b32 {v(T0)}, 4, {v(T0)}")
    a(f"v_bfe_u32 {v(PMA)}, v0, 1, 1")
    a(f"v_lshl_add_u32 {v(T0)}, {v(PMA)}, 2, {v(T0)}")
    a(f"v_bfe_u32 {v(T1)}, v0, 2, 1")
    a(f"v_lshl_add_u32 {v(PMA)}, {v(T1)}, 8, {v(T0)}")
    a(f"v_lshl_add_u32 {v(PTA)}, {v(T1)}, 9, {v(T0)}")
    a(f"v_and_b32 {v(T1)}, 1, v0")
    a(f"v_lshl_add_u32 {v(PTA)}, {v(T1)}, 8, {v(PTA)}")
    a(f"v_lshlrev_b32 {v(T1)}, 30, {v(T1)}")
    a(f"v_or_b32 {v(PMA)}, {v(PMA)}, {v(T1)}")
    a(f"v_mov_b32 {v(T0)}, 0")
    a(f"v_lshlrev_b32 {v(T1)}, 2, v0")
    a(f"ds_write_b32 {v(T1)}, {v(T0)} offset:{XTI + 28672 + 256 * w}")
    for tt in range(2):
        a(f"v_mov_b32 {v(TP + 16 * tt + 14)}, 0")
        a(f"v_mov_b32 {v(TP + 16 * tt + 15)}, 0")
    a(f"s_mul_i32 {s(sXP)}, {s(S_GRP)}, {XT_SEG}")
    a(f"s_add_u32 {s(sXT)}, {s(sXP)}, {WS['XT']}")
    a(f"s_add_u32 {s(sXP)}, {s(sXP)}, {WS['XP']}")
    a(f"s_mul_i32 {s(sMEM)}, {s(S_GRP)}, {MEM_SZ}")
    a(f"s_add_u32 {s(sMEM)}, {s(sMEM)}, {WS['MEMG']}")
    a(f"s_mul_i32 {s(sP)}, {s(S_GRP)}, {PX_SZ}")
    a(f"s_add_u32 {s(sP)}, {s(sP)}, {WS['PX']}")
    a(f"s_lshr_b32 {s(sPM)}, {s(S_LOC)}, 1")
    a(f"s_lshl_b32 {s(sPM)}, {s(sPM)}, 10")
    a(f"s_and_b32 {s(S_TMP)}, {s(S_LOC)}, 1")
    a(f"s_lshl_b32 {s(S_TMP)}, {s(S_TMP)}, 3")
    a(f"s_add_u32 {s(sPM)}, {s(sPM)}, {s(S_TMP)}")
    a(f"s_add_u32 {s(sPM)}, {s(sPM)}, {s(sP)}")
    a(f"s_add_u32 {s(sPM)}, {s(sPM)}, {32768 + (w >> 1) * 512}")
    a(f"s_lshl_b32 {s(S_TMP)}, {s(S_LOC)}, 11")
    a(f"s_add_u32 {s(sP)}, {s(sP)}, {s(S_TMP)}")
    a(f"s_add_u32 {s(sP)}, {s(sP)}, {(w >> 1) * 1024}")
    a(f"s_mov_b32 {s(S_TMP + 7)}, {f32(MASKED)}")
    a(f"s_mov_b32 {s(S_STEP)}, {s(S_GRP)}")

    wait_tasks(a, "LZ", T0, 12)
    wait_tasks(a, "Z2", T0, 12)

    top = f"TA_SEG{w}"
    a.label(top)
    a.ds = []
    dma_rows(a, w, L16, sXP, XPI, 0)
    dma_rows(a, w, L16, sXT, XTI, 0)
    a("s_waitcnt vmcnt(0) lgkmcnt(0)")
    a("s_barrier")

    def read_x(ks):
        for tt in range(2):
            a.dsop(f"ds_read_b128 {v(XO + 8 * (ks & 1) + 4 * tt, 4)}, {v(L16)} offset:{XPI + tt * 14336 + ks * 1024}", ("x", ks))
    read_x(0)
    for ks in range(14):
        a.wait_ds(("x", ks))
        for n_, (tt, j) in enumerate((tt, j) for j in range(7) for tt in range(2)):
            mfma(a, T(tt, j), blk(j, ks), v(XO + 8 * (ks & 1) + 4 * tt, 4), ks == 0)
            if n_ == 1 and ks + 1 < 14:
                read_x(ks + 1)
    a.nop(2)
    for j in range(7):
        for tt in range(2):
            a(f"v_cvt_pk_bf16_f32 {v(TP + 16 * tt + 2 * j)}, {v(T(tt, j))}, {v(T(tt, j) + 1)}")
            a(f"v_cvt_pk_bf16_f32 {v(TP + 16 * tt + 2 * j + 1)}, {v(T(tt, j) + 2)}, {v(T(tt, j) + 3)}")

    def read_k(p):
        for kt in range(2):
            for q in range(2):
                a.dsop(f"ds_read_b64 {v(KO + 8 * (p & 1) + 4 * kt + 2 * q, 2)}, {v(KA)} offset:{kt * 14336 + p * 1024 + q * 512}", ("k", p))
    read_k(0)
    read_k(1)
    for p in range(4):
        a.wait_ds(("k", p))
        for t, (kt, qt) in enumerate(((0, 0), (0, 1), (1, 1))):
            mfma(a, SX + 4 * t, v(KO + 8 * (p & 1) + 4 * kt, 4), v(TP + 16 * qt + 4 * p, 4), p == 0)
        if p + 2 < 4:
            read_k(p + 2)
    a(f"v_mov_b32 {v(MK + 14)}, 0")
    a(f"v_mov_b32 {v(MK + 15)}, 0")
    a.nop(6)
    for t, (kt, qt) in enumerate(((0, 0), (0, 1), (1, 1))):
        a.dsop(f"ds_write_b128 {v(XWA)}, {v(SX + 4 * t, 4)} offset:{qt * 2304 + kt * 64}")
    a.wait_ds_all()
    a("s_barrier")
    for wv in range(4):
        a.dsop(f"ds_read_b128 {v(KO + 4 * wv, 4)}, {v(XRA)} offset:{wv * 4608}")
    a.wait_ds_all()
    for r in range(4):
        a(f"v_add_f32 {v(KO + r)}, {v(KO + r)}, {v(KO + 4 + r)}")
        a(f"v_add_f32 {v(KO + 8 + r)}, {v(KO + 8 + r)}, {v(KO + 12 + r)}")
        a(f"v_add_f32 {v(KO + r)}, {v(KO + r)}, {v(KO + 8 + r)}")
        a(f"v_mov_b32 {v(SCO + r)}, {s(S_TMP + 7)}")
        a(f"v_cndmask_b32 {v(SCO + r)}, {v(SCO + r)}, {v(KO + r)}, {s(sMASK + 2 * r, 2)}")
    M, E, M1 = KO, KO + 1, KO + 2
    a(f"v_max3_f32 {v(SX)}, {v(SCO)}, {v(SCO + 1)}, {v(SCO + 2)}")
    a(f"v_max_f32 {v(SX)}, {v(SX)}, {v(SCO + 3)}")
    stamp(a, cfg, 0)
    poll(a, [f"buffer_load_dwordx2 {v(MK + 2 * j, 2)}, {v(MKA)}, {WS_SRD}, {s(sMEM)} offen offset:{256 * j} sc1" for j in range(7)],
         range(MK, MK + 14), T0, cfg.get('psleep', 0))
    stamp(a, cfg, 1)
    for p in range(4):
        for qt in range(2):
            mfma(a, SM + 4 * qt, v(MK + 4 * p, 4), v(TP + 16 * qt + 4 * p, 4), p == 0)
    a.nop(7)
    for qt in range(2):
        a.dsop(f"ds_write_b128 {v(MWA)}, {v(SM + 4 * qt, 4)} offset:{qt * 2304}")
    a.wait_ds_all()
    a("s_barrier")
    a.dsop(f"ds_read2_b32 {v(KO + 4, 2)}, {v(MRA)} offset0:0 offset1:8")
    a.dsop(f"ds_read2_b32 {v(KO + 6, 2)}, {v(MRA)} offset0:16 offset1:24")
    a.wait_ds_all()
    a(f"v_pk_add_f32 {v(KO + 4, 2)}, {v(KO + 4, 2)}, {v(KO + 6, 2)}")
    a(f"v_add_f32 {v(E)}, {v(KO + 4)}, {v(KO + 5)}")
    a(f"v_max_f32 {v(M)}, {v(SX)}, {v(E)}")

    def reduce8(op):
        for ctl in ("quad_perm:[1,0,3,2]", "quad_perm:[2,3,0,1]", "row_half_mirror"):
            a.nop(2)
            a(f"{op}_dpp {v(M)}, {v(M)}, {v(M)} {ctl} row_mask:0xf bank_mask:0xf")
    reduce8("v_max_f32")
    for x in (E, SCO, SCO + 1, SCO + 2, SCO + 3):
        a(f"v_sub_f32 {v(x)}, {v(x)}, {v(M)}")
    for x in (E, SCO, SCO + 1, SCO + 2, SCO + 3):
        a(f"v_exp_f32 {v(x)}, {v(x)}")
    a(f"v_add_f32 {v(M)}, {v(E)}, {v(SCO)}")
    a(f"v_add_f32 {v(M1)}, {v(SCO + 1)}, {v(SCO + 2)}")
    a(f"v_add_f32 {v(M)}, {v(M)}, {v(SCO + 3)}")
    a(f"v_add_f32 {v(M)}, {v(M)}, {v(M1)}")
    a(f"v_mov_b32_dpp {v(M1)}, {v(E)} quad_perm:[1,0,3,2] row_mask:0xf bank_mask:0xf")
    reduce8("v_add_f32")
    a(f"v_rcp_f32 {v(M)}, {v(M)}")
    a(f"s_cmp_lg_u32 {s(S_SLOW)}, 0")
    for x in (SCO, SCO + 1, SCO + 2, SCO + 3, E, M1):
        a(f"v_mul_f32 {v(x)}, {v(x)}, {v(M)} clamp")
    a(f"v_cvt_pk_bf16_f32 {v(SCO)}, {v(SCO)}, {v(SCO + 1)}")
    a(f"v_cvt_pk_bf16_f32 {v(SCO + 2)}, {v(SCO + 2)}, {v(SCO + 3)}")
    a(f"v_cvt_pk_bf16_f32 {v(E)}, {v(E)}, {v(M1)}")
    local_stores(a, [f"buffer_store_dword {v(SCO)}, {v(PTA)}, {WS_SRD}, {s(sP)} offen",
                     f"buffer_store_dword {v(SCO + 2)}, {v(PTA)}, {WS_SRD}, {s(sP)} offen offset:8",
                     f"buffer_store_dword {v(E)}, {v(PMA)}, {WS_SRD}, {s(sPM)} offen"], scc_set=True)
    stamp(a, cfg, 2)
    flush_stamps(a, cfg, 3, 8 + w, T0)
    for r, step in ((sXP, XT_SEG), (sXT, XT_SEG), (sMEM, MEM_SZ), (sP, PX_SZ), (sPM, PX_SZ), (S_STEP, 1)):
        a(f"s_add_u32 {s(r)}, {s(r)}, {step * NCLONE}")
    a(f"s_cmp_lt_u32 {s(S_STEP)}, {NSEG}")
    a(f"s_cbranch_scc1 {top}")
    a("s_endpgm")


def gen_tb(a, w, cfg):
    L16, LB, XA, PMA, PW0, PW1, PRA, XRA, HA, IDX, T0, T1 = range(1, 13)
    XR = 14
    MA, YB, ZW, WT, ACC = 16, 44, 76, 92, 116
    XPI, PART, MEMIMG = 0, 28800, 28800
    sXP, sYO, sF, sYS, sY, sMEM, sP, sPM, sXR, sH = range(S_T0, S_T0 + 10)
    own = [2 * w, 2 * w + 1] if w < 3 else [6]
    order = own + [k for k in range(7) if k not in own]
    B = BRes(a, w, L16, IDX, MA, WT, ACC, ZW)
    PXQ = [MA + 4 * i for i in range(7)] + [WT + 4 * i for i in range(5)]

    a.label(f"TB_W{w}")
    srd(a, S_X, 0, 2048 * 896)
    a(f"s_sub_u32 {s(S_LOC)}, {s(S_LOC)}, 16")
    a(f"v_lshlrev_b32 {v(L16)}, 4, v0")
    wait_tasks(a, "L", T0, T1)
    a(f"s_mul_i32 {s(sXP)}, {s(S_GRP)}, {XT_SEG}")
    a(f"s_add_u32 {s(sXP)}, {s(sXP)}, {WS['XP']}")
    dma_rows(a, w, L16, sXP, XPI, 32)
    wait_tasks(a, "B", T0, T1, w)
    B.load(S_LOC, LB)
    a(f"v_and_b32 {v(T0)}, 15, v0")
    a(f"v_lshrrev_b32 {v(T1)}, 4, v0")
    a(f"v_bfe_u32 {v(XA)}, v0, 3, 1")
    a(f"v_mul_u32_u24 {v(XA)}, {14336 + 32}, {v(XA)}")
    a(f"v_lshl_add_u32 {v(XA)}, {v(T1)}, 8, {v(XA)}")
    a(f"v_bfe_u32 {v(PMA)}, v0, 2, 1")
    a(f"v_lshl_add_u32 {v(XA)}, {v(PMA)}, 6, {v(XA)}")
    a(f"v_bfe_u32 {v(PMA)}, v0, 1, 1")
    a(f"v_lshl_add_u32 {v(XA)}, {v(PMA)}, 7, {v(XA)}")
    a(f"v_and_b32 {v(PMA)}, 1, v0")
    a(f"v_lshl_add_u32 {v(XA)}, {v(PMA)}, 4, {v(XA)}")
    a(f"v_and_b32 {v(PMA)}, 31, v0")
    a(f"v_lshlrev_b32 {v(PMA)}, 4, {v(PMA)}")
    a(f"v_mul_u32_u24 {v(PW0)}, 576, {v(T1)}")
    a(f"v_lshl_add_u32 {v(PW0)}, {v(T0)}, 2, {v(PW0)}")
    a(f"v_add_u32 {v(PW0)}, {PART + w * 4608}, {v(PW0)}")
    a(f"v_add_u32 {v(PW1)}, 2304, {v(PW0)}")
    a(f"v_lshrrev_b32 {v(T0)}, 3, v0")
    a(f"v_add_u32 {v(T0)}, {8 * w}, {v(T0)}")
    a(f"v_and_b32 {v(T1)}, 7, v0")
    a(f"v_mul_u32_u24 {v(PRA)}, 144, {v(T0)}")
    a(f"v_lshl_add_u32 {v(PRA)}, {v(T1)}, 4, {v(PRA)}")
    a(f"v_add_u32 {v(PRA)}, {PART}, {v(PRA)}")
    a(f"v_mul_u32_u24 {v(XRA)}, 896, {v(T0)}")
    a(f"v_lshl_add_u32 {v(XRA)}, {v(T1)}, 3, {v(XRA)}")
    a(f"v_and_b32 {v(HA)}, 15, {v(T0)}")
    a(f"v_lshlrev_b32 {v(HA)}, 4, {v(HA)}")
    a(f"v_lshrrev_b32 {v(T0)}, 1, {v(T1)}")
    a(f"v_lshl_add_u32 {v(HA)}, {v(T0)}, 8, {v(HA)}")
    a(f"v_and_b32 {v(T0)}, 1, {v(T1)}")
    a(f"v_lshl_add_u32 {v(HA)}, {v(T0)}, 3, {v(HA)}")
    index_reg(a, IDX, T0)
    a(f"s_mul_i32 {s(sXP)}, {s(S_GRP)}, {XT_SEG}")
    a(f"s_lshl_b32 {s(S_TMP)}, {s(S_LOC)}, 10")
    a(f"s_add_u32 {s(sH)}, {s(sXP)}, {s(S_TMP)}")
    a(f"s_add_u32 {s(sH)}, {s(sH)}, {WS['HT'] + (w >> 1) * 14336}")
    a(f"s_lshl_b32 {s(S_TMP)}, {s(S_LOC)}, 6")
    a(f"s_add_u32 {s(sXR)}, {s(sXP)}, {s(S_TMP)}")
    a(f"s_add_u32 {s(sXP)}, {s(sXP)}, {WS['XP']}")
    a(f"s_mul_i32 {s(sY)}, {s(S_GRP)}, {Y_SEG}")
    a(f"s_lshl_b32 {s(S_TMP)}, {s(S_LOC)}, 15")
    a(f"s_add_u32 {s(sY)}, {s(sY)}, {s(S_TMP)}")
    a(f"s_add_u32 {s(sY)}, {s(sY)}, {WS['YL'] + w * 8192}")
    a(f"s_mov_b32 {s(sYO)}, {s(sY)}")
    a(f"s_mul_i32 {s(sF)}, {s(S_GRP)}, 224")
    a(f"s_lshl_b32 {s(S_TMP)}, {s(S_LOC)}, 4")
    a(f"s_add_u32 {s(sF)}, {s(sF)}, {s(S_TMP)}")
    a(f"s_add_u32 {s(sF)}, {s(sF)}, {WS['YF'] + 4 * w}")
    a(f"s_mul_i32 {s(sMEM)}, {s(S_GRP)}, {MEM_SZ}")
    a(f"s_add_u32 {s(sMEM)}, {s(sMEM)}, {WS['MEMG'] + own[0] * 1024}")
    a(f"s_mul_i32 {s(sP)}, {s(S_GRP)}, {PX_SZ}")
    a(f"s_add_u32 {s(sPM)}, {s(sP)}, {WS['PX'] + 32768 + w * 2048}")
    a(f"s_add_u32 {s(sP)}, {s(sP)}, {WS['PX'] + w * 8192}")
    a(f"s_mov_b32 {s(S_STEP)}, {s(S_GRP)}")
    a(f"s_mov_b32 {s(sYS)}, {s(S_GRP)}")
    a("s_waitcnt vmcnt(56) lgkmcnt(0)")
    a(f"s_branch TB_Y{w}")

    top, pv = f"TB_TOP{w}", f"TB_PV{w}"
    a.label(top)
    a(f"s_cmp_lt_u32 {s(sYS)}, {NSEG}")
    a(f"s_cbranch_scc0 {pv}")
    a.ds = []
    dma_rows(a, w, L16, sXP, XPI, 32)
    a("s_waitcnt vmcnt(0)")
    a.label(f"TB_Y{w}")
    a("s_barrier")
    for ah in range(2):
        def read_op(ks):
            for ab in range(2):
                a.dsop(f"ds_read_b128 {v(MA + 8 * (ks % 3) + 4 * ab, 4)}, {v(XA)} offset:{ks * 1024 + 32 * ab}", ("x", ks))
            if ah:
                for ct in range(2):
                    a.dsop(f"ds_read_b128 {v(WT + 8 * (ks % 3) + 4 * ct, 4)}, {v(LB)} offset:{B.lds_off(6 + ct, ks >> 1, ks & 1)}", ("x", ks))
        if ah:
            a("s_waitcnt vmcnt(4)")
        read_op(0)
        read_op(1)
        for ks in range(14):
            a.wait_ds(("x", ks))
            for n_, (t, ab) in enumerate((t, ab) for t in range(4) for ab in range(2)):
                tile = 4 * ah + t
                wr = B.blk(tile, ks >> 1, ks & 1) if tile < 6 else v(WT + 8 * (ks % 3) + 4 * (tile - 6), 4)
                mfma(a, ACC + 8 * t + 4 * ab, v(MA + 8 * (ks % 3) + 4 * ab, 4), wr, ks == 0)
                if n_ == 1 and ks + 2 < 14:
                    read_op(ks + 2)
        a.nop(2)
        if ah:
            a(f"s_add_u32 {s(S_TMP)}, {s(sYO)}, 4096")
        for t in range(4):
            o = YB + 16 * ah + 4 * t
            for i in range(4):
                a(f"v_cvt_pk_bf16_f32 {v(o + i)}, {v(ACC + 8 * t + 2 * i)}, {v(ACC + 8 * t + 2 * i + 1)}")
            a(f"buffer_store_dwordx4 {v(o, 4)}, {v(L16)}, {WS_SRD}, {s(S_TMP if ah else sYO)} offen offset:{(t & 1) * 2048 + (t >> 1) * 1024} sc1")
    a(f"v_mov_b32 {v(T0)}, {s(S_TAG)}")
    a("s_waitcnt vmcnt(0)")
    a(f"buffer_store_dword {v(T0)}, off, {WS_SRD}, {s(sF)} sc1")
    if cfg.get("stamps"):
        skip = a.newlabel("ms")
        a(f"s_cmp_lt_u32 {s(sYS)}, {NCLONE}")
        a(f"s_cbranch_scc0 {skip}")
        milestone(a, cfg, 2, T1)
        a.label(skip)
    a(f"s_add_u32 {s(sXP)}, {s(sXP)}, {XT_SEG * NCLONE}")
    a(f"s_add_u32 {s(sYO)}, {s(sYO)}, {Y_SEG * NCLONE}")
    a(f"s_add_u32 {s(sF)}, {s(sF)}, {224 * NCLONE}")
    a(f"s_add_u32 {s(sYS)}, {s(sYS)}, {NCLONE}")
    a(f"s_cmp_lt_u32 {s(sYS)}, {cfg.get('yahead', 3) * NCLONE}")
    a(f"s_cbranch_scc0 TB_PV0{w}")
    a("s_barrier")
    a(f"s_branch {top}")
    a.label(f"TB_PV0{w}")
    a(f"s_cmp_lt_u32 {s(S_STEP)}, {NCLONE}")
    a(f"s_cbranch_scc0 {pv}")
    wait_tasks(a, "LZ", T0, XR)
    wait_tasks(a, "Z2", T0, XR)

    a.label(pv)
    a.ds = []
    a("s_barrier")
    a(f"s_add_u32 {s(S_TMP)}, {s(sY)}, 4096")
    for i in range(8):
        a(f"buffer_load_dwordx4 {v(YB + 4 * i, 4)}, {v(L16)}, {WS_SRD}, {s(S_TMP if i >= 4 else sY)} offen offset:{(i % 4) * 1024} sc1")
    a(f"buffer_load_dwordx2 {v(XR, 2)}, {v(XRA)}, {s(S_X, 4)}, {s(sXR)} offen")
    for i in range(3):
        B.read_block(i, order)
    B.zero_acc()
    stamp(a, cfg, 0)
    poll(a, [f"buffer_load_dwordx4 {v(MA + 4 * k, 4)}, {v(L16)}, {WS_SRD}, {s(sMEM)} offen offset:{1024 * i} sc1" for i, k in enumerate(own)],
         range(MA + 4 * own[0], MA + 4 * own[0] + 4 * len(own)), T0, cfg.get('psleep', 0))
    stamp(a, cfg, 1)
    for k in own:
        a.dsop(f"ds_write_b128 {v(L16)}, {v(MA + 4 * k, 4)} offset:{MEMIMG + 1024 * k}")
    a.wait_ds_all()
    a("s_barrier")
    for k in order[len(own):]:
        a.dsop(f"ds_read_b128 {v(MA + 4 * k, 4)}, {v(L16)} offset:{MEMIMG + 1024 * k}", ("ma", k))
    B.mem_values(order, {})
    a("s_barrier")
    a(f"s_add_u32 {s(S_TMP)}, {s(sP)}, 4096")
    loads = [f"buffer_load_dwordx4 {v(PXQ[i], 4)}, {v(L16)}, {WS_SRD}, {s(S_TMP if i >= 4 else sP)} offen offset:{(i % 4) * 1024} sc1" for i in range(8)]
    loads += [f"buffer_load_dwordx4 {v(PXQ[8 + i], 4)}, {v(PMA)}, {WS_SRD}, {s(sPM)} offen offset:{i * 512} sc1" for i in range(4)]
    stamp(a, cfg, 2)
    poll(a, loads, [q + r for q in PXQ for r in range(4)], T0)
    stamp(a, cfg, 3)
    O = lambda qt, ct: ACC + 8 * qt + 4 * ct
    for hl in range(4):
        for qt in range(2):
            for ct in range(2):
                mfma(a, O(qt, ct), v(PXQ[2 * hl + qt], 4), v(YB + 16 * (hl >> 1) + 8 * ct + 4 * (hl & 1), 4), hl == 0)
    for hp in range(2):
        for qt in range(2):
            for ct in range(2):
                mfma(a, O(qt, ct), v(PXQ[8 + 2 * hp + qt], 4), v(ZW + 8 * ct + 4 * hp, 4), False)
    a.nop(7)
    for qt in range(2):
        for r in range(4):
            a.dsop(f"ds_write2_b32 {v(PW1 if qt else PW0)}, {v(O(qt, 0) + r)}, {v(O(qt, 1) + r)} offset0:{36 * r} offset1:{36 * r + 16}")
    a.wait_ds_all()
    a("s_barrier")
    for wv in range(4):
        a.dsop(f"ds_read_b128 {v(ACC + 4 * wv, 4)}, {v(PRA)} offset:{wv * 4608}")
    a(f"v_lshlrev_b32 {v(ACC + 16)}, 16, {v(XR)}")
    a(f"v_and_b32 {v(ACC + 17)}, 0xffff0000, {v(XR)}")
    a(f"v_lshlrev_b32 {v(ACC + 18)}, 16, {v(XR + 1)}")
    a(f"v_and_b32 {v(ACC + 19)}, 0xffff0000, {v(XR + 1)}")
    a.wait_ds_all()
    for i in (0, 2):
        a(f"v_pk_add_f32 {v(ACC + i, 2)}, {v(ACC + i, 2)}, {v(ACC + 4 + i, 2)}")
        a(f"v_pk_add_f32 {v(ACC + 8 + i, 2)}, {v(ACC + 8 + i, 2)}, {v(ACC + 12 + i, 2)}")
        a(f"v_pk_add_f32 {v(ACC + i, 2)}, {v(ACC + i, 2)}, {v(ACC + 8 + i, 2)}")
        a(f"v_cvt_pk_bf16_f32 {v(ACC + i + 1)}, {v(ACC + i)}, {v(ACC + i + 1)}")
        a(f"v_lshlrev_b32 {v(ACC + i)}, 16, {v(ACC + i + 1)}")
        a(f"v_and_b32 {v(ACC + i + 1)}, 0xffff0000, {v(ACC + i + 1)}")
        a(f"v_pk_add_f32 {v(ACC + i, 2)}, {v(ACC + i, 2)}, {v(ACC + 16 + i, 2)}")
        a(f"v_cvt_pk_bf16_f32 {v(ACC + 20 + i // 2)}, {v(ACC + i)}, {v(ACC + i + 1)}")
        a(f"v_min_u32 {v(ACC + 20 + i // 2)}, -2, {v(ACC + 20 + i // 2)}")
    a(f"buffer_store_dwordx2 {v(ACC + 20, 2)}, {v(HA)}, {WS_SRD}, {s(sH)} offen sc1")
    stamp(a, cfg, 4)
    flush_stamps(a, cfg, 5, 12 + w, T0)
    for r, step in ((sY, Y_SEG), (sMEM, MEM_SZ), (sP, PX_SZ), (sPM, PX_SZ), (sXR, XT_SEG), (sH, XT_SEG), (S_STEP, 1)):
        a(f"s_add_u32 {s(r)}, {s(r)}, {step * NCLONE}")
    a(f"s_cmp_lt_u32 {s(S_STEP)}, {NSEG}")
    a(f"s_cbranch_scc1 {top}")
    a("s_endpgm")
```

```python
import sys
from asmlib import Asm, v, s
from layout import *
from roles_rec import *

NAME = "sequential_preLN__memory_aug_recurrent_mem_tr__dense_activation_gelu__prompt"
HEADER = open("cdna_kernels/" + NAME + ".s.ref").read().split("; Override launch")[0]
LDS_MAIN = 163840
LDS_MAIL = 49136
S_DBG = 84


def descriptor(name, vgpr, accum):
    return f""".section .rodata,"a"
.p2align 6
.amdhsa_kernel {name}
  .amdhsa_next_free_vgpr {vgpr}
  .amdhsa_next_free_sgpr 102
  .amdhsa_accum_offset {accum}
  .amdhsa_group_segment_fixed_size 0
  .amdhsa_kernarg_size 120
  .amdhsa_user_sgpr_count 2
  .amdhsa_user_sgpr_kernarg_segment_ptr 1
  .amdhsa_system_sgpr_workgroup_id_x 1
  .amdhsa_float_denorm_mode_32 3
.end_amdhsa_kernel
"""


def gen_main(a, cfg):
    name = NAME + "_kernel"
    a.raw(f".globl {name}\n.p2align 8\n.type {name},@function")
    a.label(name)
    a("s_cmp_ge_u32 s2, 256")
    a("s_cbranch_scc0 MAIN_GO")
    a("s_endpgm")
    a.label("MAIN_GO")
    if cfg.get("stamps"):
        a(f"s_memrealtime {s(S_CLK + 30, 2)}")
    a(f"s_load_dwordx2 {s(S_WS, 2)}, s[0:1], 112")
    a(f"s_load_dwordx2 {s(S_DBG, 2)}, s[0:1], 104")
    a("v_lshrrev_b32 v1, 6, v0")
    a("v_and_b32 v0, 63, v0")
    a(f"v_readfirstlane_b32 {s(S_WAVE)}, v1")
    a(f"s_mov_b32 {s(S_WS + 2)}, {WS_BYTES}")
    a(f"s_mov_b32 {s(S_WS + 3)}, 0x00020000")
    a(f"s_mov_b32 {s(S_DBG + 2)}, 256")
    a(f"s_mov_b32 {s(S_DBG + 3)}, 0x00020000")
    a(f"s_mov_b32 {s(S_TO)}, 0x200000")
    a(f"s_getreg_b32 {s(S_GRP)}, hwreg(HW_REG_XCC_ID, 0, 3)")
    a(f"s_cmp_lg_u32 {s(S_WAVE)}, 0")
    a("s_cbranch_scc1 MAIN_TAGGED")
    a(f"s_and_b32 {s(S_TMP)}, s2, 7")
    a(f"s_lshl_b32 {s(S_TMP)}, {s(S_TMP)}, 2")
    a(f"s_or_b32 {s(S_TMP + 1)}, {s(S_GRP)}, 8")
    a(f"s_lshl_b32 {s(S_TMP)}, {s(S_TMP + 1)}, {s(S_TMP)}")
    a(f"v_mov_b32 v1, {s(S_TMP)}")
    a(f"s_lshr_b32 {s(S_TMP)}, s2, 3")
    a(f"s_lshl_b32 {s(S_TMP)}, {s(S_TMP)}, 2")
    a("s_waitcnt lgkmcnt(0)")
    a("s_mov_b64 exec, 1")
    a(f"buffer_atomic_or v1, off, {s(S_DBG, 4)}, {s(S_TMP)} offset:128")
    a("s_mov_b64 exec, -1")
    a("s_cmp_lg_u32 s2, 0")
    a("s_cbranch_scc1 MAIN_TAGGED")
    a(f"s_memrealtime {s(S_TMP, 2)}")
    a("s_waitcnt lgkmcnt(0)")
    a(f"s_bitset1_b32 {s(S_TMP)}, 0")
    a(f"v_mov_b32 v2, {s(S_TMP)}")
    a(f"buffer_store_dword v2, off, {s(S_DBG, 4)}, 0 sc1")
    a.label("MAIN_TAGGED")
    if "P" in cfg["roles"]:
        from roles_pre import gen_pre
        gen_pre(a, cfg)
    a.label("PRE_DONE")
    a(f"v_mov_b32 v4, {LDS_MAIL}")
    a("s_waitcnt lgkmcnt(0)")
    a(f"s_cmp_lg_u32 {s(S_WAVE)}, 0")
    a("s_cbranch_scc1 MAIN_DRAIN")
    a(f"s_mov_b32 {s(S_SLOW)}, 2")
    a(f"s_mov_b32 {s(S_LOC)}, 0")
    a(f"s_mov_b32 {s(S_TAG)}, 0")
    a("v_lshrrev_b32 v2, 1, v0")
    a("v_lshlrev_b32 v2, 2, v2")
    a("v_and_b32 v5, 1, v0")
    a("v_lshlrev_b32 v5, 4, v5")
    a.label("MAIN_CENSUS")
    a(f"buffer_load_dword v1, off, {s(S_DBG, 4)}, 0 sc1")
    a(f"buffer_load_dword v3, v2, {s(S_DBG, 4)}, 0 offen offset:128 sc1")
    a("s_waitcnt vmcnt(0)")
    a(f"v_readfirstlane_b32 {s(S_TAG)}, v1")
    a("v_lshrrev_b32 v3, v5, v3")
    a("v_and_b32 v1, 0x8888, v3")
    a("v_cmp_ne_u32 vcc, 0x8888, v1")
    a(f"s_cmp_eq_u32 {s(S_TAG)}, 0")
    a("s_cselect_b64 s[94:95], -1, vcc")
    a("s_cmp_eq_u64 s[94:95], 0")
    a("s_cbranch_scc1 MAIN_ALL")
    a("s_sleep 2")
    a(f"s_sub_u32 {s(S_TO)}, {s(S_TO)}, 1")
    a("s_cbranch_scc0 MAIN_CENSUS")
    a("s_branch MAIN_DECIDED")
    a.label("MAIN_ALL")
    for i in range(4):
        a(f"v_bfe_u32 v{8 + i}, v3, {4 * i}, 3")
    a("v_lshlrev_b32 v3, 2, v0")
    for i in range(4):
        a(f"v_cmp_eq_u32 {s(S_TMP + 2, 2)}, {s(S_GRP)}, v{8 + i}")
        a("v_cmp_gt_u32 vcc, s2, v3")
        a("v_add_u32 v3, 1, v3")
        a(f"s_and_b64 vcc, vcc, {s(S_TMP + 2, 2)}")
        a(f"s_bcnt1_i32_b64 {s(S_TMP + 1)}, vcc")
        a(f"s_add_u32 {s(S_LOC)}, {s(S_LOC)}, {s(S_TMP + 1)}")
    a(f"s_mov_b32 {s(S_SLOW)}, 0")
    for x in range(7):
        a(f"s_mov_b32 {s(S_TMP)}, 0")
        for i in range(4):
            a(f"v_cmp_eq_u32 vcc, {x}, v{8 + i}")
            a(f"s_bcnt1_i32_b64 {s(S_TMP + 1)}, vcc")
            a(f"s_add_u32 {s(S_TMP)}, {s(S_TMP)}, {s(S_TMP + 1)}")
        a(f"s_cmp_eq_u32 {s(S_TMP)}, 32")
        a(f"s_cselect_b32 {s(S_SLOW)}, {s(S_SLOW)}, 1")
    a.label("MAIN_DECIDED")
    if cfg.get("force_slow"):
        a(f"s_max_u32 {s(S_SLOW)}, {s(S_SLOW)}, 1")
    a(f"v_mov_b32 v8, {s(S_LOC)}")
    a(f"v_mov_b32 v9, {s(S_SLOW)}")
    a(f"v_mov_b32 v10, {s(S_TAG)}")
    a.label("MAIN_DRAIN")
    a("s_waitcnt vmcnt(0)")
    a("s_barrier")
    if cfg.get("stamps"):
        a(f"s_memrealtime {s(S_CLK + 26, 2)}")
    a(f"s_cmp_lg_u32 {s(S_WAVE)}, 0")
    a("s_cbranch_scc1 MAIN_MAIL")
    a(f"s_lshl_b32 {s(S_TMP)}, s2, 2")
    a(f"buffer_store_dword v10, off, {WS_SRD}, {s(S_TMP)} offset:{WS['ARR']} sc1")
    a("ds_write_b128 v4, v[8:11]")
    a("s_waitcnt lgkmcnt(0)")
    a.label("MAIN_MAIL")
    a("s_barrier")
    a("ds_read_b128 v[8:11], v4")
    a("s_waitcnt lgkmcnt(0)")
    a(f"v_readfirstlane_b32 {s(S_LOC)}, v8")
    a(f"v_readfirstlane_b32 {s(S_SLOW)}, v9")
    a(f"v_readfirstlane_b32 {s(S_TAG)}, v10")
    a("s_barrier")
    a("s_nop 3")
    a(f"s_cmp_lt_u32 {s(S_SLOW)}, 2")
    a("s_cbranch_scc1 MAIN_ALIVE")
    a("s_endpgm")
    a.label("MAIN_ALIVE")
    if cfg.get("stamps"):
        a(f"s_memrealtime {s(S_CLK + 24, 2)}")
        a("s_lshl_b32 s90, s2, 4")
        a(f"s_add_u32 s90, s90, {WS['DBG'] + 0x20000}")
        a("s_waitcnt lgkmcnt(0)")
        for i, r in enumerate((30, 26, 24)):
            a(f"v_mov_b32 v2, {s(S_CLK + r)}")
            a(f"buffer_store_dword v2, off, {WS_SRD}, s90 offset:{4 * i}")
    a(f"s_and_b32 {s(S_TMP)}, s2, 7")
    a(f"s_lshr_b32 {s(S_TMP + 1)}, s2, 3")
    a(f"s_cmp_lg_u32 {s(S_SLOW)}, 0")
    a(f"s_cselect_b32 {s(S_GRP)}, {s(S_TMP)}, {s(S_GRP)}")
    a(f"s_cselect_b32 {s(S_LOC)}, {s(S_TMP + 1)}, {s(S_LOC)}")

    milestone(a, cfg, 0, 2)

    def per_wave(stem):
        for w in range(3):
            a(f"s_cmp_eq_u32 {s(S_WAVE)}, {w}")
            a(f"s_cbranch_scc1 {stem}_W{w}")
        a(f"s_branch {stem}_W3")

    roles = cfg["roles"]
    a(f"s_cmp_eq_u32 {s(S_GRP)}, 0")
    a("s_cbranch_scc0 MAIN_NOTREC")
    a(f"s_cmp_lt_u32 {s(S_LOC)}, 16")
    a("s_cbranch_scc0 MAIN_NOTS1")
    per_wave("S1")
    a.label("MAIN_NOTS1")
    a(f"s_cmp_lt_u32 {s(S_LOC)}, 30")
    a("s_cbranch_scc0 WM")
    per_wave("S2")
    a.label("MAIN_NOTREC")
    if "T" in roles:
        a(f"s_cmp_le_u32 {s(S_GRP)}, {NCLONE}")
        a("s_cbranch_scc0 MAIN_NOTTOK")
        a(f"s_sub_u32 {s(S_GRP)}, {s(S_GRP)}, 1")
        a(f"s_cmp_lt_u32 {s(S_LOC)}, 16")
        a("s_cbranch_scc0 MAIN_NOTTA")
        per_wave("TA")
        a.label("MAIN_NOTTA")
        a(f"s_cmp_lt_u32 {s(S_LOC)}, 30")
        a("s_cbranch_scc0 MAIN_IDLE")
        per_wave("TB")
        a.label("MAIN_NOTTOK")
    if "F" in roles:
        a(f"s_cmp_le_u32 {s(S_GRP)}, {NCLONE}")
        a("s_cbranch_scc1 MAIN_IDLE")
        a(f"s_sub_u32 {s(S_GRP)}, {s(S_GRP)}, {NCLONE + 1}")
        from roles_ffn import gen_reset
        gen_reset(a, cfg)
        a(f"s_cmp_lt_u32 {s(S_LOC)}, 14")
        a("s_cbranch_scc0 MAIN_NOTF1")
        per_wave("F1")
        a.label("MAIN_NOTF1")
        a(f"s_cmp_lt_u32 {s(S_LOC)}, 28")
        a("s_cbranch_scc0 MAIN_IDLE")
        per_wave("F2")
    a.label("MAIN_IDLE")
    a("s_endpgm")
    gen_wm(a, cfg)
    for w in range(4):
        gen_s1(a, w, cfg)
    for w in range(4):
        gen_s2(a, w, cfg)
    if "T" in roles:
        from roles_tok import gen_ta, gen_tb
        for w in range(4):
            gen_ta(a, w, cfg)
        for w in range(4):
            gen_tb(a, w, cfg)
    if "F" in roles:
        from roles_ffn import gen_f1, gen_f2
        for w in range(4):
            gen_f1(a, w, cfg)
        for w in range(4):
            gen_f2(a, w, cfg)
    return descriptor(name, 512, 256)


def generate(cfg):
    a = Asm()
    launches = []
    desc = ""
    a.raw('.amdgcn_target "amdgcn-amd-amdhsa--gfx950"\n.text')
    desc += gen_main(a, cfg)
    launches.append(f"; @launch grid=(256,1,1) block=(256,1,1) lds={LDS_MAIN}")
    return HEADER + "\n".join(launches) + "\n" + a.text() + desc


if __name__ == "__main__":
    out = sys.argv[1]
    cfg = {"roles": sys.argv[2] if len(sys.argv) > 2 else "PTF"}
    for opt in sys.argv[3:]:
        k, _, val = opt.partition("=")
        cfg[k] = int(val) if val else 1
    open(out, "w").write(generate(cfg))
    import subprocess
    r = subprocess.run(["clang", "-x", "assembler", "-target", "amdgcn-amd-amdhsa", "-mcpu=gfx950", "-c", out, "-o", "gen_check.o"], capture_output=True, text=True)
    if r.returncode:
        print(r.stderr[:1500])
        sys.exit(1)
```

```python
from asmlib import v, acc, s
from layout import *
from roles_rec import milestone as _ms, S_WS, S_X, S_OUT, S_AUX, S_WAVE, S_T0, S_TMP, WS_SRD

W_BYTES = 448 * 4096 * 2
SCALE = 0.0625 * 1.4426950408889634


def f32(x):
    import struct
    return hex(struct.unpack("<I", struct.pack("<f", x))[0])


def srd(a, base, arg, nbytes):
    a(f"s_load_dwordx2 {s(base, 2)}, s[0:1], {arg}")
    a(f"s_mov_b32 {s(base + 2)}, {nbytes}")
    a(f"s_mov_b32 {s(base + 3)}, 0x00020000")


def row_sum4(a, x, tmp):
    for op in ("v_permlane32_swap_b32", "v_permlane16_swap_b32"):
        a(f"v_mov_b32 {v(tmp)}, {v(x)}")
        a.nop(2)
        a(f"{op} {v(tmp)}, {v(x)}")
        a(f"v_add_f32 {v(x)}, {v(x)}, {v(tmp)}")


def round_bf16(a, x):
    a(f"v_cvt_pk_bf16_f32 {v(x)}, {v(x)}, {v(x)}")
    a(f"v_and_b32 {v(x)}, 0xffff0000, {v(x)}")


def ln_scalars(a, mean, var):
    round_bf16(a, mean)
    round_bf16(a, var)
    a(f"v_add_f32 {v(var)}, {f32(1e-5)}, {v(var)}")
    round_bf16(a, var)
    a(f"v_sqrt_f32 {v(var)}, {v(var)}")
    a.nop(1)
    round_bf16(a, var)
    a(f"v_rcp_f32 {v(var)}, {v(var)}")
    a.nop(1)


def ln_apply(a, dst, lo, hi, mean, inv):
    a(f"v_sub_f32 {v(lo)}, {v(lo)}, {v(mean)}")
    a(f"v_sub_f32 {v(hi)}, {v(hi)}, {v(mean)}")
    a(f"v_cvt_pk_bf16_f32 {v(hi)}, {v(lo)}, {v(hi)}")
    a(f"v_lshlrev_b32 {v(lo)}, 16, {v(hi)}")
    a(f"v_and_b32 {v(hi)}, 0xffff0000, {v(hi)}")
    a(f"v_mul_f32 {v(lo)}, {v(lo)}, {v(inv)}")
    a(f"v_mul_f32 {v(hi)}, {v(hi)}, {v(inv)}")
    a(f"v_cvt_pk_bf16_f32 {v(dst)}, {v(lo)}, {v(hi)}")


def stampreg(a, cfg, r):
    if cfg.get("stamps"):
        a(f"s_memrealtime s[{r}:{r + 1}]")


def gen_pre(a, cfg):
    sH, sK, sL, sR, sO, sSC, sLB = range(S_T0, S_T0 + 7)
    nt = " nt" if cfg.get("prent") else ""
    L16, T0, T1, T2 = 1, 2, 3, 4
    RA, DA, DL = 8, 12, 20
    LEFT, RING = 0, 32768
    a(f"v_lshlrev_b32 {v(L16)}, 4, v0")
    a(f"s_and_b32 {s(sH)}, s2, 7")
    a(f"s_lshr_b32 {s(sK)}, s2, 3")
    a(f"s_cmp_lt_u32 {s(sK)}, 14")
    a("s_cbranch_scc0 PRE_NOTA")
    srd(a, S_X, 16, W_BYTES)
    srd(a, S_OUT, 24, W_BYTES)
    a("s_branch PRE_PROD")
    a.label("PRE_NOTA")
    a(f"s_cmp_lt_u32 {s(sK)}, 28")
    a("s_cbranch_scc0 PRE_LN")
    srd(a, S_X, 32, W_BYTES)
    srd(a, S_OUT, 40, W_BYTES)

    a.label("PRE_PROD")
    a.vm = []
    a(f"s_cmp_lt_u32 {s(sK)}, 14")
    a(f"s_cselect_b32 {s(sSC)}, 0, 14")
    a(f"s_sub_u32 {s(sK)}, {s(sK)}, {s(sSC)}")
    a(f"s_lshl_b32 {s(sH)}, {s(sH)}, 1")
    a(f"s_cmp_ge_u32 {s(sK)}, 7")
    a(f"s_cselect_b32 {s(S_TMP)}, 1, 0")
    a(f"s_add_u32 {s(sH)}, {s(sH)}, {s(S_TMP)}")
    a(f"s_mul_i32 {s(S_TMP)}, {s(S_TMP)}, 7")
    a(f"s_sub_u32 {s(sK)}, {s(sK)}, {s(S_TMP)}")
    a(f"v_lshrrev_b32 {v(T1)}, 5, v0")
    a(f"v_and_b32 {v(T2)}, 31, v0")
    for i in range(8):
        a(f"v_add_u32 {v(T0)}, {2 * i}, {v(T1)}")
        a(f"v_xor_b32 {v(DA + i)}, {v(T2)}, {v(T0)}")
        a(f"v_lshlrev_b32 {v(DA + i)}, 4, {v(DA + i)}")
        m = 2 * i
        d0 = 16 * (m >> 3) + 4 * ((m >> 2) & 1) + 8 * ((m >> 1) & 1)
        a(f"v_add_u32 {v(DL + i)}, {d0}, {v(T1)}")
        a(f"v_lshl_add_u32 {v(DL + i)}, {v(DL + i)}, 13, {v(DA + i)}")
        a(f"v_lshl_add_u32 {v(DA + i)}, {v(T0)}, 13, {v(DA + i)}")
    a(f"s_lshl_b32 {s(sL)}, {s(sK)}, 19")
    a(f"s_lshl_b32 {s(S_TMP)}, {s(sH)}, 9")
    a(f"s_add_u32 {s(sL)}, {s(sL)}, {s(S_TMP)}")
    a(f"s_lshr_b32 {s(S_TMP)}, {s(S_WAVE)}, 1")
    a(f"s_lshl_b32 {s(S_TMP)}, {s(S_TMP)}, 18")
    a(f"s_add_u32 {s(sL)}, {s(sL)}, {s(S_TMP)}")
    a(f"s_and_b32 {s(S_TMP)}, {s(S_WAVE)}, 1")
    a(f"s_lshl_b32 {s(S_TMP)}, {s(S_TMP)}, 14")
    a(f"s_add_u32 {s(sL)}, {s(sL)}, {s(S_TMP)}")
    a(f"s_lshl_b32 {s(sLB)}, {s(S_WAVE)}, 13")
    a("s_waitcnt lgkmcnt(0)")
    for i in range(8):
        a(f"s_add_u32 m0, {s(sLB)}, {LEFT + i * 1024}")
        a.nop(1)
        a.vmop(f"buffer_load_dwordx4 {v(DL + i)}, {s(S_X, 4)}, {s(sL)} offen{nt} lds", "l")
    a(f"v_and_b32 {v(T0)}, 15, v0")
    a(f"v_lshrrev_b32 {v(T1)}, 4, v0")
    for q in range(4):
        a(f"v_add_u32 {v(T2)}, {4 * q}, {v(T1)}")
        a(f"v_xor_b32 {v(T2)}, {v(T2)}, {v(T0)}")
        a(f"v_lshlrev_b32 {v(T2)}, 4, {v(T2)}")
        a(f"v_lshl_add_u32 {v(RA + q)}, {v(T0)}, 9, {v(T2)}")
    LOP = lambda t, ks: acc(4 * (ks * 4 + t), 4)

    def read_left():
        a.wait_vm("l")
        a("s_barrier")
        stampreg(a, cfg, 66)
        for ks in range(8):
            for t in range(4):
                a.dsop(f"ds_read_b128 {LOP(t, ks)}, {v(RA + (ks & 3))} offset:{LEFT + t * 8192 + (ks >> 2) * 256}", ("l", ks))
            if ks % 2:
                a.wait_ds(("l", ks - 1))

    def finish(accs, out, scale, soff):
        for hi in range(2):
            for ab in range(2):
                c = accs + 4 * (2 * hi + ab)
                if scale:
                    for r in range(4):
                        a(f"v_mul_f32 {v(c + r)}, {s(sSC)}, {v(c + r)}")
                a(f"v_cvt_pk_bf16_f32 {v(out + 4 * hi + 2 * ab)}, {v(c)}, {v(c + 1)}")
                a(f"v_cvt_pk_bf16_f32 {v(out + 4 * hi + 2 * ab + 1)}, {v(c + 2)}, {v(c + 3)}")
            a.vmop(f"buffer_store_dwordx4 {v(out + 4 * hi, 4)}, {v(L16)}, {WS_SRD}, {s(soff)} offen offset:{1024 * hi} sc1")

    a(f"s_cmp_lg_u32 {s(sSC)}, 0")
    a("s_cbranch_scc1 PRE_B")
    vm_common = list(a.vm)

    ACC, OUT, BO, RB = 32, 64, 80, 144
    a(f"s_mul_i32 {s(sR)}, {s(S_WAVE)}, {112 * 8192}")
    a(f"s_lshl_b32 {s(S_TMP)}, {s(sH)}, 9")
    a(f"s_add_u32 {s(sR)}, {s(sR)}, {s(S_TMP)}")
    a(f"s_lshl_b32 {s(sLB)}, {s(S_WAVE)}, 15")
    a(f"s_add_u32 {s(sLB)}, {s(sLB)}, {RING}")

    def stage_a(j):
        for i in range(8):
            a(f"s_add_u32 m0, {s(sLB)}, {(j % 4) * 8192 + i * 1024}")
            a.nop(1)
            a.vmop(f"buffer_load_dwordx4 {v(DA + i)}, {s(S_OUT, 4)}, {s(sR)} offen{nt} lds", ("r", j))
        a(f"s_add_u32 {s(sR)}, {s(sR)}, {16 * 8192}")
    for j in range(4):
        stage_a(j)
    if cfg.get("pretouch", 1):
        a(f"v_lshrrev_b32 {v(T0)}, 2, v0")
        a(f"v_lshlrev_b32 {v(T0)}, 13, {v(T0)}")
        a(f"v_and_b32 {v(T2)}, 3, v0")
        a(f"v_lshl_add_u32 {v(T0)}, {v(T2)}, 7, {v(T0)}")
        for j in range(3):
            a(f"s_add_u32 {s(S_TMP)}, {s(sR)}, {j * 16 * 8192}")
            a.vmop(f"buffer_load_dword v7, {v(T0)}, {s(S_OUT, 4)}, {s(S_TMP)} offen")
    for q in range(4):
        a(f"v_add_u32 {v(RB + q)}, {s(sLB)}, {v(RA + q)}")
    a(f"s_mul_i32 {s(sO)}, {s(sH)}, {AL_HEAD}")
    a(f"s_mul_i32 {s(S_TMP)}, {s(S_WAVE)}, 100352")
    a(f"s_add_u32 {s(sO)}, {s(sO)}, {s(S_TMP)}")
    a(f"s_lshl_b32 {s(S_TMP)}, {s(sK)}, 11")
    a(f"s_add_u32 {s(sO)}, {s(sO)}, {s(S_TMP)}")
    a(f"s_add_u32 {s(sO)}, {s(sO)}, {WS['AL']}")
    a(f"s_mov_b32 {s(sSC)}, {f32(SCALE)}")
    read_left()

    def read_a(j, ks):
        if ks == 0:
            a.wait_vm(("r", j))
        a.dsop(f"ds_read_b128 {v(BO + 32 * (j & 1) + 4 * ks, 4)}, {v(RB + (ks & 3))} offset:{(j % 4) * 8192 + (ks >> 2) * 256}", ("b", j, ks))
    for ks in range(8):
        read_a(0, ks)
    for j in range(7):
        A0 = ACC + 16 * (j & 1)
        for ks in range(8):
            a.wait_ds(("l", ks))
            a.wait_ds(("b", j, ks))
            if ks == 7 and j + 4 < 7:
                stage_a(j + 4)
            for t in range(4):
                a(f"v_mfma_f32_16x16x32_bf16 {v(A0 + 4 * t, 4)}, {LOP(t, ks)}, {v(BO + 32 * (j & 1) + 4 * ks, 4)}, " + (v(A0 + 4 * t, 4) if ks else "0"))
                if t == 0 and j + 1 < 7:
                    read_a(j + 1, ks)
            if ks == 0 and j == 4:
                stampreg(a, cfg, 70)
            if ks == 0 and j:
                finish(ACC + 16 * ((j - 1) & 1), OUT + 8 * (j & 1), True, sO)
                a(f"s_add_u32 {s(sO)}, {s(sO)}, 14336")
    stampreg(a, cfg, 68)
    a.nop(8)
    finish(ACC, OUT + 8, True, sO)
    a("s_branch PRE_DONE")

    a.label("PRE_B")
    a.vm, a.ds = vm_common, []
    TRA, ACC, BT, OUT = 5, 32, 144, 160
    a(f"s_mov_b32 {s(S_TMP)}, {-(-(1 << 32) // 14)}")
    for i in range(7):
        a(f"v_add_u32 {v(T0)}, {64 * i}, v0")
        a(f"v_mul_hi_u32 {v(DA + i)}, {v(T0)}, {s(S_TMP)}")
        a(f"v_mul_u32_u24 {v(T2)}, 14, {v(DA + i)}")
        a(f"v_sub_u32 {v(T0)}, {v(T0)}, {v(T2)}")
        a(f"v_mul_u32_u24 {v(DA + i)}, 896, {v(DA + i)}")
        a(f"v_lshl_add_u32 {v(DA + i)}, {v(T0)}, 4, {v(DA + i)}")
    a(f"s_mul_i32 {s(sLB)}, {s(S_WAVE)}, 28672")
    a(f"s_add_u32 {s(sLB)}, {s(sLB)}, {RING}")
    a(f"s_mul_i32 {s(sR)}, {s(sH)}, 229376")
    a(f"s_mul_i32 {s(S_TMP)}, {s(S_WAVE)}, 224")
    a(f"s_add_u32 {s(sR)}, {s(sR)}, {s(S_TMP)}")

    def stage_b(ks):
        for i in range(7):
            a(f"s_add_u32 m0, {s(sLB)}, {(ks % 4) * 7168 + i * 1024}")
            a.nop(1)
            a.vmop(f"buffer_load_dwordx4 {v(DA + i)}, {s(S_OUT, 4)}, {s(sR)} offen{nt} lds", ("r", ks))
        a(f"s_add_u32 {s(sR)}, {s(sR)}, {32 * 896}")
    for ks in range(4):
        stage_b(ks)
    if cfg.get("pretouch", 1):
        a(f"v_lshlrev_b32 {v(T0)}, 7, v0")
        a(f"s_mul_i32 {s(S_TMP)}, {s(S_WAVE)}, {28672 - 224}")
        a(f"s_add_u32 {s(S_TMP)}, {s(S_TMP)}, {s(sR)}")
        for j in range(4):
            a.vmop(f"buffer_load_dword v7, {v(T0)}, {s(S_OUT, 4)}, {s(S_TMP)} offen")
            a(f"s_add_u32 {s(S_TMP)}, {s(S_TMP)}, 7168")
    a(f"v_bfe_u32 {v(T0)}, v0, 2, 2")
    a(f"v_lshl_add_u32 {v(T0)}, {v(T1)}, 3, {v(T0)}")
    a(f"v_mul_u32_u24 {v(TRA)}, 224, {v(T0)}")
    a(f"v_and_b32 {v(T0)}, 3, v0")
    a(f"v_lshl_add_u32 {v(TRA)}, {v(T0)}, 3, {v(TRA)}")
    a(f"v_add_u32 {v(TRA)}, {s(sLB)}, {v(TRA)}")
    a(f"s_lshr_b32 {s(sO)}, {s(sH)}, 2")
    a(f"s_mul_i32 {s(sO)}, {s(sO)}, 114688")
    a(f"s_and_b32 {s(S_TMP)}, {s(sH)}, 3")
    a(f"s_mul_i32 {s(S_TMP)}, {s(S_TMP)}, 28672")
    a(f"s_add_u32 {s(sO)}, {s(sO)}, {s(S_TMP)}")
    a(f"s_lshl_b32 {s(S_TMP)}, {s(sK)}, 11")
    a(f"s_add_u32 {s(sO)}, {s(sO)}, {s(S_TMP)}")
    a(f"s_add_u32 {s(sO)}, {s(sO)}, {WS['BL']}")
    read_left()
    seq = [(ks, j) for ks in range(4) for j in range(7)] + [(ks, j) for j in range(7) for ks in range(4, 8)]

    def read_b(i):
        ks, j = seq[i]
        if j == 0:
            a.wait_vm(("r", ks))
        for q in range(2):
            a.dsop(f"ds_read_b64_tr_b16 {v(BT + 4 * (i % 4) + 2 * q, 2)}, {v(TRA)} offset:{(ks % 4) * 7168 + j * 32 + 896 * q}", ("b", i))
    for i in range(3):
        read_b(i)

    def finish_b(j):
        a(f"s_mul_i32 {s(S_TMP)}, {s(S_WAVE)}, 7")
        a(f"s_add_u32 {s(S_TMP)}, {s(S_TMP)}, {j}")
        a(f"s_lshr_b32 {s(S_TMP + 1)}, {s(S_TMP)}, 1")
        a(f"s_mul_i32 {s(S_TMP + 1)}, {s(S_TMP + 1)}, {BL_CU}")
        a(f"s_and_b32 {s(S_TMP)}, {s(S_TMP)}, 1")
        a(f"s_mul_i32 {s(S_TMP)}, {s(S_TMP)}, 14336")
        a(f"s_add_u32 {s(S_TMP)}, {s(S_TMP)}, {s(S_TMP + 1)}")
        a(f"s_add_u32 {s(S_TMP)}, {s(S_TMP)}, {s(sO)}")
        finish(ACC + 16 * j, OUT + 8 * j, False, S_TMP)
    for i, (ks, j) in enumerate(seq):
        a.wait_ds(("l", ks))
        a.wait_ds(("b", i))
        if j == 6 and ks < 4:
            stage_b(ks + 4)
        for t in range(4):
            c = v(ACC + 16 * j + 4 * t, 4)
            a(f"v_mfma_f32_16x16x32_bf16 {c}, {LOP(t, ks)}, {v(BT + 4 * (i % 4), 4)}, " + (c if ks else "0"))
            if t == 0 and i + 3 < len(seq):
                read_b(i + 3)
        if ks == 4 and j == 0:
            stampreg(a, cfg, 70)
        if ks == 4 and j:
            finish_b(j - 1)
    stampreg(a, cfg, 68)
    a.nop(1)
    finish_b(6)
    a("s_branch PRE_DONE")

    a.label("PRE_LN")
    srd(a, S_X, 0, 2048 * 896)
    a.vm = []
    LA, PK, F, SUM, VAR, TM = 5, 16, 80, 8, 9, 10
    a(f"s_lshl_b32 {s(sH)}, {s(sH)}, 2")
    a(f"s_add_u32 {s(sH)}, {s(sH)}, {s(sK)}")
    a(f"s_sub_u32 {s(sH)}, {s(sH)}, 28")
    a(f"s_lshl_b32 {s(sH)}, {s(sH)}, 2")
    a(f"s_add_u32 {s(sH)}, {s(sH)}, {s(S_WAVE)}")
    a(f"s_mul_i32 {s(sL)}, {s(sH)}, 14336")
    a(f"v_and_b32 {v(LA)}, 15, v0")
    a(f"v_mul_u32_u24 {v(LA)}, 896, {v(LA)}")
    a(f"v_lshrrev_b32 {v(T1)}, 4, v0")
    a(f"v_lshl_add_u32 {v(LA)}, {v(T1)}, 4, {v(LA)}")
    a("s_waitcnt lgkmcnt(0)")
    for ks in range(14):
        a.vmop(f"buffer_load_dwordx4 {v(PK + 4 * ks, 4)}, {v(LA)}, {s(S_X, 4)}, {s(sL)} offen offset:{ks * 64}", ks)
    a(f"v_mov_b32 {v(SUM)}, 0")
    a(f"v_mov_b32 {v(VAR)}, 0")
    for i in range(56):
        a.wait_vm(i // 4)
        a(f"v_lshlrev_b32 {v(F + 2 * i)}, 16, {v(PK + i)}")
        a(f"v_and_b32 {v(F + 2 * i + 1)}, 0xffff0000, {v(PK + i)}")
        a(f"v_add_f32 {v(SUM)}, {v(SUM)}, {v(F + 2 * i)}")
        a(f"v_add_f32 {v(VAR)}, {v(VAR)}, {v(F + 2 * i + 1)}")
    a(f"v_add_f32 {v(SUM)}, {v(SUM)}, {v(VAR)}")
    row_sum4(a, SUM, TM)
    a(f"v_mul_f32 {v(SUM)}, {f32(1 / 448)}, {v(SUM)}")
    a(f"v_mov_b32 {v(VAR)}, 0")
    a(f"v_mov_b32 {v(T0)}, 0")
    for i in range(56):
        a(f"v_sub_f32 {v(TM)}, {v(F + 2 * i)}, {v(SUM)}")
        a(f"v_sub_f32 {v(TM + 1)}, {v(F + 2 * i + 1)}, {v(SUM)}")
        a(f"v_fmac_f32 {v(VAR)}, {v(TM)}, {v(TM)}")
        a(f"v_fmac_f32 {v(T0)}, {v(TM + 1)}, {v(TM + 1)}")
    a(f"v_add_f32 {v(VAR)}, {v(VAR)}, {v(T0)}")
    row_sum4(a, VAR, TM)
    a(f"v_mul_f32 {v(VAR)}, {f32(1 / 448)}, {v(VAR)}")
    ln_scalars(a, SUM, VAR)
    a(f"s_add_u32 {s(sR)}, {s(sL)}, {WS['XT']}")
    a(f"s_add_u32 {s(sO)}, {s(sL)}, {WS['XP']}")
    for ks in range(14):
        p = PK + 4 * ks
        for i in range(4):
            ln_apply(a, p + i, F + 8 * ks + 2 * i, F + 8 * ks + 2 * i + 1, SUM, VAR)
        if ks and ks % 4 == 0:
            a(f"s_add_u32 {s(sR)}, {s(sR)}, 4096")
            a(f"s_add_u32 {s(sO)}, {s(sO)}, 4096")
        a(f"buffer_store_dwordx4 {v(p, 4)}, {v(L16)}, {WS_SRD}, {s(sR)} offen offset:{(ks % 4) * 1024} sc1")
        q = F + 8 * ks
        for i, src in enumerate((0, 2, 1, 3)):
            a(f"v_mov_b32 {v(q + i)}, {v(p + src)}")
        a.nop(1)
        a(f"v_permlane16_swap_b32 {v(q)}, {v(q + 1)}")
        a(f"v_permlane16_swap_b32 {v(q + 2)}, {v(q + 3)}")
        a(f"buffer_store_dwordx4 {v(q, 4)}, {v(L16)}, {WS_SRD}, {s(sO)} offen offset:{(ks % 4) * 1024} sc1")
```

```python
import sys
from asmlib import Asm, v, s
from layout import *
from roles_rec import *

NAME = "sequential_preLN__memory_aug_recurrent_mem_tr__dense_activation_gelu__prompt"
HEADER = open("cdna_kernels/" + NAME + ".s.ref").read().split("; Override launch")[0]
LDS_MAIN = 163840
LDS_MAIL = 49136
S_DBG = 84


def descriptor(name, vgpr, accum):
    return f""".section .rodata,"a"
.p2align 6
.amdhsa_kernel {name}
  .amdhsa_next_free_vgpr {vgpr}
  .amdhsa_next_free_sgpr 102
  .amdhsa_accum_offset {accum}
  .amdhsa_group_segment_fixed_size 0
  .amdhsa_kernarg_size 120
  .amdhsa_user_sgpr_count 2
  .amdhsa_user_sgpr_kernarg_segment_ptr 1
  .amdhsa_system_sgpr_workgroup_id_x 1
  .amdhsa_float_denorm_mode_32 3
.end_amdhsa_kernel
"""


def gen_main(a, cfg):
    name = NAME + "_kernel"
    a.raw(f".globl {name}\n.p2align 8\n.type {name},@function")
    a.label(name)
    a("s_cmp_ge_u32 s2, 256")
    a("s_cbranch_scc0 MAIN_GO")
    a("s_endpgm")
    a.label("MAIN_GO")
    if cfg.get("stamps"):
        a(f"s_memrealtime {s(S_CLK + 30, 2)}")
    a(f"s_load_dwordx2 {s(S_WS, 2)}, s[0:1], 112")
    a(f"s_load_dwordx2 {s(S_DBG, 2)}, s[0:1], 104")
    a("v_lshrrev_b32 v1, 6, v0")
    a("v_and_b32 v0, 63, v0")
    a(f"v_readfirstlane_b32 {s(S_WAVE)}, v1")
    a(f"s_mov_b32 {s(S_WS + 2)}, {WS_BYTES}")
    a(f"s_mov_b32 {s(S_WS + 3)}, 0x00020000")
    a(f"s_mov_b32 {s(S_DBG + 2)}, 256")
    a(f"s_mov_b32 {s(S_DBG + 3)}, 0x00020000")
    a(f"s_mov_b32 {s(S_TO)}, 0x200000")
    if cfg.get("codewarm", 1):
        a("s_getpc_b64 s[90:91]")
        a.label("MAIN_PC")
        a(f"s_lshr_b32 {s(S_TMP)}, s2, 3")
        a(f"s_lshl_b32 {s(S_TMP)}, {s(S_TMP)}, 2")
        a(f"s_add_u32 {s(S_TMP)}, {s(S_TMP)}, {s(S_WAVE)}")
        a(f"s_and_b32 {s(S_TMP)}, {s(S_TMP)}, 31")
        a(f"s_lshl_b32 {s(S_TMP)}, {s(S_TMP)}, 13")
        a(f"v_lshl_add_u32 v2, v0, 7, {s(S_TMP)}")
        a("v_min_u32 v2, CODE_END-MAIN_PC-4, v2")
        a("global_load_dword v6, v2, s[90:91]")
    a(f"s_getreg_b32 {s(S_GRP)}, hwreg(HW_REG_XCC_ID, 0, 3)")
    a(f"s_cmp_lg_u32 {s(S_WAVE)}, 0")
    a("s_cbranch_scc1 MAIN_TAGGED")
    a(f"s_and_b32 {s(S_TMP)}, s2, 7")
    a(f"s_lshl_b32 {s(S_TMP)}, {s(S_TMP)}, 2")
    a(f"s_or_b32 {s(S_TMP + 1)}, {s(S_GRP)}, 8")
    a(f"s_lshl_b32 {s(S_TMP)}, {s(S_TMP + 1)}, {s(S_TMP)}")
    a(f"v_mov_b32 v1, {s(S_TMP)}")
    a(f"s_lshr_b32 {s(S_TMP)}, s2, 3")
    a(f"s_lshl_b32 {s(S_TMP)}, {s(S_TMP)}, 2")
    a("s_waitcnt lgkmcnt(0)")
    a("s_mov_b64 exec, 1")
    a(f"buffer_atomic_or v1, off, {s(S_DBG, 4)}, {s(S_TMP)} offset:128")
    a("s_mov_b64 exec, -1")
    a("s_cmp_lg_u32 s2, 0")
    a("s_cbranch_scc1 MAIN_TAGGED")
    a(f"s_memrealtime {s(S_TMP, 2)}")
    a("s_waitcnt lgkmcnt(0)")
    a(f"s_bitset1_b32 {s(S_TMP)}, 0")
    a(f"v_mov_b32 v2, {s(S_TMP)}")
    a(f"buffer_store_dword v2, off, {s(S_DBG, 4)}, 0 sc1")
    a.label("MAIN_TAGGED")
    if "P" in cfg["roles"]:
        from roles_pre import gen_pre
        gen_pre(a, cfg)
    a.label("PRE_DONE")
    a(f"v_mov_b32 v4, {LDS_MAIL}")
    a("s_waitcnt lgkmcnt(0)")
    a(f"s_cmp_lg_u32 {s(S_WAVE)}, 0")
    a("s_cbranch_scc1 MAIN_DRAIN")
    a(f"s_mov_b32 {s(S_SLOW)}, 2")
    a(f"s_mov_b32 {s(S_LOC)}, 0")
    a(f"s_mov_b32 {s(S_TAG)}, 0")
    a("v_lshrrev_b32 v2, 1, v0")
    a("v_lshlrev_b32 v2, 2, v2")
    a("v_and_b32 v5, 1, v0")
    a("v_lshlrev_b32 v5, 4, v5")
    a.label("MAIN_CENSUS")
    a(f"buffer_load_dword v1, off, {s(S_DBG, 4)}, 0 sc1")
    a(f"buffer_load_dword v3, v2, {s(S_DBG, 4)}, 0 offen offset:128 sc1")
    a("s_waitcnt vmcnt(0)")
    a(f"v_readfirstlane_b32 {s(S_TAG)}, v1")
    a("v_lshrrev_b32 v3, v5, v3")
    a("v_and_b32 v1, 0x8888, v3")
    a("v_cmp_ne_u32 vcc, 0x8888, v1")
    a(f"s_cmp_eq_u32 {s(S_TAG)}, 0")
    a("s_cselect_b64 s[94:95], -1, vcc")
    a("s_cmp_eq_u64 s[94:95], 0")
    a("s_cbranch_scc1 MAIN_ALL")
    a("s_sleep 2")
    a(f"s_sub_u32 {s(S_TO)}, {s(S_TO)}, 1")
    a("s_cbranch_scc0 MAIN_CENSUS")
    a("s_branch MAIN_DECIDED")
    a.label("MAIN_ALL")
    for i in range(4):
        a(f"v_bfe_u32 v{8 + i}, v3, {4 * i}, 3")
    a("v_lshlrev_b32 v3, 2, v0")
    for i in range(4):
        a(f"v_cmp_eq_u32 {s(S_TMP + 2, 2)}, {s(S_GRP)}, v{8 + i}")
        a("v_cmp_gt_u32 vcc, s2, v3")
        a("v_add_u32 v3, 1, v3")
        a(f"s_and_b64 vcc, vcc, {s(S_TMP + 2, 2)}")
        a(f"s_bcnt1_i32_b64 {s(S_TMP + 1)}, vcc")
        a(f"s_add_u32 {s(S_LOC)}, {s(S_LOC)}, {s(S_TMP + 1)}")
    a(f"s_mov_b32 {s(S_SLOW)}, 0")
    for x in range(7):
        a(f"s_mov_b32 {s(S_TMP)}, 0")
        for i in range(4):
            a(f"v_cmp_eq_u32 vcc, {x}, v{8 + i}")
            a(f"s_bcnt1_i32_b64 {s(S_TMP + 1)}, vcc")
            a(f"s_add_u32 {s(S_TMP)}, {s(S_TMP)}, {s(S_TMP + 1)}")
        a(f"s_cmp_eq_u32 {s(S_TMP)}, 32")
        a(f"s_cselect_b32 {s(S_SLOW)}, {s(S_SLOW)}, 1")
    a.label("MAIN_DECIDED")
    if cfg.get("force_slow"):
        a(f"s_max_u32 {s(S_SLOW)}, {s(S_SLOW)}, 1")
    a(f"v_mov_b32 v8, {s(S_LOC)}")
    a(f"v_mov_b32 v9, {s(S_SLOW)}")
    a(f"v_mov_b32 v10, {s(S_TAG)}")
    a.label("MAIN_DRAIN")
    a("s_waitcnt vmcnt(0)")
    a("s_barrier")
    if cfg.get("stamps"):
        a(f"s_memrealtime {s(S_CLK + 26, 2)}")
    a(f"s_cmp_lg_u32 {s(S_WAVE)}, 0")
    a("s_cbranch_scc1 MAIN_MAIL")
    a(f"s_lshl_b32 {s(S_TMP)}, s2, 2")
    a(f"buffer_store_dword v10, off, {WS_SRD}, {s(S_TMP)} offset:{WS['ARR']} sc1")
    a("ds_write_b128 v4, v[8:11]")
    a("s_waitcnt lgkmcnt(0)")
    a.label("MAIN_MAIL")
    a("s_barrier")
    a("ds_read_b128 v[8:11], v4")
    a("s_waitcnt lgkmcnt(0)")
    a(f"v_readfirstlane_b32 {s(S_LOC)}, v8")
    a(f"v_readfirstlane_b32 {s(S_SLOW)}, v9")
    a(f"v_readfirstlane_b32 {s(S_TAG)}, v10")
    a("s_barrier")
    a("s_nop 3")
    a(f"s_cmp_lt_u32 {s(S_SLOW)}, 2")
    a("s_cbranch_scc1 MAIN_ALIVE")
    a("s_endpgm")
    a.label("MAIN_ALIVE")
    if cfg.get("stamps"):
        a(f"s_memrealtime {s(S_CLK + 24, 2)}")
        a("s_lshl_b32 s90, s2, 5")
        a(f"s_add_u32 s90, s90, {WS['DBG'] + 0x20000}")
        a("s_waitcnt lgkmcnt(0)")
        for i, r in enumerate((30, 26, 24, 18, 22, 20)):
            a(f"v_mov_b32 v2, {s(S_CLK + r)}")
            a(f"buffer_store_dword v2, off, {WS_SRD}, s90 offset:{4 * i}")
    a(f"s_and_b32 {s(S_TMP)}, s2, 7")
    a(f"s_lshr_b32 {s(S_TMP + 1)}, s2, 3")
    a(f"s_cmp_lg_u32 {s(S_SLOW)}, 0")
    a(f"s_cselect_b32 {s(S_GRP)}, {s(S_TMP)}, {s(S_GRP)}")
    a(f"s_cselect_b32 {s(S_LOC)}, {s(S_TMP + 1)}, {s(S_LOC)}")

    milestone(a, cfg, 0, 2)

    def per_wave(stem):
        for w in range(3):
            a(f"s_cmp_eq_u32 {s(S_WAVE)}, {w}")
            a(f"s_cbranch_scc1 {stem}_W{w}")
        a(f"s_branch {stem}_W3")

    roles = cfg["roles"]
    a(f"s_cmp_eq_u32 {s(S_GRP)}, 0")
    a("s_cbranch_scc0 MAIN_NOTREC")
    a(f"s_cmp_lt_u32 {s(S_LOC)}, 16")
    a("s_cbranch_scc0 MAIN_NOTS1")
    per_wave("S1")
    a.label("MAIN_NOTS1")
    a(f"s_cmp_lt_u32 {s(S_LOC)}, 30")
    a("s_cbranch_scc0 WM")
    per_wave("S2")
    a.label("MAIN_NOTREC")
    if "T" in roles:
        a(f"s_cmp_le_u32 {s(S_GRP)}, {NCLONE}")
        a("s_cbranch_scc0 MAIN_NOTTOK")
        a(f"s_sub_u32 {s(S_GRP)}, {s(S_GRP)}, 1")
        a(f"s_cmp_lt_u32 {s(S_LOC)}, 16")
        a("s_cbranch_scc0 MAIN_NOTTA")
        per_wave("TA")
        a.label("MAIN_NOTTA")
        a(f"s_cmp_lt_u32 {s(S_LOC)}, 30")
        a("s_cbranch_scc0 MAIN_IDLE")
        per_wave("TB")
        a.label("MAIN_NOTTOK")
    if "F" in roles:
        a(f"s_cmp_le_u32 {s(S_GRP)}, {NCLONE}")
        a("s_cbranch_scc1 MAIN_IDLE")
        a(f"s_sub_u32 {s(S_GRP)}, {s(S_GRP)}, {NCLONE + 1}")
        from roles_ffn import gen_reset
        gen_reset(a, cfg)
        a(f"s_cmp_lt_u32 {s(S_LOC)}, 14")
        a("s_cbranch_scc0 MAIN_NOTF1")
        per_wave("F1")
        a.label("MAIN_NOTF1")
        a(f"s_cmp_lt_u32 {s(S_LOC)}, 28")
        a("s_cbranch_scc0 MAIN_IDLE")
        per_wave("F2")
    a.label("MAIN_IDLE")
    a("s_endpgm")
    gen_wm(a, cfg)
    for w in range(4):
        gen_s1(a, w, cfg)
    for w in range(4):
        gen_s2(a, w, cfg)
    if "T" in roles:
        from roles_tok import gen_ta, gen_tb
        for w in range(4):
            gen_ta(a, w, cfg)
        for w in range(4):
            gen_tb(a, w, cfg)
    if "F" in roles:
        from roles_ffn import gen_f1, gen_f2
        for w in range(4):
            gen_f1(a, w, cfg)
        for w in range(4):
            gen_f2(a, w, cfg)
    a.label("CODE_END")
    a("s_endpgm")
    return descriptor(name, 512, 256)


def generate(cfg):
    a = Asm()
    launches = []
    desc = ""
    a.raw('.amdgcn_target "amdgcn-amd-amdhsa--gfx950"\n.text')
    desc += gen_main(a, cfg)
    launches.append(f"; @launch grid=(256,1,1) block=(256,1,1) lds={LDS_MAIN}")
    return HEADER + "\n".join(launches) + "\n" + a.text() + desc


if __name__ == "__main__":
    out = sys.argv[1]
    cfg = {"roles": sys.argv[2] if len(sys.argv) > 2 else "PTF"}
    for opt in sys.argv[3:]:
        k, _, val = opt.partition("=")
        cfg[k] = int(val) if val else 1
    open(out, "w").write(generate(cfg))
    import subprocess
    r = subprocess.run(["clang", "-x", "assembler", "-target", "amdgcn-amd-amdhsa", "-mcpu=gfx950", "-c", out, "-o", "gen_check.o"], capture_output=True, text=True)
    if r.returncode:
        print(r.stderr[:1500])
        sys.exit(1)
```

```python
from asmlib import Asm, v, acc, s, interleave
from layout import *

S_WS = 4
S_X = 8
S_OUT = 12
S_AUX = 16
S_WAVE = 20
S_GRP = 21
S_LOC = 22
S_SLOW = 23
S_TO = 24
S_STEP = 25
S_T0 = 26
S_TMP = 40
S_BELL = 89
S_TAG = 88
S_CLK = 48

IOTA = [0, 2, 1, 3]
WS_SRD = s(S_WS, 4)


def wblock(b, vbase, hi=None):
    n = 8 if hi is None else 4
    o = 0 if hi is None else 4 * hi
    return acc(8 * b + o, n) if b < 32 else v(vbase + 8 * (b - 32) + o, n)


def smf(a, d, x, w, idx, upper=False):
    a(f"v_smfmac_f32_16x16x64_bf16 {v(d, 4)}, {v(x, 4)}, {w}, {v(idx)}" + (" abid:1" if upper else ""))


def stream_load(a, dests, vaddr, soff, window=48):
    for i, d in enumerate(dests):
        if i and i % 4 == 0:
            a(f"s_add_u32 {s(soff)}, {s(soff)}, 4096")
        if i >= window and (i - window) % 8 == 0:
            a(f"s_waitcnt vmcnt({window - 8})")
        a(f"buffer_load_dwordx4 {d}, {v(vaddr)}, {WS_SRD}, {s(soff)} offen offset:{(i % 4) * 1024}")


def any_poison(a, regs, tmp):
    regs = list(regs)
    a(f"v_max3_u32 {v(tmp)}, {v(regs[0])}, {v(regs[1])}, {v(regs[2])}")
    rest = regs[3:]
    while len(rest) >= 2:
        a(f"v_max3_u32 {v(tmp)}, {v(tmp)}, {v(rest[0])}, {v(rest[1])}")
        rest = rest[2:]
    if rest:
        a(f"v_max_u32 {v(tmp)}, {v(tmp)}, {v(rest[0])}")
    a(f"v_cmp_eq_u32 vcc, -1, {v(tmp)}")


def poll(a, loads, regs, tmp, sleep=0):
    top, done = a.newlabel("poll"), a.newlabel("got")
    a.label(top)
    for l in loads:
        a(l)
    a("s_waitcnt vmcnt(0)")
    any_poison(a, regs, tmp)
    a(f"s_cbranch_vccz {done}")
    if sleep:
        a(f"s_sleep {sleep}")
    a(f"s_sub_u32 {s(S_TO)}, {s(S_TO)}, 1")
    a(f"s_cbranch_scc0 {top}")
    a("s_endpgm")
    a.label(done)


def poll_deep(a, loads, regs, tmp, under=(), depth=2):
    spin, done = a.newlabel("spin"), a.newlabel("got")
    for _ in range(depth - 1):
        for l in loads:
            a(l)
    a.label(spin)
    for l in loads:
        a(l)
    a(f"s_waitcnt vmcnt({len(loads) * (depth - 1)})")
    any_poison(a, regs, tmp)
    for f in under:
        f()
    a(f"s_cbranch_vccz {done}")
    a(f"s_sub_u32 {s(S_TO)}, {s(S_TO)}, 1")
    a(f"s_cbranch_scc0 {spin}")
    a("s_endpgm")
    a.label(done)


def wait_flag(a, reg, load, sleep=2, landed=True):
    top, first, done = a.newlabel("flag"), a.newlabel("first"), a.newlabel("set")
    if not landed:
        a(f"s_branch {first}")
    a.label(top)
    a(f"v_cmp_ne_u32 vcc, {s(S_TAG)}, {v(reg)}")
    a(f"s_cbranch_vccz {done}")
    a(f"s_sleep {sleep}")
    a.label(first)
    a(load)
    a("s_waitcnt vmcnt(0)")
    a(f"s_sub_u32 {s(S_TO)}, {s(S_TO)}, 1")
    a(f"s_cbranch_scc0 {top}")
    a("s_endpgm")
    a.label(done)


def wait_tasks(a, kind, t0, t1, w=0):
    if kind == "A":
        a(f"v_min_u32 {v(t0)}, 6, v0")
        a(f"v_lshlrev_b32 {v(t0)}, 5, {v(t0)}")
        a(f"s_and_b32 {s(S_TMP)}, {s(S_LOC)}, 1")
        a(f"s_mul_i32 {s(S_TMP)}, {s(S_TMP)}, 224")
        a(f"s_lshr_b32 {s(S_TMP + 1)}, {s(S_LOC)}, 1")
        a(f"s_lshl_b32 {s(S_TMP + 1)}, {s(S_TMP + 1)}, 2")
        a(f"s_add_u32 {s(S_TMP)}, {s(S_TMP)}, {s(S_TMP + 1)}")
    elif kind == "B":
        a(f"v_lshrrev_b32 {v(t0)}, 1, v0")
        a(f"v_min_u32 {v(t0)}, 13, {v(t0)}")
        a(f"v_lshlrev_b32 {v(t0)}, 5, {v(t0)}")
        a(f"v_and_b32 {v(t1)}, 1, v0")
        a(f"v_lshl_add_u32 {v(t0)}, {v(t1)}, 2, {v(t0)}")
        a(f"s_mov_b32 {s(S_TMP)}, {448 + 8 * w}")
    elif kind == "L":
        a(f"v_and_b32 {v(t0)}, 31, v0")
        a(f"v_lshlrev_b32 {v(t0)}, 2, {v(t0)}")
        a(f"s_mov_b32 {s(S_TMP)}, 896")
    else:
        a(f"v_min_u32 {v(t0)}, {63 if kind == 'LZ' else 47}, v0")
        a(f"v_lshlrev_b32 {v(t0)}, 3, {v(t0)}")
        top, done = a.newlabel("lz"), a.newlabel("lzok")
        a.label(top)
        a(f"buffer_load_dwordx2 {v(t1, 2)}, {v(t0)}, {WS_SRD}, 0 offen offset:{WS['ARR'] + (896 if kind == 'LZ' else 1536)} sc1")
        a("s_waitcnt vmcnt(0)")
        a(f"v_cmp_ne_u32 vcc, {s(S_TAG)}, {v(t1)}")
        a(f"v_cmp_ne_u32 {s(S_TMP, 2)}, {s(S_TAG)}, {v(t1 + 1)}")
        a(f"s_or_b64 vcc, vcc, {s(S_TMP, 2)}")
        a(f"s_cbranch_vccz {done}")
        a("s_sleep 4")
        a(f"s_sub_u32 {s(S_TO)}, {s(S_TO)}, 1")
        a(f"s_cbranch_scc0 {top}")
        a("s_endpgm")
        a.label(done)
        return
    wait_flag(a, t1, f"buffer_load_dword {v(t1)}, {v(t0)}, {WS_SRD}, {s(S_TMP)} offen offset:{WS['ARR']} sc1", sleep=4, landed=False)


def wait_bell(a, cfg, tmp, sval, word, depth=2):
    if not cfg.get("bell", 1):
        return
    spin, done = a.newlabel("bell"), a.newlabel("rung")
    load = f"buffer_load_dword {v(tmp)}, off, {WS_SRD}, {s(S_BELL)} offset:{4 * word} sc1"
    a(f"s_cmp_lg_u32 {s(S_SLOW)}, 0")
    a(f"s_cbranch_scc1 {done}")
    for _ in range(depth - 1):
        a(load)
    a.label(spin)
    a(load)
    a(f"s_waitcnt vmcnt({depth - 1})")
    a(f"v_cmp_ne_u32 vcc, {s(sval)}, {v(tmp)}")
    a(f"s_cbranch_vccz {done}")
    a(f"s_sub_u32 {s(S_TO)}, {s(S_TO)}, 1")
    a(f"s_cbranch_scc0 {spin}")
    a("s_endpgm")
    a.label(done)


def wait_first_y(a, tmp, seg_reg=None, seg=0):
    if seg_reg is not None:
        a(f"s_mul_i32 {s(S_TMP)}, {s(seg_reg)}, 224")
        a(f"s_add_u32 {s(S_TMP)}, {s(S_TMP)}, {WS['YF']}")
    else:
        a(f"s_mov_b32 {s(S_TMP)}, {WS['YF'] + 224 * seg}")
    wait_flag(a, tmp, f"buffer_load_dword {v(tmp)}, off, {WS_SRD}, {s(S_TMP)} sc1", sleep=8, landed=False)


def local_stores(a, stores, scc_set=False):
    slow, done = a.newlabel("wt"), a.newlabel("st")
    if not scc_set:
        a(f"s_cmp_lg_u32 {s(S_SLOW)}, 0")
    a(f"s_cbranch_scc1 {slow}")
    for st in stores:
        a(st)
    a(f"s_branch {done}")
    a.label(slow)
    for st in stores:
        a(st + " sc1")
    a.label(done)


def index_reg(a, reg, tmp):
    a(f"v_and_b32 {v(tmp)}, 8, v0")
    a(f"v_cmp_eq_u32 vcc, 0, {v(tmp)}")
    a(f"v_mov_b32 {v(tmp)}, 0x88884444")
    a(f"v_mov_b32 {v(reg)}, 0xddddeeee")
    a(f"v_cndmask_b32 {v(reg)}, {v(reg)}, {v(tmp)}, vcc")


def iota_reg(a, reg, tmp):
    a(f"v_bfe_u32 {v(reg)}, v0, 5, 1")
    a(f"v_bfe_u32 {v(tmp)}, v0, 4, 1")
    a(f"v_lshl_add_u32 {v(reg)}, {v(tmp)}, 1, {v(reg)}")


def stamp(a, cfg, k):
    if cfg.get("stamps", 0) >> k & 1:
        a(f"{'s_memrealtime' if cfg.get('rt') else 's_memtime'} {s(S_CLK + 2 * k, 2)}")


def flush_stamps(a, cfg, n, slot, tmp):
    if not cfg.get("stamps"):
        return
    a("s_waitcnt lgkmcnt(0)")
    a.ds = []
    a(f"s_lshl_b32 {s(S_TMP)}, {s(S_STEP)}, 6")
    a(f"s_add_u32 {s(S_TMP)}, {s(S_TMP)}, {WS['DBG'] + slot * 4096}")
    a(f"s_mul_i32 {s(S_TMP + 1)}, {s(S_LOC)}, 0x30000")
    a(f"s_add_u32 {s(S_TMP)}, {s(S_TMP)}, {s(S_TMP + 1)}")
    skip = a.newlabel("nostamp")
    for k in range(n):
        a(f"v_mov_b32 {v(tmp)}, {s(S_CLK + 2 * k)}")
        a(f"buffer_store_dword {v(tmp)}, off, {WS_SRD}, {s(S_TMP)} offset:{4 * k}")
    a(f"v_mov_b32 {v(tmp)}, {s(S_TO)}")
    a(f"buffer_store_dword {v(tmp)}, off, {WS_SRD}, {s(S_TMP)} offset:60")
    a(f"s_add_u32 {s(S_TMP + 1)}, {s(S_STEP)}, -1")
    a(f"s_cmp_lt_u32 {s(S_TMP + 1)}, {cfg.get('last_step', 61)}")
    a(f"s_cbranch_scc1 {skip}")
    a(f"s_memrealtime {s(S_CLK + 28, 2)}")
    a("s_waitcnt lgkmcnt(0)")
    a(f"v_mov_b32 {v(tmp)}, {s(S_CLK + 28)}")
    a(f"buffer_store_dword {v(tmp)}, off, {WS_SRD}, {s(S_TMP)} offset:56")
    a(f"v_mov_b32 {v(tmp)}, {s(S_CLK + 30)}")
    a(f"buffer_store_dword {v(tmp)}, off, {WS_SRD}, {s(S_TMP)} offset:52")
    a.label(skip)


def milestone(a, cfg, k, tmp):
    if not cfg.get("stamps"):
        return
    a("s_memrealtime s[92:93]")
    a("s_lshl_b32 s90, s2, 2")
    a(f"s_add_u32 s90, s90, {s(S_WAVE)}")
    a("s_lshl_b32 s90, s90, 5")
    a(f"s_add_u32 s90, s90, {WS['DBG'] + 0x28000}")
    a("s_waitcnt lgkmcnt(0)")
    a(f"v_mov_b32 {v(tmp)}, s92")
    a(f"buffer_store_dword {v(tmp)}, off, {WS_SRD}, s90 offset:{4 * k}")
    if k == 0:
        a(f"s_lshl_b32 s91, {s(S_GRP)}, 8")
        a(f"s_add_u32 s91, s91, {s(S_LOC)}")
        a(f"v_mov_b32 {v(tmp)}, s91")
        a(f"buffer_store_dword {v(tmp)}, off, {WS_SRD}, s90 offset:28")


def keep_stamps(a, cfg, n, base):
    if cfg.get("stamps"):
        a(f"s_mov_b32 m0, {s(S_STEP)}")
        for k in range(n):
            a(f"v_writelane_b32 {v(base + k)}, {s(S_CLK + 2 * k)}, m0")


def dump_stamps(a, cfg, n, base, slot, lane16):
    if not cfg.get("stamps"):
        return
    a(f"v_lshlrev_b32 {v(lane16)}, 2, {v(lane16)}")
    a(f"s_mul_i32 {s(S_TMP)}, {s(S_LOC)}, 0x30000")
    a(f"s_add_u32 {s(S_TMP)}, {s(S_TMP)}, {WS['DBG'] + slot * 4096}")
    for k in range(n):
        a(f"buffer_store_dword {v(base + k)}, {v(lane16)}, {WS_SRD}, {s(S_TMP)} offen offset:{4 * k}")


def gen_s1(a, w, cfg):
    L16, XKA, MKA, TWA, TRA, SWA, SRA, SRM, PTA, PMA, IDX, T0, T1 = range(1, 14)
    TACC, MA, MK, XK, WV = 16, 44, 72, 88, 120
    MEMIMG, TBUF, SBUF, ZERO = 0, 8192 + 2048 * w, 16384, 24576
    sMEM, sP, sPM, sX0, sX1, sY, sR, sRDY, sVAL, sOWN = range(S_T0, S_T0 + 10)
    p0 = cfg.get('ypieces', 0)
    blk = lambda j, k: wblock(j * 7 + k, WV)
    own = [2 * w, 2 * w + 1] if w < 3 else [5, 6]
    share = own if w < 3 else [6]
    others = [k for k in range(7) if k not in own]
    T = lambda j, r=0: TACC + 4 * j + r
    TOP0, TOP1 = T(0), T(1)
    T1D = T(6)
    SC = [MA + 4 * own[0], MA + 4 * own[1], 12]

    a.label(f"S1_W{w}")
    a(f"v_lshlrev_b32 {v(L16)}, 4, v0")
    wait_tasks(a, "A", T0, T1)
    a(f"s_mul_i32 {s(S_TMP)}, {s(S_LOC)}, {AL_HEAD}")
    a(f"s_add_u32 {s(S_TMP)}, {s(S_TMP)}, {WS['AL'] + w * 100352}")
    stream_load(a, [wblock(b, WV, hi) for b in range(49) for hi in range(2)], L16, S_TMP)
    a(f"v_and_b32 {v(T0)}, 15, v0")
    a(f"v_lshrrev_b32 {v(T1)}, 4, v0")
    a(f"v_add_u32 {v(MKA)}, {14 * w}, {v(T1)}")
    a(f"v_lshrrev_b32 {v(XKA)}, 2, {v(MKA)}")
    a(f"v_lshlrev_b32 {v(XKA)}, 10, {v(XKA)}")
    a(f"v_and_b32 {v(SWA)}, 3, {v(MKA)}")
    a(f"v_lshl_add_u32 {v(SWA)}, {v(SWA)}, 4, {v(T0)}")
    a(f"v_lshl_add_u32 {v(XKA)}, {v(SWA)}, 4, {v(XKA)}")
    a(f"v_and_b32 {v(SWA)}, 7, v0")
    a(f"v_lshlrev_b32 {v(SWA)}, 4, {v(SWA)}")
    a(f"v_lshl_add_u32 {v(MKA)}, {v(MKA)}, 7, {v(SWA)}")
    iota_reg(a, PTA, PMA)
    a(f"v_lshlrev_b32 {v(TWA)}, 2, {v(PTA)}")
    a(f"v_lshl_add_u32 {v(TWA)}, {v(T0)}, 4, {v(TWA)}")
    a(f"v_add_u32 {v(TWA)}, {TBUF}, {v(TWA)}")
    a(f"v_mul_u32_u24 {v(SWA)}, 1536, {v(PTA)}")
    a(f"v_lshl_add_u32 {v(SWA)}, {v(T0)}, 4, {v(SWA)}")
    a(f"v_add_u32 {v(SWA)}, {SBUF + (w >> 1) * 256 + (w & 1) * 8}, {v(SWA)}")
    a(f"v_bfe_u32 {v(TRA)}, v0, 2, 2")
    a(f"v_lshl_add_u32 {v(TRA)}, {v(T1)}, 3, {v(TRA)}")
    a(f"v_lshlrev_b32 {v(TRA)}, 5, {v(TRA)}")
    a(f"v_and_b32 {v(PMA)}, 3, v0")
    a(f"v_lshl_add_u32 {v(TRA)}, {v(PMA)}, 3, {v(TRA)}")
    a(f"v_add_u32 {v(TRA)}, {TBUF}, {v(TRA)}")
    a(f"v_lshrrev_b32 {v(T1)}, 5, v0")
    a(f"v_bfe_u32 {v(SRA)}, v0, 4, 1")
    a(f"v_lshlrev_b32 {v(SRA)}, 9, {v(SRA)}")
    a(f"v_lshl_add_u32 {v(SRA)}, {v(T1)}, 8, {v(SRA)}")
    a(f"v_lshl_add_u32 {v(SRA)}, {v(T0)}, 4, {v(SRA)}")
    a(f"v_add_u32 {v(SRA)}, {SBUF + w * 1536}, {v(SRA)}")
    a(f"v_and_b32 {v(SRM)}, 7, v0")
    a(f"v_lshlrev_b32 {v(SRM)}, 4, {v(SRM)}")
    a(f"v_lshl_add_u32 {v(SRM)}, {v(T1)}, 8, {v(SRM)}")
    a(f"v_add_u32 {v(SRM)}, {SBUF + w * 1536 + 1024}, {v(SRM)}")
    a(f"v_add_u32 {v(T1)}, {2 * w}, {v(T1)}")
    a(f"v_bfe_u32 {v(PTA)}, v0, 3, 2")
    a(f"v_lshlrev_b32 {v(PTA)}, 7, {v(PTA)}")
    a(f"v_lshl_add_u32 {v(PTA)}, {v(T1)}, 4, {v(PTA)}")
    a(f"v_and_b32 {v(T0)}, 7, v0")
    a(f"v_lshl_add_u32 {v(PTA)}, {v(T0)}, 1, {v(PTA)}")
    a(f"v_bfe_u32 {v(PMA)}, v0, 1, 1")
    a(f"v_lshlrev_b32 {v(PMA)}, 7, {v(PMA)}")
    a(f"v_lshl_add_u32 {v(PMA)}, {v(T1)}, 4, {v(PMA)}")
    a(f"v_bfe_u32 {v(T0)}, v0, 2, 1")
    a(f"v_lshl_add_u32 {v(PMA)}, {v(T0)}, 3, {v(PMA)}")
    a(f"v_and_b32 {v(T0)}, 1, v0")
    a(f"v_lshlrev_b32 {v(T0)}, 30, {v(T0)}")
    a(f"v_or_b32 {v(PTA)}, {v(PTA)}, {v(T0)}")
    a(f"v_or_b32 {v(PMA)}, {v(PMA)}, {v(T0)}")
    index_reg(a, IDX, T0)
    a(f"v_mov_b32 {v(T0)}, 0")
    a(f"v_lshlrev_b32 {v(T1)}, 2, v0")
    a(f"ds_write_b32 {v(T1)}, {v(T0)} offset:{TBUF + 7 * 256}")
    a(f"ds_write_b32 {v(T1)}, {v(T0)} offset:{MEMIMG + 7168}")
    a(f"ds_write_b32 {v(T1)}, {v(T0)} offset:{ZERO + 256 * w}")
    a(f"s_mul_i32 {s(sMEM)}, {s(S_SLOW)}, {WS['MEMG'] - WS['MEML']}")
    a(f"s_add_u32 {s(sMEM)}, {s(sMEM)}, {WS['MEML'] + own[0] * 1024}")
    a(f"s_lshl_b32 {s(sP)}, {s(S_LOC)}, 9")
    a(f"s_add_u32 {s(sP)}, {s(sP)}, {WS['PB']}")
    a(f"s_lshr_b32 {s(sPM)}, {s(S_LOC)}, 1")
    a(f"s_lshl_b32 {s(sPM)}, {s(sPM)}, 8")
    a(f"s_and_b32 {s(S_TMP)}, {s(S_LOC)}, 1")
    a(f"s_lshl_b32 {s(S_TMP)}, {s(S_TMP)}, 2")
    a(f"s_add_u32 {s(sPM)}, {s(sPM)}, {s(S_TMP)}")
    a(f"s_add_u32 {s(sPM)}, {s(sPM)}, {WS['PB'] + 8192}")
    a(f"s_mov_b32 {s(S_X)}, {s(S_WS)}")
    a(f"s_or_b32 {s(S_X + 1)}, {s(S_WS + 1)}, 0x80000")
    a(f"s_mov_b32 {s(S_X + 2)}, {(8 - p0) * 128}")
    a(f"s_mov_b32 {s(S_X + 3)}, 0x00020000")
    a(f"s_mov_b32 {s(S_OUT)}, {s(S_WS)}")
    a(f"s_mov_b32 {s(S_OUT + 1)}, {s(S_X + 1)}")
    a(f"s_mov_b32 {s(S_OUT + 2)}, {56 * 16}")
    a(f"s_mov_b32 {s(S_OUT + 3)}, 0x00020000")
    a(f"s_lshl_b32 {s(sY)}, {s(S_LOC)}, 15")
    a(f"s_add_u32 {s(sY)}, {s(sY)}, {WS['YL'] + Y_SEG + w * 8192 + p0 * 1024}")
    a(f"s_mov_b32 {s(sR)}, {WS['YR'] + 128}")
    a(f"s_mov_b32 {s(S_TMP + 7)}, 0x3e800000")
    a(f"s_mov_b32 {s(sX0)}, {WS['XT']}")
    a(f"s_mov_b32 {s(sX1)}, {WS['XT'] + 14336}")
    a(f"s_mov_b32 {s(S_STEP)}, 0")
    a("s_waitcnt lgkmcnt(0)")
    a(f"v_lshrrev_b32 v0, 4, {v(L16)}")
    wait_tasks(a, "LZ", 14, 12)
    milestone(a, cfg, 1, T0)

    T0 = JUNK = 0

    def load_keys(i):
        kt, q = i & 1, i >> 1
        a(f"buffer_load_dwordx4 {v(XK + 16 * kt + 4 * q, 4)}, {v(XKA)}, {WS_SRD}, {s(sX1 if kt else sX0)} offen offset:{q * 1024}")
    a(f"s_mov_b32 {s(S_BELL)}, {WS['BELL']}")
    a(f"s_lshl_b32 {s(sOWN)}, {s(S_LOC)}, 2")
    a(f"s_add_u32 {s(sOWN)}, {s(sOWN)}, {WS['BELL']}")
    a(f"s_mov_b32 {s(sVAL)}, {s(S_TAG)}")
    top = f"S1_STEP{w}"
    a.label(top)
    a(f"buffer_load_dword {v(MK)}, off, {WS_SRD}, {s(sR)} sc1")
    for r in range(32):
        a(f"v_mov_b32 {v(12 + r)}, 0")
    stamp(a, cfg, 0)
    if cfg.get("stamps"):
        a(f"s_memtime {s(S_CLK + 22, 2)}")
    first = a.newlabel("first")
    a(f"s_cmp_eq_u32 {s(S_STEP)}, 0")
    a(f"s_cbranch_scc1 {first}")
    wait_bell(a, cfg, MK + 1, sVAL, 64 + 2 * own[0])
    a.label(first)
    a(f"s_add_u32 {s(sVAL)}, {s(sVAL)}, 1")
    pa = [(j, k) for k in own for j in range(7)]
    poll_deep(a, [f"buffer_load_dwordx4 {v(MA + 4 * own[i], 4)}, {v(L16)}, {WS_SRD}, {s(sMEM)} offen offset:{1024 * i} sc1" for i in range(2)],
              range(MA + 4 * own[0], MA + 4 * own[0] + 8), T0,
              [lambda k=k: a.dsop(f"ds_write_b128 {v(L16)}, {v(MA + 4 * k, 4)} offset:{MEMIMG + 1024 * k}") for k in share],
              cfg.get("depth1", 2))
    stamp(a, cfg, 1)
    nh = cfg.get("nhead", 3)
    for n_, (j, k) in enumerate(pa[:nh]):
        smf(a, T(j), MA + 4 * k, blk(j, k), IDX)
        if n_ == 0:
            a(f"v_readfirstlane_b32 {s(sRDY)}, {v(MK)}")
    a.wait_ds_all()
    stamp(a, cfg, 5)
    a("s_barrier")
    stamp(a, cfg, 6)
    kg = [cfg.get("kgap0", -10) + cfg.get("kgap", 4) * i for i in range(8)]
    for n_, (j, k) in enumerate(pa[nh:]):
        if n_ < len(others):
            a.dsop(f"ds_read_b128 {v(MA + 4 * others[n_], 4)}, {v(L16)} offset:{MEMIMG + 1024 * others[n_]}", ("ma", others[n_]))
        smf(a, T(j), MA + 4 * k, blk(j, k), IDX)
        if n_ == 0:
            a(f"s_cmp_lt_u32 {s(S_LOC)}, 14")
            a(f"s_cselect_b32 {s(sRDY)}, {s(sRDY)}, 0")
            a(f"s_cmp_eq_u32 {s(sRDY)}, {s(S_TAG)}")
            a(f"s_cselect_b32 {s(S_X + 2)}, {(8 - p0) * 128 if cfg.get('assist', 1) else 0}, 0")
        if n_ - (14 - nh) in kg:
            load_keys(kg.index(n_ - (14 - nh)))
        if 5 <= n_ < 9:
            a.dsop(f"ds_read_b128 {v(MK + 4 * (n_ - 5), 4)}, {v(MKA)} offset:{MEMIMG + 512 * (n_ - 5)}", "mk")

    def post(j):
        return [lambda: a(f"v_permlane32_swap_b32 {v(T(j, 0))}, {v(T(j, 2))}"),
                lambda: a(f"v_permlane32_swap_b32 {v(T(j, 1))}, {v(T(j, 3))}"),
                lambda: (a(f"v_add_f32 {v(T(j, 0))}, {v(T(j, 0))}, {v(T(j, 2))}"),
                         a(f"v_add_f32 {v(T(j, 1))}, {v(T(j, 1))}, {v(T(j, 3))}")),
                lambda: a(f"v_cvt_pk_bf16_f32 {v(T(j, 0))}, {v(T(j, 0))}, {v(T(j, 1))}"),
                lambda: a.dsop(f"ds_write_b32 {v(TWA)}, {v(T(j, 0))} offset:{256 * j}")]

    main, fill = [], {}
    for j in range(7):
        for k in others:
            def mm(j=j, k=k):
                if j == 0:
                    a.wait_ds(("ma", k))
                smf(a, T(j), MA + 4 * k, blk(j, k), IDX)
            main.append(mm)
    for i in range(8):
        if kg[i] >= 0:
            fill[kg[i]] = [lambda i=i: load_keys(i)]
    ag = kg[7] + 4
    fill.setdefault(ag, []).append(lambda: a(f"buffer_load_dword {v(JUNK)}, {v(L16)}, {s(S_X, 4)}, {s(sY)} idxen sc1"))
    after = lambda gap: sum(g > gap for g in kg) + (ag > gap)
    for j in range(6):
        for i, f in enumerate(post(j)):
            fill.setdefault(5 * (j + 1) + 2 + i, []).append(f)
    zgap = 21
    fill[zgap].append(lambda: a(f"s_waitcnt vmcnt({9 - after(zgap)})"))
    for q in range(2):
        fill[zgap].append(lambda q=q: a.dsop(f"ds_read_b128 {v(SC[q], 4)}, {v(L16)} offset:{ZERO}", "z"))
    for q in range(2):
        fill.setdefault(26 + 5 * q, []).append(lambda q=q: a.dsop(f"ds_read_b64_tr_b16 {v(TOP0 + 2 * q, 2)}, {v(TRA)} offset:{128 * q}", "t0"))
    stamp(a, cfg, 7)
    fill.setdefault(4, []).append(lambda: stamp(a, cfg, 8))
    fill.setdefault(24, []).append(lambda: stamp(a, cfg, 9))
    fill.setdefault(34, []).append(lambda: stamp(a, cfg, 10))
    tail = [f for i in sorted(fill) if i >= 35 for f in fill[i]]
    interleave(a, main, {i: f for i, f in fill.items() if i < 35})
    def ring(at):
        if w == 0 and cfg.get("bell1", 1) == at:
            a(f"v_mov_b32 {v(T(2))}, {s(sVAL)}")
            a(f"buffer_store_dword {v(T(2))}, off, {WS_SRD}, {s(sOWN)}")
    a("s_waitcnt vmcnt(5)")
    ring(0)
    a.wait_ds("t0")
    keys = [XK, XK + 16, MK]
    for t in range(3):
        smf(a, SC[t], TOP0, v(keys[t], 8), IDX, True)
        if t < len(tail):
            tail[t]()
    for f in post(6):
        f()
    for q in range(2):
        a.dsop(f"ds_read_b64_tr_b16 {v(TOP1 + 2 * q, 2)}, {v(TRA)} offset:{1024 + 128 * q}", "t1")
    stamp(a, cfg, 2)
    a(f"s_waitcnt vmcnt({2 if w == 0 and cfg.get('bell1', 1) == 0 else 1})")
    ring(1)
    a.wait_ds("t1")
    for t in range(3):
        smf(a, SC[t], TOP1, v(keys[t] + 8, 8), IDX, True)
    a.nop(2)
    for t in range(3):
        a(f"v_permlane32_swap_b32 {v(SC[t])}, {v(SC[t] + 2)}")
        a(f"v_permlane32_swap_b32 {v(SC[t] + 1)}, {v(SC[t] + 3)}")
        a(f"v_add_f32 {v(SC[t])}, {v(SC[t])}, {v(SC[t] + 2)}")
        a(f"v_add_f32 {v(SC[t] + 1)}, {v(SC[t] + 1)}, {v(SC[t] + 3)}")
        a.dsop(f"ds_write_b64 {v(SWA)}, {v(SC[t], 2)} offset:{512 * t}")
    ring(2)
    a.wait_ds_all()
    a("s_barrier")
    stamp(a, cfg, 3)
    R, Q, LIM = T(3), T(4), T(5)
    a(f"v_mov_b32 {v(LIM)}, 0x42800000")
    a.dsop(f"ds_read_b128 {v(R, 4)}, {v(SRA)}", "r")
    a.dsop(f"ds_read_b128 {v(Q, 4)}, {v(SRM)}", "q")
    a.wait_ds("r")
    a(f"v_pk_add_f32 {v(R, 2)}, {v(R, 2)}, {v(R + 2, 2)}")
    a.wait_ds("q")
    a(f"v_pk_add_f32 {v(Q, 2)}, {v(Q, 2)}, {v(Q + 2, 2)}")
    a.nop(1)
    a(f"v_permlane32_swap_b32 {v(R)}, {v(R + 1)}")
    a(f"v_permlane32_swap_b32 {v(Q)}, {v(Q + 1)}")
    A_, B_, M, M2 = R, Q, R + 2, R + 3
    a(f"v_add_f32 {v(A_)}, {v(R)}, {v(R + 1)}")
    a(f"v_add_f32 {v(B_)}, {v(Q)}, {v(Q + 1)}")

    def reduce32(op, under=()):
        under = list(under)
        for ctl in ("quad_perm:[1,0,3,2]", "quad_perm:[2,3,0,1]", "row_half_mirror", "row_mirror"):
            if under:
                a(under.pop(0))
                a.nop(1)
            else:
                a.nop(2)
            a(f"{op}_dpp {v(M)}, {v(M)}, {v(M)} {ctl} row_mask:0xf bank_mask:0xf")
        a(f"v_mov_b32 {v(M2)}, {v(M)}")
        a.nop(2)
        a(f"v_permlane16_swap_b32 {v(M2)}, {v(M)}")
        a(f"{op} {v(M)}, {v(M)}, {v(M2)}")

    def true_max(da=A_, db=B_):
        a(f"v_max_f32 {v(M)}, {v(R)}, {v(Q)}")
        reduce32("v_max_f32")
        a(f"v_sub_f32 {v(R)}, {v(R)}, {v(M)}")
        a(f"v_sub_f32 {v(Q)}, {v(Q)}, {v(M)}")
        a(f"v_exp_f32 {v(da)}, {v(R)}")
        a(f"v_exp_f32 {v(db)}, {v(Q)}")

    late = []
    if cfg.get("quickmax", 1):
        shifted, ranged = a.newlabel("shift"), a.newlabel("range")
        a(f"v_max_f32 {v(M)}, |{v(A_)}|, |{v(B_)}|")
        a(f"v_exp_f32 {v(R + 1)}, {v(A_)}")
        a(f"v_cmp_nle_f32 vcc, {v(M)}, {v(LIM)}")
        a(f"v_exp_f32 {v(Q + 1)}, {v(B_)}")
        a(f"s_cbranch_vccnz {shifted}")
        a.label(ranged)
        late.append((shifted, ranged))
        A_, B_, NA, NB = R + 1, Q + 1, R, Q
    else:
        true_max()
        a.nop(1)
        NA, NB = R + 1, Q + 1
    a(f"v_fma_f32 {v(M)}, {v(B_)}, {s(S_TMP + 7)}, {v(A_)}")
    reduce32("v_add_f32", [f"v_mov_b32_dpp {v(NA)}, {v(A_)} quad_perm:[1,0,3,2] row_mask:0xf bank_mask:0xf",
                           f"v_mov_b32_dpp {v(NB)}, {v(B_)} quad_perm:[1,0,3,2] row_mask:0xf bank_mask:0xf"])
    a(f"v_rcp_f32 {v(M)}, {v(M)}")
    a(f"s_cmp_lg_u32 {s(S_SLOW)}, 0")
    a(f"v_pk_mul_f32 {v(R, 2)}, {v(R, 2)}, {v(M, 2)} op_sel_hi:[1,0] clamp")
    a(f"v_pk_mul_f32 {v(Q, 2)}, {v(Q, 2)}, {v(M, 2)} op_sel_hi:[1,0] clamp")
    a(f"v_cvt_pk_bf16_f32 {v(A_)}, {v(A_)}, {v(NA)}")
    a(f"v_cvt_pk_bf16_f32 {v(B_)}, {v(B_)}, {v(NB)}")
    local_stores(a, [f"buffer_store_dword {v(A_)}, {v(PTA)}, {WS_SRD}, {s(sP)} offen",
                     f"buffer_store_dword {v(B_)}, {v(PMA)}, {WS_SRD}, {s(sPM)} offen"], scc_set=True)
    stamp(a, cfg, 4)
    a(f"s_add_u32 {s(sR)}, {s(sR)}, 128")
    a(f"s_add_u32 {s(sY)}, {s(sY)}, {Y_SEG}")
    if cfg.get("stamps"):
        a("s_waitcnt lgkmcnt(0)")
        a(f"s_lshl_b32 {s(S_TMP)}, {s(S_STEP)}, 6")
        a(f"v_mov_b32 {v(T1D)}, {s(S_TMP)}")
        for k, r in [(k, S_CLK + 2 * k) for k in range(12)] + [(15, S_TO)]:
            if k >= 11 or cfg["stamps"] >> k & 1:
                a(f"v_mov_b32 {v(T1D + 1)}, {s(r)}")
                a(f"ds_write_b32 {v(T1D)}, {v(T1D + 1)} offset:{32768 + 4096 * w + 4 * k}")
    a(f"s_add_u32 {s(sMEM)}, {s(sMEM)}, {MEM_SZ}")
    a(f"s_add_u32 {s(sP)}, {s(sP)}, {PB_SZ}")
    a(f"s_add_u32 {s(sPM)}, {s(sPM)}, {PB_SZ}")
    a(f"s_add_u32 {s(sX0)}, {s(sX0)}, {0 if cfg.get('samex') else XT_SEG}")
    a(f"s_add_u32 {s(sX1)}, {s(sX1)}, {0 if cfg.get('samex') else XT_SEG}")
    a(f"s_add_u32 {s(S_STEP)}, {s(S_STEP)}, 1")
    a(f"s_cmp_lt_u32 {s(S_STEP)}, {NSEG - 1}")
    a(f"s_cbranch_scc1 {top}")
    if cfg.get("stamps"):
        a(f"s_mul_i32 {s(S_TMP)}, {s(S_LOC)}, 0x30000")
        a(f"s_add_u32 {s(S_TMP)}, {s(S_TMP)}, {WS['DBG'] + w * 4096}")
        for i in range(4):
            a(f"ds_read_b128 {v(16, 4)}, {v(L16)} offset:{32768 + 4096 * w + 1024 * i}")
            a("s_waitcnt lgkmcnt(0)")
            a(f"buffer_store_dwordx4 {v(16, 4)}, {v(L16)}, {WS_SRD}, {s(S_TMP)} offen offset:{1024 * i}")
            a("s_waitcnt vmcnt(0)")
    a("s_endpgm")
    for shifted, ranged in late:
        a.label(shifted)
        true_max(R + 1, Q + 1)
        a(f"s_branch {ranged}")


class BRes:
    WL = 49152
    WV = 176

    def __init__(self, a, w, L16, IDX, MA, WT, ACC, ZW):
        self.a, self.w, self.L16, self.IDX, self.MA, self.WT, self.ACC, self.ZW = a, w, L16, IDX, MA, WT, ACC, ZW

    def blk(self, t, k, hi=None):
        return wblock(t * 7 + k, self.WV, hi)

    def lds_off(self, t, k, hi):
        return (t - 6) * 14336 + k * 2048 + hi * 1024

    def load(self, sloc, lbase):
        a, w = self.a, self.w
        a(f"s_mul_i32 {s(S_TMP)}, {s(sloc)}, {BL_CU}")
        a(f"s_add_u32 {s(S_TMP)}, {s(S_TMP)}, {WS['BL'] + w * 114688}")
        a(f"s_add_u32 {s(S_TMP + 1)}, {s(S_TMP)}, {6 * 14336}")
        a(f"s_add_u32 {s(S_TMP + 3)}, {s(S_TMP)}, {4 * 14336}")
        stream_load(a, [wblock(b, self.WV, hi) for b in range(28) for hi in range(2)], self.L16, S_TMP, window=40)
        for i in range(28):
            if i % 8 == 0:
                a("s_waitcnt vmcnt(40)")
            a(f"s_mov_b32 m0, {self.WL + w * 28672 + i * 1024}")
            a(f"s_add_u32 {s(S_TMP + 2)}, {s(S_TMP + 1)}, {i * 1024}")
            a(f"buffer_load_dwordx4 {v(self.L16)}, {WS_SRD}, {s(S_TMP + 2)} offen lds")
        dests = [wblock(b, self.WV, hi) for b in range(28, 42) for hi in range(2)]
        for i in range(0, 28, 4):
            a("s_waitcnt vmcnt(52)")
            stream_load(a, dests[i:i + 4], self.L16, S_TMP + 3)
            a(f"s_add_u32 {s(S_TMP + 3)}, {s(S_TMP + 3)}, 4096")
        a(f"v_add_u32 {v(lbase)}, {self.WL + w * 28672}, {v(self.L16)}")
        self.lbase = lbase

    def read_block(self, i, order, half=None):
        t, k = 6 + i // 7, order[i % 7]
        for hi in (range(2) if half is None else [half]):
            self.a.dsop(f"ds_read_b128 {v(self.WT + 8 * (i % 3) + 4 * hi, 4)}, {v(self.lbase)} offset:{self.lds_off(t, k, hi)}", ("wt", i))

    def zero_acc(self):
        for r in range(32):
            self.a(f"v_mov_b32 {v(self.ACC + r)}, 0")

    def cvt(self, t, slot):
        d = self.ZW + 8 * (t & 1) + 2 * (t >> 1)
        c = self.ACC + 4 * slot
        return [lambda: self.a(f"v_cvt_pk_bf16_f32 {v(d)}, {v(c)}, {v(c + 1)}"),
                lambda: self.a(f"v_cvt_pk_bf16_f32 {v(d + 1)}, {v(c + 2)}, {v(c + 3)}")]

    def mem_values(self, order, extra):
        a = self.a
        groups = ([0, 1, 2, 6], [3, 4, 5, 7])
        main, fill = [], {k: list(x) for k, x in extra.items()}
        for gi, tiles in enumerate(groups):
            for ki, k in enumerate(order):
                for ti, t in enumerate(tiles):
                    def mm(gi=gi, ki=ki, k=k, ti=ti, t=t):
                        if ti == 0 and gi == 0:
                            a.wait_ds(("ma", k))
                        if t >= 6:
                            a.wait_ds(("wt", gi * 7 + ki))
                            wr = v(self.WT + 8 * ((gi * 7 + ki) % 3), 8)
                        else:
                            wr = self.blk(t, k)
                        smf(a, self.ACC + 4 * (gi * 4 + ti), self.MA + 4 * k, wr, self.IDX)
                    main.append(mm)
                i = gi * 7 + ki
                if i + 3 < 14:
                    for hi in range(2):
                        fill.setdefault(len(main) + hi, []).append(lambda i=i, hi=hi: self.read_block(i + 3, order, hi))
        cv = [f for ti, t in enumerate(groups[0]) for f in self.cvt(t, ti)]
        for f, gap in zip(cv, (30, 31, 34, 35, 38, 39, 42, 43)):
            fill.setdefault(gap, []).append(f)
        interleave(a, main, fill)
        a.nop(3)
        for ti, t in enumerate(groups[1]):
            for f in self.cvt(t, 4 + ti):
                f()


def gen_s2(a, w, cfg):
    if cfg.get("quiet2"):
        cfg = {k: x for k, x in cfg.items() if k != "stamps"}
    L16, LB, PMA, PWA, PRA, MOA, IDX, FLG, T0, T1 = range(1, 11)
    MA, YB, ZW, PA, WT, ACC, O = 16, 44, 76, 92, 104, 128, 160
    MEMIMG, PART = 0, 8192
    sMEM, sP, sPM, sY, sY1, sF, sO, sVAL, sOWN = range(S_T0, S_T0 + 9)
    own = [2 * w, 2 * w + 1] if w < 3 else [6]
    order = own + [k for k in range(7) if k not in own]
    B = BRes(a, w, L16, IDX, MA, WT, ACC, ZW)
    ct_out = w & 1

    a.label(f"S2_W{w}")
    a(f"s_sub_u32 {s(S_LOC)}, {s(S_LOC)}, 16")
    a(f"v_lshlrev_b32 {v(L16)}, 4, v0")
    wait_tasks(a, "B", T0, T1, w)
    B.load(S_LOC, LB)
    a(f"v_and_b32 {v(T0)}, 15, v0")
    a(f"v_lshrrev_b32 {v(T1)}, 5, v0")
    a(f"v_lshlrev_b32 {v(PMA)}, 4, {v(T0)}")
    a(f"v_lshl_add_u32 {v(PMA)}, {v(T1)}, 8, {v(PMA)}")
    iota_reg(a, PWA, T1)
    a(f"v_lshlrev_b32 {v(PWA)}, 7, {v(PWA)}")
    a(f"v_lshl_add_u32 {v(PWA)}, {v(T0)}, 2, {v(PWA)}")
    a(f"v_add_u32 {v(PWA)}, {PART + w * 1024}, {v(PWA)}")
    a(f"v_lshlrev_b32 {v(PRA)}, 3, v0")
    a(f"v_add_u32 {v(PRA)}, {PART + ct_out * 512}, {v(PRA)}")
    a(f"v_lshrrev_b32 {v(T0)}, 3, v0")
    a(f"v_lshlrev_b32 {v(MOA)}, 4, {v(T0)}")
    a(f"v_bfe_u32 {v(T0)}, v0, 2, 1")
    a(f"v_lshl_add_u32 {v(MOA)}, {v(T0)}, 7, {v(MOA)}")
    a(f"v_and_b32 {v(T0)}, 3, v0")
    a(f"v_lshl_add_u32 {v(MOA)}, {v(T0)}, 2, {v(MOA)}")
    index_reg(a, IDX, T0)
    a(f"s_mul_i32 {s(sMEM)}, {s(S_SLOW)}, {WS['MEMG'] - WS['MEML']}")
    a(f"s_add_u32 {s(sMEM)}, {s(sMEM)}, {WS['MEML'] + own[0] * 1024}")
    a(f"s_mov_b32 {s(sP)}, {WS['PB'] + w * 2048}")
    a(f"s_mov_b32 {s(sPM)}, {WS['PB'] + 8192 + w * 512}")
    a(f"s_lshl_b32 {s(sY)}, {s(S_LOC)}, 15")
    a(f"s_add_u32 {s(sY)}, {s(sY)}, {WS['YL'] + w * 8192}")
    a(f"s_add_u32 {s(sY1)}, {s(sY)}, 4096")
    a(f"s_lshl_b32 {s(sF)}, {s(S_LOC)}, 4")
    a(f"s_add_u32 {s(sF)}, {s(sF)}, {WS['YF'] + w * 4}")
    a(f"s_lshl_b32 {s(sO)}, {s(S_LOC)}, 9")
    a(f"s_add_u32 {s(sO)}, {s(sO)}, {WS['MEML' if w < 2 else 'MEMG'] + MEM_SZ + ct_out * 256}")
    a(f"s_mov_b32 {s(S_STEP)}, 0")
    a(f"s_mov_b32 {s(S_BELL)}, {WS['BELL']}")
    a(f"s_lshl_b32 {s(sOWN)}, {s(S_LOC)}, 2")
    a(f"s_add_u32 {s(sOWN)}, {s(sOWN)}, {WS['BELL'] + 256}")
    a(f"s_add_u32 {s(sVAL)}, {s(S_TAG)}, 1")
    flag_load = f"buffer_load_dword {v(FLG)}, off, {WS_SRD}, {s(sF)} sc1"
    a(flag_load)
    B.zero_acc()
    wait_tasks(a, "LZ", T0, 12)
    milestone(a, cfg, 1, T0)
    wait_flag(a, FLG, flag_load)
    milestone(a, cfg, 2, T0)

    top = f"S2_STEP{w}"
    a.label(top)
    a.ds = []
    for i in range(3):
        B.read_block(i, order)
    if cfg.get("zerotop", 1):
        B.zero_acc()
    stamp(a, cfg, 0)
    poll_deep(a, [f"buffer_load_dwordx4 {v(MA + 4 * k, 4)}, {v(L16)}, {WS_SRD}, {s(sMEM)} offen offset:{1024 * i} sc1" for i, k in enumerate(own)],
              range(MA + 4 * own[0], MA + 4 * own[0] + 4 * len(own)), T0,
              [lambda k=k: a.dsop(f"ds_write_b128 {v(L16)}, {v(MA + 4 * k, 4)} offset:{MEMIMG + 1024 * k}") for k in own],
              cfg.get("depth3", 2))
    stamp(a, cfg, 1)
    a(f"s_add_u32 {s(sF)}, {s(sF)}, 224")
    a.wait_ds_all()
    a("s_barrier")
    keep_stamps(a, cfg, 6, 168)
    if w >= 2:
        skip = a.newlabel("done")
        a(f"s_cmp_eq_u32 {s(S_STEP)}, 0")
        a(f"s_cselect_b32 {s(S_TMP)}, 1, {s(S_SLOW)}")
        a(f"s_cmp_lg_u32 {s(S_TMP)}, 0")
        a(f"s_cbranch_scc1 {skip}")
        a(f"s_sub_u32 {s(S_TMP)}, {s(sO)}, {MEM_SZ}")
        a(f"buffer_store_dword {v(O)}, {v(MOA)}, {WS_SRD}, {s(S_TMP)} offen sc1")
        a.label(skip)
    for k in order[len(own):]:
        a.dsop(f"ds_read_b128 {v(MA + 4 * k, 4)}, {v(L16)} offset:{MEMIMG + 1024 * k}", ("ma", k))
    yl = [f"buffer_load_dwordx4 {v(YB + 4 * i, 4)}, {v(L16)}, {WS_SRD}, {s(sY1 if i >= 4 else sY)} offen offset:{(i % 4) * 1024} sc1" for i in range(8)]
    yl = ([flag_load] if cfg.get("noy", 0) < 2 else []) + ([] if cfg.get("noy") else yl)
    extra = {}
    for i, x in enumerate(yl):
        extra.setdefault(i * cfg.get("ygap", 1) - 1, []).append(lambda x=x: a(x))
    B.mem_values(order, extra)
    for r in range(8):
        a(f"v_mov_b32 {v(O + r)}, 0")
    if not cfg.get("zerotop", 1):
        B.zero_acc()
    stamp(a, cfg, 2)
    a("s_waitcnt vmcnt(0)")
    wait_flag(a, FLG, flag_load)
    stamp(a, cfg, 3)
    a(f"v_mov_b32 {v(T1)}, {s(sVAL)}")
    wait_bell(a, cfg, 11, sVAL, 4 * w)
    bell = f"buffer_store_dword {v(T1)}, off, {WS_SRD}, {s(sOWN)}"
    if w == 0 and cfg.get("bell2", 1) == 0:
        a(bell)
    poll_deep(a, [f"buffer_load_dwordx4 {v(PA, 4)}, {v(L16)}, {WS_SRD}, {s(sP)} offen sc1",
                  f"buffer_load_dwordx4 {v(PA + 4, 4)}, {v(L16)}, {WS_SRD}, {s(sP)} offen offset:1024 sc1",
                  f"buffer_load_dwordx4 {v(PA + 8, 4)}, {v(PMA)}, {WS_SRD}, {s(sPM)} offen sc1"],
              range(PA, PA + 12), T0, (), cfg.get("depth2", 2))
    stamp(a, cfg, 4)
    for ct in range(2):
        for x, z in ((PA, YB), (PA + 4, YB + 16), (PA + 8, ZW)):
            smf(a, O + 4 * ct, x, v(z + 8 * ct, 8), IDX)
            if w == 0 and x == PA and ct == 0 and cfg.get("bell2", 1) == 1:
                a(bell)
    for ct in range(2):
        o = O + 4 * ct
        if ct:
            a.nop(2)
        a(f"v_permlane32_swap_b32 {v(o)}, {v(o + 2)}")
        a(f"v_permlane32_swap_b32 {v(o + 1)}, {v(o + 3)}")
        a(f"v_add_f32 {v(o)}, {v(o)}, {v(o + 2)}")
        a(f"v_add_f32 {v(o + 1)}, {v(o + 1)}, {v(o + 3)}")
        a.dsop(f"ds_write2_b32 {v(PWA)}, {v(o)}, {v(o + 1)} offset0:{128 * ct} offset1:{128 * ct + 16}")
    a.wait_ds_all()
    a("s_barrier")
    for wv in range(4):
        a.dsop(f"ds_read_b64 {v(O + 2 * wv, 2)}, {v(PRA)} offset:{1024 * wv}", ("p", wv))
    a.wait_ds(("p", 1))
    a(f"v_pk_add_f32 {v(O, 2)}, {v(O, 2)}, {v(O + 2, 2)}")
    a.wait_ds(("p", 3))
    a(f"v_pk_add_f32 {v(O + 4, 2)}, {v(O + 4, 2)}, {v(O + 6, 2)}")
    a(f"v_pk_add_f32 {v(O, 2)}, {v(O, 2)}, {v(O + 4, 2)}")
    a(f"v_cvt_pk_bf16_f32 {v(O)}, {v(O)}, {v(O + 1)}")
    a(f"v_min_u32 {v(O)}, -2, {v(O)}")
    if w < 2:
        a(f"buffer_store_dword {v(O)}, {v(MOA)}, {WS_SRD}, {s(sO)} offen")
    else:
        skip = a.newlabel("later")
        a(f"s_cmp_eq_u32 {s(S_STEP)}, {NSEG - 2}")
        a(f"s_cselect_b32 {s(S_TMP)}, 1, {s(S_SLOW)}")
        a(f"s_cmp_eq_u32 {s(S_TMP)}, 0")
        a(f"s_cbranch_scc1 {skip}")
        a(f"buffer_store_dword {v(O)}, {v(MOA)}, {WS_SRD}, {s(sO)} offen sc1")
        a.label(skip)
    stamp(a, cfg, 5)
    a(f"s_add_u32 {s(sMEM)}, {s(sMEM)}, {MEM_SZ}")
    a(f"s_add_u32 {s(sO)}, {s(sO)}, {MEM_SZ}")
    a(f"s_add_u32 {s(sVAL)}, {s(sVAL)}, 1")
    a(f"s_add_u32 {s(sP)}, {s(sP)}, {PB_SZ}")
    a(f"s_add_u32 {s(sPM)}, {s(sPM)}, {PB_SZ}")
    if not cfg.get("samey"):
        a(f"s_add_u32 {s(sY)}, {s(sY)}, {Y_SEG}")
        a(f"s_add_u32 {s(sY1)}, {s(sY1)}, {Y_SEG}")
    a(f"s_add_u32 {s(S_STEP)}, {s(S_STEP)}, 1")
    a(f"s_cmp_lt_u32 {s(S_STEP)}, {NSEG - 1}")
    a(f"s_cbranch_scc1 {top}")
    dump_stamps(a, cfg, 6, 168, 4 + w, L16)
    a("s_endpgm")


def gen_wm(a, cfg):
    L128, FLA, T0, JUNK = range(1, 5)
    sM, sA, sB, sF, sU, sR = range(S_T0, S_T0 + 6)
    ahead = cfg.get("wmahead", 2)
    a.label("WM")
    a(f"s_sub_u32 {s(sU)}, {s(S_LOC)}, 30")
    a(f"s_lshl_b32 {s(sU)}, {s(sU)}, 2")
    a(f"s_add_u32 {s(sU)}, {s(sU)}, {s(S_WAVE)}")
    wait_tasks(a, "LZ", T0, 8)
    a(f"s_mov_b32 {s(S_STEP)}, 0")
    a(f"s_cmp_eq_u32 {s(sU)}, 7")
    a("s_cbranch_scc0 WM_LINES")
    a(f"v_min_u32 {v(FLA)}, 55, v0")
    a(f"v_lshlrev_b32 {v(FLA)}, 2, {v(FLA)}")
    a(f"s_mov_b32 {s(sF)}, {WS['YF'] + 224}")
    a(f"s_mov_b32 {s(sR)}, {WS['YR'] + 128}")
    a.label("WM_Y")
    wait_flag(a, T0, f"buffer_load_dword {v(T0)}, {v(FLA)}, {WS_SRD}, {s(sF)} offen sc1", sleep=8, landed=False)
    a(f"buffer_store_dword {v(T0)}, off, {WS_SRD}, {s(sR)}")
    a(f"s_add_u32 {s(sF)}, {s(sF)}, 224")
    a(f"s_add_u32 {s(sR)}, {s(sR)}, 128")
    a(f"s_add_u32 {s(S_STEP)}, {s(S_STEP)}, 1")
    a(f"s_cmp_lt_u32 {s(S_STEP)}, {NSEG - 1}")
    a("s_cbranch_scc1 WM_Y")
    a("s_endpgm")
    a.label("WM_LINES")
    a(f"v_lshlrev_b32 {v(L128)}, 7, v0")
    a(f"s_mul_i32 {s(sM)}, {s(S_SLOW)}, {WS['MEMG'] - WS['MEML']}")
    a(f"s_add_u32 {s(sM)}, {s(sM)}, {WS['MEML']}")
    a(f"s_mul_i32 {s(sA)}, {s(sU)}, 7168")
    a(f"s_add_u32 {s(sA)}, {s(sA)}, {WS['XT']}")
    a(f"s_mov_b32 {s(sB)}, {XT_SEG}")
    a(f"s_cmp_lt_u32 {s(sU)}, 4")
    a("s_cbranch_scc1 WM_GO")
    a(f"s_mov_b32 {s(sA)}, {s(sM)}")
    a(f"s_mov_b32 {s(sB)}, {MEM_SZ}")
    a(f"s_cmp_eq_u32 {s(sU)}, 4")
    a("s_cbranch_scc1 WM_GO")
    a(f"s_and_b32 {s(sA)}, {s(sU)}, 1")
    a(f"s_lshl_b32 {s(sA)}, {s(sA)}, 11")
    a(f"s_add_u32 {s(sA)}, {s(sA)}, {WS['PB']}")
    a(f"s_mov_b32 {s(sB)}, {PB_SZ}")
    a.label("WM_GO")
    for i in range(ahead):
        a(f"buffer_load_dword {v(JUNK)}, {v(L128)}, {WS_SRD}, {s(sA)} offen sc1")
        a(f"s_add_u32 {s(sA)}, {s(sA)}, {s(sB)}")
    a.label("WM_STEP")
    a(f"buffer_load_dword {v(T0)}, off, {WS_SRD}, {s(sM)} sc1")
    a("s_waitcnt vmcnt(0)")
    a(f"v_cmp_eq_u32 vcc, -1, {v(T0)}")
    a("s_cbranch_vccz WM_RUN")
    a("s_sleep 4")
    a(f"s_sub_u32 {s(S_TO)}, {s(S_TO)}, 1")
    a("s_cbranch_scc0 WM_STEP")
    a("s_endpgm")
    a.label("WM_RUN")
    a(f"buffer_load_dword {v(JUNK)}, {v(L128)}, {WS_SRD}, {s(sA)} offen sc1")
    a(f"s_add_u32 {s(sA)}, {s(sA)}, {s(sB)}")
    a(f"s_add_u32 {s(sM)}, {s(sM)}, {MEM_SZ}")
    a(f"s_add_u32 {s(S_STEP)}, {s(S_STEP)}, 1")
    a(f"s_cmp_lt_u32 {s(S_STEP)}, {NSEG - ahead}")
    a("s_cbranch_scc1 WM_STEP")
    a("s_endpgm")
```

```python
from asmlib import v, acc, s
from layout import *
from roles_rec import *
from roles_pre import srd, f32, row_sum4, ln_scalars, ln_apply
from roles_tok import mfma

GELU_C1 = -2.0 * 1.4426950408889634 * 0.7978845608028654
GELU_C2 = GELU_C1 * 0.044715


def unpack(a, dst, src, n):
    for i in range(n):
        a(f"v_lshlrev_b32 {v(dst + 2 * i)}, 16, {v(src + i)}")
        a(f"v_and_b32 {v(dst + 2 * i + 1)}, 0xffff0000, {v(src + i)}")


def gen_f1(a, w, cfg):
    L16, DA, TRA, SA, T0, T1, MEAN, M2, TM = range(1, 10)
    OTH, BIAS, PK, F, XO, ACC = 12, 16, 24, 52, 108, 132
    HN, STAT, STAGE = 0, 28672, 32768
    sH, sO, sF, sC1, sC2 = range(S_T0, S_T0 + 5)
    qt0, ks0 = w >> 1, 7 * (w & 1)
    W = lambda ab, ks: acc(8 * ks + 4 * ab, 4)

    a.label(f"F1_W{w}")
    srd(a, S_X, 64, 448 * 3584)
    srd(a, S_AUX, 72, 3584)
    a(f"v_lshlrev_b32 {v(L16)}, 4, v0")
    a(f"v_lshrrev_b32 {v(T0)}, 2, v0")
    a(f"v_mul_u32_u24 {v(DA)}, 3584, {v(T0)}")
    a(f"v_and_b32 {v(T1)}, 3, v0")
    a(f"v_lshl_add_u32 {v(DA)}, {v(T1)}, 4, {v(DA)}")
    a(f"v_lshrrev_b32 {v(TRA)}, 4, v0")
    a(f"v_lshlrev_b32 {v(SA)}, 4, {v(TRA)}")
    a(f"v_lshlrev_b32 {v(TRA)}, 3, {v(TRA)}")
    a(f"v_and_b32 {v(T0)}, 3, {v(T0)}")
    a(f"v_add_u32 {v(TRA)}, {v(TRA)}, {v(T0)}")
    a(f"v_lshlrev_b32 {v(TRA)}, 6, {v(TRA)}")
    a(f"v_lshl_add_u32 {v(TRA)}, {v(T1)}, 4, {v(TRA)}")
    a(f"v_add_u32 {v(TRA)}, {STAGE + w * 28672}, {v(TRA)}")
    a(f"s_lshl_b32 {s(S_TMP)}, {s(S_LOC)}, 8")
    a(f"s_add_u32 {s(S_TMP)}, {s(S_TMP)}, {64 * w}")
    a("s_waitcnt lgkmcnt(0)")
    a(f"buffer_load_dwordx4 {v(PK, 4)}, {v(SA)}, {s(S_AUX, 4)}, {s(S_TMP)} offen")
    for i in range(28):
        a(f"s_mov_b32 m0, {STAGE + w * 28672 + i * 1024}")
        a(f"s_add_u32 {s(S_TMP + 1)}, {s(S_TMP)}, {i * 16 * 3584}")
        a(f"buffer_load_dwordx4 {v(DA)}, {s(S_X, 4)}, {s(S_TMP + 1)} offen lds")
    a(f"v_and_b32 {v(SA)}, 15, v0")
    a(f"v_lshlrev_b32 {v(SA)}, 3, {v(SA)}")
    a(f"v_add_u32 {v(SA)}, {STAT}, {v(SA)}")
    a(f"s_mul_i32 {s(sH)}, {s(S_GRP)}, {XT_SEG}")
    a(f"s_add_u32 {s(sH)}, {s(sH)}, {WS['HT'] + qt0 * 14336 + ks0 * 1024}")
    a(f"s_mul_i32 {s(sO)}, {s(S_GRP)}, {H1_SEG}")
    a(f"s_lshl_b32 {s(S_TMP + 1)}, {s(S_LOC)}, 12")
    a(f"s_add_u32 {s(sO)}, {s(sO)}, {s(S_TMP + 1)}")
    a(f"s_add_u32 {s(sO)}, {s(sO)}, {WS['H1T'] + w * 1024}")
    a(f"s_mul_i32 {s(sF)}, {s(S_GRP)}, 224")
    a(f"s_lshl_b32 {s(S_TMP + 1)}, {s(S_LOC)}, 4")
    a(f"s_add_u32 {s(sF)}, {s(sF)}, {s(S_TMP + 1)}")
    a(f"s_add_u32 {s(sF)}, {s(sF)}, {WS['HF'] + 4 * w}")
    a(f"s_mov_b32 {s(sC1)}, {f32(GELU_C1)}")
    a(f"s_mov_b32 {s(sC2)}, {f32(GELU_C2)}")
    a(f"s_mov_b32 {s(S_STEP)}, {s(S_GRP)}")
    a("s_waitcnt vmcnt(0)")
    unpack(a, BIAS, PK, 4)
    for ks in range(14):
        for ab in range(2):
            for q in range(2):
                a(f"ds_read_b64_tr_b16 {acc(8 * ks + 4 * ab + 2 * q, 2)}, {v(TRA)} offset:{ks * 2048 + q * 256 + ab * 8}")
        if ks % 3 == 2:
            a("s_waitcnt lgkmcnt(0)")
    a("s_waitcnt lgkmcnt(0)")
    wait_tasks(a, "Z2", T0, OTH)

    top = f"F1_SEG{w}"
    a.label(top)
    a.ds = []
    a(f"s_add_u32 {s(S_TMP)}, {s(sH)}, 4096")
    stamp(a, cfg, 0)
    poll(a, [f"buffer_load_dwordx4 {v(PK + 4 * i, 4)}, {v(L16)}, {WS_SRD}, {s(S_TMP if i >= 4 else sH)} offen offset:{(i % 4) * 1024} sc1" for i in range(7)],
         range(PK, PK + 28), T0, cfg.get('psleep', 0))
    stamp(a, cfg, 1)
    unpack(a, F, PK, 28)
    a(f"v_pk_add_f32 {v(TM + 1, 2)}, {v(F, 2)}, {v(F + 2, 2)}")
    for i in range(2, 28):
        a(f"v_pk_add_f32 {v(TM + 1, 2)}, {v(TM + 1, 2)}, {v(F + 2 * i, 2)}")
    a(f"v_add_f32 {v(MEAN)}, {v(TM + 1)}, {v(TM + 2)}")
    row_sum4(a, MEAN, TM)
    a(f"v_mul_f32 {v(T0 + 1)}, {f32(-1 / 224)}, {v(MEAN)}")
    a(f"v_mul_f32 {v(MEAN)}, {f32(1 / 224)}, {v(MEAN)}")
    for i in range(28):
        a(f"v_pk_add_f32 {v(XO, 2)}, {v(F + 2 * i, 2)}, {v(T0 + 1, 2)} op_sel_hi:[1,0]")
        if i:
            a(f"v_pk_fma_f32 {v(TM + 1, 2)}, {v(XO, 2)}, {v(XO, 2)}, {v(TM + 1, 2)}")
        else:
            a(f"v_pk_mul_f32 {v(TM + 1, 2)}, {v(XO, 2)}, {v(XO, 2)}")
    a(f"v_add_f32 {v(M2)}, {v(TM + 1)}, {v(TM + 2)}")
    row_sum4(a, M2, TM)
    a(f"v_mov_b32 {v(OTH)}, {v(MEAN)}")
    a(f"v_mov_b32 {v(OTH + 1)}, {v(M2)}")
    a.dsop(f"ds_write_b64 {v(SA)}, {v(OTH, 2)} offset:{128 * w}")
    a.wait_ds_all()
    a("s_barrier")
    a.dsop(f"ds_read_b64 {v(OTH + 2, 2)}, {v(SA)} offset:{128 * (w ^ 1)}")
    a.wait_ds_all()
    a(f"v_sub_f32 {v(TM)}, {v(MEAN)}, {v(OTH + 2)}")
    a(f"v_add_f32 {v(MEAN)}, {v(MEAN)}, {v(OTH + 2)}")
    a(f"v_mul_f32 {v(MEAN)}, 0.5, {v(MEAN)}")
    a(f"v_add_f32 {v(M2)}, {v(M2)}, {v(OTH + 3)}")
    a(f"v_mul_f32 {v(TM)}, {v(TM)}, {v(TM)}")
    a(f"v_fmac_f32 {v(M2)}, {f32(112.0)}, {v(TM)}")
    a(f"v_mul_f32 {v(M2)}, {f32(1 / 448)}, {v(M2)}")
    ln_scalars(a, MEAN, M2)
    a(f"v_mul_f32 {v(TM + 1)}, -{v(MEAN)}, {v(M2)}")
    for i in range(7):
        for j in range(4):
            x = F + 8 * i + 2 * j
            a(f"v_pk_fma_f32 {v(x, 2)}, {v(x, 2)}, {v(M2, 2)}, {v(TM + 1, 2)} op_sel_hi:[1,0,0]")
            a(f"v_cvt_pk_bf16_f32 {v(PK + 4 * i + j)}, {v(x)}, {v(x + 1)}")
        a.dsop(f"ds_write_b128 {v(L16)}, {v(PK + 4 * i, 4)} offset:{HN + qt0 * 14336 + (ks0 + i) * 1024}")
    a.wait_ds_all()
    a("s_barrier")
    stamp(a, cfg, 2)

    def read_x(ks):
        for qt in range(2):
            a.dsop(f"ds_read_b128 {v(XO + 8 * (ks % 3) + 4 * qt, 4)}, {v(L16)} offset:{HN + qt * 14336 + ks * 1024}", ("x", ks))
    read_x(0)
    read_x(1)
    for ks in range(14):
        a.wait_ds(("x", ks))
        for n_, (qt, ab) in enumerate((qt, ab) for qt in range(2) for ab in range(2)):
            mfma(a, ACC + 8 * qt + 4 * ab, W(ab, ks), v(XO + 8 * (ks % 3) + 4 * qt, 4), ks == 0)
            if n_ == 0 and ks + 2 < 14:
                read_x(ks + 2)
    stamp(a, cfg, 3)
    a.nop(6)
    for qt in range(2):
        U, E = ACC + 8 * qt, F
        for i in range(0, 8, 2):
            a(f"v_pk_add_f32 {v(U + i, 2)}, {v(U + i, 2)}, {v(BIAS + i, 2)}")
            a(f"v_pk_mul_f32 {v(E + i, 2)}, {v(U + i, 2)}, {v(U + i, 2)}")
        for i in range(8):
            a(f"v_mov_b32 {v(T0)}, {s(sC1)}") if i == 0 and qt == 0 else None
            a(f"v_fma_f32 {v(E + i)}, {v(E + i)}, {s(sC2)}, {v(T0)}")
        for i in range(0, 8, 2):
            a(f"v_pk_mul_f32 {v(E + i, 2)}, {v(E + i, 2)}, {v(U + i, 2)}")
        for i in range(8):
            a(f"v_exp_f32 {v(E + i)}, {v(E + i)}")
        for i in range(8):
            a(f"v_add_f32 {v(E + i)}, 1.0, {v(E + i)}")
        for i in range(8):
            a(f"v_rcp_f32 {v(E + i)}, {v(E + i)}")
        for i in range(0, 8, 2):
            a(f"v_pk_mul_f32 {v(U + i, 2)}, {v(U + i, 2)}, {v(E + i, 2)}")
        for i in range(4):
            a(f"v_cvt_pk_bf16_f32 {v(PK + 4 * qt + i)}, {v(U + 2 * i)}, {v(U + 2 * i + 1)}")
        if qt:
            a(f"s_add_u32 {s(S_TMP)}, {s(sO)}, 57344")
        local_stores(a, [f"buffer_store_dwordx4 {v(PK + 4 * qt, 4)}, {v(L16)}, {WS_SRD}, {s(S_TMP if qt else sO)} offen"])
    a(f"v_mov_b32 {v(T0)}, {s(S_TAG)}")
    a("s_waitcnt vmcnt(0)")
    local_stores(a, [f"buffer_store_dword {v(T0)}, off, {WS_SRD}, {s(sF)}"])
    stamp(a, cfg, 4)
    flush_stamps(a, cfg, 5, 16 + w, T0)
    for r, step in ((sH, XT_SEG), (sO, H1_SEG), (sF, 224), (S_STEP, 1)):
        a(f"s_add_u32 {s(r)}, {s(r)}, {step * NFFN}")
    a(f"s_cmp_lt_u32 {s(S_STEP)}, {NSEG}")
    a(f"s_cbranch_scc1 {top}")
    a("s_endpgm")


def gen_f2(a, w, cfg):
    L16, DA, TRA, FA, PWA, PRA, HA, OA, T0, T1 = range(1, 11)
    HR, BIAS, XO, ACC = 12, 16, 20, 76
    PART, STAGE = 0, 20480
    sTT, sCG, sH1, sF, sH, sO = range(S_T0, S_T0 + 6)
    W = lambda ct, ks: acc(16 * ks + 4 * ct, 4)

    a.label(f"F2_W{w}")
    srd(a, S_X, 80, 1792 * 896)
    srd(a, S_AUX, 88, 896)
    srd(a, S_OUT, 96, 2048 * 896)
    a(f"s_sub_u32 {s(S_LOC)}, {s(S_LOC)}, 14")
    a(f"s_and_b32 {s(sTT)}, {s(S_LOC)}, 1")
    a(f"s_lshr_b32 {s(sCG)}, {s(S_LOC)}, 1")
    a(f"v_lshlrev_b32 {v(L16)}, 4, v0")
    a(f"v_lshrrev_b32 {v(T0)}, 3, v0")
    a(f"v_mul_u32_u24 {v(DA)}, 896, {v(T0)}")
    a(f"v_and_b32 {v(T1)}, 7, v0")
    a(f"v_lshl_add_u32 {v(DA)}, {v(T1)}, 4, {v(DA)}")
    a(f"v_lshrrev_b32 {v(T1)}, 4, v0")
    a(f"v_bfe_u32 {v(T0)}, v0, 2, 2")
    a(f"v_lshl_add_u32 {v(TRA)}, {v(T1)}, 3, {v(T0)}")
    a(f"v_lshlrev_b32 {v(TRA)}, 7, {v(TRA)}")
    a(f"v_and_b32 {v(T0)}, 3, v0")
    a(f"v_lshl_add_u32 {v(TRA)}, {v(T0)}, 3, {v(TRA)}")
    a(f"v_add_u32 {v(TRA)}, {STAGE + w * 28672}, {v(TRA)}")
    a(f"v_min_u32 {v(FA)}, 13, v0")
    a(f"v_lshlrev_b32 {v(FA)}, 2, {v(FA)}")
    a(f"v_and_b32 {v(T0)}, 15, v0")
    a(f"v_mul_u32_u24 {v(PWA)}, 272, {v(T0)}")
    a(f"v_lshl_add_u32 {v(PWA)}, {v(T1)}, 4, {v(PWA)}")
    a(f"v_add_u32 {v(PWA)}, {PART + w * 4352}, {v(PWA)}")
    a(f"v_add_u32 {v(T1)}, {4 * w}, {v(T1)}")
    a(f"v_mul_u32_u24 {v(PRA)}, 272, {v(T1)}")
    a(f"v_lshl_add_u32 {v(PRA)}, {v(T0)}, 4, {v(PRA)}")
    a(f"v_mul_u32_u24 {v(OA)}, 896, {v(T1)}")
    a(f"v_lshl_add_u32 {v(OA)}, {v(T0)}, 3, {v(OA)}")
    a(f"v_lshlrev_b32 {v(HA)}, 4, {v(T1)}")
    a(f"v_lshrrev_b32 {v(T1)}, 1, {v(T0)}")
    a(f"v_lshl_add_u32 {v(HA)}, {v(T1)}, 8, {v(HA)}")
    a(f"v_and_b32 {v(T1)}, 1, {v(T0)}")
    a(f"v_lshl_add_u32 {v(HA)}, {v(T1)}, 3, {v(HA)}")
    a(f"v_lshlrev_b32 {v(T0)}, 3, {v(T0)}")
    a(f"s_lshl_b32 {s(S_TMP)}, {s(sCG)}, 7")
    a("s_waitcnt lgkmcnt(0)")
    a(f"buffer_load_dwordx2 {v(HR, 2)}, {v(T0)}, {s(S_AUX, 4)}, {s(S_TMP)} offen")
    a(f"s_add_u32 {s(S_TMP)}, {s(S_TMP)}, {448 * w * 896}")
    for half in range(2):
        for i in range(28):
            a(f"s_mov_b32 m0, {STAGE + w * 28672 + i * 1024}")
            a(f"s_add_u32 {s(S_TMP + 1)}, {s(S_TMP)}, {(half * 224 + i * 8) * 896}")
            a(f"buffer_load_dwordx4 {v(DA)}, {s(S_X, 4)}, {s(S_TMP + 1)} offen lds")
        a("s_waitcnt vmcnt(0)")
        for k in range(7):
            for ct in range(4):
                for q in range(2):
                    a(f"ds_read_b64_tr_b16 {acc(16 * (7 * half + k) + 4 * ct + 2 * q, 2)}, {v(TRA)} offset:{k * 4096 + q * 512 + ct * 32}")
            a("s_waitcnt lgkmcnt(0)")
    unpack(a, BIAS, HR, 2)
    a(f"s_mul_i32 {s(sH1)}, {s(S_GRP)}, {H1_SEG}")
    a(f"s_mul_i32 {s(S_TMP)}, {s(sTT)}, 57344")
    a(f"s_add_u32 {s(sH1)}, {s(sH1)}, {s(S_TMP)}")
    a(f"s_add_u32 {s(sH1)}, {s(sH1)}, {WS['H1T'] + w * 14336}")
    a(f"s_mul_i32 {s(sF)}, {s(S_GRP)}, 224")
    a(f"s_add_u32 {s(sF)}, {s(sF)}, {WS['HF'] + w * 56}")
    a(f"s_mul_i32 {s(sO)}, {s(S_GRP)}, {XT_SEG}")
    a(f"s_mul_i32 {s(S_TMP)}, {s(sTT)}, 14336")
    a(f"s_add_u32 {s(sO)}, {s(sO)}, {s(S_TMP)}")
    a(f"s_lshl_b32 {s(S_TMP)}, {s(sCG)}, 11")
    a(f"s_add_u32 {s(sH)}, {s(sO)}, {s(S_TMP)}")
    a(f"s_add_u32 {s(sH)}, {s(sH)}, {WS['HT']}")
    a(f"s_lshl_b32 {s(S_TMP)}, {s(sCG)}, 7")
    a(f"s_add_u32 {s(sO)}, {s(sO)}, {s(S_TMP)}")
    a(f"s_mov_b32 {s(S_STEP)}, {s(S_GRP)}")

    top = f"F2_SEG{w}"
    a.label(top)
    a.ds, a.vm = [], []
    a("s_barrier")
    stamp(a, cfg, 0)
    wait_flag(a, T0, f"buffer_load_dword {v(T0)}, {v(FA)}, {WS_SRD}, {s(sF)} offen sc1", sleep=max(1, cfg.get('psleep', 0)), landed=False)
    stamp(a, cfg, 1)
    a(f"s_mov_b32 {s(S_TMP)}, {s(sH1)}")
    for ks in range(14):
        if ks and ks % 4 == 0:
            a(f"s_add_u32 {s(S_TMP)}, {s(S_TMP)}, 4096")
        a.vmop(f"buffer_load_dwordx4 {v(XO + 4 * ks, 4)}, {v(L16)}, {WS_SRD}, {s(S_TMP)} offen offset:{(ks % 4) * 1024} sc1", ks)
    a.vmop(f"buffer_load_dwordx2 {v(HR, 2)}, {v(HA)}, {WS_SRD}, {s(sH)} offen sc1", "h")
    for ks in range(14):
        a.wait_vm(ks)
        for ct in range(4):
            mfma(a, ACC + 4 * ct, W(ct, ks), v(XO + 4 * ks, 4), ks == 0)
    a.nop(5)
    for ct in range(4):
        a.dsop(f"ds_write_b128 {v(PWA)}, {v(ACC + 4 * ct, 4)} offset:{64 * ct}")
    a.wait_vm("h")
    unpack(a, XO, HR, 2)
    a.wait_ds_all()
    a("s_barrier")
    for wv in range(4):
        a.dsop(f"ds_read_b128 {v(ACC + 4 * wv, 4)}, {v(PRA)} offset:{PART + wv * 4352}")
    a.wait_ds_all()
    for i in (0, 2):
        a(f"v_pk_add_f32 {v(ACC + i, 2)}, {v(ACC + i, 2)}, {v(ACC + 4 + i, 2)}")
        a(f"v_pk_add_f32 {v(ACC + 8 + i, 2)}, {v(ACC + 8 + i, 2)}, {v(ACC + 12 + i, 2)}")
        a(f"v_pk_add_f32 {v(ACC + i, 2)}, {v(ACC + i, 2)}, {v(ACC + 8 + i, 2)}")
        a(f"v_pk_add_f32 {v(ACC + i, 2)}, {v(ACC + i, 2)}, {v(BIAS + i, 2)}")
        a(f"v_cvt_pk_bf16_f32 {v(ACC + i + 1)}, {v(ACC + i)}, {v(ACC + i + 1)}")
        a(f"v_lshlrev_b32 {v(ACC + i)}, 16, {v(ACC + i + 1)}")
        a(f"v_and_b32 {v(ACC + i + 1)}, 0xffff0000, {v(ACC + i + 1)}")
        a(f"v_pk_add_f32 {v(ACC + i, 2)}, {v(ACC + i, 2)}, {v(XO + i, 2)}")
        a(f"v_cvt_pk_bf16_f32 {v(HR + i // 2)}, {v(ACC + i)}, {v(ACC + i + 1)}")
    a(f"buffer_store_dwordx2 {v(HR, 2)}, {v(OA)}, {s(S_OUT, 4)}, {s(sO)} offen")
    stamp(a, cfg, 2)
    flush_stamps(a, cfg, 3, 20 + w, T0)
    for r, step in ((sH1, H1_SEG), (sF, 224), (sH, XT_SEG), (sO, XT_SEG), (S_STEP, 1)):
        a(f"s_add_u32 {s(r)}, {s(r)}, {step * NFFN}")
    a(f"s_cmp_lt_u32 {s(S_STEP)}, {NSEG}")
    a(f"s_cbranch_scc1 {top}")
    a("s_endpgm")


def gen_reset(a, cfg):
    L16, T0, T1, P0, P1 = 1, 2, 3, 8, 12
    nw = NFFN * 128
    srd(a, S_AUX, 8, MEM_SZ)
    a(f"v_lshlrev_b32 {v(L16)}, 4, v0")
    a(f"s_lshl_b32 {s(S_TMP + 4)}, {s(S_GRP)}, 5")
    a(f"s_add_u32 {s(S_TMP + 4)}, {s(S_TMP + 4)}, {s(S_LOC)}")
    a(f"s_lshl_b32 {s(S_TMP)}, {s(S_TMP + 4)}, 2")
    a(f"s_add_u32 {s(S_TMP)}, {s(S_TMP)}, {s(S_WAVE)}")
    for r in range(4):
        a(f"v_mov_b32 {v(P0 + r)}, -1")
    a(f"v_and_b32 {v(T0)}, 7, v0")
    a(f"v_mul_u32_u24 {v(T0)}, 896, {v(T0)}")
    a(f"v_lshrrev_b32 {v(T1)}, 3, v0")
    a(f"v_lshl_add_u32 {v(T0)}, {v(T1)}, 4, {v(T0)}")
    a(f"s_mov_b32 {s(S_WS + 2)}, {POISON_END}")
    a(f"s_lshl_b32 {s(S_TMP + 2)}, {s(S_TMP)}, 10")
    a(f"s_add_u32 {s(S_TMP + 2)}, {s(S_TMP + 2)}, {POISON_BEGIN}")
    a("s_waitcnt lgkmcnt(0)")
    gch = (WS['MEMG'] - WS['MEML']) // 1024
    a(f"v_mov_b32 {v(T1)}, {s(S_TAG)}")
    a(f"s_lshl_b32 {s(S_TMP + 4)}, {s(S_TMP + 4)}, 2")

    def announce(at):
        a("s_waitcnt vmcnt(0)")
        a("s_barrier")
        a(f"buffer_store_dword {v(T1)}, off, {WS_SRD}, {s(S_TMP + 4)} offset:{WS['ARR'] + at} sc1")
    early = -(-(WS['PX'] - POISON_BEGIN) // (nw * 1024))
    for i in range(-(-(POISON_END - POISON_BEGIN) // (nw * 1024))):
        if i == early:
            announce(1024)
            wait_first_y(a, T0, seg=NCLONE - 1)
        first = [c for c in (0, gch) if c // nw == i]
        src = P0
        if first:
            assert (first[0] + 6) // nw == i
            skip = a.newlabel("nomem")
            src = P1 + 4 * i
            for r in range(4):
                a(f"v_mov_b32 {v(src + r)}, -1")
            a(f"s_sub_u32 {s(S_TMP + 1)}, {s(S_TMP)}, {first[0] % nw}")
            a(f"s_cmp_lt_u32 {s(S_TMP + 1)}, 7")
            a(f"s_cbranch_scc0 {skip}")
            a(f"s_lshl_b32 {s(S_TMP + 1)}, {s(S_TMP + 1)}, 7")
            a(f"buffer_load_dwordx4 {v(src, 4)}, {v(T0)}, {s(S_AUX, 4)}, {s(S_TMP + 1)} offen")
            a("s_waitcnt vmcnt(0)")
            for r in range(4):
                a(f"v_min_u32 {v(src + r)}, -2, {v(src + r)}")
            a.label(skip)
        a(f"buffer_store_dwordx4 {v(src, 4)}, {v(L16)}, {WS_SRD}, {s(S_TMP + 2)} offen sc1")
        a(f"s_add_u32 {s(S_TMP + 2)}, {s(S_TMP + 2)}, {nw * 1024}")
    a(f"s_mov_b32 {s(S_WS + 2)}, {WS_BYTES}")
    announce(1536)
```

```python
from asmlib import Asm, v, acc, s, interleave
from layout import *

S_WS = 4
S_X = 8
S_OUT = 12
S_AUX = 16
S_WAVE = 20
S_GRP = 21
S_LOC = 22
S_SLOW = 23
S_TO = 24
S_STEP = 25
S_T0 = 26
S_TMP = 40
S_BELL = 89
S_TAG = 88
S_CLK = 48

IOTA = [0, 2, 1, 3]
WS_SRD = s(S_WS, 4)


def wblock(b, vbase, hi=None):
    n = 8 if hi is None else 4
    o = 0 if hi is None else 4 * hi
    return acc(8 * b + o, n) if b < 32 else v(vbase + 8 * (b - 32) + o, n)


def smf(a, d, x, w, idx, upper=False):
    a(f"v_smfmac_f32_16x16x64_bf16 {v(d, 4)}, {v(x, 4)}, {w}, {v(idx)}" + (" abid:1" if upper else ""))


def stream_load(a, dests, vaddr, soff, window=48):
    for i, d in enumerate(dests):
        if i and i % 4 == 0:
            a(f"s_add_u32 {s(soff)}, {s(soff)}, 4096")
        if i >= window and (i - window) % 8 == 0:
            a(f"s_waitcnt vmcnt({window - 8})")
        a(f"buffer_load_dwordx4 {d}, {v(vaddr)}, {WS_SRD}, {s(soff)} offen offset:{(i % 4) * 1024}")


def any_poison(a, regs, tmp):
    regs = list(regs)
    a(f"v_max3_u32 {v(tmp)}, {v(regs[0])}, {v(regs[1])}, {v(regs[2])}")
    rest = regs[3:]
    while len(rest) >= 2:
        a(f"v_max3_u32 {v(tmp)}, {v(tmp)}, {v(rest[0])}, {v(rest[1])}")
        rest = rest[2:]
    if rest:
        a(f"v_max_u32 {v(tmp)}, {v(tmp)}, {v(rest[0])}")
    a(f"v_cmp_eq_u32 vcc, -1, {v(tmp)}")


def poll(a, loads, regs, tmp, sleep=0):
    top, done = a.newlabel("poll"), a.newlabel("got")
    a.label(top)
    for l in loads:
        a(l)
    a("s_waitcnt vmcnt(0)")
    any_poison(a, regs, tmp)
    a(f"s_cbranch_vccz {done}")
    if sleep:
        a(f"s_cmp_ge_u32 {s(S_STEP)}, {NSEG - 6}")
        a(f"s_cbranch_scc1 {top}x")
        a(f"s_sleep {sleep}")
        a.label(top + "x")
    a(f"s_sub_u32 {s(S_TO)}, {s(S_TO)}, 1")
    a(f"s_cbranch_scc0 {top}")
    a("s_endpgm")
    a.label(done)


def poll_deep(a, loads, regs, tmp, under=(), depth=2):
    spin, done = a.newlabel("spin"), a.newlabel("got")
    for _ in range(depth - 1):
        for l in loads:
            a(l)
    a.label(spin)
    for l in loads:
        a(l)
    a(f"s_waitcnt vmcnt({len(loads) * (depth - 1)})")
    any_poison(a, regs, tmp)
    for f in under:
        f()
    a(f"s_cbranch_vccz {done}")
    a(f"s_sub_u32 {s(S_TO)}, {s(S_TO)}, 1")
    a(f"s_cbranch_scc0 {spin}")
    a("s_endpgm")
    a.label(done)


def wait_flag(a, reg, load, sleep=2, landed=True):
    top, first, done = a.newlabel("flag"), a.newlabel("first"), a.newlabel("set")
    if not landed:
        a(f"s_branch {first}")
    a.label(top)
    a(f"v_cmp_ne_u32 vcc, {s(S_TAG)}, {v(reg)}")
    a(f"s_cbranch_vccz {done}")
    a(f"s_sleep {sleep}")
    a.label(first)
    a(load)
    a("s_waitcnt vmcnt(0)")
    a(f"s_sub_u32 {s(S_TO)}, {s(S_TO)}, 1")
    a(f"s_cbranch_scc0 {top}")
    a("s_endpgm")
    a.label(done)


def wait_tasks(a, kind, t0, t1, w=0):
    if kind == "A":
        a(f"v_min_u32 {v(t0)}, 6, v0")
        a(f"v_lshlrev_b32 {v(t0)}, 5, {v(t0)}")
        a(f"s_and_b32 {s(S_TMP)}, {s(S_LOC)}, 1")
        a(f"s_mul_i32 {s(S_TMP)}, {s(S_TMP)}, 224")
        a(f"s_lshr_b32 {s(S_TMP + 1)}, {s(S_LOC)}, 1")
        a(f"s_lshl_b32 {s(S_TMP + 1)}, {s(S_TMP + 1)}, 2")
        a(f"s_add_u32 {s(S_TMP)}, {s(S_TMP)}, {s(S_TMP + 1)}")
    elif kind == "B":
        a(f"v_lshrrev_b32 {v(t0)}, 1, v0")
        a(f"v_min_u32 {v(t0)}, 13, {v(t0)}")
        a(f"v_lshlrev_b32 {v(t0)}, 5, {v(t0)}")
        a(f"v_and_b32 {v(t1)}, 1, v0")
        a(f"v_lshl_add_u32 {v(t0)}, {v(t1)}, 2, {v(t0)}")
        a(f"s_mov_b32 {s(S_TMP)}, {448 + 8 * w}")
    elif kind == "L":
        a(f"v_and_b32 {v(t0)}, 31, v0")
        a(f"v_lshlrev_b32 {v(t0)}, 2, {v(t0)}")
        a(f"s_mov_b32 {s(S_TMP)}, 896")
    else:
        a(f"v_min_u32 {v(t0)}, {63 if kind == 'LZ' else 47}, v0")
        a(f"v_lshlrev_b32 {v(t0)}, 3, {v(t0)}")
        top, done = a.newlabel("lz"), a.newlabel("lzok")
        a.label(top)
        a(f"buffer_load_dwordx2 {v(t1, 2)}, {v(t0)}, {WS_SRD}, 0 offen offset:{WS['ARR'] + (896 if kind == 'LZ' else 1536)} sc1")
        a("s_waitcnt vmcnt(0)")
        a(f"v_cmp_ne_u32 vcc, {s(S_TAG)}, {v(t1)}")
        a(f"v_cmp_ne_u32 {s(S_TMP, 2)}, {s(S_TAG)}, {v(t1 + 1)}")
        a(f"s_or_b64 vcc, vcc, {s(S_TMP, 2)}")
        a(f"s_cbranch_vccz {done}")
        a("s_sleep 4")
        a(f"s_sub_u32 {s(S_TO)}, {s(S_TO)}, 1")
        a(f"s_cbranch_scc0 {top}")
        a("s_endpgm")
        a.label(done)
        return
    wait_flag(a, t1, f"buffer_load_dword {v(t1)}, {v(t0)}, {WS_SRD}, {s(S_TMP)} offen offset:{WS['ARR']} sc1", sleep=4, landed=False)


def wait_bell(a, cfg, tmp, sval, word, depth=2):
    if not cfg.get("bell", 1):
        return
    spin, done = a.newlabel("bell"), a.newlabel("rung")
    load = f"buffer_load_dword {v(tmp)}, off, {WS_SRD}, {s(S_BELL)} offset:{4 * word} sc1"
    a(f"s_cmp_lg_u32 {s(S_SLOW)}, 0")
    a(f"s_cbranch_scc1 {done}")
    for _ in range(depth - 1):
        a(load)
    a.label(spin)
    a(load)
    a(f"s_waitcnt vmcnt({depth - 1})")
    a(f"v_cmp_ne_u32 vcc, {s(sval)}, {v(tmp)}")
    a(f"s_cbranch_vccz {done}")
    a(f"s_sub_u32 {s(S_TO)}, {s(S_TO)}, 1")
    a(f"s_cbranch_scc0 {spin}")
    a("s_endpgm")
    a.label(done)


def wait_first_y(a, tmp, seg_reg=None, seg=0):
    if seg_reg is not None:
        a(f"s_mul_i32 {s(S_TMP)}, {s(seg_reg)}, 224")
        a(f"s_add_u32 {s(S_TMP)}, {s(S_TMP)}, {WS['YF']}")
    else:
        a(f"s_mov_b32 {s(S_TMP)}, {WS['YF'] + 224 * seg}")
    wait_flag(a, tmp, f"buffer_load_dword {v(tmp)}, off, {WS_SRD}, {s(S_TMP)} sc1", sleep=8, landed=False)


def local_stores(a, stores, scc_set=False):
    slow, done = a.newlabel("wt"), a.newlabel("st")
    if not scc_set:
        a(f"s_cmp_lg_u32 {s(S_SLOW)}, 0")
    a(f"s_cbranch_scc1 {slow}")
    for st in stores:
        a(st)
    a(f"s_branch {done}")
    a.label(slow)
    for st in stores:
        a(st + " sc1")
    a.label(done)


def index_reg(a, reg, tmp):
    a(f"v_and_b32 {v(tmp)}, 8, v0")
    a(f"v_cmp_eq_u32 vcc, 0, {v(tmp)}")
    a(f"v_mov_b32 {v(tmp)}, 0x88884444")
    a(f"v_mov_b32 {v(reg)}, 0xddddeeee")
    a(f"v_cndmask_b32 {v(reg)}, {v(reg)}, {v(tmp)}, vcc")


def iota_reg(a, reg, tmp):
    a(f"v_bfe_u32 {v(reg)}, v0, 5, 1")
    a(f"v_bfe_u32 {v(tmp)}, v0, 4, 1")
    a(f"v_lshl_add_u32 {v(reg)}, {v(tmp)}, 1, {v(reg)}")


def stamp(a, cfg, k):
    if cfg.get("stamps", 0) >> k & 1:
        a(f"{'s_memrealtime' if cfg.get('rt') else 's_memtime'} {s(S_CLK + 2 * k, 2)}")


def flush_stamps(a, cfg, n, slot, tmp):
    if not cfg.get("stamps"):
        return
    a("s_waitcnt lgkmcnt(0)")
    a.ds = []
    a(f"s_lshl_b32 {s(S_TMP)}, {s(S_STEP)}, 6")
    a(f"s_add_u32 {s(S_TMP)}, {s(S_TMP)}, {WS['DBG'] + slot * 4096}")
    a(f"s_mul_i32 {s(S_TMP + 1)}, {s(S_LOC)}, 0x30000")
    a(f"s_add_u32 {s(S_TMP)}, {s(S_TMP)}, {s(S_TMP + 1)}")
    skip = a.newlabel("nostamp")
    for k in range(n):
        a(f"v_mov_b32 {v(tmp)}, {s(S_CLK + 2 * k)}")
        a(f"buffer_store_dword {v(tmp)}, off, {WS_SRD}, {s(S_TMP)} offset:{4 * k}")
    a(f"v_mov_b32 {v(tmp)}, {s(S_TO)}")
    a(f"buffer_store_dword {v(tmp)}, off, {WS_SRD}, {s(S_TMP)} offset:60")
    a(f"s_add_u32 {s(S_TMP + 1)}, {s(S_STEP)}, -1")
    a(f"s_cmp_lt_u32 {s(S_TMP + 1)}, {cfg.get('last_step', 61)}")
    a(f"s_cbranch_scc1 {skip}")
    a(f"s_memrealtime {s(S_CLK + 28, 2)}")
    a("s_waitcnt lgkmcnt(0)")
    a(f"v_mov_b32 {v(tmp)}, {s(S_CLK + 28)}")
    a(f"buffer_store_dword {v(tmp)}, off, {WS_SRD}, {s(S_TMP)} offset:56")
    a(f"v_mov_b32 {v(tmp)}, {s(S_CLK + 30)}")
    a(f"buffer_store_dword {v(tmp)}, off, {WS_SRD}, {s(S_TMP)} offset:52")
    a.label(skip)


def milestone(a, cfg, k, tmp):
    if not cfg.get("stamps"):
        return
    a("s_memrealtime s[92:93]")
    a("s_lshl_b32 s90, s2, 2")
    a(f"s_add_u32 s90, s90, {s(S_WAVE)}")
    a("s_lshl_b32 s90, s90, 5")
    a(f"s_add_u32 s90, s90, {WS['DBG'] + 0x28000}")
    a("s_waitcnt lgkmcnt(0)")
    a(f"v_mov_b32 {v(tmp)}, s92")
    a(f"buffer_store_dword {v(tmp)}, off, {WS_SRD}, s90 offset:{4 * k}")
    if k == 0:
        a(f"s_lshl_b32 s91, {s(S_GRP)}, 8")
        a(f"s_add_u32 s91, s91, {s(S_LOC)}")
        a(f"v_mov_b32 {v(tmp)}, s91")
        a(f"buffer_store_dword {v(tmp)}, off, {WS_SRD}, s90 offset:28")


def keep_stamps(a, cfg, n, base):
    if cfg.get("stamps"):
        a(f"s_mov_b32 m0, {s(S_STEP)}")
        for k in range(n):
            a(f"v_writelane_b32 {v(base + k)}, {s(S_CLK + 2 * k)}, m0")


def dump_stamps(a, cfg, n, base, slot, lane16):
    if not cfg.get("stamps"):
        return
    a(f"v_lshlrev_b32 {v(lane16)}, 2, {v(lane16)}")
    a(f"s_mul_i32 {s(S_TMP)}, {s(S_LOC)}, 0x30000")
    a(f"s_add_u32 {s(S_TMP)}, {s(S_TMP)}, {WS['DBG'] + slot * 4096}")
    for k in range(n):
        a(f"buffer_store_dword {v(base + k)}, {v(lane16)}, {WS_SRD}, {s(S_TMP)} offen offset:{4 * k}")


def gen_s1(a, w, cfg):
    L16, XKA, MKA, TWA, TRA, SWA, SRA, SRM, PTA, PMA, IDX, T0, T1 = range(1, 14)
    TACC, MA, MK, XK, WV = 16, 44, 72, 88, 120
    MEMIMG, TBUF, SBUF, ZERO = 0, 8192 + 2048 * w, 16384, 24576
    sMEM, sP, sPM, sX0, sX1, sY, sR, sRDY, sVAL, sOWN = range(S_T0, S_T0 + 10)
    p0 = cfg.get('ypieces', 0)
    blk = lambda j, k: wblock(j * 7 + k, WV)
    own = [2 * w, 2 * w + 1] if w < 3 else [5, 6]
    share = own if w < 3 else [6]
    others = [k for k in range(7) if k not in own]
    T = lambda j, r=0: TACC + 4 * j + r
    TOP0, TOP1 = T(0), T(1)
    T1D = T(6)
    SC = [MA + 4 * own[0], MA + 4 * own[1], 12]

    a.label(f"S1_W{w}")
    a(f"v_lshlrev_b32 {v(L16)}, 4, v0")
    wait_tasks(a, "A", T0, T1)
    a(f"s_mul_i32 {s(S_TMP)}, {s(S_LOC)}, {AL_HEAD}")
    a(f"s_add_u32 {s(S_TMP)}, {s(S_TMP)}, {WS['AL'] + w * 100352}")
    stream_load(a, [wblock(b, WV, hi) for b in range(49) for hi in range(2)], L16, S_TMP)
    a(f"v_and_b32 {v(T0)}, 15, v0")
    a(f"v_lshrrev_b32 {v(T1)}, 4, v0")
    a(f"v_add_u32 {v(MKA)}, {14 * w}, {v(T1)}")
    a(f"v_lshrrev_b32 {v(XKA)}, 2, {v(MKA)}")
    a(f"v_lshlrev_b32 {v(XKA)}, 10, {v(XKA)}")
    a(f"v_and_b32 {v(SWA)}, 3, {v(MKA)}")
    a(f"v_lshl_add_u32 {v(SWA)}, {v(SWA)}, 4, {v(T0)}")
    a(f"v_lshl_add_u32 {v(XKA)}, {v(SWA)}, 4, {v(XKA)}")
    a(f"v_and_b32 {v(SWA)}, 7, v0")
    a(f"v_lshlrev_b32 {v(SWA)}, 4, {v(SWA)}")
    a(f"v_lshl_add_u32 {v(MKA)}, {v(MKA)}, 7, {v(SWA)}")
    iota_reg(a, PTA, PMA)
    a(f"v_lshlrev_b32 {v(TWA)}, 2, {v(PTA)}")
    a(f"v_lshl_add_u32 {v(TWA)}, {v(T0)}, 4, {v(TWA)}")
    a(f"v_add_u32 {v(TWA)}, {TBUF}, {v(TWA)}")
    a(f"v_mul_u32_u24 {v(SWA)}, 1536, {v(PTA)}")
    a(f"v_lshl_add_u32 {v(SWA)}, {v(T0)}, 4, {v(SWA)}")
    a(f"v_add_u32 {v(SWA)}, {SBUF + (w >> 1) * 256 + (w & 1) * 8}, {v(SWA)}")
    a(f"v_bfe_u32 {v(TRA)}, v0, 2, 2")
    a(f"v_lshl_add_u32 {v(TRA)}, {v(T1)}, 3, {v(TRA)}")
    a(f"v_lshlrev_b32 {v(TRA)}, 5, {v(TRA)}")
    a(f"v_and_b32 {v(PMA)}, 3, v0")
    a(f"v_lshl_add_u32 {v(TRA)}, {v(PMA)}, 3, {v(TRA)}")
    a(f"v_add_u32 {v(TRA)}, {TBUF}, {v(TRA)}")
    a(f"v_lshrrev_b32 {v(T1)}, 5, v0")
    a(f"v_bfe_u32 {v(SRA)}, v0, 4, 1")
    a(f"v_lshlrev_b32 {v(SRA)}, 9, {v(SRA)}")
    a(f"v_lshl_add_u32 {v(SRA)}, {v(T1)}, 8, {v(SRA)}")
    a(f"v_lshl_add_u32 {v(SRA)}, {v(T0)}, 4, {v(SRA)}")
    a(f"v_add_u32 {v(SRA)}, {SBUF + w * 1536}, {v(SRA)}")
    a(f"v_and_b32 {v(SRM)}, 7, v0")
    a(f"v_lshlrev_b32 {v(SRM)}, 4, {v(SRM)}")
    a(f"v_lshl_add_u32 {v(SRM)}, {v(T1)}, 8, {v(SRM)}")
    a(f"v_add_u32 {v(SRM)}, {SBUF + w * 1536 + 1024}, {v(SRM)}")
    a(f"v_add_u32 {v(T1)}, {2 * w}, {v(T1)}")
    a(f"v_bfe_u32 {v(PTA)}, v0, 3, 2")
    a(f"v_lshlrev_b32 {v(PTA)}, 7, {v(PTA)}")
    a(f"v_lshl_add_u32 {v(PTA)}, {v(T1)}, 4, {v(PTA)}")
    a(f"v_and_b32 {v(T0)}, 7, v0")
    a(f"v_lshl_add_u32 {v(PTA)}, {v(T0)}, 1, {v(PTA)}")
    a(f"v_bfe_u32 {v(PMA)}, v0, 1, 1")
    a(f"v_lshlrev_b32 {v(PMA)}, 7, {v(PMA)}")
    a(f"v_lshl_add_u32 {v(PMA)}, {v(T1)}, 4, {v(PMA)}")
    a(f"v_bfe_u32 {v(T0)}, v0, 2, 1")
    a(f"v_lshl_add_u32 {v(PMA)}, {v(T0)}, 3, {v(PMA)}")
    a(f"v_and_b32 {v(T0)}, 1, v0")
    a(f"v_lshlrev_b32 {v(T0)}, 30, {v(T0)}")
    a(f"v_or_b32 {v(PTA)}, {v(PTA)}, {v(T0)}")
    a(f"v_or_b32 {v(PMA)}, {v(PMA)}, {v(T0)}")
    index_reg(a, IDX, T0)
    a(f"v_mov_b32 {v(T0)}, 0")
    a(f"v_lshlrev_b32 {v(T1)}, 2, v0")
    a(f"ds_write_b32 {v(T1)}, {v(T0)} offset:{TBUF + 7 * 256}")
    a(f"ds_write_b32 {v(T1)}, {v(T0)} offset:{MEMIMG + 7168}")
    a(f"ds_write_b32 {v(T1)}, {v(T0)} offset:{ZERO + 256 * w}")
    a(f"s_mul_i32 {s(sMEM)}, {s(S_SLOW)}, {WS['MEMG'] - WS['MEML']}")
    a(f"s_add_u32 {s(sMEM)}, {s(sMEM)}, {WS['MEML'] + own[0] * 1024}")
    a(f"s_lshl_b32 {s(sP)}, {s(S_LOC)}, 9")
    a(f"s_add_u32 {s(sP)}, {s(sP)}, {WS['PB']}")
    a(f"s_lshr_b32 {s(sPM)}, {s(S_LOC)}, 1")
    a(f"s_lshl_b32 {s(sPM)}, {s(sPM)}, 8")
    a(f"s_and_b32 {s(S_TMP)}, {s(S_LOC)}, 1")
    a(f"s_lshl_b32 {s(S_TMP)}, {s(S_TMP)}, 2")
    a(f"s_add_u32 {s(sPM)}, {s(sPM)}, {s(S_TMP)}")
    a(f"s_add_u32 {s(sPM)}, {s(sPM)}, {WS['PB'] + 8192}")
    a(f"s_mov_b32 {s(S_X)}, {s(S_WS)}")
    a(f"s_or_b32 {s(S_X + 1)}, {s(S_WS + 1)}, 0x80000")
    a(f"s_mov_b32 {s(S_X + 2)}, {(8 - p0) * 128}")
    a(f"s_mov_b32 {s(S_X + 3)}, 0x00020000")
    a(f"s_mov_b32 {s(S_OUT)}, {s(S_WS)}")
    a(f"s_mov_b32 {s(S_OUT + 1)}, {s(S_X + 1)}")
    a(f"s_mov_b32 {s(S_OUT + 2)}, {56 * 16}")
    a(f"s_mov_b32 {s(S_OUT + 3)}, 0x00020000")
    a(f"s_lshl_b32 {s(sY)}, {s(S_LOC)}, 15")
    a(f"s_add_u32 {s(sY)}, {s(sY)}, {WS['YL'] + Y_SEG + w * 8192 + p0 * 1024}")
    a(f"s_mov_b32 {s(sR)}, {WS['YR'] + 128}")
    a(f"s_mov_b32 {s(S_TMP + 7)}, 0x3e800000")
    a(f"s_mov_b32 {s(sX0)}, {WS['XT']}")
    a(f"s_mov_b32 {s(sX1)}, {WS['XT'] + 14336}")
    a(f"s_mov_b32 {s(S_STEP)}, 0")
    a("s_waitcnt lgkmcnt(0)")
    a(f"v_lshrrev_b32 v0, 4, {v(L16)}")
    wait_tasks(a, "LZ", 14, 12)
    milestone(a, cfg, 1, T0)

    T0 = JUNK = 0

    def load_keys(i):
        kt, q = i & 1, i >> 1
        a(f"buffer_load_dwordx4 {v(XK + 16 * kt + 4 * q, 4)}, {v(XKA)}, {WS_SRD}, {s(sX1 if kt else sX0)} offen offset:{q * 1024}")
    a(f"s_mov_b32 {s(S_BELL)}, {WS['BELL']}")
    a(f"s_lshl_b32 {s(sOWN)}, {s(S_LOC)}, 2")
    a(f"s_add_u32 {s(sOWN)}, {s(sOWN)}, {WS['BELL']}")
    a(f"s_mov_b32 {s(sVAL)}, {s(S_TAG)}")
    top = f"S1_STEP{w}"
    a.label(top)
    a(f"buffer_load_dword {v(MK)}, off, {WS_SRD}, {s(sR)} sc1")
    for r in range(32):
        a(f"v_mov_b32 {v(12 + r)}, 0")
    stamp(a, cfg, 0)
    if cfg.get("stamps"):
        a(f"s_memtime {s(S_CLK + 22, 2)}")
    first = a.newlabel("first")
    a(f"s_cmp_eq_u32 {s(S_STEP)}, 0")
    a(f"s_cbranch_scc1 {first}")
    wait_bell(a, cfg, MK + 1, sVAL, 64 + 2 * own[0])
    a.label(first)
    a(f"s_add_u32 {s(sVAL)}, {s(sVAL)}, 1")
    pa = [(j, k) for k in own for j in range(7)]
    poll_deep(a, [f"buffer_load_dwordx4 {v(MA + 4 * own[i], 4)}, {v(L16)}, {WS_SRD}, {s(sMEM)} offen offset:{1024 * i} sc1" for i in range(2)],
              range(MA + 4 * own[0], MA + 4 * own[0] + 8), T0,
              [lambda k=k: a.dsop(f"ds_write_b128 {v(L16)}, {v(MA + 4 * k, 4)} offset:{MEMIMG + 1024 * k}") for k in share],
              cfg.get("depth1", 2))
    stamp(a, cfg, 1)
    nh = cfg.get("nhead", 3)
    for n_, (j, k) in enumerate(pa[:nh]):
        smf(a, T(j), MA + 4 * k, blk(j, k), IDX)
        if n_ == 0:
            a(f"v_readfirstlane_b32 {s(sRDY)}, {v(MK)}")
    a.wait_ds_all()
    stamp(a, cfg, 5)
    a("s_barrier")
    stamp(a, cfg, 6)
    kg = [cfg.get("kgap0", -10) + cfg.get("kgap", 4) * i for i in range(8)]
    for n_, (j, k) in enumerate(pa[nh:]):
        if n_ < len(others):
            a.dsop(f"ds_read_b128 {v(MA + 4 * others[n_], 4)}, {v(L16)} offset:{MEMIMG + 1024 * others[n_]}", ("ma", others[n_]))
        smf(a, T(j), MA + 4 * k, blk(j, k), IDX)
        if n_ == 0:
            a(f"s_cmp_lt_u32 {s(S_LOC)}, 14")
            a(f"s_cselect_b32 {s(sRDY)}, {s(sRDY)}, 0")
            a(f"s_cmp_eq_u32 {s(sRDY)}, {s(S_TAG)}")
            a(f"s_cselect_b32 {s(S_X + 2)}, {(8 - p0) * 128 if cfg.get('assist', 1) else 0}, 0")
        if n_ - (14 - nh) in kg:
            load_keys(kg.index(n_ - (14 - nh)))
        if 5 <= n_ < 9:
            a.dsop(f"ds_read_b128 {v(MK + 4 * (n_ - 5), 4)}, {v(MKA)} offset:{MEMIMG + 512 * (n_ - 5)}", "mk")

    def post(j):
        return [lambda: a(f"v_permlane32_swap_b32 {v(T(j, 0))}, {v(T(j, 2))}"),
                lambda: a(f"v_permlane32_swap_b32 {v(T(j, 1))}, {v(T(j, 3))}"),
                lambda: (a(f"v_add_f32 {v(T(j, 0))}, {v(T(j, 0))}, {v(T(j, 2))}"),
                         a(f"v_add_f32 {v(T(j, 1))}, {v(T(j, 1))}, {v(T(j, 3))}")),
                lambda: a(f"v_cvt_pk_bf16_f32 {v(T(j, 0))}, {v(T(j, 0))}, {v(T(j, 1))}"),
                lambda: a.dsop(f"ds_write_b32 {v(TWA)}, {v(T(j, 0))} offset:{256 * j}")]

    main, fill = [], {}
    for j in range(7):
        for k in others:
            def mm(j=j, k=k):
                if j == 0:
                    a.wait_ds(("ma", k))
                smf(a, T(j), MA + 4 * k, blk(j, k), IDX)
            main.append(mm)
    for i in range(8):
        if kg[i] >= 0:
            fill[kg[i]] = [lambda i=i: load_keys(i)]
    ag = kg[7] + 4
    fill.setdefault(ag, []).append(lambda: a(f"buffer_load_dword {v(JUNK)}, {v(L16)}, {s(S_X, 4)}, {s(sY)} idxen sc1"))
    after = lambda gap: sum(g > gap for g in kg) + (ag > gap)
    for j in range(6):
        for i, f in enumerate(post(j)):
            fill.setdefault(5 * (j + 1) + 2 + i, []).append(f)
    zgap = 21
    fill[zgap].append(lambda: a(f"s_waitcnt vmcnt({9 - after(zgap)})"))
    for q in range(2):
        fill[zgap].append(lambda q=q: a.dsop(f"ds_read_b128 {v(SC[q], 4)}, {v(L16)} offset:{ZERO}", "z"))
    for q in range(2):
        fill.setdefault(26 + 5 * q, []).append(lambda q=q: a.dsop(f"ds_read_b64_tr_b16 {v(TOP0 + 2 * q, 2)}, {v(TRA)} offset:{128 * q}", "t0"))
    stamp(a, cfg, 7)
    fill.setdefault(4, []).append(lambda: stamp(a, cfg, 8))
    fill.setdefault(24, []).append(lambda: stamp(a, cfg, 9))
    fill.setdefault(34, []).append(lambda: stamp(a, cfg, 10))
    tail = [f for i in sorted(fill) if i >= 35 for f in fill[i]]
    interleave(a, main, {i: f for i, f in fill.items() if i < 35})
    def ring(at):
        if w == 0 and cfg.get("bell1", 1) == at:
            a(f"v_mov_b32 {v(T(2))}, {s(sVAL)}")
            a(f"buffer_store_dword {v(T(2))}, off, {WS_SRD}, {s(sOWN)}")
    a("s_waitcnt vmcnt(5)")
    ring(0)
    a.wait_ds("t0")
    keys = [XK, XK + 16, MK]
    for t in range(3):
        smf(a, SC[t], TOP0, v(keys[t], 8), IDX, True)
        if t < len(tail):
            tail[t]()
    for f in post(6):
        f()
    for q in range(2):
        a.dsop(f"ds_read_b64_tr_b16 {v(TOP1 + 2 * q, 2)}, {v(TRA)} offset:{1024 + 128 * q}", "t1")
    stamp(a, cfg, 2)
    a(f"s_waitcnt vmcnt({2 if w == 0 and cfg.get('bell1', 1) == 0 else 1})")
    ring(1)
    a.wait_ds("t1")
    for t in range(3):
        smf(a, SC[t], TOP1, v(keys[t] + 8, 8), IDX, True)
    a.nop(2)
    for t in range(3):
        a(f"v_permlane32_swap_b32 {v(SC[t])}, {v(SC[t] + 2)}")
        a(f"v_permlane32_swap_b32 {v(SC[t] + 1)}, {v(SC[t] + 3)}")
        a(f"v_add_f32 {v(SC[t])}, {v(SC[t])}, {v(SC[t] + 2)}")
        a(f"v_add_f32 {v(SC[t] + 1)}, {v(SC[t] + 1)}, {v(SC[t] + 3)}")
        a.dsop(f"ds_write_b64 {v(SWA)}, {v(SC[t], 2)} offset:{512 * t}")
    ring(2)
    a.wait_ds_all()
    a("s_barrier")
    stamp(a, cfg, 3)
    R, Q, LIM = T(3), T(4), T(5)
    a(f"v_mov_b32 {v(LIM)}, 0x42800000")
    a.dsop(f"ds_read_b128 {v(R, 4)}, {v(SRA)}", "r")
    a.dsop(f"ds_read_b128 {v(Q, 4)}, {v(SRM)}", "q")
    a.wait_ds("r")
    a(f"v_pk_add_f32 {v(R, 2)}, {v(R, 2)}, {v(R + 2, 2)}")
    a.wait_ds("q")
    a(f"v_pk_add_f32 {v(Q, 2)}, {v(Q, 2)}, {v(Q + 2, 2)}")
    a.nop(1)
    a(f"v_permlane32_swap_b32 {v(R)}, {v(R + 1)}")
    a(f"v_permlane32_swap_b32 {v(Q)}, {v(Q + 1)}")
    A_, B_, M, M2 = R, Q, R + 2, R + 3
    a(f"v_add_f32 {v(A_)}, {v(R)}, {v(R + 1)}")
    a(f"v_add_f32 {v(B_)}, {v(Q)}, {v(Q + 1)}")

    def reduce32(op, under=()):
        under = list(under)
        for ctl in ("quad_perm:[1,0,3,2]", "quad_perm:[2,3,0,1]", "row_half_mirror", "row_mirror"):
            if under:
                a(under.pop(0))
                a.nop(1)
            else:
                a.nop(2)
            a(f"{op}_dpp {v(M)}, {v(M)}, {v(M)} {ctl} row_mask:0xf bank_mask:0xf")
        a(f"v_mov_b32 {v(M2)}, {v(M)}")
        a.nop(2)
        a(f"v_permlane16_swap_b32 {v(M2)}, {v(M)}")
        a(f"{op} {v(M)}, {v(M)}, {v(M2)}")

    def true_max(da=A_, db=B_):
        a(f"v_max_f32 {v(M)}, {v(R)}, {v(Q)}")
        reduce32("v_max_f32")
        a(f"v_sub_f32 {v(R)}, {v(R)}, {v(M)}")
        a(f"v_sub_f32 {v(Q)}, {v(Q)}, {v(M)}")
        a(f"v_exp_f32 {v(da)}, {v(R)}")
        a(f"v_exp_f32 {v(db)}, {v(Q)}")

    late = []
    if cfg.get("quickmax", 1):
        shifted, ranged = a.newlabel("shift"), a.newlabel("range")
        a(f"v_max_f32 {v(M)}, |{v(A_)}|, |{v(B_)}|")
        a(f"v_exp_f32 {v(R + 1)}, {v(A_)}")
        a(f"v_cmp_nle_f32 vcc, {v(M)}, {v(LIM)}")
        a(f"v_exp_f32 {v(Q + 1)}, {v(B_)}")
        a(f"s_cbranch_vccnz {shifted}")
        a.label(ranged)
        late.append((shifted, ranged))
        A_, B_, NA, NB = R + 1, Q + 1, R, Q
    else:
        true_max()
        a.nop(1)
        NA, NB = R + 1, Q + 1
    a(f"v_fma_f32 {v(M)}, {v(B_)}, {s(S_TMP + 7)}, {v(A_)}")
    reduce32("v_add_f32", [f"v_mov_b32_dpp {v(NA)}, {v(A_)} quad_perm:[1,0,3,2] row_mask:0xf bank_mask:0xf",
                           f"v_mov_b32_dpp {v(NB)}, {v(B_)} quad_perm:[1,0,3,2] row_mask:0xf bank_mask:0xf"])
    a(f"v_rcp_f32 {v(M)}, {v(M)}")
    a(f"s_cmp_lg_u32 {s(S_SLOW)}, 0")
    a(f"v_pk_mul_f32 {v(R, 2)}, {v(R, 2)}, {v(M, 2)} op_sel_hi:[1,0] clamp")
    a(f"v_pk_mul_f32 {v(Q, 2)}, {v(Q, 2)}, {v(M, 2)} op_sel_hi:[1,0] clamp")
    a(f"v_cvt_pk_bf16_f32 {v(A_)}, {v(A_)}, {v(NA)}")
    a(f"v_cvt_pk_bf16_f32 {v(B_)}, {v(B_)}, {v(NB)}")
    local_stores(a, [f"buffer_store_dword {v(A_)}, {v(PTA)}, {WS_SRD}, {s(sP)} offen",
                     f"buffer_store_dword {v(B_)}, {v(PMA)}, {WS_SRD}, {s(sPM)} offen"], scc_set=True)
    stamp(a, cfg, 4)
    a(f"s_add_u32 {s(sR)}, {s(sR)}, 128")
    a(f"s_add_u32 {s(sY)}, {s(sY)}, {Y_SEG}")
    if cfg.get("stamps"):
        a("s_waitcnt lgkmcnt(0)")
        a(f"s_lshl_b32 {s(S_TMP)}, {s(S_STEP)}, 6")
        a(f"v_mov_b32 {v(T1D)}, {s(S_TMP)}")
        for k, r in [(k, S_CLK + 2 * k) for k in range(12)] + [(15, S_TO)]:
            if k >= 11 or cfg["stamps"] >> k & 1:
                a(f"v_mov_b32 {v(T1D + 1)}, {s(r)}")
                a(f"ds_write_b32 {v(T1D)}, {v(T1D + 1)} offset:{32768 + 4096 * w + 4 * k}")
    a(f"s_add_u32 {s(sMEM)}, {s(sMEM)}, {MEM_SZ}")
    a(f"s_add_u32 {s(sP)}, {s(sP)}, {PB_SZ}")
    a(f"s_add_u32 {s(sPM)}, {s(sPM)}, {PB_SZ}")
    a(f"s_add_u32 {s(sX0)}, {s(sX0)}, {0 if cfg.get('samex') else XT_SEG}")
    a(f"s_add_u32 {s(sX1)}, {s(sX1)}, {0 if cfg.get('samex') else XT_SEG}")
    a(f"s_add_u32 {s(S_STEP)}, {s(S_STEP)}, 1")
    a(f"s_cmp_lt_u32 {s(S_STEP)}, {NSEG - 1}")
    a(f"s_cbranch_scc1 {top}")
    if cfg.get("stamps"):
        a(f"s_mul_i32 {s(S_TMP)}, {s(S_LOC)}, 0x30000")
        a(f"s_add_u32 {s(S_TMP)}, {s(S_TMP)}, {WS['DBG'] + w * 4096}")
        for i in range(4):
            a(f"ds_read_b128 {v(16, 4)}, {v(L16)} offset:{32768 + 4096 * w + 1024 * i}")
            a("s_waitcnt lgkmcnt(0)")
            a(f"buffer_store_dwordx4 {v(16, 4)}, {v(L16)}, {WS_SRD}, {s(S_TMP)} offen offset:{1024 * i}")
            a("s_waitcnt vmcnt(0)")
    a("s_endpgm")
    for shifted, ranged in late:
        a.label(shifted)
        true_max(R + 1, Q + 1)
        a(f"s_branch {ranged}")


class BRes:
    WL = 49152
    WV = 176

    def __init__(self, a, w, L16, IDX, MA, WT, ACC, ZW):
        self.a, self.w, self.L16, self.IDX, self.MA, self.WT, self.ACC, self.ZW = a, w, L16, IDX, MA, WT, ACC, ZW

    def blk(self, t, k, hi=None):
        return wblock(t * 7 + k, self.WV, hi)

    def lds_off(self, t, k, hi):
        return (t - 6) * 14336 + k * 2048 + hi * 1024

    def load(self, sloc, lbase):
        a, w = self.a, self.w
        a(f"s_mul_i32 {s(S_TMP)}, {s(sloc)}, {BL_CU}")
        a(f"s_add_u32 {s(S_TMP)}, {s(S_TMP)}, {WS['BL'] + w * 114688}")
        a(f"s_add_u32 {s(S_TMP + 1)}, {s(S_TMP)}, {6 * 14336}")
        a(f"s_add_u32 {s(S_TMP + 3)}, {s(S_TMP)}, {4 * 14336}")
        stream_load(a, [wblock(b, self.WV, hi) for b in range(28) for hi in range(2)], self.L16, S_TMP, window=40)
        for i in range(28):
            if i % 8 == 0:
                a("s_waitcnt vmcnt(40)")
            a(f"s_mov_b32 m0, {self.WL + w * 28672 + i * 1024}")
            a(f"s_add_u32 {s(S_TMP + 2)}, {s(S_TMP + 1)}, {i * 1024}")
            a(f"buffer_load_dwordx4 {v(self.L16)}, {WS_SRD}, {s(S_TMP + 2)} offen lds")
        dests = [wblock(b, self.WV, hi) for b in range(28, 42) for hi in range(2)]
        for i in range(0, 28, 4):
            a("s_waitcnt vmcnt(52)")
            stream_load(a, dests[i:i + 4], self.L16, S_TMP + 3)
            a(f"s_add_u32 {s(S_TMP + 3)}, {s(S_TMP + 3)}, 4096")
        a(f"v_add_u32 {v(lbase)}, {self.WL + w * 28672}, {v(self.L16)}")
        self.lbase = lbase

    def read_block(self, i, order, half=None):
        t, k = 6 + i // 7, order[i % 7]
        for hi in (range(2) if half is None else [half]):
            self.a.dsop(f"ds_read_b128 {v(self.WT + 8 * (i % 3) + 4 * hi, 4)}, {v(self.lbase)} offset:{self.lds_off(t, k, hi)}", ("wt", i))

    def zero_acc(self):
        for r in range(32):
            self.a(f"v_mov_b32 {v(self.ACC + r)}, 0")

    def cvt(self, t, slot):
        d = self.ZW + 8 * (t & 1) + 2 * (t >> 1)
        c = self.ACC + 4 * slot
        return [lambda: self.a(f"v_cvt_pk_bf16_f32 {v(d)}, {v(c)}, {v(c + 1)}"),
                lambda: self.a(f"v_cvt_pk_bf16_f32 {v(d + 1)}, {v(c + 2)}, {v(c + 3)}")]

    def mem_values(self, order, extra):
        a = self.a
        groups = ([0, 1, 2, 6], [3, 4, 5, 7])
        main, fill = [], {k: list(x) for k, x in extra.items()}
        for gi, tiles in enumerate(groups):
            for ki, k in enumerate(order):
                for ti, t in enumerate(tiles):
                    def mm(gi=gi, ki=ki, k=k, ti=ti, t=t):
                        if ti == 0 and gi == 0:
                            a.wait_ds(("ma", k))
                        if t >= 6:
                            a.wait_ds(("wt", gi * 7 + ki))
                            wr = v(self.WT + 8 * ((gi * 7 + ki) % 3), 8)
                        else:
                            wr = self.blk(t, k)
                        smf(a, self.ACC + 4 * (gi * 4 + ti), self.MA + 4 * k, wr, self.IDX)
                    main.append(mm)
                i = gi * 7 + ki
                if i + 3 < 14:
                    for hi in range(2):
                        fill.setdefault(len(main) + hi, []).append(lambda i=i, hi=hi: self.read_block(i + 3, order, hi))
        cv = [f for ti, t in enumerate(groups[0]) for f in self.cvt(t, ti)]
        for f, gap in zip(cv, (30, 31, 34, 35, 38, 39, 42, 43)):
            fill.setdefault(gap, []).append(f)
        interleave(a, main, fill)
        a.nop(3)
        for ti, t in enumerate(groups[1]):
            for f in self.cvt(t, 4 + ti):
                f()


def gen_s2(a, w, cfg):
    if cfg.get("quiet2"):
        cfg = {k: x for k, x in cfg.items() if k != "stamps"}
    L16, LB, PMA, PWA, PRA, MOA, IDX, FLG, T0, T1 = range(1, 11)
    MA, YB, ZW, PA, WT, ACC, O = 16, 44, 76, 92, 104, 128, 160
    MEMIMG, PART = 0, 8192
    sMEM, sP, sPM, sY, sY1, sF, sO, sVAL, sOWN = range(S_T0, S_T0 + 9)
    own = [2 * w, 2 * w + 1] if w < 3 else [6]
    order = own + [k for k in range(7) if k not in own]
    B = BRes(a, w, L16, IDX, MA, WT, ACC, ZW)
    ct_out = w & 1

    a.label(f"S2_W{w}")
    a(f"s_sub_u32 {s(S_LOC)}, {s(S_LOC)}, 16")
    a(f"v_lshlrev_b32 {v(L16)}, 4, v0")
    wait_tasks(a, "B", T0, T1, w)
    B.load(S_LOC, LB)
    a(f"v_and_b32 {v(T0)}, 15, v0")
    a(f"v_lshrrev_b32 {v(T1)}, 5, v0")
    a(f"v_lshlrev_b32 {v(PMA)}, 4, {v(T0)}")
    a(f"v_lshl_add_u32 {v(PMA)}, {v(T1)}, 8, {v(PMA)}")
    iota_reg(a, PWA, T1)
    a(f"v_lshlrev_b32 {v(PWA)}, 7, {v(PWA)}")
    a(f"v_lshl_add_u32 {v(PWA)}, {v(T0)}, 2, {v(PWA)}")
    a(f"v_add_u32 {v(PWA)}, {PART + w * 1024}, {v(PWA)}")
    a(f"v_lshlrev_b32 {v(PRA)}, 3, v0")
    a(f"v_add_u32 {v(PRA)}, {PART + ct_out * 512}, {v(PRA)}")
    a(f"v_lshrrev_b32 {v(T0)}, 3, v0")
    a(f"v_lshlrev_b32 {v(MOA)}, 4, {v(T0)}")
    a(f"v_bfe_u32 {v(T0)}, v0, 2, 1")
    a(f"v_lshl_add_u32 {v(MOA)}, {v(T0)}, 7, {v(MOA)}")
    a(f"v_and_b32 {v(T0)}, 3, v0")
    a(f"v_lshl_add_u32 {v(MOA)}, {v(T0)}, 2, {v(MOA)}")
    index_reg(a, IDX, T0)
    a(f"s_mul_i32 {s(sMEM)}, {s(S_SLOW)}, {WS['MEMG'] - WS['MEML']}")
    a(f"s_add_u32 {s(sMEM)}, {s(sMEM)}, {WS['MEML'] + own[0] * 1024}")
    a(f"s_mov_b32 {s(sP)}, {WS['PB'] + w * 2048}")
    a(f"s_mov_b32 {s(sPM)}, {WS['PB'] + 8192 + w * 512}")
    a(f"s_lshl_b32 {s(sY)}, {s(S_LOC)}, 15")
    a(f"s_add_u32 {s(sY)}, {s(sY)}, {WS['YL'] + w * 8192}")
    a(f"s_add_u32 {s(sY1)}, {s(sY)}, 4096")
    a(f"s_lshl_b32 {s(sF)}, {s(S_LOC)}, 4")
    a(f"s_add_u32 {s(sF)}, {s(sF)}, {WS['YF'] + w * 4}")
    a(f"s_lshl_b32 {s(sO)}, {s(S_LOC)}, 9")
    a(f"s_add_u32 {s(sO)}, {s(sO)}, {WS['MEML' if w < 2 else 'MEMG'] + MEM_SZ + ct_out * 256}")
    a(f"s_mov_b32 {s(S_STEP)}, 0")
    a(f"s_mov_b32 {s(S_BELL)}, {WS['BELL']}")
    a(f"s_lshl_b32 {s(sOWN)}, {s(S_LOC)}, 2")
    a(f"s_add_u32 {s(sOWN)}, {s(sOWN)}, {WS['BELL'] + 256}")
    a(f"s_add_u32 {s(sVAL)}, {s(S_TAG)}, 1")
    flag_load = f"buffer_load_dword {v(FLG)}, off, {WS_SRD}, {s(sF)} sc1"
    a(flag_load)
    B.zero_acc()
    wait_tasks(a, "LZ", T0, 12)
    milestone(a, cfg, 1, T0)
    wait_flag(a, FLG, flag_load)
    milestone(a, cfg, 2, T0)

    top = f"S2_STEP{w}"
    a.label(top)
    a.ds = []
    for i in range(3):
        B.read_block(i, order)
    if cfg.get("zerotop", 1):
        B.zero_acc()
    stamp(a, cfg, 0)
    poll_deep(a, [f"buffer_load_dwordx4 {v(MA + 4 * k, 4)}, {v(L16)}, {WS_SRD}, {s(sMEM)} offen offset:{1024 * i} sc1" for i, k in enumerate(own)],
              range(MA + 4 * own[0], MA + 4 * own[0] + 4 * len(own)), T0,
              [lambda k=k: a.dsop(f"ds_write_b128 {v(L16)}, {v(MA + 4 * k, 4)} offset:{MEMIMG + 1024 * k}") for k in own],
              cfg.get("depth3", 2))
    stamp(a, cfg, 1)
    a(f"s_add_u32 {s(sF)}, {s(sF)}, 224")
    a.wait_ds_all()
    a("s_barrier")
    keep_stamps(a, cfg, 6, 168)
    if w >= 2:
        skip = a.newlabel("done")
        a(f"s_cmp_eq_u32 {s(S_STEP)}, 0")
        a(f"s_cselect_b32 {s(S_TMP)}, 1, {s(S_SLOW)}")
        a(f"s_cmp_lg_u32 {s(S_TMP)}, 0")
        a(f"s_cbranch_scc1 {skip}")
        a(f"s_sub_u32 {s(S_TMP)}, {s(sO)}, {MEM_SZ}")
        a(f"buffer_store_dword {v(O)}, {v(MOA)}, {WS_SRD}, {s(S_TMP)} offen sc1")
        a.label(skip)
    for k in order[len(own):]:
        a.dsop(f"ds_read_b128 {v(MA + 4 * k, 4)}, {v(L16)} offset:{MEMIMG + 1024 * k}", ("ma", k))
    yl = [f"buffer_load_dwordx4 {v(YB + 4 * i, 4)}, {v(L16)}, {WS_SRD}, {s(sY1 if i >= 4 else sY)} offen offset:{(i % 4) * 1024} sc1" for i in range(8)]
    yl = ([flag_load] if cfg.get("noy", 0) < 2 else []) + ([] if cfg.get("noy") else yl)
    extra = {}
    for i, x in enumerate(yl):
        extra.setdefault(i * cfg.get("ygap", 1) - 1, []).append(lambda x=x: a(x))
    B.mem_values(order, extra)
    for r in range(8):
        a(f"v_mov_b32 {v(O + r)}, 0")
    if not cfg.get("zerotop", 1):
        B.zero_acc()
    stamp(a, cfg, 2)
    a("s_waitcnt vmcnt(0)")
    wait_flag(a, FLG, flag_load)
    stamp(a, cfg, 3)
    a(f"v_mov_b32 {v(T1)}, {s(sVAL)}")
    wait_bell(a, cfg, 11, sVAL, 4 * w)
    bell = f"buffer_store_dword {v(T1)}, off, {WS_SRD}, {s(sOWN)}"
    if w == 0 and cfg.get("bell2", 1) == 0:
        a(bell)
    poll_deep(a, [f"buffer_load_dwordx4 {v(PA, 4)}, {v(L16)}, {WS_SRD}, {s(sP)} offen sc1",
                  f"buffer_load_dwordx4 {v(PA + 4, 4)}, {v(L16)}, {WS_SRD}, {s(sP)} offen offset:1024 sc1",
                  f"buffer_load_dwordx4 {v(PA + 8, 4)}, {v(PMA)}, {WS_SRD}, {s(sPM)} offen sc1"],
              range(PA, PA + 12), T0, (), cfg.get("depth2", 2))
    stamp(a, cfg, 4)
    for ct in range(2):
        for x, z in ((PA, YB), (PA + 4, YB + 16), (PA + 8, ZW)):
            smf(a, O + 4 * ct, x, v(z + 8 * ct, 8), IDX)
            if w == 0 and x == PA and ct == 0 and cfg.get("bell2", 1) == 1:
                a(bell)
    for ct in range(2):
        o = O + 4 * ct
        if ct:
            a.nop(2)
        a(f"v_permlane32_swap_b32 {v(o)}, {v(o + 2)}")
        a(f"v_permlane32_swap_b32 {v(o + 1)}, {v(o + 3)}")
        a(f"v_add_f32 {v(o)}, {v(o)}, {v(o + 2)}")
        a(f"v_add_f32 {v(o + 1)}, {v(o + 1)}, {v(o + 3)}")
        a.dsop(f"ds_write2_b32 {v(PWA)}, {v(o)}, {v(o + 1)} offset0:{128 * ct} offset1:{128 * ct + 16}")
    a.wait_ds_all()
    a("s_barrier")
    for wv in range(4):
        a.dsop(f"ds_read_b64 {v(O + 2 * wv, 2)}, {v(PRA)} offset:{1024 * wv}", ("p", wv))
    a.wait_ds(("p", 1))
    a(f"v_pk_add_f32 {v(O, 2)}, {v(O, 2)}, {v(O + 2, 2)}")
    a.wait_ds(("p", 3))
    a(f"v_pk_add_f32 {v(O + 4, 2)}, {v(O + 4, 2)}, {v(O + 6, 2)}")
    a(f"v_pk_add_f32 {v(O, 2)}, {v(O, 2)}, {v(O + 4, 2)}")
    a(f"v_cvt_pk_bf16_f32 {v(O)}, {v(O)}, {v(O + 1)}")
    a(f"v_min_u32 {v(O)}, -2, {v(O)}")
    if w < 2:
        a(f"buffer_store_dword {v(O)}, {v(MOA)}, {WS_SRD}, {s(sO)} offen")
    else:
        skip = a.newlabel("later")
        a(f"s_cmp_eq_u32 {s(S_STEP)}, {NSEG - 2}")
        a(f"s_cselect_b32 {s(S_TMP)}, 1, {s(S_SLOW)}")
        a(f"s_cmp_eq_u32 {s(S_TMP)}, 0")
        a(f"s_cbranch_scc1 {skip}")
        a(f"buffer_store_dword {v(O)}, {v(MOA)}, {WS_SRD}, {s(sO)} offen sc1")
        a.label(skip)
    stamp(a, cfg, 5)
    a(f"s_add_u32 {s(sMEM)}, {s(sMEM)}, {MEM_SZ}")
    a(f"s_add_u32 {s(sO)}, {s(sO)}, {MEM_SZ}")
    a(f"s_add_u32 {s(sVAL)}, {s(sVAL)}, 1")
    a(f"s_add_u32 {s(sP)}, {s(sP)}, {PB_SZ}")
    a(f"s_add_u32 {s(sPM)}, {s(sPM)}, {PB_SZ}")
    if not cfg.get("samey"):
        a(f"s_add_u32 {s(sY)}, {s(sY)}, {Y_SEG}")
        a(f"s_add_u32 {s(sY1)}, {s(sY1)}, {Y_SEG}")
    a(f"s_add_u32 {s(S_STEP)}, {s(S_STEP)}, 1")
    a(f"s_cmp_lt_u32 {s(S_STEP)}, {NSEG - 1}")
    a(f"s_cbranch_scc1 {top}")
    dump_stamps(a, cfg, 6, 168, 4 + w, L16)
    a("s_endpgm")


def gen_wm(a, cfg):
    L128, FLA, T0, JUNK = range(1, 5)
    sM, sA, sB, sF, sU, sR = range(S_T0, S_T0 + 6)
    ahead = cfg.get("wmahead", 2)
    a.label("WM")
    a(f"s_sub_u32 {s(sU)}, {s(S_LOC)}, 30")
    a(f"s_lshl_b32 {s(sU)}, {s(sU)}, 2")
    a(f"s_add_u32 {s(sU)}, {s(sU)}, {s(S_WAVE)}")
    wait_tasks(a, "LZ", T0, 8)
    a(f"s_mov_b32 {s(S_STEP)}, 0")
    a(f"s_cmp_eq_u32 {s(sU)}, 7")
    a("s_cbranch_scc0 WM_LINES")
    a(f"v_min_u32 {v(FLA)}, 55, v0")
    a(f"v_lshlrev_b32 {v(FLA)}, 2, {v(FLA)}")
    a(f"s_mov_b32 {s(sF)}, {WS['YF'] + 224}")
    a(f"s_mov_b32 {s(sR)}, {WS['YR'] + 128}")
    a.label("WM_Y")
    wait_flag(a, T0, f"buffer_load_dword {v(T0)}, {v(FLA)}, {WS_SRD}, {s(sF)} offen sc1", sleep=8, landed=False)
    a(f"buffer_store_dword {v(T0)}, off, {WS_SRD}, {s(sR)}")
    a(f"s_add_u32 {s(sF)}, {s(sF)}, 224")
    a(f"s_add_u32 {s(sR)}, {s(sR)}, 128")
    a(f"s_add_u32 {s(S_STEP)}, {s(S_STEP)}, 1")
    a(f"s_cmp_lt_u32 {s(S_STEP)}, {NSEG - 1}")
    a("s_cbranch_scc1 WM_Y")
    a("s_endpgm")
    a.label("WM_LINES")
    a(f"v_lshlrev_b32 {v(L128)}, 7, v0")
    a(f"s_mul_i32 {s(sM)}, {s(S_SLOW)}, {WS['MEMG'] - WS['MEML']}")
    a(f"s_add_u32 {s(sM)}, {s(sM)}, {WS['MEML']}")
    a(f"s_mul_i32 {s(sA)}, {s(sU)}, 7168")
    a(f"s_add_u32 {s(sA)}, {s(sA)}, {WS['XT']}")
    a(f"s_mov_b32 {s(sB)}, {XT_SEG}")
    a(f"s_cmp_lt_u32 {s(sU)}, 4")
    a("s_cbranch_scc1 WM_GO")
    a(f"s_mov_b32 {s(sA)}, {s(sM)}")
    a(f"s_mov_b32 {s(sB)}, {MEM_SZ}")
    a(f"s_cmp_eq_u32 {s(sU)}, 4")
    a("s_cbranch_scc1 WM_GO")
    a(f"s_and_b32 {s(sA)}, {s(sU)}, 1")
    a(f"s_lshl_b32 {s(sA)}, {s(sA)}, 11")
    a(f"s_add_u32 {s(sA)}, {s(sA)}, {WS['PB']}")
    a(f"s_mov_b32 {s(sB)}, {PB_SZ}")
    a.label("WM_GO")
    for i in range(ahead):
        a(f"buffer_load_dword {v(JUNK)}, {v(L128)}, {WS_SRD}, {s(sA)} offen sc1")
        a(f"s_add_u32 {s(sA)}, {s(sA)}, {s(sB)}")
    a.label("WM_STEP")
    a(f"buffer_load_dword {v(T0)}, off, {WS_SRD}, {s(sM)} sc1")
    a("s_waitcnt vmcnt(0)")
    a(f"v_cmp_eq_u32 vcc, -1, {v(T0)}")
    a("s_cbranch_vccz WM_RUN")
    a("s_sleep 4")
    a(f"s_sub_u32 {s(S_TO)}, {s(S_TO)}, 1")
    a("s_cbranch_scc0 WM_STEP")
    a("s_endpgm")
    a.label("WM_RUN")
    a(f"buffer_load_dword {v(JUNK)}, {v(L128)}, {WS_SRD}, {s(sA)} offen sc1")
    a(f"s_add_u32 {s(sA)}, {s(sA)}, {s(sB)}")
    a(f"s_add_u32 {s(sM)}, {s(sM)}, {MEM_SZ}")
    a(f"s_add_u32 {s(S_STEP)}, {s(S_STEP)}, 1")
    a(f"s_cmp_lt_u32 {s(S_STEP)}, {NSEG - ahead}")
    a("s_cbranch_scc1 WM_STEP")
    a("s_endpgm")


def gen_clean(a, cfg):
    a.label("CLEAN")
    wait_tasks(a, "LZ", 1, 2)
    for seg in (cfg.get("clean", 52), 61):
        top, done = a.newlabel("cl"), a.newlabel("clgo")
        a(f"s_mov_b32 {s(S_TMP)}, {WS['MEMG'] + MEM_SZ * seg}")
        a.label(top)
        a(f"buffer_load_dword v1, off, {WS_SRD}, {s(S_TMP)} sc1")
        a("s_waitcnt vmcnt(0)")
        a("v_cmp_eq_u32 vcc, -1, v1")
        a(f"s_cbranch_vccz {done}")
        a("s_sleep 32")
        a(f"s_sub_u32 {s(S_TO)}, {s(S_TO)}, 1")
        a(f"s_cbranch_scc0 {top}")
        a("s_endpgm")
        a.label(done)
        a("buffer_wbl2 sc1")
        a("s_waitcnt vmcnt(0)")
    a("s_endpgm")
```

```python
import sys
from asmlib import Asm, v, s
from layout import *
from roles_rec import *

NAME = "sequential_preLN__memory_aug_recurrent_mem_tr__dense_activation_gelu__prompt"
HEADER = open("cdna_kernels/" + NAME + ".s.ref").read().split("; Override launch")[0]
LDS_MAIN = 163840
LDS_MAIL = 49136
S_DBG = 84


def descriptor(name, vgpr, accum):
    return f""".section .rodata,"a"
.p2align 6
.amdhsa_kernel {name}
  .amdhsa_next_free_vgpr {vgpr}
  .amdhsa_next_free_sgpr 102
  .amdhsa_accum_offset {accum}
  .amdhsa_group_segment_fixed_size 0
  .amdhsa_kernarg_size 120
  .amdhsa_user_sgpr_count 2
  .amdhsa_user_sgpr_kernarg_segment_ptr 1
  .amdhsa_system_sgpr_workgroup_id_x 1
  .amdhsa_float_denorm_mode_32 3
.end_amdhsa_kernel
"""


def gen_main(a, cfg):
    name = NAME + "_kernel"
    a.raw(f".globl {name}\n.p2align 8\n.type {name},@function")
    a.label(name)
    a("s_cmp_ge_u32 s2, 256")
    a("s_cbranch_scc0 MAIN_GO")
    a("s_endpgm")
    a.label("MAIN_GO")
    if cfg.get("stamps") or cfg.get("span"):
        a(f"s_memrealtime {s(S_CLK + 30, 2)}")
    a(f"s_load_dwordx2 {s(S_WS, 2)}, s[0:1], 112")
    a(f"s_load_dwordx2 {s(S_DBG, 2)}, s[0:1], 104")
    a("v_lshrrev_b32 v1, 6, v0")
    a("v_and_b32 v0, 63, v0")
    a(f"v_readfirstlane_b32 {s(S_WAVE)}, v1")
    a(f"s_mov_b32 {s(S_WS + 2)}, {WS_BYTES}")
    a(f"s_mov_b32 {s(S_WS + 3)}, 0x00020000")
    a(f"s_mov_b32 {s(S_DBG + 2)}, 256")
    a(f"s_mov_b32 {s(S_DBG + 3)}, 0x00020000")
    a(f"s_mov_b32 {s(S_TO)}, 0x200000")
    if cfg.get("codewarm", 1):
        a("s_getpc_b64 s[90:91]")
        a.label("MAIN_PC")
        a(f"s_lshr_b32 {s(S_TMP)}, s2, 3")
        a(f"s_lshl_b32 {s(S_TMP)}, {s(S_TMP)}, 2")
        a(f"s_add_u32 {s(S_TMP)}, {s(S_TMP)}, {s(S_WAVE)}")
        a(f"s_and_b32 {s(S_TMP)}, {s(S_TMP)}, 31")
        a(f"s_lshl_b32 {s(S_TMP)}, {s(S_TMP)}, 13")
        a(f"v_lshl_add_u32 v2, v0, 7, {s(S_TMP)}")
        a("v_min_u32 v2, CODE_END-MAIN_PC-4, v2")
        a("global_load_dword v6, v2, s[90:91]")
    a(f"s_getreg_b32 {s(S_GRP)}, hwreg(HW_REG_XCC_ID, 0, 3)")
    a(f"s_cmp_lg_u32 {s(S_WAVE)}, 0")
    a("s_cbranch_scc1 MAIN_TAGGED")
    a(f"s_and_b32 {s(S_TMP)}, s2, 7")
    a(f"s_lshl_b32 {s(S_TMP)}, {s(S_TMP)}, 2")
    a(f"s_or_b32 {s(S_TMP + 1)}, {s(S_GRP)}, 8")
    a(f"s_lshl_b32 {s(S_TMP)}, {s(S_TMP + 1)}, {s(S_TMP)}")
    a(f"v_mov_b32 v1, {s(S_TMP)}")
    a(f"s_lshr_b32 {s(S_TMP)}, s2, 3")
    a(f"s_lshl_b32 {s(S_TMP)}, {s(S_TMP)}, 2")
    a("s_waitcnt lgkmcnt(0)")
    a("s_mov_b64 exec, 1")
    a(f"buffer_atomic_or v1, off, {s(S_DBG, 4)}, {s(S_TMP)} offset:128")
    a("s_mov_b64 exec, -1")
    a("s_cmp_lg_u32 s2, 0")
    a("s_cbranch_scc1 MAIN_TAGGED")
    a(f"s_memrealtime {s(S_TMP, 2)}")
    a("s_waitcnt lgkmcnt(0)")
    a(f"s_bitset1_b32 {s(S_TMP)}, 0")
    a(f"v_mov_b32 v2, {s(S_TMP)}")
    a(f"buffer_store_dword v2, off, {s(S_DBG, 4)}, 0 sc1")
    a.label("MAIN_TAGGED")
    if "P" in cfg["roles"]:
        from roles_pre import gen_pre
        gen_pre(a, cfg)
    a.label("PRE_DONE")
    a(f"v_mov_b32 v4, {LDS_MAIL}")
    a("s_waitcnt lgkmcnt(0)")
    a(f"s_cmp_lg_u32 {s(S_WAVE)}, 0")
    a("s_cbranch_scc1 MAIN_DRAIN")
    a(f"s_mov_b32 {s(S_SLOW)}, 2")
    a(f"s_mov_b32 {s(S_LOC)}, 0")
    a(f"s_mov_b32 {s(S_TAG)}, 0")
    a("v_lshrrev_b32 v2, 1, v0")
    a("v_lshlrev_b32 v2, 2, v2")
    a("v_and_b32 v5, 1, v0")
    a("v_lshlrev_b32 v5, 4, v5")
    a.label("MAIN_CENSUS")
    a(f"buffer_load_dword v1, off, {s(S_DBG, 4)}, 0 sc1")
    a(f"buffer_load_dword v3, v2, {s(S_DBG, 4)}, 0 offen offset:128 sc1")
    a("s_waitcnt vmcnt(0)")
    a(f"v_readfirstlane_b32 {s(S_TAG)}, v1")
    a("v_lshrrev_b32 v3, v5, v3")
    a("v_and_b32 v1, 0x8888, v3")
    a("v_cmp_ne_u32 vcc, 0x8888, v1")
    a(f"s_cmp_eq_u32 {s(S_TAG)}, 0")
    a("s_cselect_b64 s[94:95], -1, vcc")
    a("s_cmp_eq_u64 s[94:95], 0")
    a("s_cbranch_scc1 MAIN_ALL")
    a("s_sleep 2")
    a(f"s_sub_u32 {s(S_TO)}, {s(S_TO)}, 1")
    a("s_cbranch_scc0 MAIN_CENSUS")
    a("s_branch MAIN_DECIDED")
    a.label("MAIN_ALL")
    for i in range(4):
        a(f"v_bfe_u32 v{8 + i}, v3, {4 * i}, 3")
    a("v_lshlrev_b32 v3, 2, v0")
    for i in range(4):
        a(f"v_cmp_eq_u32 {s(S_TMP + 2, 2)}, {s(S_GRP)}, v{8 + i}")
        a("v_cmp_gt_u32 vcc, s2, v3")
        a("v_add_u32 v3, 1, v3")
        a(f"s_and_b64 vcc, vcc, {s(S_TMP + 2, 2)}")
        a(f"s_bcnt1_i32_b64 {s(S_TMP + 1)}, vcc")
        a(f"s_add_u32 {s(S_LOC)}, {s(S_LOC)}, {s(S_TMP + 1)}")
    a(f"s_mov_b32 {s(S_SLOW)}, 0")
    for x in range(7):
        a(f"s_mov_b32 {s(S_TMP)}, 0")
        for i in range(4):
            a(f"v_cmp_eq_u32 vcc, {x}, v{8 + i}")
            a(f"s_bcnt1_i32_b64 {s(S_TMP + 1)}, vcc")
            a(f"s_add_u32 {s(S_TMP)}, {s(S_TMP)}, {s(S_TMP + 1)}")
        a(f"s_cmp_eq_u32 {s(S_TMP)}, 32")
        a(f"s_cselect_b32 {s(S_SLOW)}, {s(S_SLOW)}, 1")
    a.label("MAIN_DECIDED")
    if cfg.get("force_slow"):
        a(f"s_max_u32 {s(S_SLOW)}, {s(S_SLOW)}, 1")
    a(f"v_mov_b32 v8, {s(S_LOC)}")
    a(f"v_mov_b32 v9, {s(S_SLOW)}")
    a(f"v_mov_b32 v10, {s(S_TAG)}")
    a.label("MAIN_DRAIN")
    a("s_waitcnt vmcnt(0)")
    a("s_barrier")
    if cfg.get("stamps"):
        a(f"s_memrealtime {s(S_CLK + 26, 2)}")
    a(f"s_cmp_lg_u32 {s(S_WAVE)}, 0")
    a("s_cbranch_scc1 MAIN_MAIL")
    a(f"s_lshl_b32 {s(S_TMP)}, s2, 2")
    a(f"buffer_store_dword v10, off, {WS_SRD}, {s(S_TMP)} offset:{WS['ARR']} sc1")
    a("ds_write_b128 v4, v[8:11]")
    a("s_waitcnt lgkmcnt(0)")
    a.label("MAIN_MAIL")
    a("s_barrier")
    a("ds_read_b128 v[8:11], v4")
    a("s_waitcnt lgkmcnt(0)")
    a(f"v_readfirstlane_b32 {s(S_LOC)}, v8")
    a(f"v_readfirstlane_b32 {s(S_SLOW)}, v9")
    a(f"v_readfirstlane_b32 {s(S_TAG)}, v10")
    a("s_barrier")
    a("s_nop 3")
    a(f"s_cmp_lt_u32 {s(S_SLOW)}, 2")
    a("s_cbranch_scc1 MAIN_ALIVE")
    a("s_endpgm")
    a.label("MAIN_ALIVE")
    if cfg.get("stamps"):
        a(f"s_memrealtime {s(S_CLK + 24, 2)}")
        a("s_lshl_b32 s90, s2, 5")
        a(f"s_add_u32 s90, s90, {WS['DBG'] + 0x20000}")
        a("s_waitcnt lgkmcnt(0)")
        for i, r in enumerate((30, 26, 24, 18, 22, 20)):
            a(f"v_mov_b32 v2, {s(S_CLK + r)}")
            a(f"buffer_store_dword v2, off, {WS_SRD}, s90 offset:{4 * i}")
    a(f"s_and_b32 {s(S_TMP)}, s2, 7")
    a(f"s_lshr_b32 {s(S_TMP + 1)}, s2, 3")
    a(f"s_cmp_lg_u32 {s(S_SLOW)}, 0")
    a(f"s_cselect_b32 {s(S_GRP)}, {s(S_TMP)}, {s(S_GRP)}")
    a(f"s_cselect_b32 {s(S_LOC)}, {s(S_TMP + 1)}, {s(S_LOC)}")

    milestone(a, cfg, 0, 2)

    def per_wave(stem):
        for w in range(3):
            a(f"s_cmp_eq_u32 {s(S_WAVE)}, {w}")
            a(f"s_cbranch_scc1 {stem}_W{w}")
        a(f"s_branch {stem}_W3")

    roles = cfg["roles"]
    a(f"s_cmp_eq_u32 {s(S_GRP)}, 0")
    a("s_cbranch_scc0 MAIN_NOTREC")
    a(f"s_cmp_lt_u32 {s(S_LOC)}, 16")
    a("s_cbranch_scc0 MAIN_NOTS1")
    per_wave("S1")
    a.label("MAIN_NOTS1")
    a(f"s_cmp_lt_u32 {s(S_LOC)}, 30")
    a("s_cbranch_scc0 WM")
    per_wave("S2")
    a.label("MAIN_NOTREC")
    if "T" in roles:
        a(f"s_cmp_le_u32 {s(S_GRP)}, {NCLONE}")
        a("s_cbranch_scc0 MAIN_NOTTOK")
        a(f"s_sub_u32 {s(S_GRP)}, {s(S_GRP)}, 1")
        a(f"s_cmp_lt_u32 {s(S_LOC)}, 16")
        a("s_cbranch_scc0 MAIN_NOTTA")
        per_wave("TA")
        a.label("MAIN_NOTTA")
        a(f"s_cmp_lt_u32 {s(S_LOC)}, 30")
        a("s_cbranch_scc0 MAIN_IDLE")
        per_wave("TB")
        a.label("MAIN_NOTTOK")
    if "F" in roles:
        a(f"s_cmp_le_u32 {s(S_GRP)}, {NCLONE}")
        a("s_cbranch_scc1 MAIN_IDLE")
        a(f"s_sub_u32 {s(S_GRP)}, {s(S_GRP)}, {NCLONE + 1}")
        from roles_ffn import gen_reset
        gen_reset(a, cfg)
        a(f"s_cmp_lt_u32 {s(S_LOC)}, 14")
        a("s_cbranch_scc0 MAIN_NOTF1")
        per_wave("F1")
        a.label("MAIN_NOTF1")
        a(f"s_cmp_lt_u32 {s(S_LOC)}, 28")
        a("s_cbranch_scc0 MAIN_IDLE")
        per_wave("F2")
    a.label("MAIN_IDLE")
    if cfg.get("clean", 52):
        a(f"s_cmp_eq_u32 {s(S_LOC)}, 31")
        a("s_cbranch_scc0 MAIN_END")
        a(f"s_cmp_eq_u32 {s(S_WAVE)}, 0")
        a("s_cbranch_scc1 CLEAN")
    a.label("MAIN_END")
    a("s_endpgm")
    if cfg.get("clean", 52):
        gen_clean(a, cfg)
    gen_wm(a, cfg)
    for w in range(4):
        gen_s1(a, w, cfg)
    for w in range(4):
        gen_s2(a, w, cfg)
    if "T" in roles:
        from roles_tok import gen_ta, gen_tb
        for w in range(4):
            gen_ta(a, w, cfg)
        for w in range(4):
            gen_tb(a, w, cfg)
    if "F" in roles:
        from roles_ffn import gen_f1, gen_f2
        for w in range(4):
            gen_f1(a, w, cfg)
        for w in range(4):
            gen_f2(a, w, cfg)
    a.label("CODE_END")
    a("s_endpgm")
    return descriptor(name, 512, 256)


def generate(cfg):
    a = Asm()
    launches = []
    desc = ""
    a.raw('.amdgcn_target "amdgcn-amd-amdhsa--gfx950"\n.text')
    desc += gen_main(a, cfg)
    launches.append(f"; @launch grid=(256,1,1) block=(256,1,1) lds={LDS_MAIN}")
    return HEADER + "\n".join(launches) + "\n" + a.text() + desc


if __name__ == "__main__":
    out = sys.argv[1]
    cfg = {"roles": sys.argv[2] if len(sys.argv) > 2 else "PTF"}
    for opt in sys.argv[3:]:
        k, _, val = opt.partition("=")
        cfg[k] = int(val) if val else 1
    open(out, "w").write(generate(cfg))
    import subprocess
    r = subprocess.run(["clang", "-x", "assembler", "-target", "amdgcn-amd-amdhsa", "-mcpu=gfx950", "-c", out, "-o", "gen_check.o"], capture_output=True, text=True)
    if r.returncode:
        print(r.stderr[:1500])
        sys.exit(1)
```

```python
from asmlib import Asm, v, acc, s
from layout import *
from roles_rec import *
from roles_pre import srd, f32, row_sum4, ln_scalars, ln_apply
from roles_tok import mfma

GELU_C1 = -2.0 * 1.4426950408889634 * 0.7978845608028654
GELU_C2 = GELU_C1 * 0.044715


def unpack(a, dst, src, n):
    for i in range(n):
        a(f"v_lshlrev_b32 {v(dst + 2 * i)}, 16, {v(src + i)}")
        a(f"v_and_b32 {v(dst + 2 * i + 1)}, 0xffff0000, {v(src + i)}")


NTILE = 2 * NSEG


def gen_f1(a, w, cfg):
    L16, DA, TRA, SA, T0, T1, MEAN, M2, TM = range(1, 10)
    BIAS, CSUM, PK, F, XO, ACC, ST, ONES, SW = 16, 24, 32, 48, 80, 96, 104, 112, 14
    HN, STAT, STAGE = 0, 14336, 32768
    sH, sO, sF, sC1, sC2 = range(S_T0, S_T0 + 5)
    sM1, sM2 = S_T0 + 6, S_T0 + 8
    ks0, nb = (0, 4, 8, 11)[w], (4, 4, 3, 3)[w]
    W = lambda ab, ks: acc(8 * ks + 4 * ab, 4)

    a.label(f"F1_W{w}")
    srd(a, S_X, 64, 448 * 3584)
    srd(a, S_AUX, 72, 3584)
    a(f"v_lshlrev_b32 {v(L16)}, 4, v0")
    a(f"v_lshrrev_b32 {v(T0)}, 2, v0")
    a(f"v_mul_u32_u24 {v(DA)}, 3584, {v(T0)}")
    a(f"v_and_b32 {v(T1)}, 3, v0")
    a(f"v_lshl_add_u32 {v(DA)}, {v(T1)}, 4, {v(DA)}")
    a(f"v_lshrrev_b32 {v(TRA)}, 4, v0")
    a(f"v_lshlrev_b32 {v(SA)}, 4, {v(TRA)}")
    a(f"v_lshlrev_b32 {v(TRA)}, 3, {v(TRA)}")
    a(f"v_and_b32 {v(T0)}, 3, {v(T0)}")
    a(f"v_add_u32 {v(TRA)}, {v(TRA)}, {v(T0)}")
    a(f"v_lshlrev_b32 {v(TRA)}, 6, {v(TRA)}")
    a(f"v_lshl_add_u32 {v(TRA)}, {v(T1)}, 4, {v(TRA)}")
    a(f"v_add_u32 {v(TRA)}, {STAGE + w * 28672}, {v(TRA)}")
    a(f"s_lshl_b32 {s(S_TMP)}, {s(S_LOC)}, 8")
    a(f"s_add_u32 {s(S_TMP)}, {s(S_TMP)}, {64 * w}")
    a("s_waitcnt lgkmcnt(0)")
    a(f"buffer_load_dwordx4 {v(PK, 4)}, {v(SA)}, {s(S_AUX, 4)}, {s(S_TMP)} offen")
    for i in range(28):
        a(f"s_mov_b32 m0, {STAGE + w * 28672 + i * 1024}")
        a(f"s_add_u32 {s(S_TMP + 1)}, {s(S_TMP)}, {i * 16 * 3584}")
        a(f"buffer_load_dwordx4 {v(DA)}, {s(S_X, 4)}, {s(S_TMP + 1)} offen lds")
    a(f"v_and_b32 {v(SA)}, 15, v0")
    a(f"v_lshlrev_b32 {v(SA)}, 5, {v(SA)}")
    a(f"v_add_u32 {v(SA)}, {STAT}, {v(SA)}")
    a(f"v_bfe_u32 {v(T0)}, v0, 2, 2")
    a(f"v_lshrrev_b32 {v(T1)}, 4, v0")
    a(f"v_cmp_eq_u32 vcc, {v(T0)}, {v(T1)}")
    a(f"v_add_u32 {v(T0)}, {8 * w}, {v(SA)}")
    a(f"v_lshlrev_b32 {v(SW)}, 3, v0")
    a(f"v_add_u32 {v(SW)}, {STAT + 512}, {v(SW)}")
    a(f"v_cndmask_b32 {v(SW)}, {v(SW)}, {v(T0)}, vcc")
    a(f"v_and_b32 {v(T0)}, 1, v0")
    a(f"v_cmp_ne_u32 {s(sM1, 2)}, 0, {v(T0)}")
    a(f"v_and_b32 {v(T0)}, 2, v0")
    a(f"v_cmp_ne_u32 {s(sM2, 2)}, 0, {v(T0)}")
    a(f"s_mul_i32 {s(sH)}, {s(S_GRP)}, 14336")
    a(f"s_add_u32 {s(sH)}, {s(sH)}, {WS['HT'] + ks0 * 1024}")
    a(f"s_mul_i32 {s(sO)}, {s(S_GRP)}, 57344")
    a(f"s_lshl_b32 {s(S_TMP + 1)}, {s(S_LOC)}, 12")
    a(f"s_add_u32 {s(sO)}, {s(sO)}, {s(S_TMP + 1)}")
    a(f"s_add_u32 {s(sO)}, {s(sO)}, {WS['H1T'] + w * 1024}")
    a(f"s_mul_i32 {s(sF)}, {s(S_GRP)}, 224")
    a(f"s_lshl_b32 {s(S_TMP + 1)}, {s(S_LOC)}, 4")
    a(f"s_add_u32 {s(sF)}, {s(sF)}, {s(S_TMP + 1)}")
    a(f"s_add_u32 {s(sF)}, {s(sF)}, {WS['HF'] + 4 * w}")
    a(f"s_mov_b32 {s(sC1)}, {f32(GELU_C1)}")
    a(f"s_mov_b32 {s(sC2)}, {f32(GELU_C2)}")
    a(f"s_mov_b32 {s(S_STEP)}, {s(S_GRP)}")
    a("s_waitcnt vmcnt(0)")
    unpack(a, BIAS, PK, 4)
    for r in range(4):
        a(f"v_mov_b32 {v(ONES + r)}, 0x3f803f80")
    for ks in range(14):
        for ab in range(2):
            for q in range(2):
                a(f"ds_read_b64_tr_b16 {acc(8 * ks + 4 * ab + 2 * q, 2)}, {v(TRA)} offset:{ks * 2048 + q * 256 + ab * 8}")
        if ks % 3 == 2:
            a("s_waitcnt lgkmcnt(0)")
    a("s_waitcnt lgkmcnt(0)")
    for ks in range(14):
        for ab in range(2):
            mfma(a, CSUM + 4 * ab, W(ab, ks), v(ONES, 4), ks == 0)
    wait_tasks(a, "Z2", T0, 12)

    top = f"F1_JOB{w}"
    a.label(top)
    a.ds = []
    a("s_barrier")
    stamp(a, cfg, 0)
    poll_deep(a, [f"buffer_load_dwordx4 {v(PK + 4 * i, 4)}, {v(L16)}, {WS_SRD}, {s(sH)} offen offset:{i * 1024} sc1" for i in range(nb)],
              range(PK, PK + 4 * nb), T0, depth=cfg.get("fdepth", 2), sleep=(cfg.get("fsleep", 8), NTILE - 8) if cfg.get("fsleep", 8) else None)
    stamp(a, cfg, 1)
    for i in range(nb):
        mfma(a, F, v(PK + 4 * i, 4), v(PK + 4 * i, 4), i == 0)
        a.dsop(f"ds_write_b128 {v(L16)}, {v(PK + 4 * i, 4)} offset:{HN + (ks0 + i) * 1024}")
    for i in range(nb):
        mfma(a, F + 4, v(ONES, 4), v(PK + 4 * i, 4), i == 0)
    a(f"v_cndmask_b32 {v(F)}, {v(F)}, {v(F + 1)}, {s(sM1, 2)}")
    a(f"v_cndmask_b32 {v(F + 2)}, {v(F + 2)}, {v(F + 3)}, {s(sM1, 2)}")
    a.nop(6)
    a(f"v_cndmask_b32 {v(F + 5)}, {v(F)}, {v(F + 2)}, {s(sM2, 2)}")
    a.dsop(f"ds_write_b64 {v(SW)}, {v(F + 4, 2)}")
    a.wait_ds_all()
    a("s_barrier")
    stamp(a, cfg, 2)
    side = Asm()
    side(f"v_add_f32 {v(MEAN)}, {v(ST)}, {v(ST + 2)}")
    side(f"v_add_f32 {v(M2)}, {v(ST + 1)}, {v(ST + 3)}")
    side(f"v_add_f32 {v(TM)}, {v(ST + 4)}, {v(ST + 6)}")
    side(f"v_add_f32 {v(TM + 1)}, {v(ST + 5)}, {v(ST + 7)}")
    side(f"v_add_f32 {v(MEAN)}, {v(MEAN)}, {v(TM)}")
    side(f"v_add_f32 {v(M2)}, {v(M2)}, {v(TM + 1)}")
    side(f"v_mul_f32 {v(MEAN)}, {f32(1 / 448)}, {v(MEAN)}")
    side(f"v_mul_f32 {v(M2)}, {f32(1 / 448)}, {v(M2)}")
    side(f"v_fma_f32 {v(M2)}, -{v(MEAN)}, {v(MEAN)}, {v(M2)}")
    side(f"v_max_f32 {v(M2)}, 0, {v(M2)}")
    ln_scalars(side, MEAN, M2)
    side(f"v_sub_f32 {v(T1)}, 0, {v(MEAN)}")
    side(f"v_mov_b32 {v(T0)}, {s(sC1)}")
    side = list(side.lines)

    def read_x(ks):
        a.dsop(f"ds_read_b128 {v(XO + 4 * (ks % 4), 4)}, {v(L16)} offset:{HN + ks * 1024}", ("x", ks))
    for ks in range(3):
        read_x(ks)
    a.dsop(f"ds_read_b128 {v(ST, 4)}, {v(SA)}", "st")
    a.dsop(f"ds_read_b128 {v(ST + 4, 4)}, {v(SA)} offset:16", "st")
    for ks in range(14):
        a.wait_ds(("x", ks))
        for ab in range(2):
            mfma(a, ACC + 4 * ab, W(ab, ks), v(XO + 4 * (ks % 4), 4), ks == 0)
            if ab == 0 and ks + 3 < 14:
                read_x(ks + 3)
            if ks >= 3:
                a.wait_ds("st")
                for x in side[:2]:
                    a(x)
                side = side[2:]
    assert not side
    stamp(a, cfg, 3)
    a.nop(7)
    U, E = ACC, F
    for i in range(0, 8, 2):
        a(f"v_pk_fma_f32 {v(U + i, 2)}, {v(CSUM + i, 2)}, {v(T1, 2)}, {v(U + i, 2)} op_sel_hi:[1,0,1]")
    for i in range(0, 8, 2):
        a(f"v_pk_fma_f32 {v(U + i, 2)}, {v(U + i, 2)}, {v(M2, 2)}, {v(BIAS + i, 2)} op_sel_hi:[1,0,1]")
    for i in range(0, 8, 2):
        a(f"v_pk_mul_f32 {v(E + i, 2)}, {v(U + i, 2)}, {v(U + i, 2)}")
    for i in range(8):
        a(f"v_fma_f32 {v(E + i)}, {v(E + i)}, {s(sC2)}, {v(T0)}")
    for i in range(0, 8, 2):
        a(f"v_pk_mul_f32 {v(E + i, 2)}, {v(E + i, 2)}, {v(U + i, 2)}")
    for i in range(8):
        a(f"v_exp_f32 {v(E + i)}, {v(E + i)}")
    for i in range(8):
        a(f"v_add_f32 {v(E + i)}, 1.0, {v(E + i)}")
    for i in range(8):
        a(f"v_rcp_f32 {v(E + i)}, {v(E + i)}")
    for i in range(0, 8, 2):
        a(f"v_pk_mul_f32 {v(U + i, 2)}, {v(U + i, 2)}, {v(E + i, 2)}")
    a("s_waitcnt vmcnt(0)")
    for i in range(4):
        a(f"v_cvt_pk_bf16_f32 {v(PK + i)}, {v(U + 2 * i)}, {v(U + 2 * i + 1)}")
    local_stores(a, [f"buffer_store_dwordx4 {v(PK, 4)}, {v(L16)}, {WS_SRD}, {s(sO)} offen"])
    a(f"v_mov_b32 {v(T0)}, {s(S_TAG)}")
    a("s_waitcnt vmcnt(0)")
    local_stores(a, [f"buffer_store_dword {v(T0)}, off, {WS_SRD}, {s(sF)}"])
    stamp(a, cfg, 4)
    job_stamps(a, cfg, 5, 16 + w, T0)
    for r, step in ((sH, 14336), (sO, 57344), (sF, 224), (S_STEP, 1)):
        a(f"s_add_u32 {s(r)}, {s(r)}, {step * NFFN}")
    a(f"s_cmp_lt_u32 {s(S_STEP)}, {NTILE}")
    a(f"s_cbranch_scc1 {top}")
    a("s_endpgm")


def job_stamps(a, cfg, n, slot, tmp):
    if cfg.get("stamps"):
        a(f"s_mov_b32 s96, {s(S_STEP)}")
        a(f"s_lshr_b32 {s(S_STEP)}, {s(S_STEP)}, 1")
        flush_stamps(a, cfg, n, slot, tmp)
        a(f"s_mov_b32 {s(S_STEP)}, s96")


def gen_f2(a, w, cfg):
    L16, DA, TRA, FA, PWA, PRA, HA, OA, T0, T1 = range(1, 11)
    HR, BIAS, RES, XO, ACC = 11, 12, 14, 16, 72
    PART, STAGE = 0, 16384
    sH1, sF, sH, sO, sT = range(S_T0, S_T0 + 5)
    TA = 80
    W = lambda ct, ks: acc(8 * ks + 4 * ct, 4)

    a.label(f"F2_W{w}")
    srd(a, S_X, 80, 1792 * 896)
    srd(a, S_AUX, 88, 896)
    srd(a, S_OUT, 96, 2048 * 896)
    a(f"s_sub_u32 {s(S_LOC)}, {s(S_LOC)}, 14")
    a(f"v_lshlrev_b32 {v(L16)}, 4, v0")
    a(f"v_lshrrev_b32 {v(T0)}, 2, v0")
    a(f"v_mul_u32_u24 {v(DA)}, 896, {v(T0)}")
    a(f"v_and_b32 {v(T1)}, 3, v0")
    a(f"v_lshl_add_u32 {v(DA)}, {v(T1)}, 4, {v(DA)}")
    a(f"v_lshrrev_b32 {v(TRA)}, 4, v0")
    a(f"v_lshlrev_b32 {v(TRA)}, 3, {v(TRA)}")
    a(f"v_and_b32 {v(T0)}, 3, {v(T0)}")
    a(f"v_add_u32 {v(TRA)}, {v(TRA)}, {v(T0)}")
    a(f"v_lshlrev_b32 {v(TRA)}, 6, {v(TRA)}")
    a(f"v_lshl_add_u32 {v(TRA)}, {v(T1)}, 3, {v(TRA)}")
    a(f"v_add_u32 {v(TRA)}, {STAGE + w * 28672}, {v(TRA)}")
    a(f"v_min_u32 {v(FA)}, 13, v0")
    a(f"v_lshlrev_b32 {v(FA)}, 2, {v(FA)}")
    a(f"v_and_b32 {v(T0)}, 15, v0")
    a(f"v_lshrrev_b32 {v(T1)}, 4, v0")
    a(f"v_mul_u32_u24 {v(PWA)}, 144, {v(T0)}")
    a(f"v_lshl_add_u32 {v(PWA)}, {v(T1)}, 4, {v(PWA)}")
    a(f"v_add_u32 {v(PWA)}, {PART + w * 2304}, {v(PWA)}")
    a(f"v_add_u32 {v(T1)}, {4 * w}, {v(T1)}")
    a(f"v_mul_u32_u24 {v(PRA)}, 144, {v(T1)}")
    a(f"v_lshl_add_u32 {v(PRA)}, {v(T0)}, 3, {v(PRA)}")
    a(f"v_mul_u32_u24 {v(OA)}, 896, {v(T1)}")
    a(f"v_lshl_add_u32 {v(OA)}, {v(T0)}, 2, {v(OA)}")
    a(f"v_lshlrev_b32 {v(HA)}, 4, {v(T1)}")
    a(f"v_lshrrev_b32 {v(T1)}, 2, {v(T0)}")
    a(f"v_lshl_add_u32 {v(HA)}, {v(T1)}, 8, {v(HA)}")
    a(f"v_and_b32 {v(T1)}, 3, {v(T0)}")
    a(f"v_lshl_add_u32 {v(HA)}, {v(T1)}, 2, {v(HA)}")
    a(f"v_lshlrev_b32 {v(T0)}, 2, {v(T0)}")
    a(f"s_lshl_b32 {s(S_TMP)}, {s(S_LOC)}, 6")
    a("s_waitcnt lgkmcnt(0)")
    a(f"buffer_load_dword {v(HR)}, {v(T0)}, {s(S_AUX, 4)}, {s(S_TMP)} offen")
    a(f"s_add_u32 {s(S_TMP)}, {s(S_TMP)}, {448 * w * 896}")
    for i in range(28):
        a(f"s_mov_b32 m0, {STAGE + w * 28672 + i * 1024}")
        a(f"s_add_u32 {s(S_TMP + 1)}, {s(S_TMP)}, {i * 16 * 896}")
        a(f"buffer_load_dwordx4 {v(DA)}, {s(S_X, 4)}, {s(S_TMP + 1)} offen lds")
    a("s_waitcnt vmcnt(0)")
    for ks in range(14):
        for ct in range(2):
            for q in range(2):
                a(f"ds_read_b64_tr_b16 {acc(8 * ks + 4 * ct + 2 * q, 2)}, {v(TRA)} offset:{ks * 2048 + q * 256 + ct * 32}")
        if ks % 3 == 2:
            a("s_waitcnt lgkmcnt(0)")
    a("s_waitcnt lgkmcnt(0)")
    unpack(a, BIAS, HR, 1)
    a(f"s_mul_i32 {s(sH1)}, {s(S_GRP)}, 57344")
    a(f"s_add_u32 {s(sH1)}, {s(sH1)}, {WS['H1T'] + w * 14336}")
    a(f"s_mul_i32 {s(sF)}, {s(S_GRP)}, 224")
    a(f"s_add_u32 {s(sF)}, {s(sF)}, {WS['HF'] + w * 56}")
    a(f"s_mul_i32 {s(sO)}, {s(S_GRP)}, 14336")
    a(f"s_lshl_b32 {s(S_TMP)}, {s(S_LOC)}, 10")
    a(f"s_add_u32 {s(sH)}, {s(sO)}, {s(S_TMP)}")
    a(f"s_add_u32 {s(sH)}, {s(sH)}, {WS['HT']}")
    a(f"s_lshl_b32 {s(S_TMP)}, {s(S_LOC)}, 6")
    a(f"s_add_u32 {s(sO)}, {s(sO)}, {s(S_TMP)}")
    a(f"s_mov_b32 {s(S_STEP)}, {s(S_GRP)}")
    a(f"s_lshl_b32 {s(sT)}, {s(S_LOC)}, 10")
    a(f"s_add_u32 {s(sT)}, {s(sT)}, {57344 * NFFN * cfg.get('h1ahead', 2)}")
    a(f"v_and_b32 {v(TA)}, 7, v0")
    a(f"v_lshlrev_b32 {v(TA)}, 7, {v(TA)}")
    wait_tasks(a, "Z2", T0, RES)

    top = f"F2_JOB{w}"
    a.label(top)
    a.ds, a.vm = [], []
    a("s_barrier")
    spin, got = a.newlabel("res"), a.newlabel("resok")
    a.label(spin)
    a(f"buffer_load_dword {v(HR)}, {v(HA)}, {WS_SRD}, {s(sH)} offen sc1")
    a("s_waitcnt vmcnt(0)")
    a(f"v_cmp_eq_u32 vcc, -1, {v(HR)}")
    a(f"s_cbranch_vccz {got}")
    a("s_sleep 2")
    a(f"s_sub_u32 {s(S_TO)}, {s(S_TO)}, 1")
    a(f"s_cbranch_scc0 {spin}")
    a("s_endpgm")
    a.label(got)
    unpack(a, RES, HR, 1)
    stamp(a, cfg, 0)
    wait_flag(a, T0, f"buffer_load_dword {v(T0)}, {v(FA)}, {WS_SRD}, {s(sF)} offen sc1", sleep=0, landed=False)
    stamp(a, cfg, 1)
    a(f"s_mov_b32 {s(S_TMP)}, {s(sH1)}")
    for ks in range(14):
        if ks and ks % 4 == 0:
            a(f"s_add_u32 {s(S_TMP)}, {s(S_TMP)}, 4096")
        a.vmop(f"buffer_load_dwordx4 {v(XO + 4 * ks, 4)}, {v(L16)}, {WS_SRD}, {s(S_TMP)} offen offset:{(ks % 4) * 1024} sc1", ks)
    for ks in range(14):
        a.wait_vm(ks)
        for ct in range(2):
            mfma(a, ACC + 4 * ct, W(ct, ks), v(XO + 4 * ks, 4), ks == 0)
    a.nop(7)
    for ct in range(2):
        a.dsop(f"ds_write_b128 {v(PWA)}, {v(ACC + 4 * ct, 4)} offset:{64 * ct}")
    a.wait_ds_all()
    a("s_barrier")
    for wv in range(4):
        a.dsop(f"ds_read_b64 {v(ACC + 2 * wv, 2)}, {v(PRA)} offset:{PART + wv * 2304}")
    a.wait_ds_all()
    a(f"v_pk_add_f32 {v(ACC, 2)}, {v(ACC, 2)}, {v(ACC + 2, 2)}")
    a(f"v_pk_add_f32 {v(ACC + 4, 2)}, {v(ACC + 4, 2)}, {v(ACC + 6, 2)}")
    a(f"v_pk_add_f32 {v(ACC, 2)}, {v(ACC, 2)}, {v(BIAS, 2)}")
    a(f"v_pk_add_f32 {v(ACC, 2)}, {v(ACC, 2)}, {v(ACC + 4, 2)}")
    a(f"v_cvt_pk_bf16_f32 {v(ACC + 1)}, {v(ACC)}, {v(ACC + 1)}")
    a(f"v_lshlrev_b32 {v(ACC)}, 16, {v(ACC + 1)}")
    a(f"v_and_b32 {v(ACC + 1)}, 0xffff0000, {v(ACC + 1)}")
    a(f"v_pk_add_f32 {v(ACC, 2)}, {v(ACC, 2)}, {v(RES, 2)}")
    a(f"v_cvt_pk_bf16_f32 {v(ACC)}, {v(ACC)}, {v(ACC + 1)}")
    a(f"buffer_store_dword {v(ACC)}, {v(OA)}, {s(S_OUT, 4)}, {s(sO)} offen")
    stamp(a, cfg, 2)
    if cfg.get("h1touch", 1):
        a(f"s_add_u32 {s(S_TMP)}, {s(sH1)}, {s(sT)}")
        a(f"buffer_load_dword {v(T1)}, {v(TA)}, {WS_SRD}, {s(S_TMP)} offen sc1")
    job_stamps(a, cfg, 3, 20 + w, T0)
    for r, step in ((sH1, 57344), (sF, 224), (sH, 14336), (sO, 14336), (S_STEP, 1)):
        a(f"s_add_u32 {s(r)}, {s(r)}, {step * NFFN}")
    a(f"s_cmp_lt_u32 {s(S_STEP)}, {NTILE}")
    a(f"s_cbranch_scc1 {top}")
    a("s_endpgm")


def gen_reset(a, cfg):
    L16, T0, T1, P0, P1 = 1, 2, 3, 8, 12
    nw = NFFN * 128
    srd(a, S_AUX, 8, MEM_SZ)
    a(f"v_lshlrev_b32 {v(L16)}, 4, v0")
    a(f"s_lshl_b32 {s(S_TMP + 4)}, {s(S_GRP)}, 5")
    a(f"s_add_u32 {s(S_TMP + 4)}, {s(S_TMP + 4)}, {s(S_LOC)}")
    a(f"s_lshl_b32 {s(S_TMP)}, {s(S_TMP + 4)}, 2")
    a(f"s_add_u32 {s(S_TMP)}, {s(S_TMP)}, {s(S_WAVE)}")
    for r in range(4):
        a(f"v_mov_b32 {v(P0 + r)}, -1")
    a(f"v_and_b32 {v(T0)}, 7, v0")
    a(f"v_mul_u32_u24 {v(T0)}, 896, {v(T0)}")
    a(f"v_lshrrev_b32 {v(T1)}, 3, v0")
    a(f"v_lshl_add_u32 {v(T0)}, {v(T1)}, 4, {v(T0)}")
    a(f"s_mov_b32 {s(S_WS + 2)}, {POISON_END}")
    a(f"s_lshl_b32 {s(S_TMP + 2)}, {s(S_TMP)}, 10")
    a(f"s_add_u32 {s(S_TMP + 2)}, {s(S_TMP + 2)}, {POISON_BEGIN}")
    a("s_waitcnt lgkmcnt(0)")
    gch = (WS['MEMG'] - WS['MEML']) // 1024
    a(f"v_mov_b32 {v(T1)}, {s(S_TAG)}")
    a(f"s_lshl_b32 {s(S_TMP + 4)}, {s(S_TMP + 4)}, 2")

    def announce(at):
        a("s_waitcnt vmcnt(0)")
        a("s_barrier")
        a(f"buffer_store_dword {v(T1)}, off, {WS_SRD}, {s(S_TMP + 4)} offset:{WS['ARR'] + at} sc1")
    early = -(-(WS['PX'] - POISON_BEGIN) // (nw * 1024))
    for i in range(-(-(POISON_END - POISON_BEGIN) // (nw * 1024))):
        if i == early:
            announce(1024)
            if cfg.get("rgate"):
                wait_tasks(a, "LZ", T0, 4)
                wait_step(a, T0, cfg["rgate"])
            else:
                wait_first_y(a, T0, seg=7 if cfg.get('stagger', 0) else NCLONE - 1)
        first = [c for c in (0, gch) if c // nw == i]
        src = P0
        if first:
            assert (first[0] + 6) // nw == i
            skip = a.newlabel("nomem")
            src = P1 + 4 * i
            for r in range(4):
                a(f"v_mov_b32 {v(src + r)}, -1")
            a(f"s_sub_u32 {s(S_TMP + 1)}, {s(S_TMP)}, {first[0] % nw}")
            a(f"s_cmp_lt_u32 {s(S_TMP + 1)}, 7")
            a(f"s_cbranch_scc0 {skip}")
            a(f"s_lshl_b32 {s(S_TMP + 1)}, {s(S_TMP + 1)}, 7")
            a(f"buffer_load_dwordx4 {v(src, 4)}, {v(T0)}, {s(S_AUX, 4)}, {s(S_TMP + 1)} offen")
            a("s_waitcnt vmcnt(0)")
            for r in range(4):
                a(f"v_min_u32 {v(src + r)}, -2, {v(src + r)}")
            a.label(skip)
        a(f"buffer_store_dwordx4 {v(src, 4)}, {v(L16)}, {WS_SRD}, {s(S_TMP + 2)} offen sc1")
        a(f"s_add_u32 {s(S_TMP + 2)}, {s(S_TMP + 2)}, {nw * 1024}")
    a(f"s_mov_b32 {s(S_WS + 2)}, {WS_BYTES}")
    announce(1536)
    if cfg.get("fgate"):
        wait_tasks(a, "LZ", T0, 4)
        wait_step(a, T0, cfg["fgate"], 1)
```

```python
from asmlib import v, acc, s
from layout import *
from roles_rec import S_TAG, S_WS, S_X, S_OUT, S_AUX, S_WAVE, S_T0, S_TMP, WS_SRD

W_BYTES = 448 * 4096 * 2
SCALE = 0.0625 * 1.4426950408889634


def f32(x):
    import struct
    return hex(struct.unpack("<I", struct.pack("<f", x))[0])


def srd(a, base, arg, nbytes):
    a(f"s_load_dwordx2 {s(base, 2)}, s[0:1], {arg}")
    a(f"s_mov_b32 {s(base + 2)}, {nbytes}")
    a(f"s_mov_b32 {s(base + 3)}, 0x00020000")


def row_sum4(a, x, tmp):
    for op in ("v_permlane32_swap_b32", "v_permlane16_swap_b32"):
        a(f"v_mov_b32 {v(tmp)}, {v(x)}")
        a.nop(2)
        a(f"{op} {v(tmp)}, {v(x)}")
        a(f"v_add_f32 {v(x)}, {v(x)}, {v(tmp)}")


def round_bf16(a, x):
    a(f"v_cvt_pk_bf16_f32 {v(x)}, {v(x)}, {v(x)}")
    a(f"v_and_b32 {v(x)}, 0xffff0000, {v(x)}")


def ln_scalars(a, mean, var):
    round_bf16(a, mean)
    round_bf16(a, var)
    a(f"v_add_f32 {v(var)}, {f32(1e-5)}, {v(var)}")
    round_bf16(a, var)
    a(f"v_sqrt_f32 {v(var)}, {v(var)}")
    a.nop(1)
    round_bf16(a, var)
    a(f"v_rcp_f32 {v(var)}, {v(var)}")
    a.nop(1)


def ln_apply(a, dst, lo, hi, mean, inv):
    a(f"v_sub_f32 {v(lo)}, {v(lo)}, {v(mean)}")
    a(f"v_sub_f32 {v(hi)}, {v(hi)}, {v(mean)}")
    a(f"v_cvt_pk_bf16_f32 {v(hi)}, {v(lo)}, {v(hi)}")
    a(f"v_lshlrev_b32 {v(lo)}, 16, {v(hi)}")
    a(f"v_and_b32 {v(hi)}, 0xffff0000, {v(hi)}")
    a(f"v_mul_f32 {v(lo)}, {v(lo)}, {v(inv)}")
    a(f"v_mul_f32 {v(hi)}, {v(hi)}, {v(inv)}")
    a(f"v_cvt_pk_bf16_f32 {v(dst)}, {v(lo)}, {v(hi)}")


def stampreg(a, cfg, r):
    if cfg.get("stamps"):
        a(f"s_memrealtime s[{r}:{r + 1}]")


sH, sK, sL, sR, sO, sSC, sLB = range(S_T0, S_T0 + 7)
L16, T0, T1, T2 = 1, 2, 3, 4
RA, DA, DL = 8, 12, 20
LEFT, RING = 0, 32768


def read_addresses(a):
    a(f"v_and_b32 {v(T0)}, 15, v0")
    a(f"v_lshrrev_b32 {v(T1)}, 4, v0")
    for q in range(4):
        a(f"v_add_u32 {v(T2)}, {4 * q}, {v(T1)}")
        a(f"v_xor_b32 {v(T2)}, {v(T2)}, {v(T0)}")
        a(f"v_lshlrev_b32 {v(T2)}, 4, {v(T2)}")
        a(f"v_lshl_add_u32 {v(RA + q)}, {v(T0)}, 9, {v(T2)}")


def stage_left(a, nt, natural):
    a(f"v_lshrrev_b32 {v(T1)}, 5, v0")
    a(f"v_and_b32 {v(T2)}, 31, v0")
    for i in range(8):
        m = 2 * i
        a(f"v_add_u32 {v(T0)}, {m}, {v(T1)}")
        a(f"v_xor_b32 {v(DA + i)}, {v(T2)}, {v(T0)}")
        a(f"v_lshlrev_b32 {v(DA + i)}, 4, {v(DA + i)}")
        a(f"v_add_u32 {v(DL + i)}, {16 * (m >> 3) + 4 * ((m >> 2) & 1) + 8 * ((m >> 1) & 1)}, {v(T1)}")
        a(f"v_lshl_add_u32 {v(DL + i)}, {v(DL + i)}, 13, {v(DA + i)}")
        if natural:
            a(f"v_lshl_add_u32 {v(DA + i)}, {v(T0)}, 13, {v(DA + i)}")
    a(f"s_lshl_b32 {s(sL)}, {s(sK)}, 19")
    a(f"s_lshl_b32 {s(S_TMP)}, {s(sH)}, 9")
    a(f"s_add_u32 {s(sL)}, {s(sL)}, {s(S_TMP)}")
    a(f"s_lshr_b32 {s(S_TMP)}, {s(S_WAVE)}, 1")
    a(f"s_lshl_b32 {s(S_TMP)}, {s(S_TMP)}, 18")
    a(f"s_add_u32 {s(sL)}, {s(sL)}, {s(S_TMP)}")
    a(f"s_and_b32 {s(S_TMP)}, {s(S_WAVE)}, 1")
    a(f"s_lshl_b32 {s(S_TMP)}, {s(S_TMP)}, 14")
    a(f"s_add_u32 {s(sL)}, {s(sL)}, {s(S_TMP)}")
    a(f"s_lshl_b32 {s(sLB)}, {s(S_WAVE)}, 13")
    a("s_waitcnt lgkmcnt(0)")
    for i in range(8):
        a(f"s_add_u32 m0, {s(sLB)}, {LEFT + i * 1024}")
        a.nop(1)
        a.vmop(f"buffer_load_dwordx4 {v(DL + i)}, {s(S_X, 4)}, {s(sL)} offen{nt} lds", "l")


def read_left(a, cfg, tiles, lop):
    a.wait_vm("l")
    a("s_barrier")
    stampreg(a, cfg, 66)
    for ks in range(8):
        for t in range(tiles):
            a.dsop(f"ds_read_b128 {lop(t, ks)}, {v(RA + (ks & 3))} offset:{LEFT + t * 8192 + (ks >> 2) * 256}", ("l", ks))
        if ks % 2:
            a.wait_ds(("l", ks - 1))


def finish(a, c0, out, scale, soff, off):
    for ab in range(2):
        c = c0 + 4 * ab
        if scale:
            for r in range(4):
                a(f"v_mul_f32 {v(c + r)}, {s(sSC)}, {v(c + r)}")
        a(f"v_cvt_pk_bf16_f32 {v(out + 2 * ab)}, {v(c)}, {v(c + 1)}")
        a(f"v_cvt_pk_bf16_f32 {v(out + 2 * ab + 1)}, {v(c + 2)}, {v(c + 3)}")
    a.vmop(f"buffer_store_dwordx4 {v(out, 4)}, {v(L16)}, {WS_SRD}, {s(soff)} offen offset:{off} sc1")


def gen_atask(a, cfg):
    nt = " nt" if cfg.get("prent", 1) else ""
    ACC, OUT, BO, RB = 32, 64, 80, 144
    LOP = lambda t, ks: acc(4 * (ks * 4 + t), 4)
    a.label("ATASK")
    a.vm, a.ds = [], []
    srd(a, S_X, 16, W_BYTES)
    srd(a, S_OUT, 24, W_BYTES)
    stage_left(a, nt, True)
    a(f"s_mul_i32 {s(sR)}, {s(S_WAVE)}, {112 * 8192}")
    a(f"s_lshl_b32 {s(S_TMP)}, {s(sH)}, 9")
    a(f"s_add_u32 {s(sR)}, {s(sR)}, {s(S_TMP)}")
    a(f"s_lshl_b32 {s(sLB)}, {s(S_WAVE)}, 15")
    a(f"s_add_u32 {s(sLB)}, {s(sLB)}, {RING}")

    def stage(j):
        for i in range(8):
            a(f"s_add_u32 m0, {s(sLB)}, {(j % 4) * 8192 + i * 1024}")
            a.nop(1)
            a.vmop(f"buffer_load_dwordx4 {v(DA + i)}, {s(S_OUT, 4)}, {s(sR)} offen{nt} lds", ("r", j))
        a(f"s_add_u32 {s(sR)}, {s(sR)}, {16 * 8192}")
    for j in range(4):
        stage(j)
    if cfg.get("pretouch", 1):
        a(f"v_lshrrev_b32 {v(T0)}, 2, v0")
        a(f"v_lshlrev_b32 {v(T0)}, 13, {v(T0)}")
        a(f"v_and_b32 {v(T2)}, 3, v0")
        a(f"v_lshl_add_u32 {v(T0)}, {v(T2)}, 7, {v(T0)}")
        for j in range(3):
            a(f"s_add_u32 {s(S_TMP)}, {s(sR)}, {j * 16 * 8192}")
            a.vmop(f"buffer_load_dword v7, {v(T0)}, {s(S_OUT, 4)}, {s(S_TMP)} offen{nt}")
    read_addresses(a)
    for q in range(4):
        a(f"v_add_u32 {v(RB + q)}, {s(sLB)}, {v(RA + q)}")
    a(f"s_mul_i32 {s(sO)}, {s(sH)}, {AL_HEAD}")
    a(f"s_mul_i32 {s(S_TMP)}, {s(S_WAVE)}, 100352")
    a(f"s_add_u32 {s(sO)}, {s(sO)}, {s(S_TMP)}")
    a(f"s_lshl_b32 {s(S_TMP)}, {s(sK)}, 11")
    a(f"s_add_u32 {s(sO)}, {s(sO)}, {s(S_TMP)}")
    a(f"s_add_u32 {s(sO)}, {s(sO)}, {WS['AL']}")
    a(f"s_mov_b32 {s(sSC)}, {f32(SCALE)}")
    read_left(a, cfg, 4, LOP)

    def read_right(j, ks):
        if ks == 0:
            a.wait_vm(("r", j))
        a.dsop(f"ds_read_b128 {v(BO + 32 * (j & 1) + 4 * ks, 4)}, {v(RB + (ks & 3))} offset:{(j % 4) * 8192 + (ks >> 2) * 256}", ("b", j, ks))

    def finish_tile(j):
        for hi in range(2):
            finish(a, ACC + 16 * (j & 1) + 8 * hi, OUT + 8 * (j & 1) + 4 * hi, True, sO, 1024 * hi)
        a(f"s_add_u32 {s(sO)}, {s(sO)}, 14336")
    for ks in range(8):
        read_right(0, ks)
    for j in range(7):
        A0 = ACC + 16 * (j & 1)
        for ks in range(8):
            a.wait_ds(("l", ks))
            a.wait_ds(("b", j, ks))
            if ks == 7 and j + 4 < 7:
                stage(j + 4)
            for t in range(4):
                a(f"v_mfma_f32_16x16x32_bf16 {v(A0 + 4 * t, 4)}, {LOP(t, ks)}, {v(BO + 32 * (j & 1) + 4 * ks, 4)}, " + (v(A0 + 4 * t, 4) if ks else "0"))
                if t == 0 and j + 1 < 7:
                    read_right(j + 1, ks)
            if ks == 0 and j == 4:
                stampreg(a, cfg, 70)
            if ks == 0 and j:
                finish_tile(j - 1)
    stampreg(a, cfg, 68)
    a.nop(8)
    finish_tile(6)
    a("s_branch PRE_DONE")


def gen_pre(a, cfg):
    nt = " nt" if cfg.get("prent", 1) else ""
    TRA, ACC, BT, OUT = 216, 32, 144, 160
    LOP = lambda t, ks: acc(4 * (ks * 4 + t), 4)
    a(f"v_lshlrev_b32 {v(L16)}, 4, v0")
    a(f"s_and_b32 {s(sH)}, s2, 7")
    a(f"s_lshr_b32 {s(sK)}, s2, 3")
    a(f"s_cmp_lt_u32 {s(sK)}, 28")
    a("s_cbranch_scc0 PRE_LN")
    a(f"s_cmp_lt_u32 {s(sK)}, 14")
    a(f"s_cselect_b32 {s(sSC)}, 0, 14")
    a(f"s_sub_u32 {s(sK)}, {s(sK)}, {s(sSC)}")
    a(f"s_lshl_b32 {s(sH)}, {s(sH)}, 1")
    a(f"s_cmp_ge_u32 {s(sK)}, 7")
    a(f"s_cselect_b32 {s(S_TMP)}, 1, 0")
    a(f"s_add_u32 {s(sH)}, {s(sH)}, {s(S_TMP)}")
    a(f"s_mul_i32 {s(S_TMP)}, {s(S_TMP)}, 7")
    a(f"s_sub_u32 {s(sK)}, {s(sK)}, {s(S_TMP)}")
    a(f"s_cmp_eq_u32 {s(sSC)}, 0")
    a("s_cbranch_scc1 ATASK")
    srd(a, S_X, 32, W_BYTES)
    srd(a, S_OUT, 40, W_BYTES)
    a.vm, a.ds = [], []
    stage_left(a, nt, False)
    a(f"s_mov_b32 {s(S_TMP)}, {-(-(1 << 32) // 56)}")
    a(f"s_mul_i32 {s(S_TMP + 1)}, {s(S_WAVE)}, 448")
    for i in range(7):
        a(f"v_add_u32 {v(T0)}, {s(S_TMP + 1)}, v0")
        a(f"s_add_u32 {s(S_TMP + 1)}, {s(S_TMP + 1)}, 64")
        a(f"v_mul_hi_u32 {v(DA + i)}, {v(T0)}, {s(S_TMP)}")
        a(f"v_mul_u32_u24 {v(T2)}, 56, {v(DA + i)}")
        a(f"v_sub_u32 {v(T0)}, {v(T0)}, {v(T2)}")
        a(f"v_and_b32 {v(T2)}, 2, {v(DA + i)}")
        a(f"v_xor_b32 {v(T0)}, {v(T0)}, {v(T2)}")
        a(f"v_bfe_u32 {v(T2)}, {v(DA + i)}, 3, 1")
        a(f"v_lshlrev_b32 {v(T2)}, 2, {v(T2)}")
        a(f"v_xor_b32 {v(T0)}, {v(T0)}, {v(T2)}")
        a(f"v_mul_u32_u24 {v(DA + i)}, 896, {v(DA + i)}")
        a(f"v_lshl_add_u32 {v(DA + i)}, {v(T0)}, 4, {v(DA + i)}")
    a(f"s_mul_i32 {s(sLB)}, {s(S_WAVE)}, 7168")
    slot = lambda ks: LEFT if ks == 4 else RING + (ks % 5) * 28672
    a(f"s_mul_i32 {s(sR)}, {s(sH)}, 229376")

    def stage(ks):
        for i in range(7):
            a(f"s_add_u32 m0, {s(sLB)}, {slot(ks) + i * 1024}")
            a.nop(1)
            a.vmop(f"buffer_load_dwordx4 {v(DA + i)}, {s(S_OUT, 4)}, {s(sR)} offen{nt} lds", ("r", ks))
        a(f"s_add_u32 {s(sR)}, {s(sR)}, {32 * 896}")
    for ks in range(4):
        stage(ks)
    if cfg.get("pretouch", 1):
        a(f"v_lshlrev_b32 {v(T0)}, 7, v0")
        a(f"s_mul_i32 {s(S_TMP)}, {s(S_WAVE)}, 28672")
        a(f"s_add_u32 {s(S_TMP)}, {s(S_TMP)}, {s(sR)}")
        for j in range(4):
            a.vmop(f"buffer_load_dword v7, {v(T0)}, {s(S_OUT, 4)}, {s(S_TMP)} offen{nt}")
            a(f"s_add_u32 {s(S_TMP)}, {s(S_TMP)}, 7168")
    read_addresses(a)
    a(f"v_bfe_u32 {v(T0)}, v0, 2, 2")
    a(f"v_lshl_add_u32 {v(T0)}, {v(T1)}, 3, {v(T0)}")
    a(f"v_mul_u32_u24 {v(DL)}, 896, {v(T0)}")
    a(f"v_and_b32 {v(T0)}, 3, v0")
    a(f"v_lshl_add_u32 {v(DL)}, {v(T0)}, 3, {v(DL)}")
    a(f"v_bfe_u32 {v(T0)}, v0, 3, 2")
    for jj in range(4):
        a(f"s_mul_i32 {s(S_TMP)}, {s(S_WAVE)}, 7")
        a(f"s_add_u32 {s(S_TMP)}, {s(S_TMP)}, {jj}")
        a(f"v_xor_b32 {v(T2)}, {s(S_TMP)}, {v(T0)}")
        a(f"v_lshl_add_u32 {v(T2)}, {v(T2)}, 5, {v(DL)}")
        a(f"v_mov_b32 {v(TRA + jj)}, {v(T2)}")
        a(f"v_add_u32 {v(TRA + 4 + jj)}, {RING + 57344}, {v(T2)}")
    a(f"s_lshr_b32 {s(sO)}, {s(sH)}, 2")
    a(f"s_mul_i32 {s(sO)}, {s(sO)}, 114688")
    a(f"s_and_b32 {s(S_TMP)}, {s(sH)}, 3")
    a(f"s_mul_i32 {s(S_TMP)}, {s(S_TMP)}, 28672")
    a(f"s_add_u32 {s(sO)}, {s(sO)}, {s(S_TMP)}")
    a(f"s_lshl_b32 {s(S_TMP)}, {s(sK)}, 11")
    a(f"s_add_u32 {s(sO)}, {s(sO)}, {s(S_TMP)}")
    a(f"s_add_u32 {s(sO)}, {s(sO)}, {WS['BL']}")
    read_left(a, cfg, 4, LOP)
    seq = [(ks, j) for ks in range(4) for j in range(7)] + [(ks, j) for j in range(7) for ks in range(4, 8)]

    def read_right(i):
        ks, j = seq[i]
        far = int(slot(ks) >= RING + 57344)
        for q in range(2):
            a.dsop(f"ds_read_b64_tr_b16 {v(BT + 4 * (i % 4) + 2 * q, 2)}, {v(TRA + 4 * far + (j & 3))} "
                   f"offset:{slot(ks) - far * (RING + 57344) + (j >> 2) * 128 + 3584 * q}", ("b", i))

    def finish_tile(j):
        a(f"s_mul_i32 {s(S_TMP)}, {s(S_WAVE)}, 7")
        a(f"s_add_u32 {s(S_TMP)}, {s(S_TMP)}, {j}")
        a(f"s_lshr_b32 {s(S_TMP + 1)}, {s(S_TMP)}, 1")
        a(f"s_mul_i32 {s(S_TMP + 1)}, {s(S_TMP + 1)}, {BL_CU}")
        a(f"s_and_b32 {s(S_TMP)}, {s(S_TMP)}, 1")
        a(f"s_mul_i32 {s(S_TMP)}, {s(S_TMP)}, 14336")
        a(f"s_add_u32 {s(S_TMP)}, {s(S_TMP)}, {s(S_TMP + 1)}")
        a(f"s_add_u32 {s(S_TMP)}, {s(S_TMP)}, {s(sO)}")
        for hi in range(2):
            finish(a, ACC + 16 * j + 8 * hi, OUT + 8 * j + 4 * hi, False, S_TMP, 1024 * hi)
    issued = 0
    for i, (ks, j) in enumerate(seq):
        if j == 0 and ks <= 4:
            a.wait_vm(("r", ks if ks < 4 else 7))
            a.wait_ds_all()
            a("s_barrier")
            if ks < 4:
                stage(ks + 4)
            else:
                stampreg(a, cfg, 70)
        limit = 7 * (ks + 1) if ks < 4 else len(seq)
        while issued < min(i + 3, limit):
            read_right(issued)
            issued += 1
        a.wait_ds(("l", ks))
        a.wait_ds(("b", i))
        for t in range(4):
            c = v(ACC + 16 * j + 4 * t, 4)
            a(f"v_mfma_f32_16x16x32_bf16 {c}, {LOP(t, ks)}, {v(BT + 4 * (i % 4), 4)}, " + (c if ks else "0"))
            if t == 0 and issued < min(i + 4, limit):
                read_right(issued)
                issued += 1
        if ks == 4 and j:
            finish_tile(j - 1)
    stampreg(a, cfg, 68)
    a.nop(1)
    finish_tile(6)
    a("s_branch PRE_DONE")
    gen_atask(a, cfg)

    a.label("PRE_LN")
    srd(a, S_X, 0, 2048 * 896)
    a.vm = []
    LA, PK, F, SUM, VAR, TM = 5, 16, 80, 8, 9, 10
    a(f"s_lshl_b32 {s(sH)}, {s(sH)}, 2")
    a(f"s_add_u32 {s(sH)}, {s(sH)}, {s(sK)}")
    a(f"s_sub_u32 {s(sH)}, {s(sH)}, 28")
    a(f"s_lshl_b32 {s(sH)}, {s(sH)}, 2")
    a(f"s_add_u32 {s(sH)}, {s(sH)}, {s(S_WAVE)}")
    a(f"s_mul_i32 {s(sL)}, {s(sH)}, 14336")
    a(f"v_and_b32 {v(LA)}, 15, v0")
    a(f"v_mul_u32_u24 {v(LA)}, 896, {v(LA)}")
    a(f"v_lshrrev_b32 {v(T1)}, 4, v0")
    a(f"v_lshl_add_u32 {v(LA)}, {v(T1)}, 4, {v(LA)}")
    a("s_waitcnt lgkmcnt(0)")
    for ks in range(14):
        a.vmop(f"buffer_load_dwordx4 {v(PK + 4 * ks, 4)}, {v(LA)}, {s(S_X, 4)}, {s(sL)} offen offset:{ks * 64}", ks)
    a(f"v_mov_b32 {v(SUM)}, 0")
    a(f"v_mov_b32 {v(VAR)}, 0")
    for i in range(56):
        a.wait_vm(i // 4)
        a(f"v_lshlrev_b32 {v(F + 2 * i)}, 16, {v(PK + i)}")
        a(f"v_and_b32 {v(F + 2 * i + 1)}, 0xffff0000, {v(PK + i)}")
        a(f"v_add_f32 {v(SUM)}, {v(SUM)}, {v(F + 2 * i)}")
        a(f"v_add_f32 {v(VAR)}, {v(VAR)}, {v(F + 2 * i + 1)}")
    a(f"v_add_f32 {v(SUM)}, {v(SUM)}, {v(VAR)}")
    row_sum4(a, SUM, TM)
    a(f"v_mul_f32 {v(SUM)}, {f32(1 / 448)}, {v(SUM)}")
    a(f"v_mov_b32 {v(VAR)}, 0")
    a(f"v_mov_b32 {v(T0)}, 0")
    for i in range(56):
        a(f"v_sub_f32 {v(TM)}, {v(F + 2 * i)}, {v(SUM)}")
        a(f"v_sub_f32 {v(TM + 1)}, {v(F + 2 * i + 1)}, {v(SUM)}")
        a(f"v_fmac_f32 {v(VAR)}, {v(TM)}, {v(TM)}")
        a(f"v_fmac_f32 {v(T0)}, {v(TM + 1)}, {v(TM + 1)}")
    a(f"v_add_f32 {v(VAR)}, {v(VAR)}, {v(T0)}")
    row_sum4(a, VAR, TM)
    a(f"v_mul_f32 {v(VAR)}, {f32(1 / 448)}, {v(VAR)}")
    ln_scalars(a, SUM, VAR)
    a(f"s_add_u32 {s(sR)}, {s(sL)}, {WS['XT']}")
    a(f"s_add_u32 {s(sO)}, {s(sL)}, {WS['XP']}")
    for ks in range(14):
        p = PK + 4 * ks
        for i in range(4):
            ln_apply(a, p + i, F + 8 * ks + 2 * i, F + 8 * ks + 2 * i + 1, SUM, VAR)
        if ks and ks % 4 == 0:
            a(f"s_add_u32 {s(sR)}, {s(sR)}, 4096")
            a(f"s_add_u32 {s(sO)}, {s(sO)}, 4096")
        a(f"buffer_store_dwordx4 {v(p, 4)}, {v(L16)}, {WS_SRD}, {s(sR)} offen offset:{(ks % 4) * 1024} sc1")
        q = F + 8 * ks
        for i, src in enumerate((0, 2, 1, 3)):
            a(f"v_mov_b32 {v(q + i)}, {v(p + src)}")
        a.nop(1)
        a(f"v_permlane16_swap_b32 {v(q)}, {v(q + 1)}")
        a(f"v_permlane16_swap_b32 {v(q + 2)}, {v(q + 3)}")
        a(f"buffer_store_dwordx4 {v(q, 4)}, {v(L16)}, {WS_SRD}, {s(sO)} offen offset:{(ks % 4) * 1024} sc1")
```

```python
from asmlib import Asm, v, acc, s, interleave
from layout import *

S_WS = 4
S_X = 8
S_OUT = 12
S_AUX = 16
S_WAVE = 20
S_GRP = 21
S_LOC = 22
S_SLOW = 23
S_TO = 24
S_STEP = 25
S_T0 = 26
S_TMP = 40
S_BELL = 89
S_TAG = 88
S_CLK = 48

IOTA = [0, 2, 1, 3]
WS_SRD = s(S_WS, 4)


def wblock(b, vbase, hi=None):
    n = 8 if hi is None else 4
    o = 0 if hi is None else 4 * hi
    return acc(8 * b + o, n) if b < 32 else v(vbase + 8 * (b - 32) + o, n)


def smf(a, d, x, w, idx, upper=False):
    a(f"v_smfmac_f32_16x16x64_bf16 {v(d, 4)}, {v(x, 4)}, {w}, {v(idx)}" + (" abid:1" if upper else ""))


def stream_load(a, dests, vaddr, soff, window=48):
    for i, d in enumerate(dests):
        if i and i % 4 == 0:
            a(f"s_add_u32 {s(soff)}, {s(soff)}, 4096")
        if i >= window and (i - window) % 8 == 0:
            a(f"s_waitcnt vmcnt({window - 8})")
        a(f"buffer_load_dwordx4 {d}, {v(vaddr)}, {WS_SRD}, {s(soff)} offen offset:{(i % 4) * 1024}")


def any_poison(a, regs, tmp):
    regs = list(regs)
    a(f"v_max3_u32 {v(tmp)}, {v(regs[0])}, {v(regs[1])}, {v(regs[2])}")
    rest = regs[3:]
    while len(rest) >= 2:
        a(f"v_max3_u32 {v(tmp)}, {v(tmp)}, {v(rest[0])}, {v(rest[1])}")
        rest = rest[2:]
    if rest:
        a(f"v_max_u32 {v(tmp)}, {v(tmp)}, {v(rest[0])}")
    a(f"v_cmp_eq_u32 vcc, -1, {v(tmp)}")


def poll(a, loads, regs, tmp, sleep=0):
    top, done = a.newlabel("poll"), a.newlabel("got")
    a.label(top)
    for l in loads:
        a(l)
    a("s_waitcnt vmcnt(0)")
    any_poison(a, regs, tmp)
    a(f"s_cbranch_vccz {done}")
    if sleep:
        a(f"s_cmp_ge_u32 {s(S_STEP)}, {NSEG - 6}")
        a(f"s_cbranch_scc1 {top}x")
        a(f"s_sleep {sleep}")
        a.label(top + "x")
    a(f"s_sub_u32 {s(S_TO)}, {s(S_TO)}, 1")
    a(f"s_cbranch_scc0 {top}")
    a("s_endpgm")
    a.label(done)


def poll_deep(a, loads, regs, tmp, under=(), depth=2, sleep=None):
    spin, done = a.newlabel("spin"), a.newlabel("got")
    for _ in range(depth - 1):
        for l in loads:
            a(l)
    a.label(spin)
    for l in loads:
        a(l)
    a(f"s_waitcnt vmcnt({len(loads) * (depth - 1)})")
    any_poison(a, regs, tmp)
    for f in under:
        f()
    a(f"s_cbranch_vccz {done}")
    if sleep:
        a(f"s_cmp_ge_u32 {s(S_STEP)}, {sleep[1]}")
        a(f"s_cbranch_scc1 {spin}x")
        a(f"s_sleep {sleep[0]}")
        a.label(spin + "x")
    a(f"s_sub_u32 {s(S_TO)}, {s(S_TO)}, 1")
    a(f"s_cbranch_scc0 {spin}")
    a("s_endpgm")
    a.label(done)


def wait_flag(a, reg, load, sleep=2, landed=True):
    top, first, done = a.newlabel("flag"), a.newlabel("first"), a.newlabel("set")
    if not landed:
        a(f"s_branch {first}")
    a.label(top)
    a(f"v_cmp_ne_u32 vcc, {s(S_TAG)}, {v(reg)}")
    a(f"s_cbranch_vccz {done}")
    if sleep:
        a(f"s_sleep {sleep}")
    a.label(first)
    a(load)
    a("s_waitcnt vmcnt(0)")
    a(f"s_sub_u32 {s(S_TO)}, {s(S_TO)}, 1")
    a(f"s_cbranch_scc0 {top}")
    a("s_endpgm")
    a.label(done)


def wait_tasks(a, kind, t0, t1, w=0):
    if kind == "A":
        a(f"v_min_u32 {v(t0)}, 6, v0")
        a(f"v_lshlrev_b32 {v(t0)}, 5, {v(t0)}")
        a(f"s_and_b32 {s(S_TMP)}, {s(S_LOC)}, 1")
        a(f"s_mul_i32 {s(S_TMP)}, {s(S_TMP)}, 224")
        a(f"s_lshr_b32 {s(S_TMP + 1)}, {s(S_LOC)}, 1")
        a(f"s_lshl_b32 {s(S_TMP + 1)}, {s(S_TMP + 1)}, 2")
        a(f"s_add_u32 {s(S_TMP)}, {s(S_TMP)}, {s(S_TMP + 1)}")
    elif kind == "B":
        a(f"v_lshrrev_b32 {v(t0)}, 1, v0")
        a(f"v_min_u32 {v(t0)}, 13, {v(t0)}")
        a(f"v_lshlrev_b32 {v(t0)}, 5, {v(t0)}")
        a(f"v_and_b32 {v(t1)}, 1, v0")
        a(f"v_lshl_add_u32 {v(t0)}, {v(t1)}, 2, {v(t0)}")
        if w is None:
            a(f"s_lshl_b32 {s(S_TMP)}, {s(S_WAVE)}, 3")
            a(f"s_add_u32 {s(S_TMP)}, {s(S_TMP)}, 448")
        else:
            a(f"s_mov_b32 {s(S_TMP)}, {448 + 8 * w}")
    elif kind == "L":
        a(f"v_and_b32 {v(t0)}, 31, v0")
        a(f"v_lshlrev_b32 {v(t0)}, 2, {v(t0)}")
        a(f"s_mov_b32 {s(S_TMP)}, 896")
    else:
        a(f"v_min_u32 {v(t0)}, {63 if kind == 'LZ' else 47}, v0")
        a(f"v_lshlrev_b32 {v(t0)}, 3, {v(t0)}")
        top, done = a.newlabel("lz"), a.newlabel("lzok")
        a.label(top)
        a(f"buffer_load_dwordx2 {v(t1, 2)}, {v(t0)}, {WS_SRD}, 0 offen offset:{WS['ARR'] + (896 if kind == 'LZ' else 1536)} sc1")
        a("s_waitcnt vmcnt(0)")
        a(f"v_cmp_ne_u32 vcc, {s(S_TAG)}, {v(t1)}")
        a(f"v_cmp_ne_u32 {s(S_TMP, 2)}, {s(S_TAG)}, {v(t1 + 1)}")
        a(f"s_or_b64 vcc, vcc, {s(S_TMP, 2)}")
        a(f"s_cbranch_vccz {done}")
        a("s_sleep 4")
        a(f"s_sub_u32 {s(S_TO)}, {s(S_TO)}, 1")
        a(f"s_cbranch_scc0 {top}")
        a("s_endpgm")
        a.label(done)
        return
    wait_flag(a, t1, f"buffer_load_dword {v(t1)}, {v(t0)}, {WS_SRD}, {s(S_TMP)} offen offset:{WS['ARR']} sc1", sleep=4, landed=False)


def wait_bell(a, cfg, tmp, sval, word, depth=2):
    if not cfg.get("bell", 0):
        return
    spin, done = a.newlabel("bell"), a.newlabel("rung")
    load = f"buffer_load_dword {v(tmp)}, off, {WS_SRD}, {s(S_BELL)} offset:{4 * word} sc1"
    a(f"s_cmp_lg_u32 {s(S_SLOW)}, 0")
    a(f"s_cbranch_scc1 {done}")
    for _ in range(depth - 1):
        a(load)
    a.label(spin)
    a(load)
    a(f"s_waitcnt vmcnt({depth - 1})")
    a(f"v_cmp_ne_u32 vcc, {s(sval)}, {v(tmp)}")
    a(f"s_cbranch_vccz {done}")
    a(f"s_sub_u32 {s(S_TO)}, {s(S_TO)}, 1")
    a(f"s_cbranch_scc0 {spin}")
    a("s_endpgm")
    a.label(done)


def wait_step(a, tmp, first, per_group=0, sleep=16):
    top, done = a.newlabel("stp"), a.newlabel("stpok")
    a(f"s_mul_i32 {s(S_TMP)}, {s(S_GRP)}, {per_group * MEM_SZ}")
    a(f"s_add_u32 {s(S_TMP)}, {s(S_TMP)}, {WS['MEMG'] + first * MEM_SZ}")
    a.label(top)
    a(f"buffer_load_dword {v(tmp)}, off, {WS_SRD}, {s(S_TMP)} sc1")
    a("s_waitcnt vmcnt(0)")
    a(f"v_cmp_eq_u32 vcc, -1, {v(tmp)}")
    a(f"s_cbranch_vccz {done}")
    a(f"s_sleep {sleep}")
    a(f"s_sub_u32 {s(S_TO)}, {s(S_TO)}, 1")
    a(f"s_cbranch_scc0 {top}")
    a("s_endpgm")
    a.label(done)


def wait_first_y(a, tmp, seg_reg=None, seg=0):
    if seg_reg is not None:
        a(f"s_mul_i32 {s(S_TMP)}, {s(seg_reg)}, 224")
        a(f"s_add_u32 {s(S_TMP)}, {s(S_TMP)}, {WS['YF']}")
    else:
        a(f"s_mov_b32 {s(S_TMP)}, {WS['YF'] + 224 * seg}")
    wait_flag(a, tmp, f"buffer_load_dword {v(tmp)}, off, {WS_SRD}, {s(S_TMP)} sc1", sleep=8, landed=False)


def local_stores(a, stores, scc_set=False):
    slow, done = a.newlabel("wt"), a.newlabel("st")
    if not scc_set:
        a(f"s_cmp_lg_u32 {s(S_SLOW)}, 0")
    a(f"s_cbranch_scc1 {slow}")
    for st in stores:
        a(st)
    a(f"s_branch {done}")
    a.label(slow)
    for st in stores:
        a(st + " sc1")
    a.label(done)


def index_reg(a, reg, tmp):
    a(f"v_and_b32 {v(tmp)}, 8, v0")
    a(f"v_cmp_eq_u32 vcc, 0, {v(tmp)}")
    a(f"v_mov_b32 {v(tmp)}, 0x88884444")
    a(f"v_mov_b32 {v(reg)}, 0xddddeeee")
    a(f"v_cndmask_b32 {v(reg)}, {v(reg)}, {v(tmp)}, vcc")


def iota_reg(a, reg, tmp):
    a(f"v_bfe_u32 {v(reg)}, v0, 5, 1")
    a(f"v_bfe_u32 {v(tmp)}, v0, 4, 1")
    a(f"v_lshl_add_u32 {v(reg)}, {v(tmp)}, 1, {v(reg)}")


def stamp(a, cfg, k):
    if cfg.get("stamps", 0) >> k & 1:
        a(f"{'s_memrealtime' if cfg.get('rt') else 's_memtime'} {s(S_CLK + 2 * k, 2)}")


def flush_stamps(a, cfg, n, slot, tmp):
    if not cfg.get("stamps"):
        return
    skip = a.newlabel("nostamp")
    if cfg.get("lastonly"):
        a(f"s_cmp_lt_u32 {s(S_STEP)}, 63")
        a(f"s_cbranch_scc1 {skip}")
    a("s_waitcnt lgkmcnt(0)")
    a.ds = []
    a(f"s_lshl_b32 {s(S_TMP)}, {s(S_STEP)}, 6")
    a(f"s_add_u32 {s(S_TMP)}, {s(S_TMP)}, {WS['DBG'] + slot * 4096}")
    a(f"s_mul_i32 {s(S_TMP + 1)}, {s(S_LOC)}, 0x30000")
    a(f"s_add_u32 {s(S_TMP)}, {s(S_TMP)}, {s(S_TMP + 1)}")
    for k in range(n):
        a(f"v_mov_b32 {v(tmp)}, {s(S_CLK + 2 * k)}")
        a(f"buffer_store_dword {v(tmp)}, off, {WS_SRD}, {s(S_TMP)} offset:{4 * k}")
    a(f"v_mov_b32 {v(tmp)}, {s(S_TO)}")
    a(f"buffer_store_dword {v(tmp)}, off, {WS_SRD}, {s(S_TMP)} offset:60")
    a(f"s_add_u32 {s(S_TMP + 1)}, {s(S_STEP)}, -1")
    a(f"s_cmp_lt_u32 {s(S_TMP + 1)}, {cfg.get('last_step', 61)}")
    a(f"s_cbranch_scc1 {skip}")
    a(f"s_memrealtime {s(S_CLK + 28, 2)}")
    a("s_waitcnt lgkmcnt(0)")
    a(f"v_mov_b32 {v(tmp)}, {s(S_CLK + 28)}")
    a(f"buffer_store_dword {v(tmp)}, off, {WS_SRD}, {s(S_TMP)} offset:56")
    a(f"v_mov_b32 {v(tmp)}, {s(S_CLK + 30)}")
    a(f"buffer_store_dword {v(tmp)}, off, {WS_SRD}, {s(S_TMP)} offset:52")
    a.label(skip)


def milestone(a, cfg, k, tmp):
    if not cfg.get("stamps"):
        return
    a("s_memrealtime s[92:93]")
    a("s_lshl_b32 s90, s2, 2")
    a(f"s_add_u32 s90, s90, {s(S_WAVE)}")
    a("s_lshl_b32 s90, s90, 5")
    a(f"s_add_u32 s90, s90, {WS['DBG'] + 0x28000}")
    a("s_waitcnt lgkmcnt(0)")
    a(f"v_mov_b32 {v(tmp)}, s92")
    a(f"buffer_store_dword {v(tmp)}, off, {WS_SRD}, s90 offset:{4 * k}")
    if k == 0:
        a(f"s_lshl_b32 s91, {s(S_GRP)}, 8")
        a(f"s_add_u32 s91, s91, {s(S_LOC)}")
        a(f"v_mov_b32 {v(tmp)}, s91")
        a(f"buffer_store_dword {v(tmp)}, off, {WS_SRD}, s90 offset:28")


def keep_stamps(a, cfg, n, base):
    if cfg.get("stamps"):
        a(f"s_mov_b32 m0, {s(S_STEP)}")
        for k in range(n):
            a(f"v_writelane_b32 {v(base + k)}, {s(S_CLK + 2 * k)}, m0")


def dump_stamps(a, cfg, n, base, slot, lane16):
    if not cfg.get("stamps"):
        return
    a(f"v_lshlrev_b32 {v(lane16)}, 2, {v(lane16)}")
    a(f"s_mul_i32 {s(S_TMP)}, {s(S_LOC)}, 0x30000")
    a(f"s_add_u32 {s(S_TMP)}, {s(S_TMP)}, {WS['DBG'] + slot * 4096}")
    for k in range(n):
        a(f"buffer_store_dword {v(base + k)}, {v(lane16)}, {WS_SRD}, {s(S_TMP)} offen offset:{4 * k}")


def gen_s1(a, w, cfg):
    L16, XKA, MKA, TWA, TRA, SWA, SRA, SRM, PTA, PMA, IDX, T0, T1 = range(1, 14)
    TACC, MA, MK, XK, WV = 16, 44, 72, 88, 120
    MEMIMG, TBUF, SBUF, ZERO = 0, 8192 + 2048 * w, 16384, 24576
    sMEM, sP, sPM, sX0, sX1, sY, sR, sRDY, sVAL, sOWN = range(S_T0, S_T0 + 10)
    p0 = cfg.get('ypieces', 0)
    blk = lambda j, k: wblock(j * 7 + k, WV)
    own = [2 * w, 2 * w + 1] if w < 3 else [5, 6]
    share = own if w < 3 else [6]
    others = [k for k in range(7) if k not in own]
    T = lambda j, r=0: TACC + 4 * j + r
    TOP0, TOP1 = T(0), T(1)
    T1D = T(6)
    SC = [MA + 4 * own[0], MA + 4 * own[1], 12]

    a.label(f"S1_W{w}")
    a(f"v_lshlrev_b32 {v(L16)}, 4, v0")
    wait_tasks(a, "A", T0, T1)
    a(f"s_mul_i32 {s(S_TMP)}, {s(S_LOC)}, {AL_HEAD}")
    a(f"s_add_u32 {s(S_TMP)}, {s(S_TMP)}, {WS['AL'] + w * 100352}")
    stream_load(a, [wblock(b, WV, hi) for b in range(49) for hi in range(2)], L16, S_TMP)
    a(f"v_and_b32 {v(T0)}, 15, v0")
    a(f"v_lshrrev_b32 {v(T1)}, 4, v0")
    a(f"v_add_u32 {v(MKA)}, {14 * w}, {v(T1)}")
    a(f"v_lshrrev_b32 {v(XKA)}, 2, {v(MKA)}")
    a(f"v_lshlrev_b32 {v(XKA)}, 10, {v(XKA)}")
    a(f"v_and_b32 {v(SWA)}, 3, {v(MKA)}")
    a(f"v_lshl_add_u32 {v(SWA)}, {v(SWA)}, 4, {v(T0)}")
    a(f"v_lshl_add_u32 {v(XKA)}, {v(SWA)}, 4, {v(XKA)}")
    a(f"v_and_b32 {v(SWA)}, 7, v0")
    a(f"v_lshlrev_b32 {v(SWA)}, 4, {v(SWA)}")
    a(f"v_lshl_add_u32 {v(MKA)}, {v(MKA)}, 7, {v(SWA)}")
    iota_reg(a, PTA, PMA)
    a(f"v_lshlrev_b32 {v(TWA)}, 2, {v(PTA)}")
    a(f"v_lshl_add_u32 {v(TWA)}, {v(T0)}, 4, {v(TWA)}")
    a(f"v_add_u32 {v(TWA)}, {TBUF}, {v(TWA)}")
    a(f"v_mul_u32_u24 {v(SWA)}, 1536, {v(PTA)}")
    a(f"v_lshl_add_u32 {v(SWA)}, {v(T0)}, 4, {v(SWA)}")
    a(f"v_add_u32 {v(SWA)}, {SBUF + (w >> 1) * 256 + (w & 1) * 8}, {v(SWA)}")
    a(f"v_bfe_u32 {v(TRA)}, v0, 2, 2")
    a(f"v_lshl_add_u32 {v(TRA)}, {v(T1)}, 3, {v(TRA)}")
    a(f"v_lshlrev_b32 {v(TRA)}, 5, {v(TRA)}")
    a(f"v_and_b32 {v(PMA)}, 3, v0")
    a(f"v_lshl_add_u32 {v(TRA)}, {v(PMA)}, 3, {v(TRA)}")
    a(f"v_add_u32 {v(TRA)}, {TBUF}, {v(TRA)}")
    a(f"v_lshrrev_b32 {v(T1)}, 5, v0")
    a(f"v_bfe_u32 {v(SRA)}, v0, 4, 1")
    a(f"v_lshlrev_b32 {v(SRA)}, 9, {v(SRA)}")
    a(f"v_lshl_add_u32 {v(SRA)}, {v(T1)}, 8, {v(SRA)}")
    a(f"v_lshl_add_u32 {v(SRA)}, {v(T0)}, 4, {v(SRA)}")
    a(f"v_add_u32 {v(SRA)}, {SBUF + w * 1536}, {v(SRA)}")
    a(f"v_and_b32 {v(SRM)}, 7, v0")
    a(f"v_lshlrev_b32 {v(SRM)}, 4, {v(SRM)}")
    a(f"v_lshl_add_u32 {v(SRM)}, {v(T1)}, 8, {v(SRM)}")
    a(f"v_add_u32 {v(SRM)}, {SBUF + w * 1536 + 1024}, {v(SRM)}")
    a(f"v_add_u32 {v(T1)}, {2 * w}, {v(T1)}")
    a(f"v_bfe_u32 {v(PTA)}, v0, 3, 2")
    a(f"v_lshlrev_b32 {v(PTA)}, 7, {v(PTA)}")
    a(f"v_lshl_add_u32 {v(PTA)}, {v(T1)}, 4, {v(PTA)}")
    a(f"v_and_b32 {v(T0)}, 7, v0")
    a(f"v_lshl_add_u32 {v(PTA)}, {v(T0)}, 1, {v(PTA)}")
    a(f"v_bfe_u32 {v(PMA)}, v0, 1, 1")
    a(f"v_lshlrev_b32 {v(PMA)}, 7, {v(PMA)}")
    a(f"v_lshl_add_u32 {v(PMA)}, {v(T1)}, 4, {v(PMA)}")
    a(f"v_bfe_u32 {v(T0)}, v0, 2, 1")
    a(f"v_lshl_add_u32 {v(PMA)}, {v(T0)}, 3, {v(PMA)}")
    a(f"v_and_b32 {v(T0)}, 1, v0")
    a(f"v_lshlrev_b32 {v(T0)}, 30, {v(T0)}")
    a(f"v_or_b32 {v(PTA)}, {v(PTA)}, {v(T0)}")
    a(f"v_or_b32 {v(PMA)}, {v(PMA)}, {v(T0)}")
    index_reg(a, IDX, T0)
    a(f"v_mov_b32 {v(T0)}, 0")
    a(f"v_lshlrev_b32 {v(T1)}, 2, v0")
    a(f"ds_write_b32 {v(T1)}, {v(T0)} offset:{TBUF + 7 * 256}")
    a(f"ds_write_b32 {v(T1)}, {v(T0)} offset:{MEMIMG + 7168}")
    a(f"ds_write_b32 {v(T1)}, {v(T0)} offset:{ZERO + 256 * w}")
    a(f"s_mul_i32 {s(sMEM)}, {s(S_SLOW)}, {WS['MEMG'] - WS['MEML']}")
    a(f"s_add_u32 {s(sMEM)}, {s(sMEM)}, {WS['MEML'] + own[0] * 1024}")
    a(f"s_lshl_b32 {s(sP)}, {s(S_LOC)}, 9")
    a(f"s_add_u32 {s(sP)}, {s(sP)}, {WS['PB']}")
    a(f"s_lshr_b32 {s(sPM)}, {s(S_LOC)}, 1")
    a(f"s_lshl_b32 {s(sPM)}, {s(sPM)}, 8")
    a(f"s_and_b32 {s(S_TMP)}, {s(S_LOC)}, 1")
    a(f"s_lshl_b32 {s(S_TMP)}, {s(S_TMP)}, 2")
    a(f"s_add_u32 {s(sPM)}, {s(sPM)}, {s(S_TMP)}")
    a(f"s_add_u32 {s(sPM)}, {s(sPM)}, {WS['PB'] + 8192}")
    a(f"s_mov_b32 {s(S_X)}, {s(S_WS)}")
    a(f"s_or_b32 {s(S_X + 1)}, {s(S_WS + 1)}, 0x80000")
    a(f"s_mov_b32 {s(S_X + 2)}, {(8 - p0) * 128}")
    a(f"s_mov_b32 {s(S_X + 3)}, 0x00020000")
    a(f"s_mov_b32 {s(S_OUT)}, {s(S_WS)}")
    a(f"s_mov_b32 {s(S_OUT + 1)}, {s(S_X + 1)}")
    a(f"s_mov_b32 {s(S_OUT + 2)}, {56 * 16}")
    a(f"s_mov_b32 {s(S_OUT + 3)}, 0x00020000")
    a(f"s_lshl_b32 {s(sY)}, {s(S_LOC)}, 15")
    a(f"s_add_u32 {s(sY)}, {s(sY)}, {WS['YL'] + Y_SEG + w * 8192 + p0 * 1024}")
    a(f"s_mov_b32 {s(sR)}, {WS['YR'] + 128}")
    a(f"s_mov_b32 {s(S_TMP + 7)}, 0x3e800000")
    a(f"s_mov_b32 {s(sX0)}, {WS['XT']}")
    a(f"s_mov_b32 {s(sX1)}, {WS['XT'] + 14336}")
    a(f"s_mov_b32 {s(S_STEP)}, 0")
    a("s_waitcnt lgkmcnt(0)")
    a(f"v_lshrrev_b32 v0, 4, {v(L16)}")
    wait_tasks(a, "LZ", 14, 12)
    milestone(a, cfg, 1, T0)

    T0 = JUNK = 0

    def load_keys(i):
        kt, q = i & 1, i >> 1
        a(f"buffer_load_dwordx4 {v(XK + 16 * kt + 4 * q, 4)}, {v(XKA)}, {WS_SRD}, {s(sX1 if kt else sX0)} offen offset:{q * 1024}")
    a(f"s_mov_b32 {s(S_BELL)}, {WS['BELL']}")
    a(f"s_lshl_b32 {s(sOWN)}, {s(S_LOC)}, 2")
    a(f"s_add_u32 {s(sOWN)}, {s(sOWN)}, {WS['BELL']}")
    a(f"s_mov_b32 {s(sVAL)}, {s(S_TAG)}")
    top = f"S1_STEP{w}"
    a.label(top)
    a(f"buffer_load_dword {v(MK)}, off, {WS_SRD}, {s(sR)} sc1")
    for r in range(32):
        a(f"v_mov_b32 {v(12 + r)}, 0")
    stamp(a, cfg, 0)
    if cfg.get("stamps"):
        a(f"s_memtime {s(S_CLK + 22, 2)}")
    first = a.newlabel("first")
    a(f"s_cmp_eq_u32 {s(S_STEP)}, 0")
    a(f"s_cbranch_scc1 {first}")
    wait_bell(a, cfg, MK + 1, sVAL, 64 + 2 * own[0])
    a.label(first)
    a(f"s_add_u32 {s(sVAL)}, {s(sVAL)}, 1")
    pa = [(j, k) for k in own for j in range(7)]
    poll_deep(a, [f"buffer_load_dwordx4 {v(MA + 4 * own[i], 4)}, {v(L16)}, {WS_SRD}, {s(sMEM)} offen offset:{1024 * i} sc1" for i in range(cfg.get("mpoll", 2))],
              range(MA + 4 * own[0], MA + 4 * own[0] + 4 * cfg.get("mpoll", 2)), T0,
              [lambda k=k: a.dsop(f"ds_write_b128 {v(L16)}, {v(MA + 4 * k, 4)} offset:{MEMIMG + 1024 * k}") for k in share],
              cfg.get("depth1", 2))
    stamp(a, cfg, 1)
    nh = cfg.get("nhead", 3)
    for n_, (j, k) in enumerate(pa[:nh]):
        smf(a, T(j), MA + 4 * k, blk(j, k), IDX)
        if n_ == 0:
            a(f"v_readfirstlane_b32 {s(sRDY)}, {v(MK)}")
    a.wait_ds_all()
    stamp(a, cfg, 5)
    a("s_barrier")
    stamp(a, cfg, 6)
    kg = [cfg.get("kgap0", -10) + cfg.get("kgap", 4) * i for i in range(8)]
    for n_, (j, k) in enumerate(pa[nh:]):
        if n_ < len(others):
            a.dsop(f"ds_read_b128 {v(MA + 4 * others[n_], 4)}, {v(L16)} offset:{MEMIMG + 1024 * others[n_]}", ("ma", others[n_]))
        smf(a, T(j), MA + 4 * k, blk(j, k), IDX)
        if n_ == 0:
            a(f"s_cmp_lt_u32 {s(S_LOC)}, 14")
            a(f"s_cselect_b32 {s(sRDY)}, {s(sRDY)}, 0")
            a(f"s_cmp_eq_u32 {s(sRDY)}, {s(S_TAG)}")
            a(f"s_cselect_b32 {s(S_X + 2)}, {(8 - p0) * 128 if cfg.get('assist', 0) else 0}, 0")
        if n_ - (14 - nh) in kg:
            load_keys(kg.index(n_ - (14 - nh)))
        if 5 <= n_ < 9:
            a.dsop(f"ds_read_b128 {v(MK + 4 * (n_ - 5), 4)}, {v(MKA)} offset:{MEMIMG + 512 * (n_ - 5)}", "mk")

    def post(j):
        return [lambda: a(f"v_permlane32_swap_b32 {v(T(j, 0))}, {v(T(j, 2))}"),
                lambda: a(f"v_permlane32_swap_b32 {v(T(j, 1))}, {v(T(j, 3))}"),
                lambda: (a(f"v_add_f32 {v(T(j, 0))}, {v(T(j, 0))}, {v(T(j, 2))}"),
                         a(f"v_add_f32 {v(T(j, 1))}, {v(T(j, 1))}, {v(T(j, 3))}")),
                lambda: a(f"v_cvt_pk_bf16_f32 {v(T(j, 0))}, {v(T(j, 0))}, {v(T(j, 1))}"),
                lambda: a.dsop(f"ds_write_b32 {v(TWA)}, {v(T(j, 0))} offset:{256 * j}")]

    main, fill = [], {}
    for j in range(7):
        for k in others:
            def mm(j=j, k=k):
                if j == 0:
                    a.wait_ds(("ma", k))
                smf(a, T(j), MA + 4 * k, blk(j, k), IDX)
            main.append(mm)
    for i in range(8):
        if kg[i] >= 0:
            fill[kg[i]] = [lambda i=i: load_keys(i)]
    ag = kg[7] + 4
    fill.setdefault(ag, []).append(lambda: a(f"buffer_load_dword {v(JUNK)}, {v(L16)}, {s(S_X, 4)}, {s(sY)} idxen sc1"))
    after = lambda gap: sum(g > gap for g in kg) + (ag > gap)
    for j in range(6):
        for i, f in enumerate(post(j)):
            fill.setdefault(5 * (j + 1) + 2 + i, []).append(f)
    zgap = 21
    fill[zgap].append(lambda: a(f"s_waitcnt vmcnt({9 - after(zgap)})"))
    for q in range(2):
        fill[zgap].append(lambda q=q: a.dsop(f"ds_read_b128 {v(SC[q], 4)}, {v(L16)} offset:{ZERO}", "z"))
    for q in range(2):
        fill.setdefault(26 + 5 * q, []).append(lambda q=q: a.dsop(f"ds_read_b64_tr_b16 {v(TOP0 + 2 * q, 2)}, {v(TRA)} offset:{128 * q}", "t0"))
    stamp(a, cfg, 7)
    fill.setdefault(4, []).append(lambda: stamp(a, cfg, 8))
    fill.setdefault(24, []).append(lambda: stamp(a, cfg, 9))
    fill.setdefault(34, []).append(lambda: stamp(a, cfg, 10))
    tail = [f for i in sorted(fill) if i >= 35 for f in fill[i]]
    interleave(a, main, {i: f for i, f in fill.items() if i < 35})
    def ring(at):
        if w == 0 and cfg.get("bell", 0) and cfg.get("bell1", 1) == at:
            a(f"v_mov_b32 {v(T(2))}, {s(sVAL)}")
            a(f"buffer_store_dword {v(T(2))}, off, {WS_SRD}, {s(sOWN)}")
    a("s_waitcnt vmcnt(5)")
    ring(0)
    a.wait_ds("t0")
    keys = [XK, XK + 16, MK]
    for t in range(3):
        smf(a, SC[t], TOP0, v(keys[t], 8), IDX, True)
        if t < len(tail):
            tail[t]()
    for f in post(6):
        f()
    for q in range(2):
        a.dsop(f"ds_read_b64_tr_b16 {v(TOP1 + 2 * q, 2)}, {v(TRA)} offset:{1024 + 128 * q}", "t1")
    stamp(a, cfg, 2)
    a(f"s_waitcnt vmcnt({2 if w == 0 and cfg.get('bell', 0) and cfg.get('bell1', 1) == 0 else 1})")
    ring(1)
    a.wait_ds("t1")
    for t in range(3):
        smf(a, SC[t], TOP1, v(keys[t] + 8, 8), IDX, True)
    swaps = lambda x: (a(f"v_permlane32_swap_b32 {v(x)}, {v(x + 2)}"), a(f"v_permlane32_swap_b32 {v(x + 1)}, {v(x + 3)}"))
    adds = lambda x: (a(f"v_add_f32 {v(x)}, {v(x)}, {v(x + 2)}"), a(f"v_add_f32 {v(x + 1)}, {v(x + 1)}, {v(x + 3)}"))
    write = lambda t: a.dsop(f"ds_write_b64 {v(SWA)}, {v(SC[t], 2)} offset:{512 * t}")
    a.nop(cfg.get("scnop", 2))
    if cfg.get("reorder", 1):
        swaps(SC[0]); adds(SC[0]); swaps(SC[1]); write(0); adds(SC[1]); swaps(SC[2]); write(1); adds(SC[2]); write(2)
    else:
        for t in range(3):
            swaps(SC[t]); adds(SC[t]); write(t)
    ring(2)
    a.wait_ds_all()
    a("s_barrier")
    stamp(a, cfg, 3)
    R, Q, LIM = T(3), T(4), T(5)
    a.dsop(f"ds_read_b128 {v(R, 4)}, {v(SRA)}", "r")
    a.dsop(f"ds_read_b128 {v(Q, 4)}, {v(SRM)}", "q")
    a(f"v_mov_b32 {v(LIM)}, 0x42800000")
    a.wait_ds("r")
    a(f"v_pk_add_f32 {v(R, 2)}, {v(R, 2)}, {v(R + 2, 2)}")
    a.wait_ds("q")
    a(f"v_pk_add_f32 {v(Q, 2)}, {v(Q, 2)}, {v(Q + 2, 2)}")
    a.nop(1)
    a(f"v_permlane32_swap_b32 {v(R)}, {v(R + 1)}")
    a(f"v_permlane32_swap_b32 {v(Q)}, {v(Q + 1)}")
    A_, B_, M, M2 = R, Q, R + 2, R + 3
    a(f"v_add_f32 {v(A_)}, {v(R)}, {v(R + 1)}")
    a(f"v_add_f32 {v(B_)}, {v(Q)}, {v(Q + 1)}")

    def reduce32(op, under=()):
        under = list(under)
        for ctl in ("quad_perm:[1,0,3,2]", "quad_perm:[2,3,0,1]", "row_half_mirror", "row_mirror"):
            if under:
                a(under.pop(0))
                a.nop(1)
            else:
                a.nop(2)
            a(f"{op}_dpp {v(M)}, {v(M)}, {v(M)} {ctl} row_mask:0xf bank_mask:0xf")
        a(f"v_mov_b32 {v(M2)}, {v(M)}")
        a.nop(2)
        a(f"v_permlane16_swap_b32 {v(M2)}, {v(M)}")
        a(f"{op} {v(M)}, {v(M)}, {v(M2)}")

    def true_max(da=A_, db=B_):
        a(f"v_max_f32 {v(M)}, {v(R)}, {v(Q)}")
        reduce32("v_max_f32")
        a(f"v_sub_f32 {v(R)}, {v(R)}, {v(M)}")
        a(f"v_sub_f32 {v(Q)}, {v(Q)}, {v(M)}")
        a(f"v_exp_f32 {v(da)}, {v(R)}")
        a(f"v_exp_f32 {v(db)}, {v(Q)}")

    late = []
    if cfg.get("quickmax", 1):
        shifted, ranged = a.newlabel("shift"), a.newlabel("range")
        a(f"v_max_f32 {v(M)}, |{v(A_)}|, |{v(B_)}|")
        a(f"v_exp_f32 {v(R + 1)}, {v(A_)}")
        a(f"v_cmp_nle_f32 vcc, {v(M)}, {v(LIM)}")
        a(f"v_exp_f32 {v(Q + 1)}, {v(B_)}")
        a(f"s_cbranch_vccnz {shifted}")
        a.label(ranged)
        late.append((shifted, ranged))
        A_, B_, NA, NB = R + 1, Q + 1, R, Q
    else:
        true_max()
        a.nop(1)
        NA, NB = R + 1, Q + 1
    a(f"v_fma_f32 {v(M)}, {v(B_)}, {s(S_TMP + 7)}, {v(A_)}")
    reduce32("v_add_f32", [f"v_mov_b32_dpp {v(NA)}, {v(A_)} quad_perm:[1,0,3,2] row_mask:0xf bank_mask:0xf",
                           f"v_mov_b32_dpp {v(NB)}, {v(B_)} quad_perm:[1,0,3,2] row_mask:0xf bank_mask:0xf"])
    a(f"v_rcp_f32 {v(M)}, {v(M)}")
    a(f"s_cmp_lg_u32 {s(S_SLOW)}, 0")
    a(f"v_pk_mul_f32 {v(R, 2)}, {v(R, 2)}, {v(M, 2)} op_sel_hi:[1,0] clamp")
    a(f"v_pk_mul_f32 {v(Q, 2)}, {v(Q, 2)}, {v(M, 2)} op_sel_hi:[1,0] clamp")
    a(f"v_cvt_pk_bf16_f32 {v(A_)}, {v(A_)}, {v(NA)}")
    a(f"v_cvt_pk_bf16_f32 {v(B_)}, {v(B_)}, {v(NB)}")
    local_stores(a, [f"buffer_store_dword {v(A_)}, {v(PTA)}, {WS_SRD}, {s(sP)} offen",
                     f"buffer_store_dword {v(B_)}, {v(PMA)}, {WS_SRD}, {s(sPM)} offen"], scc_set=True)
    stamp(a, cfg, 4)
    a(f"s_add_u32 {s(sR)}, {s(sR)}, 128")
    a(f"s_add_u32 {s(sY)}, {s(sY)}, {Y_SEG}")
    if cfg.get("span") and w == 0:
        for k, st in enumerate((0, 10, 60, 62)):
            skip = a.newlabel("sp")
            a(f"s_cmp_eq_u32 {s(S_STEP)}, {st}")
            a(f"s_cbranch_scc0 {skip}")
            a(f"s_memrealtime {s(S_CLK + 4 * k, 2)}")
            a(f"s_memtime {s(S_CLK + 4 * k + 2, 2)}")
            a("s_waitcnt lgkmcnt(0)")
            a.label(skip)
    if cfg.get("stamps"):
        a("s_waitcnt lgkmcnt(0)")
        a(f"s_lshl_b32 {s(S_TMP)}, {s(S_STEP)}, 6")
        a(f"v_mov_b32 {v(T1D)}, {s(S_TMP)}")
        for k, r in [(k, S_CLK + 2 * k) for k in range(12)] + [(15, S_TO)]:
            if k >= 11 or cfg["stamps"] >> k & 1:
                a(f"v_mov_b32 {v(T1D + 1)}, {s(r)}")
                a(f"ds_write_b32 {v(T1D)}, {v(T1D + 1)} offset:{32768 + 4096 * w + 4 * k}")
    a(f"s_add_u32 {s(sMEM)}, {s(sMEM)}, {MEM_SZ}")
    a(f"s_add_u32 {s(sP)}, {s(sP)}, {PB_SZ}")
    a(f"s_add_u32 {s(sPM)}, {s(sPM)}, {PB_SZ}")
    a(f"s_add_u32 {s(sX0)}, {s(sX0)}, {0 if cfg.get('samex') else XT_SEG}")
    a(f"s_add_u32 {s(sX1)}, {s(sX1)}, {0 if cfg.get('samex') else XT_SEG}")
    a(f"s_add_u32 {s(S_STEP)}, {s(S_STEP)}, 1")
    a(f"s_cmp_lt_u32 {s(S_STEP)}, {NSEG - 1}")
    a(f"s_cbranch_scc1 {top}")
    if cfg.get("span") and w == 0:
        a(f"s_lshl_b32 {s(S_TMP)}, {s(S_LOC)}, 6")
        a(f"s_add_u32 {s(S_TMP)}, {s(S_TMP)}, {WS['DBG']}")
        for k, r in enumerate(list(range(0, 16, 2)) + [30]):
            a(f"v_mov_b32 v16, {s(S_CLK + r)}")
            a(f"buffer_store_dword v16, off, {WS_SRD}, {s(S_TMP)} offset:{4 * k}")
    if cfg.get("stamps"):
        a(f"s_mul_i32 {s(S_TMP)}, {s(S_LOC)}, 0x30000")
        a(f"s_add_u32 {s(S_TMP)}, {s(S_TMP)}, {WS['DBG'] + w * 4096}")
        for i in range(4):
            a(f"ds_read_b128 {v(16, 4)}, {v(L16)} offset:{32768 + 4096 * w + 1024 * i}")
            a("s_waitcnt lgkmcnt(0)")
            a(f"buffer_store_dwordx4 {v(16, 4)}, {v(L16)}, {WS_SRD}, {s(S_TMP)} offen offset:{1024 * i}")
            a("s_waitcnt vmcnt(0)")
    a("s_endpgm")
    for shifted, ranged in late:
        a.label(shifted)
        true_max(R + 1, Q + 1)
        a(f"s_branch {ranged}")


class BRes:
    WL = 49152
    WV = 176

    def __init__(self, a, w, L16, IDX, MA, WT, ACC, ZW):
        self.a, self.w, self.L16, self.IDX, self.MA, self.WT, self.ACC, self.ZW = a, w, L16, IDX, MA, WT, ACC, ZW

    def blk(self, t, k, hi=None):
        return wblock(t * 7 + k, self.WV, hi)

    def lds_off(self, t, k, hi):
        return (t - 6) * 14336 + k * 2048 + hi * 1024

    def load(self, sloc, lbase, hook=None, hook_at=0):
        a, w = self.a, self.w
        a(f"s_mul_i32 {s(S_TMP)}, {s(sloc)}, {BL_CU}")
        a(f"s_add_u32 {s(S_TMP)}, {s(S_TMP)}, {WS['BL'] + w * 114688}")
        a(f"s_add_u32 {s(S_TMP + 1)}, {s(S_TMP)}, {6 * 14336}")
        a(f"s_add_u32 {s(S_TMP + 3)}, {s(S_TMP)}, {4 * 14336}")
        stream_load(a, [wblock(b, self.WV, hi) for b in range(28) for hi in range(2)], self.L16, S_TMP, window=40)
        for i in range(28):
            if i % 8 == 0:
                a("s_waitcnt vmcnt(40)")
                if hook and i == 8 * (hook_at - 1):
                    hook()
            a(f"s_mov_b32 m0, {self.WL + w * 28672 + i * 1024}")
            a(f"s_add_u32 {s(S_TMP + 2)}, {s(S_TMP + 1)}, {i * 1024}")
            a(f"buffer_load_dwordx4 {v(self.L16)}, {WS_SRD}, {s(S_TMP + 2)} offen lds")
        dests = [wblock(b, self.WV, hi) for b in range(28, 42) for hi in range(2)]
        for i in range(0, 28, 4):
            a("s_waitcnt vmcnt(52)")
            stream_load(a, dests[i:i + 4], self.L16, S_TMP + 3)
            a(f"s_add_u32 {s(S_TMP + 3)}, {s(S_TMP + 3)}, 4096")
        if hook and hook_at == 9:
            hook()
        a(f"v_add_u32 {v(lbase)}, {self.WL + w * 28672}, {v(self.L16)}")
        self.lbase = lbase

    def read_block(self, i, order, half=None):
        t, k = 6 + i // 7, order[i % 7]
        for hi in (range(2) if half is None else [half]):
            self.a.dsop(f"ds_read_b128 {v(self.WT + 8 * (i % 3) + 4 * hi, 4)}, {v(self.lbase)} offset:{self.lds_off(t, k, hi)}", ("wt", i))

    def zero_acc(self):
        for r in range(32):
            self.a(f"v_mov_b32 {v(self.ACC + r)}, 0")

    def cvt(self, t, slot):
        d = self.ZW + 8 * (t & 1) + 2 * (t >> 1)
        c = self.ACC + 4 * slot
        return [lambda: self.a(f"v_cvt_pk_bf16_f32 {v(d)}, {v(c)}, {v(c + 1)}"),
                lambda: self.a(f"v_cvt_pk_bf16_f32 {v(d + 1)}, {v(c + 2)}, {v(c + 3)}")]

    def mem_values(self, order, extra):
        a = self.a
        groups = ([0, 1, 2, 6], [3, 4, 5, 7])
        main, fill = [], {k: list(x) for k, x in extra.items()}
        for gi, tiles in enumerate(groups):
            for ki, k in enumerate(order):
                for ti, t in enumerate(tiles):
                    def mm(gi=gi, ki=ki, k=k, ti=ti, t=t):
                        if ti == 0 and gi == 0:
                            a.wait_ds(("ma", k))
                        if t >= 6:
                            a.wait_ds(("wt", gi * 7 + ki))
                            wr = v(self.WT + 8 * ((gi * 7 + ki) % 3), 8)
                        else:
                            wr = self.blk(t, k)
                        smf(a, self.ACC + 4 * (gi * 4 + ti), self.MA + 4 * k, wr, self.IDX)
                    main.append(mm)
                i = gi * 7 + ki
                if i + 3 < 14:
                    for hi in range(2):
                        fill.setdefault(len(main) + hi, []).append(lambda i=i, hi=hi: self.read_block(i + 3, order, hi))
        cv = [f for ti, t in enumerate(groups[0]) for f in self.cvt(t, ti)]
        for f, gap in zip(cv, (30, 31, 34, 35, 38, 39, 42, 43)):
            fill.setdefault(gap, []).append(f)
        interleave(a, main, fill)
        a.nop(3)
        for ti, t in enumerate(groups[1]):
            for f in self.cvt(t, 4 + ti):
                f()


def gen_s2(a, w, cfg):
    if cfg.get("quiet2"):
        cfg = {k: x for k, x in cfg.items() if k != "stamps"}
    L16, LB, PMA, PWA, PRA, MOA, IDX, FLG, T0, T1 = range(1, 11)
    MA, YB, ZW, PA, WT, ACC, O = 16, 44, 76, 92, 104, 128, 160
    MEMIMG, PART = 0, 8192
    sMEM, sP, sPM, sY, sY1, sF, sO, sVAL, sOWN = range(S_T0, S_T0 + 9)
    own = [2 * w, 2 * w + 1] if w < 3 else [6]
    order = own + [k for k in range(7) if k not in own]
    B = BRes(a, w, L16, IDX, MA, WT, ACC, ZW)
    ct_out = w & 1

    a.label(f"S2_W{w}")
    a(f"s_sub_u32 {s(S_LOC)}, {s(S_LOC)}, 16")
    a(f"v_lshlrev_b32 {v(L16)}, 4, v0")
    wait_tasks(a, "B", T0, T1, w)
    B.load(S_LOC, LB)
    a(f"v_and_b32 {v(T0)}, 15, v0")
    a(f"v_lshrrev_b32 {v(T1)}, 5, v0")
    a(f"v_lshlrev_b32 {v(PMA)}, 4, {v(T0)}")
    a(f"v_lshl_add_u32 {v(PMA)}, {v(T1)}, 8, {v(PMA)}")
    iota_reg(a, PWA, T1)
    a(f"v_lshlrev_b32 {v(PWA)}, 7, {v(PWA)}")
    a(f"v_lshl_add_u32 {v(PWA)}, {v(T0)}, 2, {v(PWA)}")
    a(f"v_add_u32 {v(PWA)}, {PART + w * 1024}, {v(PWA)}")
    a(f"v_lshlrev_b32 {v(PRA)}, 3, v0")
    a(f"v_add_u32 {v(PRA)}, {PART + ct_out * 512}, {v(PRA)}")
    a(f"v_lshrrev_b32 {v(T0)}, 3, v0")
    a(f"v_lshlrev_b32 {v(MOA)}, 4, {v(T0)}")
    a(f"v_bfe_u32 {v(T0)}, v0, 2, 1")
    a(f"v_lshl_add_u32 {v(MOA)}, {v(T0)}, 7, {v(MOA)}")
    a(f"v_and_b32 {v(T0)}, 3, v0")
    a(f"v_lshl_add_u32 {v(MOA)}, {v(T0)}, 2, {v(MOA)}")
    index_reg(a, IDX, T0)
    a(f"s_mul_i32 {s(sMEM)}, {s(S_SLOW)}, {WS['MEMG'] - WS['MEML']}")
    a(f"s_add_u32 {s(sMEM)}, {s(sMEM)}, {WS['MEML'] + own[0] * 1024}")
    a(f"s_mov_b32 {s(sP)}, {WS['PB'] + w * 2048}")
    a(f"s_mov_b32 {s(sPM)}, {WS['PB'] + 8192 + w * 512}")
    a(f"s_lshl_b32 {s(sY)}, {s(S_LOC)}, 15")
    a(f"s_add_u32 {s(sY)}, {s(sY)}, {WS['YL'] + w * 8192}")
    a(f"s_add_u32 {s(sY1)}, {s(sY)}, 4096")
    a(f"s_lshl_b32 {s(sF)}, {s(S_LOC)}, 4")
    a(f"s_add_u32 {s(sF)}, {s(sF)}, {WS['YF'] + w * 4}")
    a(f"s_lshl_b32 {s(sO)}, {s(S_LOC)}, 9")
    a(f"s_add_u32 {s(sO)}, {s(sO)}, {WS['MEML' if w < 2 else 'MEMG'] + MEM_SZ + ct_out * 256}")
    a(f"s_mov_b32 {s(S_STEP)}, 0")
    a(f"s_mov_b32 {s(S_BELL)}, {WS['BELL']}")
    a(f"s_lshl_b32 {s(sOWN)}, {s(S_LOC)}, 2")
    a(f"s_add_u32 {s(sOWN)}, {s(sOWN)}, {WS['BELL'] + 256}")
    a(f"s_add_u32 {s(sVAL)}, {s(S_TAG)}, 1")
    flag_load = f"buffer_load_dword {v(FLG)}, off, {WS_SRD}, {s(sF)} sc1"
    a(flag_load)
    B.zero_acc()
    wait_tasks(a, "LZ", T0, 12)
    milestone(a, cfg, 1, T0)
    wait_flag(a, FLG, flag_load)
    milestone(a, cfg, 2, T0)

    top = f"S2_STEP{w}"
    a.label(top)
    a.ds = []
    for i in range(3):
        B.read_block(i, order)
    if cfg.get("zerotop", 1):
        B.zero_acc()
    stamp(a, cfg, 0)
    poll_deep(a, [f"buffer_load_dwordx4 {v(MA + 4 * k, 4)}, {v(L16)}, {WS_SRD}, {s(sMEM)} offen offset:{1024 * i} sc1" for i, k in enumerate(own)],
              range(MA + 4 * own[0], MA + 4 * own[0] + 4 * len(own)), T0,
              [lambda k=k: a.dsop(f"ds_write_b128 {v(L16)}, {v(MA + 4 * k, 4)} offset:{MEMIMG + 1024 * k}") for k in own],
              cfg.get("depth3", 1))
    stamp(a, cfg, 1)
    a(f"s_add_u32 {s(sF)}, {s(sF)}, 224")
    a.wait_ds_all()
    a("s_barrier")
    keep_stamps(a, cfg, 6, 168)
    if w >= 2:
        skip = a.newlabel("done")
        a(f"s_cmp_eq_u32 {s(S_STEP)}, 0")
        a(f"s_cselect_b32 {s(S_TMP)}, 1, {s(S_SLOW)}")
        a(f"s_cmp_lg_u32 {s(S_TMP)}, 0")
        a(f"s_cbranch_scc1 {skip}")
        a(f"s_sub_u32 {s(S_TMP)}, {s(sO)}, {MEM_SZ}")
        a(f"buffer_store_dword {v(O)}, {v(MOA)}, {WS_SRD}, {s(S_TMP)} offen sc1")
        a.label(skip)
    for k in order[len(own):]:
        a.dsop(f"ds_read_b128 {v(MA + 4 * k, 4)}, {v(L16)} offset:{MEMIMG + 1024 * k}", ("ma", k))
    yl = [f"buffer_load_dwordx4 {v(YB + 4 * i, 4)}, {v(L16)}, {WS_SRD}, {s(sY1 if i >= 4 else sY)} offen offset:{(i % 4) * 1024} sc1" for i in range(8)]
    yl = ([flag_load] if cfg.get("noy", 0) < 2 else []) + ([] if cfg.get("noy") else yl)
    extra = {}
    for i, x in enumerate(yl):
        extra.setdefault(i * cfg.get("ygap", 1) - 1, []).append(lambda x=x: a(x))
    B.mem_values(order, extra)
    for r in range(8):
        a(f"v_mov_b32 {v(O + r)}, 0")
    if not cfg.get("zerotop", 1):
        B.zero_acc()
    stamp(a, cfg, 2)
    a("s_waitcnt vmcnt(0)")
    wait_flag(a, FLG, flag_load)
    stamp(a, cfg, 3)
    a(f"v_mov_b32 {v(T1)}, {s(sVAL)}")
    wait_bell(a, cfg, 11, sVAL, 4 * w)
    bell = f"buffer_store_dword {v(T1)}, off, {WS_SRD}, {s(sOWN)}"
    if w == 0 and cfg.get("bell", 0) and cfg.get("bell2", 1) == 0:
        a(bell)
    poll_deep(a, [f"buffer_load_dwordx4 {v(PA, 4)}, {v(L16)}, {WS_SRD}, {s(sP)} offen sc1",
                  f"buffer_load_dwordx4 {v(PA + 4, 4)}, {v(L16)}, {WS_SRD}, {s(sP)} offen offset:1024 sc1",
                  f"buffer_load_dwordx4 {v(PA + 8, 4)}, {v(PMA)}, {WS_SRD}, {s(sPM)} offen sc1"][:cfg.get("npoll", 3)],
              range(PA, PA + 4 * cfg.get("npoll", 3)), T0, (), cfg.get("depth2", 2))
    stamp(a, cfg, 4)
    for ct in range(2):
        for x, z in ((PA, YB), (PA + 4, YB + 16), (PA + 8, ZW)):
            smf(a, O + 4 * ct, x, v(z + 8 * ct, 8), IDX)
            if w == 0 and x == PA and ct == 0 and cfg.get("bell", 0) and cfg.get("bell2", 1) == 1:
                a(bell)
    swaps = lambda x: (a(f"v_permlane32_swap_b32 {v(x)}, {v(x + 2)}"), a(f"v_permlane32_swap_b32 {v(x + 1)}, {v(x + 3)}"))
    adds = lambda x: (a(f"v_add_f32 {v(x)}, {v(x)}, {v(x + 2)}"), a(f"v_add_f32 {v(x + 1)}, {v(x + 1)}, {v(x + 3)}"))
    write = lambda ct: a.dsop(f"ds_write2_b32 {v(PWA)}, {v(O + 4 * ct)}, {v(O + 4 * ct + 1)} offset0:{128 * ct} offset1:{128 * ct + 16}")
    swaps(O); adds(O); write(0); a.nop(2); swaps(O + 4); adds(O + 4); write(1)
    a.wait_ds_all()
    a("s_barrier")
    for wv in range(4):
        a.dsop(f"ds_read_b64 {v(O + 2 * wv, 2)}, {v(PRA)} offset:{1024 * wv}", ("p", wv))
    a.wait_ds(("p", 1))
    a(f"v_pk_add_f32 {v(O, 2)}, {v(O, 2)}, {v(O + 2, 2)}")
    a.wait_ds(("p", 3))
    a(f"v_pk_add_f32 {v(O + 4, 2)}, {v(O + 4, 2)}, {v(O + 6, 2)}")
    a(f"v_pk_add_f32 {v(O, 2)}, {v(O, 2)}, {v(O + 4, 2)}")
    a(f"v_cvt_pk_bf16_f32 {v(O)}, {v(O)}, {v(O + 1)}")
    a(f"v_min_u32 {v(O)}, -2, {v(O)}")
    if w < 2:
        a(f"buffer_store_dword {v(O)}, {v(MOA)}, {WS_SRD}, {s(sO)} offen")
    else:
        skip = a.newlabel("later")
        a(f"s_cmp_eq_u32 {s(S_STEP)}, {NSEG - 2}")
        a(f"s_cselect_b32 {s(S_TMP)}, 1, {s(S_SLOW)}")
        a(f"s_cmp_eq_u32 {s(S_TMP)}, 0")
        a(f"s_cbranch_scc1 {skip}")
        a(f"buffer_store_dword {v(O)}, {v(MOA)}, {WS_SRD}, {s(sO)} offen sc1")
        a.label(skip)
    stamp(a, cfg, 5)
    a(f"s_add_u32 {s(sMEM)}, {s(sMEM)}, {MEM_SZ}")
    a(f"s_add_u32 {s(sO)}, {s(sO)}, {MEM_SZ}")
    a(f"s_add_u32 {s(sVAL)}, {s(sVAL)}, 1")
    a(f"s_add_u32 {s(sP)}, {s(sP)}, {PB_SZ}")
    a(f"s_add_u32 {s(sPM)}, {s(sPM)}, {PB_SZ}")
    if not cfg.get("samey"):
        a(f"s_add_u32 {s(sY)}, {s(sY)}, {Y_SEG}")
        a(f"s_add_u32 {s(sY1)}, {s(sY1)}, {Y_SEG}")
    a(f"s_add_u32 {s(S_STEP)}, {s(S_STEP)}, 1")
    a(f"s_cmp_lt_u32 {s(S_STEP)}, {NSEG - 1}")
    a(f"s_cbranch_scc1 {top}")
    dump_stamps(a, cfg, 6, 168, 4 + w, L16)
    a("s_endpgm")


def gen_wm(a, cfg):
    L128, FLA, T0, JUNK = range(1, 5)
    sM, sA, sB, sF, sU, sR = range(S_T0, S_T0 + 6)
    ahead = cfg.get("wmahead", 2)
    a.label("WM")
    a(f"s_sub_u32 {s(sU)}, {s(S_LOC)}, 30")
    a(f"s_lshl_b32 {s(sU)}, {s(sU)}, 2")
    a(f"s_add_u32 {s(sU)}, {s(sU)}, {s(S_WAVE)}")
    if cfg.get("wmhelp", 0):
        wait_tasks(a, "B", T0, JUNK, None)
        a(f"v_lshlrev_b32 {v(L128)}, 7, v0")
        a(f"s_lshr_b32 {s(sA)}, {s(sU)}, 2")
        a(f"s_mul_i32 {s(sA)}, {s(sA)}, {7 * BL_CU}")
        a(f"s_mul_i32 {s(S_TMP)}, {s(S_WAVE)}, 114688")
        a(f"s_add_u32 {s(sA)}, {s(sA)}, {s(S_TMP)}")
        a(f"s_add_u32 {s(sA)}, {s(sA)}, {WS['BL'] + 6 * 14336 - 8192 * cfg['wmhelp']}")
        for c in range(7):
            for i in range(cfg.get("wmhelp", 0)):
                a(f"s_add_u32 {s(S_TMP)}, {s(sA)}, {c * BL_CU + i * 8192}")
                a(f"buffer_load_dword {v(JUNK)}, {v(L128)}, {WS_SRD}, {s(S_TMP)} offen")
    wait_tasks(a, "LZ", T0, 8)
    a(f"s_mov_b32 {s(S_STEP)}, 0")
    a(f"s_cmp_eq_u32 {s(sU)}, 7")
    a("s_cbranch_scc0 WM_LINES")
    a(f"v_min_u32 {v(FLA)}, 55, v0")
    a(f"v_lshlrev_b32 {v(FLA)}, 2, {v(FLA)}")
    a(f"s_mov_b32 {s(sF)}, {WS['YF'] + 224}")
    a(f"s_mov_b32 {s(sR)}, {WS['YR'] + 128}")
    a.label("WM_Y")
    wait_flag(a, T0, f"buffer_load_dword {v(T0)}, {v(FLA)}, {WS_SRD}, {s(sF)} offen sc1", sleep=8, landed=False)
    a(f"buffer_store_dword {v(T0)}, off, {WS_SRD}, {s(sR)}")
    a(f"s_add_u32 {s(sF)}, {s(sF)}, 224")
    a(f"s_add_u32 {s(sR)}, {s(sR)}, 128")
    a(f"s_add_u32 {s(S_STEP)}, {s(S_STEP)}, 1")
    a(f"s_cmp_lt_u32 {s(S_STEP)}, {NSEG - 1}")
    a("s_cbranch_scc1 WM_Y")
    a("s_endpgm")
    a.label("WM_LINES")
    a(f"v_lshlrev_b32 {v(L128)}, 7, v0")
    a(f"s_mul_i32 {s(sM)}, {s(S_SLOW)}, {WS['MEMG'] - WS['MEML']}")
    a(f"s_add_u32 {s(sM)}, {s(sM)}, {WS['MEML']}")
    a(f"s_mul_i32 {s(sA)}, {s(sU)}, 7168")
    a(f"s_add_u32 {s(sA)}, {s(sA)}, {WS['XT']}")
    a(f"s_mov_b32 {s(sB)}, {XT_SEG}")
    a(f"s_cmp_lt_u32 {s(sU)}, 4")
    a("s_cbranch_scc1 WM_GO")
    a(f"s_mov_b32 {s(sA)}, {s(sM)}")
    a(f"s_mov_b32 {s(sB)}, {MEM_SZ}")
    a(f"s_cmp_eq_u32 {s(sU)}, 4")
    a("s_cbranch_scc1 WM_GO")
    a(f"s_and_b32 {s(sA)}, {s(sU)}, 1")
    a(f"s_lshl_b32 {s(sA)}, {s(sA)}, 11")
    a(f"s_add_u32 {s(sA)}, {s(sA)}, {WS['PB']}")
    a(f"s_mov_b32 {s(sB)}, {PB_SZ}")
    a.label("WM_GO")
    for i in range(ahead):
        a(f"buffer_load_dword {v(JUNK)}, {v(L128)}, {WS_SRD}, {s(sA)} offen sc1")
        a(f"s_add_u32 {s(sA)}, {s(sA)}, {s(sB)}")
    a.label("WM_STEP")
    a(f"buffer_load_dword {v(T0)}, off, {WS_SRD}, {s(sM)} sc1")
    a("s_waitcnt vmcnt(0)")
    a(f"v_cmp_eq_u32 vcc, -1, {v(T0)}")
    a("s_cbranch_vccz WM_RUN")
    a("s_sleep 4")
    a(f"s_sub_u32 {s(S_TO)}, {s(S_TO)}, 1")
    a("s_cbranch_scc0 WM_STEP")
    a("s_endpgm")
    a.label("WM_RUN")
    a(f"buffer_load_dword {v(JUNK)}, {v(L128)}, {WS_SRD}, {s(sA)} offen sc1")
    a(f"s_add_u32 {s(sA)}, {s(sA)}, {s(sB)}")
    a(f"s_add_u32 {s(sM)}, {s(sM)}, {MEM_SZ}")
    a(f"s_add_u32 {s(S_STEP)}, {s(S_STEP)}, 1")
    a(f"s_cmp_lt_u32 {s(S_STEP)}, {NSEG - ahead}")
    a("s_cbranch_scc1 WM_STEP")
    a("s_endpgm")


def gen_clean(a, cfg):
    a.label("CLEAN")
    wait_tasks(a, "LZ", 1, 2)
    for seg in (cfg.get("clean", 52), 61):
        wait_step(a, 1, seg, sleep=32)
        a("buffer_wbl2 sc1")
        a("s_waitcnt vmcnt(0)")
    a("s_endpgm")
```

```python
from asmlib import v, acc, s, interleave
from layout import *
from roles_rec import *
from roles_pre import srd, f32

MASKED = -1e9 * 1.4426950408889634


def mfma(a, d, x, y, first):
    a(f"v_mfma_f32_16x16x32_bf16 {v(d, 4)}, {x}, {y}, " + ("0" if first else v(d, 4)))


def dma_rows(a, w, l16, soff, lds, pad):
    for i in range(7):
        b = 7 * w + i
        a(f"s_mov_b32 m0, {lds + b * 1024 + (pad if b >= 14 else 0)}")
        a(f"s_add_u32 {s(S_TMP)}, {s(soff)}, {b * 1024}")
        a(f"buffer_load_dwordx4 {v(l16)}, {WS_SRD}, {s(S_TMP)} offen lds")


def first_y(a, cfg, dst):
    if cfg.get("stagger", 0):
        a(f"s_cmp_lt_u32 {s(S_GRP)}, 2")
        a(f"s_cselect_b32 {s(dst)}, 0, 4")
        a(f"s_add_u32 {s(dst)}, {s(dst)}, {s(S_GRP)}")
    else:
        a(f"s_mov_b32 {s(dst)}, {s(S_GRP)}")


def after_lead(a, tmp):
    skip = a.newlabel("lead")
    a(f"s_cmp_eq_u32 {s(S_GRP)}, 0")
    a(f"s_cbranch_scc1 {skip}")
    wait_flag(a, tmp, f"buffer_load_dword {v(tmp)}, off, {WS_SRD}, 0 offset:{WS['ARR'] + 3072} sc1", sleep=8, landed=False)
    a.label(skip)


def gen_ta(a, w, cfg):
    L16, KA, MKA, XWA, XRA, MWA, MRA, PTA, PMA, T0, T1 = range(1, 12)
    TACC, XO, TP, WV = 16, 72, 88, 120
    XPI, XTI, XS, MS = 0, 28672, 58368, 76800
    sXP, sXT, sMEM, sP, sPM = range(S_T0, S_T0 + 5)
    sMASK = S_T0 + 6
    blk = lambda j, ks: wblock(j * 7 + (ks >> 1), WV, ks & 1)
    T = lambda tt, j: TACC + 4 * (7 * tt + j)
    KO, SX, SM, MK, SCO = 16, 32, 44, 52, 68

    a.label(f"TA_W{w}")
    a(f"v_lshlrev_b32 {v(L16)}, 4, v0")
    if cfg.get("tahelp", 0):
        skip = a.newlabel("nohelp")
        a(f"s_cmp_lt_u32 {s(S_LOC)}, 14")
        a(f"s_cbranch_scc0 {skip}")
        wait_tasks(a, "B", T0, T1, w)
        if cfg.get("chain"):
            after_lead(a, T0)
        a(f"v_lshlrev_b32 {v(T0)}, 7, v0")
        a(f"s_mul_i32 {s(S_TMP)}, {s(S_LOC)}, {BL_CU}")
        a(f"s_add_u32 {s(S_TMP)}, {s(S_TMP)}, {WS['BL'] + w * 114688 + 57344}")
        for i in (4, 5, 6, 0, 1, 2, 3):
            a(f"s_add_u32 {s(S_TMP + 1)}, {s(S_TMP)}, {i * 8192}")
            a(f"buffer_load_dword {v(T1)}, {v(T0)}, {WS_SRD}, {s(S_TMP + 1)} offen")
        a.label(skip)
    wait_tasks(a, "A", T0, T1)
    if cfg.get("tagate"):
        wait_tasks(a, "LZ", T0, 12)
        wait_step(a, T0, cfg["tagate"], cfg.get("tastep", 2))
    else:
        first_y(a, cfg, S_TMP + 2)
        wait_first_y(a, T0, S_TMP + 2)
    a(f"s_mul_i32 {s(S_TMP)}, {s(S_LOC)}, {AL_HEAD}")
    a(f"s_add_u32 {s(S_TMP)}, {s(S_TMP)}, {WS['AL'] + w * 100352}")
    stream_load(a, [wblock(b, WV, hi) for b in range(49) for hi in range(2)], L16, S_TMP)
    a(f"v_and_b32 {v(T0)}, 15, v0")
    a(f"v_lshrrev_b32 {v(T1)}, 4, v0")
    a(f"v_lshrrev_b32 {v(MKA)}, 5, v0")
    a(f"v_add_u32 {v(MKA)}, {14 * w}, {v(MKA)}")
    a(f"v_lshrrev_b32 {v(KA)}, 2, {v(MKA)}")
    a(f"v_lshlrev_b32 {v(KA)}, 10, {v(KA)}")
    a(f"v_and_b32 {v(XWA)}, 3, {v(MKA)}")
    a(f"v_lshl_add_u32 {v(KA)}, {v(XWA)}, 8, {v(KA)}")
    a(f"v_lshl_add_u32 {v(KA)}, {v(T0)}, 4, {v(KA)}")
    a(f"v_and_b32 {v(XWA)}, 1, {v(T1)}")
    a(f"v_lshl_add_u32 {v(KA)}, {v(XWA)}, 3, {v(KA)}")
    a(f"v_add_u32 {v(KA)}, {XTI}, {v(KA)}")
    a(f"v_lshlrev_b32 {v(MKA)}, 7, {v(MKA)}")
    a(f"v_lshl_add_u32 {v(MKA)}, {v(XWA)}, 3, {v(MKA)}")
    a(f"v_and_b32 {v(XRA)}, 7, v0")
    a(f"v_lshl_add_u32 {v(MKA)}, {v(XRA)}, 4, {v(MKA)}")
    a(f"v_mul_u32_u24 {v(MWA)}, 144, {v(T0)}")
    a(f"v_lshl_add_u32 {v(MRA)}, {v(T1)}, 4, {v(MWA)}")
    a(f"v_lshl_add_u32 {v(MWA)}, {v(XWA)}, 4, {v(MWA)}")
    a(f"v_add_u32 {v(XWA)}, {XS + w * 4608}, {v(MRA)}")
    a(f"v_add_u32 {v(MWA)}, {MS + w * 32}, {v(MWA)}")
    a(f"v_lshrrev_b32 {v(T0)}, 3, v0")
    a(f"v_add_u32 {v(T0)}, {8 * w}, {v(T0)}")
    a(f"v_and_b32 {v(T1)}, 7, v0")
    a(f"v_mul_u32_u24 {v(MRA)}, 144, {v(T0)}")
    a(f"v_lshl_add_u32 {v(XRA)}, {v(T1)}, 4, {v(MRA)}")
    a(f"v_add_u32 {v(XRA)}, {XS}, {v(XRA)}")
    a(f"v_lshl_add_u32 {v(MRA)}, {v(T1)}, 2, {v(MRA)}")
    a(f"v_add_u32 {v(MRA)}, {MS}, {v(MRA)}")
    a(f"v_lshlrev_b32 {v(PTA)}, 2, {v(T1)}")
    a(f"v_sub_u32 {v(PTA)}, {v(T0)}, {v(PTA)}")
    for r in range(4):
        a(f"v_cmp_le_i32 {s(sMASK + 2 * r, 2)}, {r}, {v(PTA)}")
    a(f"v_and_b32 {v(T0)}, 15, {v(T0)}")
    a(f"v_lshlrev_b32 {v(T0)}, 4, {v(T0)}")
    a(f"v_bfe_u32 {v(PMA)}, v0, 1, 1")
    a(f"v_lshl_add_u32 {v(T0)}, {v(PMA)}, 2, {v(T0)}")
    a(f"v_bfe_u32 {v(T1)}, v0, 2, 1")
    a(f"v_lshl_add_u32 {v(PMA)}, {v(T1)}, 8, {v(T0)}")
    a(f"v_lshl_add_u32 {v(PTA)}, {v(T1)}, 9, {v(T0)}")
    a(f"v_and_b32 {v(T1)}, 1, v0")
    a(f"v_lshl_add_u32 {v(PTA)}, {v(T1)}, 8, {v(PTA)}")
    a(f"v_lshlrev_b32 {v(T1)}, 30, {v(T1)}")
    a(f"v_or_b32 {v(PMA)}, {v(PMA)}, {v(T1)}")
    a(f"v_mov_b32 {v(T0)}, 0")
    a(f"v_lshlrev_b32 {v(T1)}, 2, v0")
    a(f"ds_write_b32 {v(T1)}, {v(T0)} offset:{XTI + 28672 + 256 * w}")
    for tt in range(2):
        a(f"v_mov_b32 {v(TP + 16 * tt + 14)}, 0")
        a(f"v_mov_b32 {v(TP + 16 * tt + 15)}, 0")
    a(f"s_mul_i32 {s(sXP)}, {s(S_GRP)}, {XT_SEG}")
    a(f"s_add_u32 {s(sXT)}, {s(sXP)}, {WS['XT']}")
    a(f"s_add_u32 {s(sXP)}, {s(sXP)}, {WS['XP']}")
    a(f"s_mul_i32 {s(sMEM)}, {s(S_GRP)}, {MEM_SZ}")
    a(f"s_add_u32 {s(sMEM)}, {s(sMEM)}, {WS['MEMG']}")
    a(f"s_mul_i32 {s(sP)}, {s(S_GRP)}, {PX_SZ}")
    a(f"s_add_u32 {s(sP)}, {s(sP)}, {WS['PX']}")
    a(f"s_lshr_b32 {s(sPM)}, {s(S_LOC)}, 1")
    a(f"s_lshl_b32 {s(sPM)}, {s(sPM)}, 10")
    a(f"s_and_b32 {s(S_TMP)}, {s(S_LOC)}, 1")
    a(f"s_lshl_b32 {s(S_TMP)}, {s(S_TMP)}, 3")
    a(f"s_add_u32 {s(sPM)}, {s(sPM)}, {s(S_TMP)}")
    a(f"s_add_u32 {s(sPM)}, {s(sPM)}, {s(sP)}")
    a(f"s_add_u32 {s(sPM)}, {s(sPM)}, {32768 + (w >> 1) * 512}")
    a(f"s_lshl_b32 {s(S_TMP)}, {s(S_LOC)}, 11")
    a(f"s_add_u32 {s(sP)}, {s(sP)}, {s(S_TMP)}")
    a(f"s_add_u32 {s(sP)}, {s(sP)}, {(w >> 1) * 1024}")
    a(f"s_mov_b32 {s(S_TMP + 7)}, {f32(MASKED)}")
    a(f"s_mov_b32 {s(S_STEP)}, {s(S_GRP)}")

    wait_tasks(a, "LZ", T0, 12)
    wait_tasks(a, "Z2", T0, 12)

    top = f"TA_SEG{w}"
    a.label(top)
    a.ds = []
    dma_rows(a, w, L16, sXP, XPI, 0)
    dma_rows(a, w, L16, sXT, XTI, 0)
    a("s_waitcnt vmcnt(0) lgkmcnt(0)")
    a("s_barrier")

    def read_x(ks):
        for tt in range(2):
            a.dsop(f"ds_read_b128 {v(XO + 8 * (ks & 1) + 4 * tt, 4)}, {v(L16)} offset:{XPI + tt * 14336 + ks * 1024}", ("x", ks))
    read_x(0)
    for ks in range(14):
        a.wait_ds(("x", ks))
        for n_, (tt, j) in enumerate((tt, j) for j in range(7) for tt in range(2)):
            mfma(a, T(tt, j), blk(j, ks), v(XO + 8 * (ks & 1) + 4 * tt, 4), ks == 0)
            if n_ == 1 and ks + 1 < 14:
                read_x(ks + 1)
    a.nop(2)
    for j in range(7):
        for tt in range(2):
            a(f"v_cvt_pk_bf16_f32 {v(TP + 16 * tt + 2 * j)}, {v(T(tt, j))}, {v(T(tt, j) + 1)}")
            a(f"v_cvt_pk_bf16_f32 {v(TP + 16 * tt + 2 * j + 1)}, {v(T(tt, j) + 2)}, {v(T(tt, j) + 3)}")

    def read_k(p):
        for kt in range(2):
            for q in range(2):
                a.dsop(f"ds_read_b64 {v(KO + 8 * (p & 1) + 4 * kt + 2 * q, 2)}, {v(KA)} offset:{kt * 14336 + p * 1024 + q * 512}", ("k", p))
    read_k(0)
    read_k(1)
    for p in range(4):
        a.wait_ds(("k", p))
        for t, (kt, qt) in enumerate(((0, 0), (0, 1), (1, 1))):
            mfma(a, SX + 4 * t, v(KO + 8 * (p & 1) + 4 * kt, 4), v(TP + 16 * qt + 4 * p, 4), p == 0)
        if p + 2 < 4:
            read_k(p + 2)
    a(f"v_mov_b32 {v(MK + 14)}, 0")
    a(f"v_mov_b32 {v(MK + 15)}, 0")
    a.nop(6)
    for t, (kt, qt) in enumerate(((0, 0), (0, 1), (1, 1))):
        a.dsop(f"ds_write_b128 {v(XWA)}, {v(SX + 4 * t, 4)} offset:{qt * 2304 + kt * 64}")
    a.wait_ds_all()
    a("s_barrier")
    for wv in range(4):
        a.dsop(f"ds_read_b128 {v(KO + 4 * wv, 4)}, {v(XRA)} offset:{wv * 4608}")
    a.wait_ds_all()
    for r in range(4):
        a(f"v_add_f32 {v(KO + r)}, {v(KO + r)}, {v(KO + 4 + r)}")
        a(f"v_add_f32 {v(KO + 8 + r)}, {v(KO + 8 + r)}, {v(KO + 12 + r)}")
        a(f"v_add_f32 {v(KO + r)}, {v(KO + r)}, {v(KO + 8 + r)}")
        a(f"v_mov_b32 {v(SCO + r)}, {s(S_TMP + 7)}")
        a(f"v_cndmask_b32 {v(SCO + r)}, {v(SCO + r)}, {v(KO + r)}, {s(sMASK + 2 * r, 2)}")
    M, E, M1 = KO, KO + 1, KO + 2
    a(f"v_max3_f32 {v(SX)}, {v(SCO)}, {v(SCO + 1)}, {v(SCO + 2)}")
    a(f"v_max_f32 {v(SX)}, {v(SX)}, {v(SCO + 3)}")
    stamp(a, cfg, 0)
    poll_deep(a, [f"buffer_load_dwordx2 {v(MK + 2 * j, 2)}, {v(MKA)}, {WS_SRD}, {s(sMEM)} offen offset:{256 * j} sc1" for j in range(7)],
              range(MK, MK + 14), T0, depth=cfg.get("tdepth", 2), sleep=(8, NSEG - 6))
    stamp(a, cfg, 1)
    for p in range(4):
        for qt in range(2):
            mfma(a, SM + 4 * qt, v(MK + 4 * p, 4), v(TP + 16 * qt + 4 * p, 4), p == 0)
    a.nop(7)
    for qt in range(2):
        a.dsop(f"ds_write_b128 {v(MWA)}, {v(SM + 4 * qt, 4)} offset:{qt * 2304}")
    a.wait_ds_all()
    a("s_barrier")
    a.dsop(f"ds_read2_b32 {v(KO + 4, 2)}, {v(MRA)} offset0:0 offset1:8")
    a.dsop(f"ds_read2_b32 {v(KO + 6, 2)}, {v(MRA)} offset0:16 offset1:24")
    a.wait_ds_all()
    a(f"v_pk_add_f32 {v(KO + 4, 2)}, {v(KO + 4, 2)}, {v(KO + 6, 2)}")
    a(f"v_add_f32 {v(E)}, {v(KO + 4)}, {v(KO + 5)}")
    a(f"v_max_f32 {v(M)}, {v(SX)}, {v(E)}")

    def reduce8(op):
        for ctl in ("quad_perm:[1,0,3,2]", "quad_perm:[2,3,0,1]", "row_half_mirror"):
            a.nop(2)
            a(f"{op}_dpp {v(M)}, {v(M)}, {v(M)} {ctl} row_mask:0xf bank_mask:0xf")
    reduce8("v_max_f32")
    for x in (E, SCO, SCO + 1, SCO + 2, SCO + 3):
        a(f"v_sub_f32 {v(x)}, {v(x)}, {v(M)}")
    for x in (E, SCO, SCO + 1, SCO + 2, SCO + 3):
        a(f"v_exp_f32 {v(x)}, {v(x)}")
    a(f"v_add_f32 {v(M)}, {v(E)}, {v(SCO)}")
    a(f"v_add_f32 {v(M1)}, {v(SCO + 1)}, {v(SCO + 2)}")
    a(f"v_add_f32 {v(M)}, {v(M)}, {v(SCO + 3)}")
    a(f"v_add_f32 {v(M)}, {v(M)}, {v(M1)}")
    a(f"v_mov_b32_dpp {v(M1)}, {v(E)} quad_perm:[1,0,3,2] row_mask:0xf bank_mask:0xf")
    reduce8("v_add_f32")
    a(f"v_rcp_f32 {v(M)}, {v(M)}")
    a(f"s_cmp_lg_u32 {s(S_SLOW)}, 0")
    for x in (SCO, SCO + 1, SCO + 2, SCO + 3, E, M1):
        a(f"v_mul_f32 {v(x)}, {v(x)}, {v(M)} clamp")
    a(f"v_cvt_pk_bf16_f32 {v(SCO)}, {v(SCO)}, {v(SCO + 1)}")
    a(f"v_cvt_pk_bf16_f32 {v(SCO + 2)}, {v(SCO + 2)}, {v(SCO + 3)}")
    a(f"v_cvt_pk_bf16_f32 {v(E)}, {v(E)}, {v(M1)}")
    local_stores(a, [f"buffer_store_dword {v(SCO)}, {v(PTA)}, {WS_SRD}, {s(sP)} offen",
                     f"buffer_store_dword {v(SCO + 2)}, {v(PTA)}, {WS_SRD}, {s(sP)} offen offset:8",
                     f"buffer_store_dword {v(E)}, {v(PMA)}, {WS_SRD}, {s(sPM)} offen"], scc_set=True)
    stamp(a, cfg, 2)
    flush_stamps(a, cfg, 3, 8 + w, T0)
    for r, step in ((sXP, XT_SEG), (sXT, XT_SEG), (sMEM, MEM_SZ), (sP, PX_SZ), (sPM, PX_SZ), (S_STEP, 1)):
        a(f"s_add_u32 {s(r)}, {s(r)}, {step * NCLONE}")
    a(f"s_cmp_lt_u32 {s(S_STEP)}, {NSEG}")
    a(f"s_cbranch_scc1 {top}")
    a("s_endpgm")


def gen_tb(a, w, cfg):
    L16, LB, XA, PMA, PW0, PW1, PRA, XRA, HA, IDX, T0, T1 = range(1, 13)
    XR = 14
    MA, YB, ZW, WT, ACC = 16, 44, 76, 92, 116
    XPI, PART, MEMIMG = 0, 28800, 28800
    sXP, sYO, sF, sYS, sY, sMEM, sP, sPM, sXR, sH, sFR = range(S_T0, S_T0 + 11)
    own = [2 * w, 2 * w + 1] if w < 3 else [6]
    order = own + [k for k in range(7) if k not in own]
    B = BRes(a, w, L16, IDX, MA, WT, ACC, ZW)
    PXQ = [MA + 4 * i for i in range(7)] + [WT + 4 * i for i in range(5)]

    a.label(f"TB_W{w}")
    srd(a, S_X, 0, 2048 * 896)
    a(f"s_sub_u32 {s(S_LOC)}, {s(S_LOC)}, 16")
    a(f"v_lshlrev_b32 {v(L16)}, 4, v0")
    wait_tasks(a, "L", T0, T1)
    first_y(a, cfg, sYS)
    a(f"s_mul_i32 {s(sXP)}, {s(sYS)}, {XT_SEG}")
    a(f"s_add_u32 {s(sXP)}, {s(sXP)}, {WS['XP']}")
    dma_rows(a, w, L16, sXP, XPI, 32)
    wait_tasks(a, "B", T0, T1, w)
    if cfg.get("stagger", 0):
        skip = a.newlabel("early")
        a(f"s_cmp_lt_u32 {s(S_GRP)}, 2")
        a(f"s_cbranch_scc1 {skip}")
        wait_first_y(a, T0, seg=0)
        a.label(skip)
    if cfg.get("chain"):
        after_lead(a, T0)

        def half():
            if w == 0:
                skip = a.newlabel("quiet")
                a(f"s_cmp_eq_u32 {s(S_LOC)}, 0")
                a(f"s_cbranch_scc0 {skip}")
                a(f"v_mov_b32 {v(T0)}, {s(S_TAG)}")
                a(f"s_lshl_b32 {s(S_TMP + 2)}, {s(S_GRP)}, 2")
                a(f"buffer_store_dword {v(T0)}, off, {WS_SRD}, {s(S_TMP + 2)} offset:{WS['ARR'] + 3072} sc1")
                a.label(skip)
        B.load(S_LOC, LB, half, cfg["chain"])
    else:
        B.load(S_LOC, LB)
    a(f"v_and_b32 {v(T0)}, 15, v0")
    a(f"v_lshrrev_b32 {v(T1)}, 4, v0")
    a(f"v_bfe_u32 {v(XA)}, v0, 3, 1")
    a(f"v_mul_u32_u24 {v(XA)}, {14336 + 32}, {v(XA)}")
    a(f"v_lshl_add_u32 {v(XA)}, {v(T1)}, 8, {v(XA)}")
    a(f"v_bfe_u32 {v(PMA)}, v0, 2, 1")
    a(f"v_lshl_add_u32 {v(XA)}, {v(PMA)}, 6, {v(XA)}")
    a(f"v_bfe_u32 {v(PMA)}, v0, 1, 1")
    a(f"v_lshl_add_u32 {v(XA)}, {v(PMA)}, 7, {v(XA)}")
    a(f"v_and_b32 {v(PMA)}, 1, v0")
    a(f"v_lshl_add_u32 {v(XA)}, {v(PMA)}, 4, {v(XA)}")
    a(f"v_and_b32 {v(PMA)}, 31, v0")
    a(f"v_lshlrev_b32 {v(PMA)}, 4, {v(PMA)}")
    a(f"v_mul_u32_u24 {v(PW0)}, 576, {v(T1)}")
    a(f"v_lshl_add_u32 {v(PW0)}, {v(T0)}, 2, {v(PW0)}")
    a(f"v_add_u32 {v(PW0)}, {PART + w * 4608}, {v(PW0)}")
    a(f"v_add_u32 {v(PW1)}, 2304, {v(PW0)}")
    a(f"v_lshrrev_b32 {v(T0)}, 3, v0")
    a(f"v_add_u32 {v(T0)}, {8 * w}, {v(T0)}")
    a(f"v_and_b32 {v(T1)}, 7, v0")
    a(f"v_mul_u32_u24 {v(PRA)}, 144, {v(T0)}")
    a(f"v_lshl_add_u32 {v(PRA)}, {v(T1)}, 4, {v(PRA)}")
    a(f"v_add_u32 {v(PRA)}, {PART}, {v(PRA)}")
    a(f"v_mul_u32_u24 {v(XRA)}, 896, {v(T0)}")
    a(f"v_lshl_add_u32 {v(XRA)}, {v(T1)}, 3, {v(XRA)}")
    a(f"v_and_b32 {v(HA)}, 15, {v(T0)}")
    a(f"v_lshlrev_b32 {v(HA)}, 4, {v(HA)}")
    a(f"v_lshrrev_b32 {v(T0)}, 1, {v(T1)}")
    a(f"v_lshl_add_u32 {v(HA)}, {v(T0)}, 8, {v(HA)}")
    a(f"v_and_b32 {v(T0)}, 1, {v(T1)}")
    a(f"v_lshl_add_u32 {v(HA)}, {v(T0)}, 3, {v(HA)}")
    index_reg(a, IDX, T0)
    a(f"s_mul_i32 {s(sXR)}, {s(S_GRP)}, {XT_SEG}")
    a(f"s_lshl_b32 {s(S_TMP)}, {s(S_LOC)}, 10")
    a(f"s_add_u32 {s(sH)}, {s(sXR)}, {s(S_TMP)}")
    a(f"s_add_u32 {s(sH)}, {s(sH)}, {WS['HT'] + (w >> 1) * 14336}")
    a(f"s_lshl_b32 {s(S_TMP)}, {s(S_LOC)}, 6")
    a(f"s_add_u32 {s(sXR)}, {s(sXR)}, {s(S_TMP)}")
    a(f"s_lshl_b32 {s(S_TMP)}, {s(S_LOC)}, 15")
    a(f"s_add_u32 {s(S_TMP)}, {s(S_TMP)}, {WS['YL'] + w * 8192}")
    a(f"s_mul_i32 {s(sY)}, {s(S_GRP)}, {Y_SEG}")
    a(f"s_add_u32 {s(sY)}, {s(sY)}, {s(S_TMP)}")
    a(f"s_mul_i32 {s(sYO)}, {s(sYS)}, {Y_SEG}")
    a(f"s_add_u32 {s(sYO)}, {s(sYO)}, {s(S_TMP)}")
    a(f"s_lshl_b32 {s(S_TMP)}, {s(S_LOC)}, 4")
    a(f"s_add_u32 {s(S_TMP)}, {s(S_TMP)}, {WS['YF'] + 4 * w}")
    a(f"s_mul_i32 {s(sF)}, {s(sYS)}, 224")
    a(f"s_add_u32 {s(sF)}, {s(sF)}, {s(S_TMP)}")
    a(f"s_mul_i32 {s(sFR)}, {s(S_GRP)}, 224")
    a(f"s_add_u32 {s(sFR)}, {s(sFR)}, {s(S_TMP)}")
    a(f"s_mul_i32 {s(sMEM)}, {s(S_GRP)}, {MEM_SZ}")
    a(f"s_add_u32 {s(sMEM)}, {s(sMEM)}, {WS['MEMG'] + own[0] * 1024}")
    a(f"s_mul_i32 {s(sP)}, {s(S_GRP)}, {PX_SZ}")
    a(f"s_add_u32 {s(sPM)}, {s(sP)}, {WS['PX'] + 32768 + w * 2048}")
    a(f"s_add_u32 {s(sP)}, {s(sP)}, {WS['PX'] + w * 8192}")
    a(f"s_mov_b32 {s(S_STEP)}, {s(S_GRP)}")
    a("s_waitcnt vmcnt(56) lgkmcnt(0)")
    a(f"s_branch TB_Y{w}")

    top, pv = f"TB_TOP{w}", f"TB_PV{w}"
    a.label(top)
    a(f"s_cmp_lt_u32 {s(sYS)}, {NSEG}")
    a(f"s_cbranch_scc0 {pv}")
    a.ds = []
    dma_rows(a, w, L16, sXP, XPI, 32)
    a("s_waitcnt vmcnt(0)")
    a.label(f"TB_Y{w}")
    a("s_barrier")
    for ah in range(2):
        def read_op(ks):
            for ab in range(2):
                a.dsop(f"ds_read_b128 {v(MA + 8 * (ks % 3) + 4 * ab, 4)}, {v(XA)} offset:{ks * 1024 + 32 * ab}", ("x", ks))
            if ah:
                for ct in range(2):
                    a.dsop(f"ds_read_b128 {v(WT + 8 * (ks % 3) + 4 * ct, 4)}, {v(LB)} offset:{B.lds_off(6 + ct, ks >> 1, ks & 1)}", ("x", ks))
        if ah:
            a("s_waitcnt vmcnt(4)")
        read_op(0)
        read_op(1)
        for ks in range(14):
            a.wait_ds(("x", ks))
            for n_, (t, ab) in enumerate((t, ab) for t in range(4) for ab in range(2)):
                tile = 4 * ah + t
                wr = B.blk(tile, ks >> 1, ks & 1) if tile < 6 else v(WT + 8 * (ks % 3) + 4 * (tile - 6), 4)
                mfma(a, ACC + 8 * t + 4 * ab, v(MA + 8 * (ks % 3) + 4 * ab, 4), wr, ks == 0)
                if n_ == 1 and ks + 2 < 14:
                    read_op(ks + 2)
        a.nop(2)
        if ah:
            a(f"s_add_u32 {s(S_TMP)}, {s(sYO)}, 4096")
        for t in range(4):
            o = YB + 16 * ah + 4 * t
            for i in range(4):
                a(f"v_cvt_pk_bf16_f32 {v(o + i)}, {v(ACC + 8 * t + 2 * i)}, {v(ACC + 8 * t + 2 * i + 1)}")
            a(f"buffer_store_dwordx4 {v(o, 4)}, {v(L16)}, {WS_SRD}, {s(S_TMP if ah else sYO)} offen offset:{(t & 1) * 2048 + (t >> 1) * 1024} sc1")
    a(f"v_mov_b32 {v(T0)}, {s(S_TAG)}")
    a("s_waitcnt vmcnt(0)")
    a(f"buffer_store_dword {v(T0)}, off, {WS_SRD}, {s(sF)} sc1")
    if cfg.get("stamps"):
        skip = a.newlabel("ms")
        a(f"s_cmp_lt_u32 {s(sYS)}, {NCLONE}")
        a(f"s_cbranch_scc0 {skip}")
        milestone(a, cfg, 2, T1)
        a.label(skip)
    a(f"s_cmp_lt_u32 {s(sYS)}, {4 if cfg.get('stagger', 0) else 0}")
    a(f"s_cselect_b32 {s(S_TMP + 1)}, 2, {NCLONE}")
    for r, step in ((sXP, XT_SEG), (sYO, Y_SEG), (sF, 224), (sYS, 1)):
        a(f"s_mul_i32 {s(S_TMP)}, {s(S_TMP + 1)}, {step}")
        a(f"s_add_u32 {s(r)}, {s(r)}, {s(S_TMP)}")
    a(f"s_cmp_lt_u32 {s(sYS)}, {cfg.get('yahead', 3) * NCLONE}")
    a(f"s_cbranch_scc0 TB_PV0{w}")
    a("s_barrier")
    a(f"s_branch {top}")
    a.label(f"TB_PV0{w}")
    a(f"s_cmp_lt_u32 {s(S_STEP)}, {NCLONE}")
    a(f"s_cbranch_scc0 {pv}")
    wait_tasks(a, "LZ", T0, XR)
    wait_tasks(a, "Z2", T0, XR)

    a.label(pv)
    a.ds = []
    a("s_barrier")
    wait_flag(a, T0, f"buffer_load_dword {v(T0)}, off, {WS_SRD}, {s(sFR)} sc1", landed=False)
    a(f"s_add_u32 {s(S_TMP)}, {s(sY)}, 4096")
    for i in range(8):
        a(f"buffer_load_dwordx4 {v(YB + 4 * i, 4)}, {v(L16)}, {WS_SRD}, {s(S_TMP if i >= 4 else sY)} offen offset:{(i % 4) * 1024} sc1")
    a(f"buffer_load_dwordx2 {v(XR, 2)}, {v(XRA)}, {s(S_X, 4)}, {s(sXR)} offen")
    for i in range(3):
        B.read_block(i, order)
    B.zero_acc()
    stamp(a, cfg, 0)
    poll(a, [f"buffer_load_dwordx4 {v(MA + 4 * k, 4)}, {v(L16)}, {WS_SRD}, {s(sMEM)} offen offset:{1024 * i} sc1" for i, k in enumerate(own)],
         range(MA + 4 * own[0], MA + 4 * own[0] + 4 * len(own)), T0, cfg.get('psleep', 0))
    stamp(a, cfg, 1)
    for k in own:
        a.dsop(f"ds_write_b128 {v(L16)}, {v(MA + 4 * k, 4)} offset:{MEMIMG + 1024 * k}")
    a.wait_ds_all()
    a("s_barrier")
    for k in order[len(own):]:
        a.dsop(f"ds_read_b128 {v(MA + 4 * k, 4)}, {v(L16)} offset:{MEMIMG + 1024 * k}", ("ma", k))
    B.mem_values(order, {})
    a("s_barrier")
    a(f"s_add_u32 {s(S_TMP)}, {s(sP)}, 4096")
    loads = [f"buffer_load_dwordx4 {v(PXQ[i], 4)}, {v(L16)}, {WS_SRD}, {s(S_TMP if i >= 4 else sP)} offen offset:{(i % 4) * 1024} sc1" for i in range(8)]
    loads += [f"buffer_load_dwordx4 {v(PXQ[8 + i], 4)}, {v(PMA)}, {WS_SRD}, {s(sPM)} offen offset:{i * 512} sc1" for i in range(4)]
    stamp(a, cfg, 2)
    poll(a, loads, [q + r for q in PXQ for r in range(4)], T0)
    stamp(a, cfg, 3)
    O = lambda qt, ct: ACC + 8 * qt + 4 * ct
    for hl in range(4):
        for qt in range(2):
            for ct in range(2):
                mfma(a, O(qt, ct), v(PXQ[2 * hl + qt], 4), v(YB + 16 * (hl >> 1) + 8 * ct + 4 * (hl & 1), 4), hl == 0)
    for hp in range(2):
        for qt in range(2):
            for ct in range(2):
                mfma(a, O(qt, ct), v(PXQ[8 + 2 * hp + qt], 4), v(ZW + 8 * ct + 4 * hp, 4), False)
    a.nop(7)
    for qt in range(2):
        for r in range(4):
            a.dsop(f"ds_write2_b32 {v(PW1 if qt else PW0)}, {v(O(qt, 0) + r)}, {v(O(qt, 1) + r)} offset0:{36 * r} offset1:{36 * r + 16}")
    a.wait_ds_all()
    a("s_barrier")
    for wv in range(4):
        a.dsop(f"ds_read_b128 {v(ACC + 4 * wv, 4)}, {v(PRA)} offset:{wv * 4608}")
    a(f"v_lshlrev_b32 {v(ACC + 16)}, 16, {v(XR)}")
    a(f"v_and_b32 {v(ACC + 17)}, 0xffff0000, {v(XR)}")
    a(f"v_lshlrev_b32 {v(ACC + 18)}, 16, {v(XR + 1)}")
    a(f"v_and_b32 {v(ACC + 19)}, 0xffff0000, {v(XR + 1)}")
    a.wait_ds_all()
    for i in (0, 2):
        a(f"v_pk_add_f32 {v(ACC + i, 2)}, {v(ACC + i, 2)}, {v(ACC + 4 + i, 2)}")
        a(f"v_pk_add_f32 {v(ACC + 8 + i, 2)}, {v(ACC + 8 + i, 2)}, {v(ACC + 12 + i, 2)}")
        a(f"v_pk_add_f32 {v(ACC + i, 2)}, {v(ACC + i, 2)}, {v(ACC + 8 + i, 2)}")
        a(f"v_cvt_pk_bf16_f32 {v(ACC + i + 1)}, {v(ACC + i)}, {v(ACC + i + 1)}")
        a(f"v_lshlrev_b32 {v(ACC + i)}, 16, {v(ACC + i + 1)}")
        a(f"v_and_b32 {v(ACC + i + 1)}, 0xffff0000, {v(ACC + i + 1)}")
        a(f"v_pk_add_f32 {v(ACC + i, 2)}, {v(ACC + i, 2)}, {v(ACC + 16 + i, 2)}")
        a(f"v_cvt_pk_bf16_f32 {v(ACC + 20 + i // 2)}, {v(ACC + i)}, {v(ACC + i + 1)}")
        a(f"v_min_u32 {v(ACC + 20 + i // 2)}, -2, {v(ACC + 20 + i // 2)}")
    a(f"buffer_store_dwordx2 {v(ACC + 20, 2)}, {v(HA)}, {WS_SRD}, {s(sH)} offen sc1")
    stamp(a, cfg, 4)
    flush_stamps(a, cfg, 5, 12 + w, T0)
    for r, step in ((sY, Y_SEG), (sFR, 224), (sMEM, MEM_SZ), (sP, PX_SZ), (sPM, PX_SZ), (sXR, XT_SEG), (sH, XT_SEG), (S_STEP, 1)):
        a(f"s_add_u32 {s(r)}, {s(r)}, {step * NCLONE}")
    a(f"s_cmp_lt_u32 {s(S_STEP)}, {NSEG}")
    a(f"s_cbranch_scc1 {top}")
    a("s_endpgm")
```

```python
NSEG = 64
NCLONE = 4
NFFN = 3

MEM_SZ = 7168
PB_SZ = 10240
PX_SZ = 40960
XT_SEG = 28672
H1_SEG = 114688
Y_SEG = 458752
AL_HEAD = 401408
BL_CU = 458752

WS = {}
_off = 0


def _region(name, size):
    global _off
    WS[name] = _off
    _off += (size + 4095) // 4096 * 4096


_region("ARR", 8192)
YF_SEG = 14 * 128
_region("YF", (NSEG + 1) * YF_SEG)
_region("YR", (NSEG + 2) * 128)
_region("GATE", 8 * 128)
_region("HF", 2 * NSEG * 14 * 4 * 4)
_region("BELL", 4096)
POISON_BEGIN = _off
_region("MEML", NSEG * MEM_SZ)
_region("MEMG", NSEG * MEM_SZ)
_region("PB", NSEG * PB_SZ)
_region("PX", NSEG * PX_SZ)
_region("HT", NSEG * XT_SEG)
POISON_END = _off
_region("XT", NSEG * XT_SEG + 4096)
_region("XP", NSEG * XT_SEG)
_region("AL", 16 * AL_HEAD)
_region("BL", 14 * BL_CU)
_region("H1T", NSEG * H1_SEG)
_region("YL", NSEG * Y_SEG)
_region("DBG", 4 << 20)
WS_USED = _off
WS_BYTES = 268435456


def d32(g, e):
    return 16 * (g >> 1) + 4 * (g & 1) + 8 * ((e >> 1) & 1) + 2 * (e >> 2) + (e & 1)
```

```python
from asmlib import Asm, v, acc, s
from layout import *
from roles_rec import *
from roles_pre import srd, f32, row_sum4, ln_scalars, ln_apply
from roles_tok import mfma

GELU_C1 = -2.0 * 1.4426950408889634 * 0.7978845608028654
GELU_C2 = GELU_C1 * 0.044715


def unpack(a, dst, src, n):
    for i in range(n):
        a(f"v_lshlrev_b32 {v(dst + 2 * i)}, 16, {v(src + i)}")
        a(f"v_and_b32 {v(dst + 2 * i + 1)}, 0xffff0000, {v(src + i)}")


NTILE = 2 * NSEG


def gen_f1(a, w, cfg):
    L16, DA, TRA, SA, T0, T1, MEAN, M2, TM = range(1, 10)
    BIAS, CSUM, PK, F, XO, ACC, ST, ONES, SW = 16, 24, 32, 48, 80, 96, 104, 112, 14
    HN, STAT, STAGE = 0, 14336, 32768
    sH, sO, sF, sC1, sC2 = range(S_T0, S_T0 + 5)
    sM1, sM2 = S_T0 + 6, S_T0 + 8
    ks0, nb = (0, 4, 8, 11)[w], (4, 4, 3, 3)[w]
    W = lambda ab, ks: acc(8 * ks + 4 * ab, 4)

    a.label(f"F1_W{w}")
    srd(a, S_X, 64, 448 * 3584)
    srd(a, S_AUX, 72, 3584)
    a(f"v_lshlrev_b32 {v(L16)}, 4, v0")
    a(f"v_lshrrev_b32 {v(T0)}, 2, v0")
    a(f"v_mul_u32_u24 {v(DA)}, 3584, {v(T0)}")
    a(f"v_and_b32 {v(T1)}, 3, v0")
    a(f"v_lshl_add_u32 {v(DA)}, {v(T1)}, 4, {v(DA)}")
    a(f"v_lshrrev_b32 {v(TRA)}, 4, v0")
    a(f"v_lshlrev_b32 {v(SA)}, 4, {v(TRA)}")
    a(f"v_lshlrev_b32 {v(TRA)}, 3, {v(TRA)}")
    a(f"v_and_b32 {v(T0)}, 3, {v(T0)}")
    a(f"v_add_u32 {v(TRA)}, {v(TRA)}, {v(T0)}")
    a(f"v_lshlrev_b32 {v(TRA)}, 6, {v(TRA)}")
    a(f"v_lshl_add_u32 {v(TRA)}, {v(T1)}, 4, {v(TRA)}")
    a(f"v_add_u32 {v(TRA)}, {STAGE + w * 28672}, {v(TRA)}")
    a(f"s_lshl_b32 {s(S_TMP)}, {s(S_LOC)}, 8")
    a(f"s_add_u32 {s(S_TMP)}, {s(S_TMP)}, {64 * w}")
    a("s_waitcnt lgkmcnt(0)")
    a(f"buffer_load_dwordx4 {v(PK, 4)}, {v(SA)}, {s(S_AUX, 4)}, {s(S_TMP)} offen")
    for i in range(28):
        a(f"s_mov_b32 m0, {STAGE + w * 28672 + i * 1024}")
        a(f"s_add_u32 {s(S_TMP + 1)}, {s(S_TMP)}, {i * 16 * 3584}")
        a(f"buffer_load_dwordx4 {v(DA)}, {s(S_X, 4)}, {s(S_TMP + 1)} offen lds")
    a(f"v_and_b32 {v(SA)}, 15, v0")
    a(f"v_lshlrev_b32 {v(SA)}, 5, {v(SA)}")
    a(f"v_add_u32 {v(SA)}, {STAT}, {v(SA)}")
    a(f"v_bfe_u32 {v(T0)}, v0, 2, 2")
    a(f"v_lshrrev_b32 {v(T1)}, 4, v0")
    a(f"v_cmp_eq_u32 vcc, {v(T0)}, {v(T1)}")
    a(f"v_add_u32 {v(T0)}, {8 * w}, {v(SA)}")
    a(f"v_lshlrev_b32 {v(SW)}, 3, v0")
    a(f"v_add_u32 {v(SW)}, {STAT + 512}, {v(SW)}")
    a(f"v_cndmask_b32 {v(SW)}, {v(SW)}, {v(T0)}, vcc")
    a(f"v_and_b32 {v(T0)}, 1, v0")
    a(f"v_cmp_ne_u32 {s(sM1, 2)}, 0, {v(T0)}")
    a(f"v_and_b32 {v(T0)}, 2, v0")
    a(f"v_cmp_ne_u32 {s(sM2, 2)}, 0, {v(T0)}")
    a(f"s_mul_i32 {s(sH)}, {s(S_GRP)}, 14336")
    a(f"s_add_u32 {s(sH)}, {s(sH)}, {WS['HT'] + ks0 * 1024}")
    a(f"s_mul_i32 {s(sO)}, {s(S_GRP)}, 57344")
    a(f"s_lshl_b32 {s(S_TMP + 1)}, {s(S_LOC)}, 12")
    a(f"s_add_u32 {s(sO)}, {s(sO)}, {s(S_TMP + 1)}")
    a(f"s_add_u32 {s(sO)}, {s(sO)}, {WS['H1T'] + w * 1024}")
    a(f"s_mul_i32 {s(sF)}, {s(S_GRP)}, 224")
    a(f"s_lshl_b32 {s(S_TMP + 1)}, {s(S_LOC)}, 4")
    a(f"s_add_u32 {s(sF)}, {s(sF)}, {s(S_TMP + 1)}")
    a(f"s_add_u32 {s(sF)}, {s(sF)}, {WS['HF'] + 4 * w}")
    a(f"s_mov_b32 {s(sC1)}, {f32(GELU_C1)}")
    a(f"s_mov_b32 {s(sC2)}, {f32(GELU_C2)}")
    a(f"s_mov_b32 {s(S_STEP)}, {s(S_GRP)}")
    a("s_waitcnt vmcnt(0)")
    unpack(a, BIAS, PK, 4)
    for r in range(4):
        a(f"v_mov_b32 {v(ONES + r)}, 0x3f803f80")
    for ks in range(14):
        for ab in range(2):
            for q in range(2):
                a(f"ds_read_b64_tr_b16 {acc(8 * ks + 4 * ab + 2 * q, 2)}, {v(TRA)} offset:{ks * 2048 + q * 256 + ab * 8}")
        if ks % 3 == 2:
            a("s_waitcnt lgkmcnt(0)")
    a("s_waitcnt lgkmcnt(0)")
    for ks in range(14):
        for ab in range(2):
            mfma(a, CSUM + 4 * ab, W(ab, ks), v(ONES, 4), ks == 0)
    wait_tasks(a, "Z2", T0, 12)

    top = f"F1_JOB{w}"
    a.label(top)
    a.ds = []
    a("s_barrier")
    stamp(a, cfg, 0)
    poll_deep(a, [f"buffer_load_dwordx4 {v(PK + 4 * i, 4)}, {v(L16)}, {WS_SRD}, {s(sH)} offen offset:{i * 1024} sc1" for i in range(nb)],
              range(PK, PK + 4 * nb), T0, depth=cfg.get("fdepth", 2), sleep=(cfg.get("fsleep", 8), NTILE - 8) if cfg.get("fsleep", 8) else None)
    stamp(a, cfg, 1)
    for i in range(nb):
        mfma(a, F, v(PK + 4 * i, 4), v(PK + 4 * i, 4), i == 0)
        a.dsop(f"ds_write_b128 {v(L16)}, {v(PK + 4 * i, 4)} offset:{HN + (ks0 + i) * 1024}")
    for i in range(nb):
        mfma(a, F + 4, v(ONES, 4), v(PK + 4 * i, 4), i == 0)
    a(f"v_cndmask_b32 {v(F)}, {v(F)}, {v(F + 1)}, {s(sM1, 2)}")
    a(f"v_cndmask_b32 {v(F + 2)}, {v(F + 2)}, {v(F + 3)}, {s(sM1, 2)}")
    a.nop(6)
    a(f"v_cndmask_b32 {v(F + 5)}, {v(F)}, {v(F + 2)}, {s(sM2, 2)}")
    a.dsop(f"ds_write_b64 {v(SW)}, {v(F + 4, 2)}")
    a.wait_ds_all()
    a("s_barrier")
    stamp(a, cfg, 2)
    side = Asm()
    side(f"v_add_f32 {v(MEAN)}, {v(ST)}, {v(ST + 2)}")
    side(f"v_add_f32 {v(M2)}, {v(ST + 1)}, {v(ST + 3)}")
    side(f"v_add_f32 {v(TM)}, {v(ST + 4)}, {v(ST + 6)}")
    side(f"v_add_f32 {v(TM + 1)}, {v(ST + 5)}, {v(ST + 7)}")
    side(f"v_add_f32 {v(MEAN)}, {v(MEAN)}, {v(TM)}")
    side(f"v_add_f32 {v(M2)}, {v(M2)}, {v(TM + 1)}")
    side(f"v_mul_f32 {v(MEAN)}, {f32(1 / 448)}, {v(MEAN)}")
    side(f"v_mul_f32 {v(M2)}, {f32(1 / 448)}, {v(M2)}")
    side(f"v_fma_f32 {v(M2)}, -{v(MEAN)}, {v(MEAN)}, {v(M2)}")
    side(f"v_max_f32 {v(M2)}, 0, {v(M2)}")
    ln_scalars(side, MEAN, M2)
    side(f"v_sub_f32 {v(T1)}, 0, {v(MEAN)}")
    side(f"v_mov_b32 {v(T0)}, {s(sC1)}")
    side = list(side.lines)

    def read_x(ks):
        a.dsop(f"ds_read_b128 {v(XO + 4 * (ks % 4), 4)}, {v(L16)} offset:{HN + ks * 1024}", ("x", ks))
    for ks in range(3):
        read_x(ks)
    a.dsop(f"ds_read_b128 {v(ST, 4)}, {v(SA)}", "st")
    a.dsop(f"ds_read_b128 {v(ST + 4, 4)}, {v(SA)} offset:16", "st")
    for ks in range(14):
        a.wait_ds(("x", ks))
        for ab in range(2):
            mfma(a, ACC + 4 * ab, W(ab, ks), v(XO + 4 * (ks % 4), 4), ks == 0)
            if ab == 0 and ks + 3 < 14:
                read_x(ks + 3)
            if ks >= 3:
                a.wait_ds("st")
                for x in side[:2]:
                    a(x)
                side = side[2:]
    assert not side
    stamp(a, cfg, 3)
    a.nop(7)
    U, E = ACC, F
    for i in range(0, 8, 2):
        a(f"v_pk_fma_f32 {v(U + i, 2)}, {v(CSUM + i, 2)}, {v(T1, 2)}, {v(U + i, 2)} op_sel_hi:[1,0,1]")
    for i in range(0, 8, 2):
        a(f"v_pk_fma_f32 {v(U + i, 2)}, {v(U + i, 2)}, {v(M2, 2)}, {v(BIAS + i, 2)} op_sel_hi:[1,0,1]")
    for i in range(0, 8, 2):
        a(f"v_pk_mul_f32 {v(E + i, 2)}, {v(U + i, 2)}, {v(U + i, 2)}")
    for i in range(8):
        a(f"v_fma_f32 {v(E + i)}, {v(E + i)}, {s(sC2)}, {v(T0)}")
    for i in range(0, 8, 2):
        a(f"v_pk_mul_f32 {v(E + i, 2)}, {v(E + i, 2)}, {v(U + i, 2)}")
    for i in range(8):
        a(f"v_exp_f32 {v(E + i)}, {v(E + i)}")
    for i in range(8):
        a(f"v_add_f32 {v(E + i)}, 1.0, {v(E + i)}")
    for i in range(8):
        a(f"v_rcp_f32 {v(E + i)}, {v(E + i)}")
    for i in range(0, 8, 2):
        a(f"v_pk_mul_f32 {v(U + i, 2)}, {v(U + i, 2)}, {v(E + i, 2)}")
    a("s_waitcnt vmcnt(0)")
    for i in range(4):
        a(f"v_cvt_pk_bf16_f32 {v(PK + i)}, {v(U + 2 * i)}, {v(U + 2 * i + 1)}")
    local_stores(a, [f"buffer_store_dwordx4 {v(PK, 4)}, {v(L16)}, {WS_SRD}, {s(sO)} offen"])
    a(f"v_mov_b32 {v(T0)}, {s(S_TAG)}")
    a("s_waitcnt vmcnt(0)")
    local_stores(a, [f"buffer_store_dword {v(T0)}, off, {WS_SRD}, {s(sF)}"])
    stamp(a, cfg, 4)
    job_stamps(a, cfg, 5, 16 + w, T0)
    for r, step in ((sH, 14336), (sO, 57344), (sF, 224), (S_STEP, 1)):
        a(f"s_add_u32 {s(r)}, {s(r)}, {step * NFFN}")
    a(f"s_cmp_lt_u32 {s(S_STEP)}, {NTILE}")
    a(f"s_cbranch_scc1 {top}")
    a("s_endpgm")


def job_stamps(a, cfg, n, slot, tmp):
    if cfg.get("stamps"):
        a(f"s_mov_b32 s96, {s(S_STEP)}")
        a(f"s_lshr_b32 {s(S_STEP)}, {s(S_STEP)}, 1")
        flush_stamps(a, cfg, n, slot, tmp)
        a(f"s_mov_b32 {s(S_STEP)}, s96")


def gen_f2(a, w, cfg):
    L16, DA, TRA, FA, PWA, PRA, HA, OA, T0, T1 = range(1, 11)
    HR, BIAS, RES, XO, ACC = 11, 12, 14, 16, 72
    PART, STAGE = 0, 16384
    sH1, sF, sH, sO, sT = range(S_T0, S_T0 + 5)
    TA = 80
    W = lambda ct, ks: acc(8 * ks + 4 * ct, 4)

    a.label(f"F2_W{w}")
    srd(a, S_X, 80, 1792 * 896)
    srd(a, S_AUX, 88, 896)
    srd(a, S_OUT, 96, 2048 * 896)
    a(f"s_sub_u32 {s(S_LOC)}, {s(S_LOC)}, 14")
    a(f"v_lshlrev_b32 {v(L16)}, 4, v0")
    a(f"v_lshrrev_b32 {v(T0)}, 2, v0")
    a(f"v_mul_u32_u24 {v(DA)}, 896, {v(T0)}")
    a(f"v_and_b32 {v(T1)}, 3, v0")
    a(f"v_lshl_add_u32 {v(DA)}, {v(T1)}, 4, {v(DA)}")
    a(f"v_lshrrev_b32 {v(TRA)}, 4, v0")
    a(f"v_lshlrev_b32 {v(TRA)}, 3, {v(TRA)}")
    a(f"v_and_b32 {v(T0)}, 3, {v(T0)}")
    a(f"v_add_u32 {v(TRA)}, {v(TRA)}, {v(T0)}")
    a(f"v_lshlrev_b32 {v(TRA)}, 6, {v(TRA)}")
    a(f"v_lshl_add_u32 {v(TRA)}, {v(T1)}, 3, {v(TRA)}")
    a(f"v_add_u32 {v(TRA)}, {STAGE + w * 28672}, {v(TRA)}")
    a(f"v_min_u32 {v(FA)}, 13, v0")
    a(f"v_lshlrev_b32 {v(FA)}, 2, {v(FA)}")
    a(f"v_and_b32 {v(T0)}, 15, v0")
    a(f"v_lshrrev_b32 {v(T1)}, 4, v0")
    a(f"v_mul_u32_u24 {v(PWA)}, 144, {v(T0)}")
    a(f"v_lshl_add_u32 {v(PWA)}, {v(T1)}, 4, {v(PWA)}")
    a(f"v_add_u32 {v(PWA)}, {PART + w * 2304}, {v(PWA)}")
    a(f"v_add_u32 {v(T1)}, {4 * w}, {v(T1)}")
    a(f"v_mul_u32_u24 {v(PRA)}, 144, {v(T1)}")
    a(f"v_lshl_add_u32 {v(PRA)}, {v(T0)}, 3, {v(PRA)}")
    a(f"v_mul_u32_u24 {v(OA)}, 896, {v(T1)}")
    a(f"v_lshl_add_u32 {v(OA)}, {v(T0)}, 2, {v(OA)}")
    a(f"v_lshlrev_b32 {v(HA)}, 4, {v(T1)}")
    a(f"v_lshrrev_b32 {v(T1)}, 2, {v(T0)}")
    a(f"v_lshl_add_u32 {v(HA)}, {v(T1)}, 8, {v(HA)}")
    a(f"v_and_b32 {v(T1)}, 3, {v(T0)}")
    a(f"v_lshl_add_u32 {v(HA)}, {v(T1)}, 2, {v(HA)}")
    a(f"v_lshlrev_b32 {v(T0)}, 2, {v(T0)}")
    a(f"s_lshl_b32 {s(S_TMP)}, {s(S_LOC)}, 6")
    a("s_waitcnt lgkmcnt(0)")
    a(f"buffer_load_dword {v(HR)}, {v(T0)}, {s(S_AUX, 4)}, {s(S_TMP)} offen")
    a(f"s_add_u32 {s(S_TMP)}, {s(S_TMP)}, {448 * w * 896}")
    for i in range(28):
        a(f"s_mov_b32 m0, {STAGE + w * 28672 + i * 1024}")
        a(f"s_add_u32 {s(S_TMP + 1)}, {s(S_TMP)}, {i * 16 * 896}")
        a(f"buffer_load_dwordx4 {v(DA)}, {s(S_X, 4)}, {s(S_TMP + 1)} offen lds")
    a("s_waitcnt vmcnt(0)")
    for ks in range(14):
        for ct in range(2):
            for q in range(2):
                a(f"ds_read_b64_tr_b16 {acc(8 * ks + 4 * ct + 2 * q, 2)}, {v(TRA)} offset:{ks * 2048 + q * 256 + ct * 32}")
        if ks % 3 == 2:
            a("s_waitcnt lgkmcnt(0)")
    a("s_waitcnt lgkmcnt(0)")
    unpack(a, BIAS, HR, 1)
    a(f"s_mul_i32 {s(sH1)}, {s(S_GRP)}, 57344")
    a(f"s_add_u32 {s(sH1)}, {s(sH1)}, {WS['H1T'] + w * 14336}")
    a(f"s_mul_i32 {s(sF)}, {s(S_GRP)}, 224")
    a(f"s_add_u32 {s(sF)}, {s(sF)}, {WS['HF'] + w * 56}")
    a(f"s_mul_i32 {s(sO)}, {s(S_GRP)}, 14336")
    a(f"s_lshl_b32 {s(S_TMP)}, {s(S_LOC)}, 10")
    a(f"s_add_u32 {s(sH)}, {s(sO)}, {s(S_TMP)}")
    a(f"s_add_u32 {s(sH)}, {s(sH)}, {WS['HT']}")
    a(f"s_lshl_b32 {s(S_TMP)}, {s(S_LOC)}, 6")
    a(f"s_add_u32 {s(sO)}, {s(sO)}, {s(S_TMP)}")
    a(f"s_mov_b32 {s(S_STEP)}, {s(S_GRP)}")
    a(f"s_lshl_b32 {s(sT)}, {s(S_LOC)}, 10")
    a(f"s_add_u32 {s(sT)}, {s(sT)}, {57344 * NFFN * cfg.get('h1ahead', 2)}")
    a(f"v_and_b32 {v(TA)}, 7, v0")
    a(f"v_lshlrev_b32 {v(TA)}, 7, {v(TA)}")
    wait_tasks(a, "Z2", T0, RES)

    top = f"F2_JOB{w}"
    a.label(top)
    a.ds, a.vm = [], []
    a("s_barrier")
    spin, got = a.newlabel("res"), a.newlabel("resok")
    a.label(spin)
    a(f"buffer_load_dword {v(HR)}, {v(HA)}, {WS_SRD}, {s(sH)} offen sc1")
    a("s_waitcnt vmcnt(0)")
    a(f"v_cmp_eq_u32 vcc, -1, {v(HR)}")
    a(f"s_cbranch_vccz {got}")
    a("s_sleep 2")
    a(f"s_sub_u32 {s(S_TO)}, {s(S_TO)}, 1")
    a(f"s_cbranch_scc0 {spin}")
    a("s_endpgm")
    a.label(got)
    unpack(a, RES, HR, 1)
    stamp(a, cfg, 0)
    wait_flag(a, T0, f"buffer_load_dword {v(T0)}, {v(FA)}, {WS_SRD}, {s(sF)} offen sc1", sleep=0, landed=False)
    stamp(a, cfg, 1)
    a(f"s_mov_b32 {s(S_TMP)}, {s(sH1)}")
    for ks in range(14):
        if ks and ks % 4 == 0:
            a(f"s_add_u32 {s(S_TMP)}, {s(S_TMP)}, 4096")
        a.vmop(f"buffer_load_dwordx4 {v(XO + 4 * ks, 4)}, {v(L16)}, {WS_SRD}, {s(S_TMP)} offen offset:{(ks % 4) * 1024} sc1", ks)
    for ks in range(14):
        a.wait_vm(ks)
        for ct in range(2):
            mfma(a, ACC + 4 * ct, W(ct, ks), v(XO + 4 * ks, 4), ks == 0)
    a.nop(7)
    for ct in range(2):
        a.dsop(f"ds_write_b128 {v(PWA)}, {v(ACC + 4 * ct, 4)} offset:{64 * ct}")
    a.wait_ds_all()
    a("s_barrier")
    for wv in range(4):
        a.dsop(f"ds_read_b64 {v(ACC + 2 * wv, 2)}, {v(PRA)} offset:{PART + wv * 2304}")
    a.wait_ds_all()
    a(f"v_pk_add_f32 {v(ACC, 2)}, {v(ACC, 2)}, {v(ACC + 2, 2)}")
    a(f"v_pk_add_f32 {v(ACC + 4, 2)}, {v(ACC + 4, 2)}, {v(ACC + 6, 2)}")
    a(f"v_pk_add_f32 {v(ACC, 2)}, {v(ACC, 2)}, {v(BIAS, 2)}")
    a(f"v_pk_add_f32 {v(ACC, 2)}, {v(ACC, 2)}, {v(ACC + 4, 2)}")
    a(f"v_cvt_pk_bf16_f32 {v(ACC + 1)}, {v(ACC)}, {v(ACC + 1)}")
    a(f"v_lshlrev_b32 {v(ACC)}, 16, {v(ACC + 1)}")
    a(f"v_and_b32 {v(ACC + 1)}, 0xffff0000, {v(ACC + 1)}")
    a(f"v_pk_add_f32 {v(ACC, 2)}, {v(ACC, 2)}, {v(RES, 2)}")
    a(f"v_cvt_pk_bf16_f32 {v(ACC)}, {v(ACC)}, {v(ACC + 1)}")
    a(f"buffer_store_dword {v(ACC)}, {v(OA)}, {s(S_OUT, 4)}, {s(sO)} offen")
    stamp(a, cfg, 2)
    if cfg.get("h1touch", 1):
        a(f"s_add_u32 {s(S_TMP)}, {s(sH1)}, {s(sT)}")
        a(f"buffer_load_dword {v(T1)}, {v(TA)}, {WS_SRD}, {s(S_TMP)} offen sc1")
    job_stamps(a, cfg, 3, 20 + w, T0)
    for r, step in ((sH1, 57344), (sF, 224), (sH, 14336), (sO, 14336), (S_STEP, 1)):
        a(f"s_add_u32 {s(r)}, {s(r)}, {step * NFFN}")
    a(f"s_cmp_lt_u32 {s(S_STEP)}, {NTILE}")
    a(f"s_cbranch_scc1 {top}")
    a("s_endpgm")


def gen_reset(a, cfg):
    L16, T0, T1, P0, P1 = 1, 2, 3, 8, 12
    nw = NFFN * 128
    srd(a, S_AUX, 8, MEM_SZ)
    a(f"v_lshlrev_b32 {v(L16)}, 4, v0")
    a(f"s_lshl_b32 {s(S_TMP + 4)}, {s(S_GRP)}, 5")
    a(f"s_add_u32 {s(S_TMP + 4)}, {s(S_TMP + 4)}, {s(S_LOC)}")
    a(f"s_lshl_b32 {s(S_TMP)}, {s(S_TMP + 4)}, 2")
    a(f"s_add_u32 {s(S_TMP)}, {s(S_TMP)}, {s(S_WAVE)}")
    for r in range(4):
        a(f"v_mov_b32 {v(P0 + r)}, -1")
    a(f"v_and_b32 {v(T0)}, 7, v0")
    a(f"v_mul_u32_u24 {v(T0)}, 896, {v(T0)}")
    a(f"v_lshrrev_b32 {v(T1)}, 3, v0")
    a(f"v_lshl_add_u32 {v(T0)}, {v(T1)}, 4, {v(T0)}")
    a(f"s_mov_b32 {s(S_WS + 2)}, {POISON_END}")
    a(f"s_lshl_b32 {s(S_TMP + 2)}, {s(S_TMP)}, 10")
    a(f"s_add_u32 {s(S_TMP + 2)}, {s(S_TMP + 2)}, {POISON_BEGIN}")
    a("s_waitcnt lgkmcnt(0)")
    gch = (WS['MEMG'] - WS['MEML']) // 1024
    a(f"v_mov_b32 {v(T1)}, {s(S_TAG)}")
    a(f"s_lshr_b32 {s(S_TMP + 5)}, {s(S_TMP + 4)}, 3")
    a(f"s_lshl_b32 {s(S_TMP + 5)}, {s(S_TMP + 5)}, 7")
    a(f"s_and_b32 {s(S_TMP + 4)}, {s(S_TMP + 4)}, 7")
    a(f"s_lshl_b32 {s(S_TMP + 4)}, {s(S_TMP + 4)}, 2")
    a(f"s_add_u32 {s(S_TMP + 4)}, {s(S_TMP + 4)}, {s(S_TMP + 5)}")
    a(f"s_add_u32 {s(S_TMP + 4)}, {s(S_TMP + 4)}, {WS['ARR'] + 4096}")

    def announce(at):
        skip = a.newlabel("mute")
        a("s_waitcnt vmcnt(0)")
        a("s_barrier")
        a(f"s_cmp_lg_u32 {s(S_WAVE)}, 0")
        a(f"s_cbranch_scc1 {skip}")
        a(f"buffer_store_dword {v(T1)}, off, {WS_SRD}, {s(S_TMP + 4)} offset:{at} sc1")
        a.label(skip)
    early = -(-(WS['PX'] - POISON_BEGIN) // (nw * 1024))
    for i in range(-(-(POISON_END - POISON_BEGIN) // (nw * 1024))):
        if i == early:
            announce(512)
            wait_first_y(a, T0, seg=7 if cfg.get('stagger', 0) else NCLONE - 1)
            if cfg.get("rgate"):
                wait_tasks(a, "LZ", T0, 4)
                wait_step(a, T0, cfg["rgate"])
        first = [c for c in (0, gch) if c // nw == i]
        src = P0
        if first:
            assert (first[0] + 6) // nw == i
            skip = a.newlabel("nomem")
            src = P1 + 4 * i
            for r in range(4):
                a(f"v_mov_b32 {v(src + r)}, -1")
            a(f"s_sub_u32 {s(S_TMP + 1)}, {s(S_TMP)}, {first[0] % nw}")
            a(f"s_cmp_lt_u32 {s(S_TMP + 1)}, 7")
            a(f"s_cbranch_scc0 {skip}")
            a(f"s_lshl_b32 {s(S_TMP + 1)}, {s(S_TMP + 1)}, 7")
            a(f"buffer_load_dwordx4 {v(src, 4)}, {v(T0)}, {s(S_AUX, 4)}, {s(S_TMP + 1)} offen")
            a("s_waitcnt vmcnt(0)")
            for r in range(4):
                a(f"v_min_u32 {v(src + r)}, -2, {v(src + r)}")
            a.label(skip)
        a(f"buffer_store_dwordx4 {v(src, 4)}, {v(L16)}, {WS_SRD}, {s(S_TMP + 2)} offen sc1")
        a(f"s_add_u32 {s(S_TMP + 2)}, {s(S_TMP + 2)}, {nw * 1024}")
    a(f"s_mov_b32 {s(S_WS + 2)}, {WS_BYTES}")
    announce(2048)
    if cfg.get("fgate"):
        wait_tasks(a, "LZ", T0, 4)
        wait_step(a, T0, cfg["fgate"], 1)
```

```python
from asmlib import v, acc, s
from layout import *
from roles_rec import S_TAG, S_WS, S_X, S_OUT, S_AUX, S_WAVE, S_T0, S_TMP, WS_SRD

W_BYTES = 448 * 4096 * 2
SCALE = 0.0625 * 1.4426950408889634


def f32(x):
    import struct
    return hex(struct.unpack("<I", struct.pack("<f", x))[0])


def srd(a, base, arg, nbytes):
    a(f"s_load_dwordx2 {s(base, 2)}, s[0:1], {arg}")
    a(f"s_mov_b32 {s(base + 2)}, {nbytes}")
    a(f"s_mov_b32 {s(base + 3)}, 0x00020000")


def row_sum4(a, x, tmp):
    for op in ("v_permlane32_swap_b32", "v_permlane16_swap_b32"):
        a(f"v_mov_b32 {v(tmp)}, {v(x)}")
        a.nop(2)
        a(f"{op} {v(tmp)}, {v(x)}")
        a(f"v_add_f32 {v(x)}, {v(x)}, {v(tmp)}")


def round_bf16(a, x):
    a(f"v_cvt_pk_bf16_f32 {v(x)}, {v(x)}, {v(x)}")
    a(f"v_and_b32 {v(x)}, 0xffff0000, {v(x)}")


def ln_scalars(a, mean, var):
    round_bf16(a, mean)
    round_bf16(a, var)
    a(f"v_add_f32 {v(var)}, {f32(1e-5)}, {v(var)}")
    round_bf16(a, var)
    a(f"v_sqrt_f32 {v(var)}, {v(var)}")
    a.nop(1)
    round_bf16(a, var)
    a(f"v_rcp_f32 {v(var)}, {v(var)}")
    a.nop(1)


def ln_apply(a, dst, lo, hi, mean, inv):
    a(f"v_sub_f32 {v(lo)}, {v(lo)}, {v(mean)}")
    a(f"v_sub_f32 {v(hi)}, {v(hi)}, {v(mean)}")
    a(f"v_cvt_pk_bf16_f32 {v(hi)}, {v(lo)}, {v(hi)}")
    a(f"v_lshlrev_b32 {v(lo)}, 16, {v(hi)}")
    a(f"v_and_b32 {v(hi)}, 0xffff0000, {v(hi)}")
    a(f"v_mul_f32 {v(lo)}, {v(lo)}, {v(inv)}")
    a(f"v_mul_f32 {v(hi)}, {v(hi)}, {v(inv)}")
    a(f"v_cvt_pk_bf16_f32 {v(dst)}, {v(lo)}, {v(hi)}")


def stampreg(a, cfg, r):
    if cfg.get("stamps"):
        a(f"s_memrealtime s[{r}:{r + 1}]")


sH, sK, sL, sR, sO, sSC, sLB = range(S_T0, S_T0 + 7)
S_WORD = S_T0 + 7
L16, T0, T1, T2 = 1, 2, 3, 4
RA, DA, DL = 8, 12, 20
LEFT, RING = 0, 32768


def read_addresses(a):
    a(f"v_and_b32 {v(T0)}, 15, v0")
    a(f"v_lshrrev_b32 {v(T1)}, 4, v0")
    for q in range(4):
        a(f"v_add_u32 {v(T2)}, {4 * q}, {v(T1)}")
        a(f"v_xor_b32 {v(T2)}, {v(T2)}, {v(T0)}")
        a(f"v_lshlrev_b32 {v(T2)}, 4, {v(T2)}")
        a(f"v_lshl_add_u32 {v(RA + q)}, {v(T0)}, 9, {v(T2)}")


def stage_left(a, nt, natural):
    a(f"v_lshrrev_b32 {v(T1)}, 5, v0")
    a(f"v_and_b32 {v(T2)}, 31, v0")
    for i in range(8):
        m = 2 * i
        a(f"v_add_u32 {v(T0)}, {m}, {v(T1)}")
        a(f"v_xor_b32 {v(DA + i)}, {v(T2)}, {v(T0)}")
        a(f"v_lshlrev_b32 {v(DA + i)}, 4, {v(DA + i)}")
        a(f"v_add_u32 {v(DL + i)}, {16 * (m >> 3) + 4 * ((m >> 2) & 1) + 8 * ((m >> 1) & 1)}, {v(T1)}")
        a(f"v_lshl_add_u32 {v(DL + i)}, {v(DL + i)}, 13, {v(DA + i)}")
        if natural:
            a(f"v_lshl_add_u32 {v(DA + i)}, {v(T0)}, 13, {v(DA + i)}")
    a(f"s_lshl_b32 {s(sL)}, {s(sK)}, 19")
    a(f"s_lshl_b32 {s(S_TMP)}, {s(sH)}, 9")
    a(f"s_add_u32 {s(sL)}, {s(sL)}, {s(S_TMP)}")
    a(f"s_lshr_b32 {s(S_TMP)}, {s(S_WAVE)}, 1")
    a(f"s_lshl_b32 {s(S_TMP)}, {s(S_TMP)}, 18")
    a(f"s_add_u32 {s(sL)}, {s(sL)}, {s(S_TMP)}")
    a(f"s_and_b32 {s(S_TMP)}, {s(S_WAVE)}, 1")
    a(f"s_lshl_b32 {s(S_TMP)}, {s(S_TMP)}, 14")
    a(f"s_add_u32 {s(sL)}, {s(sL)}, {s(S_TMP)}")
    a(f"s_lshl_b32 {s(sLB)}, {s(S_WAVE)}, 13")
    a("s_waitcnt lgkmcnt(0)")
    for i in range(8):
        a(f"s_add_u32 m0, {s(sLB)}, {LEFT + i * 1024}")
        a.nop(1)
        a.vmop(f"buffer_load_dwordx4 {v(DL + i)}, {s(S_X, 4)}, {s(sL)} offen{nt} lds", "l")


def read_left(a, cfg, tiles, lop):
    a.wait_vm("l")
    a("s_barrier")
    stampreg(a, cfg, 66)
    for ks in range(8):
        for t in range(tiles):
            a.dsop(f"ds_read_b128 {lop(t, ks)}, {v(RA + (ks & 3))} offset:{LEFT + t * 8192 + (ks >> 2) * 256}", ("l", ks))
        if ks % 2:
            a.wait_ds(("l", ks - 1))


def finish(a, c0, out, scale, soff, off):
    for ab in range(2):
        c = c0 + 4 * ab
        if scale:
            for r in range(4):
                a(f"v_mul_f32 {v(c + r)}, {s(sSC)}, {v(c + r)}")
        a(f"v_cvt_pk_bf16_f32 {v(out + 2 * ab)}, {v(c)}, {v(c + 1)}")
        a(f"v_cvt_pk_bf16_f32 {v(out + 2 * ab + 1)}, {v(c + 2)}, {v(c + 3)}")
    a.vmop(f"buffer_store_dwordx4 {v(out, 4)}, {v(L16)}, {WS_SRD}, {s(soff)} offen offset:{off} sc1")


def gen_atask(a, cfg):
    nt = " nt" if cfg.get("prent", 0) else ""
    ACC, OUT, BO, RB = 32, 64, 80, 144
    LOP = lambda t, ks: acc(4 * (ks * 4 + t), 4)
    a.label("ATASK")
    a.vm, a.ds = [], []
    srd(a, S_X, 16, W_BYTES)
    srd(a, S_OUT, 24, W_BYTES)
    stage_left(a, nt, True)
    a(f"s_mul_i32 {s(sR)}, {s(S_WAVE)}, {112 * 8192}")
    a(f"s_lshl_b32 {s(S_TMP)}, {s(sH)}, 9")
    a(f"s_add_u32 {s(sR)}, {s(sR)}, {s(S_TMP)}")
    a(f"s_lshl_b32 {s(sLB)}, {s(S_WAVE)}, 15")
    a(f"s_add_u32 {s(sLB)}, {s(sLB)}, {RING}")

    def stage(j):
        for i in range(8):
            a(f"s_add_u32 m0, {s(sLB)}, {(j % 4) * 8192 + i * 1024}")
            a.nop(1)
            a.vmop(f"buffer_load_dwordx4 {v(DA + i)}, {s(S_OUT, 4)}, {s(sR)} offen{nt} lds", ("r", j))
        a(f"s_add_u32 {s(sR)}, {s(sR)}, {16 * 8192}")
    for j in range(4):
        stage(j)
    if cfg.get("pretouch", 1):
        a(f"v_lshrrev_b32 {v(T0)}, 2, v0")
        a(f"v_lshlrev_b32 {v(T0)}, 13, {v(T0)}")
        a(f"v_and_b32 {v(T2)}, 3, v0")
        a(f"v_lshl_add_u32 {v(T0)}, {v(T2)}, 7, {v(T0)}")
        for j in range(3):
            a(f"s_add_u32 {s(S_TMP)}, {s(sR)}, {j * 16 * 8192}")
            a.vmop(f"buffer_load_dword v7, {v(T0)}, {s(S_OUT, 4)}, {s(S_TMP)} offen{nt}")
    read_addresses(a)
    for q in range(4):
        a(f"v_add_u32 {v(RB + q)}, {s(sLB)}, {v(RA + q)}")
    a(f"s_mul_i32 {s(sO)}, {s(sH)}, {AL_HEAD}")
    a(f"s_mul_i32 {s(S_TMP)}, {s(S_WAVE)}, 100352")
    a(f"s_add_u32 {s(sO)}, {s(sO)}, {s(S_TMP)}")
    a(f"s_lshl_b32 {s(S_TMP)}, {s(sK)}, 11")
    a(f"s_add_u32 {s(sO)}, {s(sO)}, {s(S_TMP)}")
    a(f"s_add_u32 {s(sO)}, {s(sO)}, {WS['AL']}")
    a(f"s_mov_b32 {s(sSC)}, {f32(SCALE)}")
    read_left(a, cfg, 4, LOP)

    def read_right(j, ks):
        if ks == 0:
            a.wait_vm(("r", j))
        a.dsop(f"ds_read_b128 {v(BO + 32 * (j & 1) + 4 * ks, 4)}, {v(RB + (ks & 3))} offset:{(j % 4) * 8192 + (ks >> 2) * 256}", ("b", j, ks))

    def finish_tile(j):
        for hi in range(2):
            finish(a, ACC + 16 * (j & 1) + 8 * hi, OUT + 8 * (j & 1) + 4 * hi, True, sO, 1024 * hi)
        a(f"s_add_u32 {s(sO)}, {s(sO)}, 14336")
    for ks in range(8):
        read_right(0, ks)
    for j in range(7):
        A0 = ACC + 16 * (j & 1)
        for ks in range(8):
            a.wait_ds(("l", ks))
            a.wait_ds(("b", j, ks))
            if ks == 7 and j + 4 < 7:
                stage(j + 4)
            for t in range(4):
                a(f"v_mfma_f32_16x16x32_bf16 {v(A0 + 4 * t, 4)}, {LOP(t, ks)}, {v(BO + 32 * (j & 1) + 4 * ks, 4)}, " + (v(A0 + 4 * t, 4) if ks else "0"))
                if t == 0 and j + 1 < 7:
                    read_right(j + 1, ks)
            if ks == 0 and j == 4:
                stampreg(a, cfg, 70)
            if ks == 0 and j:
                finish_tile(j - 1)
    stampreg(a, cfg, 68)
    a.nop(8)
    finish_tile(6)
    a("s_branch PRE_DONE")


def gen_pre(a, cfg):
    nt = " nt" if cfg.get("prent", 0) else ""
    TRA, ACC, BT, OUT = 216, 32, 144, 160
    LOP = lambda t, ks: acc(4 * (ks * 4 + t), 4)
    a(f"v_lshlrev_b32 {v(L16)}, 4, v0")
    a(f"s_and_b32 {s(sH)}, s2, 7")
    a(f"s_lshr_b32 {s(sK)}, s2, 3")
    a(f"s_cmp_lt_u32 {s(sK)}, 28")
    a("s_cbranch_scc0 PRE_LN")
    a(f"s_cmp_lt_u32 {s(sK)}, 14")
    a(f"s_cselect_b32 {s(sSC)}, 0, 14")
    a(f"s_sub_u32 {s(sK)}, {s(sK)}, {s(sSC)}")
    a(f"s_lshl_b32 {s(sH)}, {s(sH)}, 1")
    a(f"s_cmp_ge_u32 {s(sK)}, 7")
    a(f"s_cselect_b32 {s(S_TMP)}, 1, 0")
    a(f"s_add_u32 {s(sH)}, {s(sH)}, {s(S_TMP)}")
    a(f"s_mul_i32 {s(S_TMP)}, {s(S_TMP)}, 7")
    a(f"s_sub_u32 {s(sK)}, {s(sK)}, {s(S_TMP)}")
    a(f"s_lshl_b32 {s(S_WORD)}, {s(sH)}, 5")
    a(f"s_add_u32 {s(S_WORD)}, {s(S_WORD)}, {s(sK)}")
    a(f"s_lshl_b32 {s(S_WORD)}, {s(S_WORD)}, 2")
    a(f"s_cmp_eq_u32 {s(sSC)}, 0")
    a("s_cbranch_scc1 ATASK")
    a(f"s_add_u32 {s(S_WORD)}, {s(S_WORD)}, 2048")
    srd(a, S_X, 32, W_BYTES)
    srd(a, S_OUT, 40, W_BYTES)
    a.vm, a.ds = [], []
    stage_left(a, nt, False)
    a(f"s_mov_b32 {s(S_TMP)}, {-(-(1 << 32) // 56)}")
    a(f"s_mul_i32 {s(S_TMP + 1)}, {s(S_WAVE)}, 448")
    for i in range(7):
        a(f"v_add_u32 {v(T0)}, {s(S_TMP + 1)}, v0")
        a(f"s_add_u32 {s(S_TMP + 1)}, {s(S_TMP + 1)}, 64")
        a(f"v_mul_hi_u32 {v(DA + i)}, {v(T0)}, {s(S_TMP)}")
        a(f"v_mul_u32_u24 {v(T2)}, 56, {v(DA + i)}")
        a(f"v_sub_u32 {v(T0)}, {v(T0)}, {v(T2)}")
        a(f"v_and_b32 {v(T2)}, 2, {v(DA + i)}")
        a(f"v_xor_b32 {v(T0)}, {v(T0)}, {v(T2)}")
        a(f"v_bfe_u32 {v(T2)}, {v(DA + i)}, 3, 1")
        a(f"v_lshlrev_b32 {v(T2)}, 2, {v(T2)}")
        a(f"v_xor_b32 {v(T0)}, {v(T0)}, {v(T2)}")
        a(f"v_mul_u32_u24 {v(DA + i)}, 896, {v(DA + i)}")
        a(f"v_lshl_add_u32 {v(DA + i)}, {v(T0)}, 4, {v(DA + i)}")
    a(f"s_mul_i32 {s(sLB)}, {s(S_WAVE)}, 7168")
    slot = lambda ks: LEFT if ks == 4 else RING + (ks % 5) * 28672
    a(f"s_mul_i32 {s(sR)}, {s(sH)}, 229376")

    def stage(ks):
        for i in range(7):
            a(f"s_add_u32 m0, {s(sLB)}, {slot(ks) + i * 1024}")
            a.nop(1)
            a.vmop(f"buffer_load_dwordx4 {v(DA + i)}, {s(S_OUT, 4)}, {s(sR)} offen{nt} lds", ("r", ks))
        a(f"s_add_u32 {s(sR)}, {s(sR)}, {32 * 896}")
    for ks in range(4):
        stage(ks)
    if cfg.get("pretouch", 1):
        a(f"v_lshlrev_b32 {v(T0)}, 7, v0")
        a(f"s_mul_i32 {s(S_TMP)}, {s(S_WAVE)}, 28672")
        a(f"s_add_u32 {s(S_TMP)}, {s(S_TMP)}, {s(sR)}")
        for j in range(4):
            a.vmop(f"buffer_load_dword v7, {v(T0)}, {s(S_OUT, 4)}, {s(S_TMP)} offen{nt}")
            a(f"s_add_u32 {s(S_TMP)}, {s(S_TMP)}, 7168")
    read_addresses(a)
    a(f"v_bfe_u32 {v(T0)}, v0, 2, 2")
    a(f"v_lshl_add_u32 {v(T0)}, {v(T1)}, 3, {v(T0)}")
    a(f"v_mul_u32_u24 {v(DL)}, 896, {v(T0)}")
    a(f"v_and_b32 {v(T0)}, 3, v0")
    a(f"v_lshl_add_u32 {v(DL)}, {v(T0)}, 3, {v(DL)}")
    a(f"v_bfe_u32 {v(T0)}, v0, 3, 2")
    for jj in range(4):
        a(f"s_mul_i32 {s(S_TMP)}, {s(S_WAVE)}, 7")
        a(f"s_add_u32 {s(S_TMP)}, {s(S_TMP)}, {jj}")
        a(f"v_xor_b32 {v(T2)}, {s(S_TMP)}, {v(T0)}")
        a(f"v_lshl_add_u32 {v(T2)}, {v(T2)}, 5, {v(DL)}")
        a(f"v_mov_b32 {v(TRA + jj)}, {v(T2)}")
        a(f"v_add_u32 {v(TRA + 4 + jj)}, {RING + 57344}, {v(T2)}")
    a(f"s_lshr_b32 {s(sO)}, {s(sH)}, 2")
    a(f"s_mul_i32 {s(sO)}, {s(sO)}, 114688")
    a(f"s_and_b32 {s(S_TMP)}, {s(sH)}, 3")
    a(f"s_mul_i32 {s(S_TMP)}, {s(S_TMP)}, 28672")
    a(f"s_add_u32 {s(sO)}, {s(sO)}, {s(S_TMP)}")
    a(f"s_lshl_b32 {s(S_TMP)}, {s(sK)}, 11")
    a(f"s_add_u32 {s(sO)}, {s(sO)}, {s(S_TMP)}")
    a(f"s_add_u32 {s(sO)}, {s(sO)}, {WS['BL']}")
    read_left(a, cfg, 4, LOP)
    seq = [(ks, j) for ks in range(4) for j in range(7)] + [(ks, j) for j in range(7) for ks in range(4, 8)]

    def read_right(i):
        ks, j = seq[i]
        far = int(slot(ks) >= RING + 57344)
        for q in range(2):
            a.dsop(f"ds_read_b64_tr_b16 {v(BT + 4 * (i % 4) + 2 * q, 2)}, {v(TRA + 4 * far + (j & 3))} "
                   f"offset:{slot(ks) - far * (RING + 57344) + (j >> 2) * 128 + 3584 * q}", ("b", i))

    def finish_tile(j):
        a(f"s_mul_i32 {s(S_TMP)}, {s(S_WAVE)}, 7")
        a(f"s_add_u32 {s(S_TMP)}, {s(S_TMP)}, {j}")
        a(f"s_lshr_b32 {s(S_TMP + 1)}, {s(S_TMP)}, 1")
        a(f"s_mul_i32 {s(S_TMP + 1)}, {s(S_TMP + 1)}, {BL_CU}")
        a(f"s_and_b32 {s(S_TMP)}, {s(S_TMP)}, 1")
        a(f"s_mul_i32 {s(S_TMP)}, {s(S_TMP)}, 14336")
        a(f"s_add_u32 {s(S_TMP)}, {s(S_TMP)}, {s(S_TMP + 1)}")
        a(f"s_add_u32 {s(S_TMP)}, {s(S_TMP)}, {s(sO)}")
        for hi in range(2):
            finish(a, ACC + 16 * j + 8 * hi, OUT + 8 * j + 4 * hi, False, S_TMP, 1024 * hi)
    issued = 0
    for i, (ks, j) in enumerate(seq):
        if j == 0 and ks <= 4:
            a.wait_vm(("r", ks if ks < 4 else 7))
            a.wait_ds_all()
            a("s_barrier")
            if ks < 4:
                stage(ks + 4)
            else:
                stampreg(a, cfg, 70)
        limit = 7 * (ks + 1) if ks < 4 else len(seq)
        while issued < min(i + 3, limit):
            read_right(issued)
            issued += 1
        a.wait_ds(("l", ks))
        a.wait_ds(("b", i))
        for t in range(4):
            c = v(ACC + 16 * j + 4 * t, 4)
            a(f"v_mfma_f32_16x16x32_bf16 {c}, {LOP(t, ks)}, {v(BT + 4 * (i % 4), 4)}, " + (c if ks else "0"))
            if t == 0 and issued < min(i + 4, limit):
                read_right(issued)
                issued += 1
        if ks == 4 and j:
            finish_tile(j - 1)
    stampreg(a, cfg, 68)
    a.nop(1)
    finish_tile(6)
    a("s_branch PRE_DONE")
    gen_atask(a, cfg)

    a.label("PRE_LN")
    a(f"s_sub_u32 {s(S_WORD)}, {s(sK)}, 28")
    a(f"s_lshl_b32 {s(S_WORD)}, {s(S_WORD)}, 5")
    a(f"s_add_u32 {s(S_WORD)}, {s(S_WORD)}, {s(sH)}")
    a(f"s_lshl_b32 {s(S_WORD)}, {s(S_WORD)}, 2")
    a(f"s_add_u32 {s(S_WORD)}, {s(S_WORD)}, 4096")
    srd(a, S_X, 0, 2048 * 896)
    a.vm = []
    LA, PK, F, SUM, VAR, TM = 5, 16, 80, 8, 9, 10
    a(f"s_lshl_b32 {s(sH)}, {s(sH)}, 2")
    a(f"s_add_u32 {s(sH)}, {s(sH)}, {s(sK)}")
    a(f"s_sub_u32 {s(sH)}, {s(sH)}, 28")
    a(f"s_lshl_b32 {s(sH)}, {s(sH)}, 2")
    a(f"s_add_u32 {s(sH)}, {s(sH)}, {s(S_WAVE)}")
    a(f"s_mul_i32 {s(sL)}, {s(sH)}, 14336")
    a(f"v_and_b32 {v(LA)}, 15, v0")
    a(f"v_mul_u32_u24 {v(LA)}, 896, {v(LA)}")
    a(f"v_lshrrev_b32 {v(T1)}, 4, v0")
    a(f"v_lshl_add_u32 {v(LA)}, {v(T1)}, 4, {v(LA)}")
    a("s_waitcnt lgkmcnt(0)")
    for ks in range(14):
        a.vmop(f"buffer_load_dwordx4 {v(PK + 4 * ks, 4)}, {v(LA)}, {s(S_X, 4)}, {s(sL)} offen offset:{ks * 64}", ks)
    a(f"v_mov_b32 {v(SUM)}, 0")
    a(f"v_mov_b32 {v(VAR)}, 0")
    for i in range(56):
        a.wait_vm(i // 4)
        a(f"v_lshlrev_b32 {v(F + 2 * i)}, 16, {v(PK + i)}")
        a(f"v_and_b32 {v(F + 2 * i + 1)}, 0xffff0000, {v(PK + i)}")
        a(f"v_add_f32 {v(SUM)}, {v(SUM)}, {v(F + 2 * i)}")
        a(f"v_add_f32 {v(VAR)}, {v(VAR)}, {v(F + 2 * i + 1)}")
    a(f"v_add_f32 {v(SUM)}, {v(SUM)}, {v(VAR)}")
    row_sum4(a, SUM, TM)
    a(f"v_mul_f32 {v(SUM)}, {f32(1 / 448)}, {v(SUM)}")
    a(f"v_mov_b32 {v(VAR)}, 0")
    a(f"v_mov_b32 {v(T0)}, 0")
    for i in range(56):
        a(f"v_sub_f32 {v(TM)}, {v(F + 2 * i)}, {v(SUM)}")
        a(f"v_sub_f32 {v(TM + 1)}, {v(F + 2 * i + 1)}, {v(SUM)}")
        a(f"v_fmac_f32 {v(VAR)}, {v(TM)}, {v(TM)}")
        a(f"v_fmac_f32 {v(T0)}, {v(TM + 1)}, {v(TM + 1)}")
    a(f"v_add_f32 {v(VAR)}, {v(VAR)}, {v(T0)}")
    row_sum4(a, VAR, TM)
    a(f"v_mul_f32 {v(VAR)}, {f32(1 / 448)}, {v(VAR)}")
    ln_scalars(a, SUM, VAR)
    a(f"s_add_u32 {s(sR)}, {s(sL)}, {WS['XT']}")
    a(f"s_add_u32 {s(sO)}, {s(sL)}, {WS['XP']}")
    for ks in range(14):
        p = PK + 4 * ks
        for i in range(4):
            ln_apply(a, p + i, F + 8 * ks + 2 * i, F + 8 * ks + 2 * i + 1, SUM, VAR)
        if ks and ks % 4 == 0:
            a(f"s_add_u32 {s(sR)}, {s(sR)}, 4096")
            a(f"s_add_u32 {s(sO)}, {s(sO)}, 4096")
        a(f"buffer_store_dwordx4 {v(p, 4)}, {v(L16)}, {WS_SRD}, {s(sR)} offen offset:{(ks % 4) * 1024} sc1")
        q = F + 8 * ks
        for i, src in enumerate((0, 2, 1, 3)):
            a(f"v_mov_b32 {v(q + i)}, {v(p + src)}")
        a.nop(1)
        a(f"v_permlane16_swap_b32 {v(q)}, {v(q + 1)}")
        a(f"v_permlane16_swap_b32 {v(q + 2)}, {v(q + 3)}")
        a(f"buffer_store_dwordx4 {v(q, 4)}, {v(L16)}, {WS_SRD}, {s(sO)} offen offset:{(ks % 4) * 1024} sc1")
```

```python
from asmlib import Asm, v, acc, s, interleave
from layout import *

S_WS = 4
S_X = 8
S_OUT = 12
S_AUX = 16
S_WAVE = 20
S_GRP = 21
S_LOC = 22
S_SLOW = 23
S_TO = 24
S_STEP = 25
S_T0 = 26
S_TMP = 40
S_BELL = 89
S_TAG = 88
S_CLK = 48

IOTA = [0, 2, 1, 3]
WS_SRD = s(S_WS, 4)


def wblock(b, vbase, hi=None):
    n = 8 if hi is None else 4
    o = 0 if hi is None else 4 * hi
    return acc(8 * b + o, n) if b < 32 else v(vbase + 8 * (b - 32) + o, n)


def smf(a, d, x, w, idx, upper=False):
    a(f"v_smfmac_f32_16x16x64_bf16 {v(d, 4)}, {v(x, 4)}, {w}, {v(idx)}" + (" abid:1" if upper else ""))


def stream_load(a, dests, vaddr, soff, window=48):
    for i, d in enumerate(dests):
        if i and i % 4 == 0:
            a(f"s_add_u32 {s(soff)}, {s(soff)}, 4096")
        if i >= window and (i - window) % 8 == 0:
            a(f"s_waitcnt vmcnt({window - 8})")
        a(f"buffer_load_dwordx4 {d}, {v(vaddr)}, {WS_SRD}, {s(soff)} offen offset:{(i % 4) * 1024}")


def any_poison(a, regs, tmp):
    regs = list(regs)
    a(f"v_max3_u32 {v(tmp)}, {v(regs[0])}, {v(regs[1])}, {v(regs[2])}")
    rest = regs[3:]
    while len(rest) >= 2:
        a(f"v_max3_u32 {v(tmp)}, {v(tmp)}, {v(rest[0])}, {v(rest[1])}")
        rest = rest[2:]
    if rest:
        a(f"v_max_u32 {v(tmp)}, {v(tmp)}, {v(rest[0])}")
    a(f"v_cmp_eq_u32 vcc, -1, {v(tmp)}")


def poll(a, loads, regs, tmp, sleep=0):
    top, done = a.newlabel("poll"), a.newlabel("got")
    a.label(top)
    for l in loads:
        a(l)
    a("s_waitcnt vmcnt(0)")
    any_poison(a, regs, tmp)
    a(f"s_cbranch_vccz {done}")
    if sleep:
        a(f"s_cmp_ge_u32 {s(S_STEP)}, {NSEG - 6}")
        a(f"s_cbranch_scc1 {top}x")
        a(f"s_sleep {sleep}")
        a.label(top + "x")
    a(f"s_sub_u32 {s(S_TO)}, {s(S_TO)}, 1")
    a(f"s_cbranch_scc0 {top}")
    a("s_endpgm")
    a.label(done)


def poll_deep(a, loads, regs, tmp, under=(), depth=2, sleep=None):
    spin, done = a.newlabel("spin"), a.newlabel("got")
    for _ in range(depth - 1):
        for l in loads:
            a(l)
    a.label(spin)
    for l in loads:
        a(l)
    a(f"s_waitcnt vmcnt({len(loads) * (depth - 1)})")
    any_poison(a, regs, tmp)
    for f in under:
        f()
    a(f"s_cbranch_vccz {done}")
    if sleep:
        a(f"s_cmp_ge_u32 {s(S_STEP)}, {sleep[1]}")
        a(f"s_cbranch_scc1 {spin}x")
        a(f"s_sleep {sleep[0]}")
        a.label(spin + "x")
    a(f"s_sub_u32 {s(S_TO)}, {s(S_TO)}, 1")
    a(f"s_cbranch_scc0 {spin}")
    a("s_endpgm")
    a.label(done)


def wait_flag(a, reg, load, sleep=2, landed=True):
    top, first, done = a.newlabel("flag"), a.newlabel("first"), a.newlabel("set")
    if not landed:
        a(f"s_branch {first}")
    a.label(top)
    a(f"v_cmp_ne_u32 vcc, {s(S_TAG)}, {v(reg)}")
    a(f"s_cbranch_vccz {done}")
    if sleep:
        a(f"s_sleep {sleep}")
    a.label(first)
    a(load)
    a("s_waitcnt vmcnt(0)")
    a(f"s_sub_u32 {s(S_TO)}, {s(S_TO)}, 1")
    a(f"s_cbranch_scc0 {top}")
    a("s_endpgm")
    a.label(done)


def wait_tasks(a, kind, t0, t1, w=0):
    if kind == "A":
        a(f"v_min_u32 {v(t0)}, 6, v0")
        a(f"v_lshlrev_b32 {v(t0)}, 2, {v(t0)}")
        a(f"s_lshl_b32 {s(S_TMP)}, {s(S_LOC)}, 7")
    elif kind == "B":
        a(f"v_and_b32 {v(t0)}, 7, v0")
        a(f"v_min_u32 {v(t0)}, 6, {v(t0)}")
        a(f"v_lshlrev_b32 {v(t0)}, 2, {v(t0)}")
        a(f"v_bfe_u32 {v(t1)}, v0, 3, 2")
        a(f"v_lshl_add_u32 {v(t0)}, {v(t1)}, 7, {v(t0)}")
        if w is None:
            a(f"s_lshl_b32 {s(S_TMP)}, {s(S_WAVE)}, 9")
            a(f"s_add_u32 {s(S_TMP)}, {s(S_TMP)}, 2048")
        else:
            a(f"s_mov_b32 {s(S_TMP)}, {2048 + 512 * w}")
    elif kind == "L":
        a(f"v_and_b32 {v(t0)}, 7, v0")
        a(f"v_lshlrev_b32 {v(t0)}, 2, {v(t0)}")
        a(f"v_bfe_u32 {v(t1)}, v0, 3, 2")
        a(f"v_lshl_add_u32 {v(t0)}, {v(t1)}, 7, {v(t0)}")
        a(f"s_mov_b32 {s(S_TMP)}, 4096")
    else:
        a(f"v_min_u32 {v(t1)}, {63 if kind == 'LZ' else 47}, v0")
        a(f"v_and_b32 {v(t0)}, 3, {v(t1)}")
        a(f"v_lshlrev_b32 {v(t0)}, 3, {v(t0)}")
        a(f"v_lshrrev_b32 {v(t1)}, 2, {v(t1)}")
        a(f"v_lshl_add_u32 {v(t0)}, {v(t1)}, 7, {v(t0)}")
        a(f"s_mov_b32 {s(S_TMP + 3)}, {WS['ARR'] + (4096 if kind == 'LZ' else 6144)}")
        top, done = a.newlabel("lz"), a.newlabel("lzok")
        a.label(top)
        a(f"buffer_load_dwordx2 {v(t1, 2)}, {v(t0)}, {WS_SRD}, {s(S_TMP + 3)} offen sc1")
        a("s_waitcnt vmcnt(0)")
        a(f"v_cmp_ne_u32 vcc, {s(S_TAG)}, {v(t1)}")
        a(f"v_cmp_ne_u32 {s(S_TMP, 2)}, {s(S_TAG)}, {v(t1 + 1)}")
        a(f"s_or_b64 vcc, vcc, {s(S_TMP, 2)}")
        a(f"s_cbranch_vccz {done}")
        a("s_sleep 8")
        a(f"s_sub_u32 {s(S_TO)}, {s(S_TO)}, 1")
        a(f"s_cbranch_scc0 {top}")
        a("s_endpgm")
        a.label(done)
        return
    wait_flag(a, t1, f"buffer_load_dword {v(t1)}, {v(t0)}, {WS_SRD}, {s(S_TMP)} offen offset:{WS['ARR']} sc1", sleep=4, landed=False)


def wait_bell(a, cfg, tmp, sval, word, depth=2):
    if not cfg.get("bell", 0):
        return
    spin, done = a.newlabel("bell"), a.newlabel("rung")
    load = f"buffer_load_dword {v(tmp)}, off, {WS_SRD}, {s(S_BELL)} offset:{4 * word} sc1"
    a(f"s_cmp_lg_u32 {s(S_SLOW)}, 0")
    a(f"s_cbranch_scc1 {done}")
    for _ in range(depth - 1):
        a(load)
    a.label(spin)
    a(load)
    a(f"s_waitcnt vmcnt({depth - 1})")
    a(f"v_cmp_ne_u32 vcc, {s(sval)}, {v(tmp)}")
    a(f"s_cbranch_vccz {done}")
    a(f"s_sub_u32 {s(S_TO)}, {s(S_TO)}, 1")
    a(f"s_cbranch_scc0 {spin}")
    a("s_endpgm")
    a.label(done)


def wait_step(a, tmp, first, per_group=0, sleep=16):
    top, done = a.newlabel("stp"), a.newlabel("stpok")
    a(f"s_mul_i32 {s(S_TMP)}, {s(S_GRP)}, {per_group * MEM_SZ}")
    a(f"s_add_u32 {s(S_TMP)}, {s(S_TMP)}, {WS['MEMG'] + first * MEM_SZ}")
    a.label(top)
    a(f"buffer_load_dword {v(tmp)}, off, {WS_SRD}, {s(S_TMP)} sc1")
    a("s_waitcnt vmcnt(0)")
    a(f"v_cmp_eq_u32 vcc, -1, {v(tmp)}")
    a(f"s_cbranch_vccz {done}")
    a(f"s_sleep {sleep}")
    a(f"s_sub_u32 {s(S_TO)}, {s(S_TO)}, 1")
    a(f"s_cbranch_scc0 {top}")
    a("s_endpgm")
    a.label(done)


def wait_first_y(a, tmp, seg_reg=None, seg=0):
    if seg_reg is not None:
        a(f"s_lshl_b32 {s(S_TMP)}, {s(seg_reg)}, 7")
        a(f"s_add_u32 {s(S_TMP)}, {s(S_TMP)}, {WS['GATE']}")
    else:
        a(f"s_mov_b32 {s(S_TMP)}, {WS['GATE'] + 128 * seg}")
    wait_flag(a, tmp, f"buffer_load_dword {v(tmp)}, off, {WS_SRD}, {s(S_TMP)} sc1", sleep=16, landed=False)


def local_stores(a, stores, scc_set=False):
    slow, done = a.newlabel("wt"), a.newlabel("st")
    if not scc_set:
        a(f"s_cmp_lg_u32 {s(S_SLOW)}, 0")
    a(f"s_cbranch_scc1 {slow}")
    for st in stores:
        a(st)
    a(f"s_branch {done}")
    a.label(slow)
    for st in stores:
        a(st + " sc1")
    a.label(done)


def index_reg(a, reg, tmp):
    a(f"v_and_b32 {v(tmp)}, 8, v0")
    a(f"v_cmp_eq_u32 vcc, 0, {v(tmp)}")
    a(f"v_mov_b32 {v(tmp)}, 0x88884444")
    a(f"v_mov_b32 {v(reg)}, 0xddddeeee")
    a(f"v_cndmask_b32 {v(reg)}, {v(reg)}, {v(tmp)}, vcc")


def iota_reg(a, reg, tmp):
    a(f"v_bfe_u32 {v(reg)}, v0, 5, 1")
    a(f"v_bfe_u32 {v(tmp)}, v0, 4, 1")
    a(f"v_lshl_add_u32 {v(reg)}, {v(tmp)}, 1, {v(reg)}")


def stamp(a, cfg, k):
    if cfg.get("stamps", 0) >> k & 1:
        a(f"{'s_memrealtime' if cfg.get('rt') else 's_memtime'} {s(S_CLK + 2 * k, 2)}")


def flush_stamps(a, cfg, n, slot, tmp):
    if not cfg.get("stamps"):
        return
    skip = a.newlabel("nostamp")
    if cfg.get("lastonly"):
        a(f"s_cmp_lt_u32 {s(S_STEP)}, 63")
        a(f"s_cbranch_scc1 {skip}")
    a("s_waitcnt lgkmcnt(0)")
    a.ds = []
    a(f"s_lshl_b32 {s(S_TMP)}, {s(S_STEP)}, 6")
    a(f"s_add_u32 {s(S_TMP)}, {s(S_TMP)}, {WS['DBG'] + slot * 4096}")
    a(f"s_mul_i32 {s(S_TMP + 1)}, {s(S_LOC)}, 0x30000")
    a(f"s_add_u32 {s(S_TMP)}, {s(S_TMP)}, {s(S_TMP + 1)}")
    for k in range(n):
        a(f"v_mov_b32 {v(tmp)}, {s(S_CLK + 2 * k)}")
        a(f"buffer_store_dword {v(tmp)}, off, {WS_SRD}, {s(S_TMP)} offset:{4 * k}")
    a(f"v_mov_b32 {v(tmp)}, {s(S_TO)}")
    a(f"buffer_store_dword {v(tmp)}, off, {WS_SRD}, {s(S_TMP)} offset:60")
    a(f"s_add_u32 {s(S_TMP + 1)}, {s(S_STEP)}, -1")
    a(f"s_cmp_lt_u32 {s(S_TMP + 1)}, {cfg.get('last_step', 61)}")
    a(f"s_cbranch_scc1 {skip}")
    a(f"s_memrealtime {s(S_CLK + 28, 2)}")
    a("s_waitcnt lgkmcnt(0)")
    a(f"v_mov_b32 {v(tmp)}, {s(S_CLK + 28)}")
    a(f"buffer_store_dword {v(tmp)}, off, {WS_SRD}, {s(S_TMP)} offset:56")
    a(f"v_mov_b32 {v(tmp)}, {s(S_CLK + 30)}")
    a(f"buffer_store_dword {v(tmp)}, off, {WS_SRD}, {s(S_TMP)} offset:52")
    a.label(skip)


def milestone(a, cfg, k, tmp):
    if not cfg.get("stamps"):
        return
    a("s_memrealtime s[92:93]")
    a("s_lshl_b32 s90, s2, 2")
    a(f"s_add_u32 s90, s90, {s(S_WAVE)}")
    a("s_lshl_b32 s90, s90, 5")
    a(f"s_add_u32 s90, s90, {WS['DBG'] + 0x28000}")
    a("s_waitcnt lgkmcnt(0)")
    a(f"v_mov_b32 {v(tmp)}, s92")
    a(f"buffer_store_dword {v(tmp)}, off, {WS_SRD}, s90 offset:{4 * k}")
    if k == 0:
        a(f"s_lshl_b32 s91, {s(S_GRP)}, 8")
        a(f"s_add_u32 s91, s91, {s(S_LOC)}")
        a(f"v_mov_b32 {v(tmp)}, s91")
        a(f"buffer_store_dword {v(tmp)}, off, {WS_SRD}, s90 offset:28")


def keep_stamps(a, cfg, n, base):
    if cfg.get("stamps"):
        a(f"s_mov_b32 m0, {s(S_STEP)}")
        for k in range(n):
            a(f"v_writelane_b32 {v(base + k)}, {s(S_CLK + 2 * k)}, m0")


def dump_stamps(a, cfg, n, base, slot, lane16):
    if not cfg.get("stamps"):
        return
    a(f"v_lshlrev_b32 {v(lane16)}, 2, {v(lane16)}")
    a(f"s_mul_i32 {s(S_TMP)}, {s(S_LOC)}, 0x30000")
    a(f"s_add_u32 {s(S_TMP)}, {s(S_TMP)}, {WS['DBG'] + slot * 4096}")
    for k in range(n):
        a(f"buffer_store_dword {v(base + k)}, {v(lane16)}, {WS_SRD}, {s(S_TMP)} offen offset:{4 * k}")


def gen_s1(a, w, cfg):
    L16, XKA, MKA, TWA, TRA, SWA, SRA, SRM, PTA, PMA, IDX, T0, T1 = range(1, 14)
    TACC, MA, MK, XK, WV = 16, 44, 72, 88, 120
    MEMIMG, TBUF, SBUF, ZERO = 0, 8192 + 2048 * w, 16384, 24576
    sMEM, sP, sPM, sX0, sX1, sY, sR, sRDY, sVAL, sOWN = range(S_T0, S_T0 + 10)
    p0 = cfg.get('ypieces', 0)
    blk = lambda j, k: wblock(j * 7 + k, WV)
    own = [2 * w, 2 * w + 1] if w < 3 else [5, 6]
    share = own if w < 3 else [6]
    others = [k for k in range(7) if k not in own]
    T = lambda j, r=0: TACC + 4 * j + r
    TOP0, TOP1 = T(0), T(1)
    T1D = T(6)
    SC = [MA + 4 * own[0], MA + 4 * own[1], 12]

    a.label(f"S1_W{w}")
    a(f"v_lshlrev_b32 {v(L16)}, 4, v0")
    wait_tasks(a, "A", T0, T1)
    a(f"s_mul_i32 {s(S_TMP)}, {s(S_LOC)}, {AL_HEAD}")
    a(f"s_add_u32 {s(S_TMP)}, {s(S_TMP)}, {WS['AL'] + w * 100352}")
    stream_load(a, [wblock(b, WV, hi) for b in range(49) for hi in range(2)], L16, S_TMP)
    a(f"v_and_b32 {v(T0)}, 15, v0")
    a(f"v_lshrrev_b32 {v(T1)}, 4, v0")
    a(f"v_add_u32 {v(MKA)}, {14 * w}, {v(T1)}")
    a(f"v_lshrrev_b32 {v(XKA)}, 2, {v(MKA)}")
    a(f"v_lshlrev_b32 {v(XKA)}, 10, {v(XKA)}")
    a(f"v_and_b32 {v(SWA)}, 3, {v(MKA)}")
    a(f"v_lshl_add_u32 {v(SWA)}, {v(SWA)}, 4, {v(T0)}")
    a(f"v_lshl_add_u32 {v(XKA)}, {v(SWA)}, 4, {v(XKA)}")
    a(f"v_and_b32 {v(SWA)}, 7, v0")
    a(f"v_lshlrev_b32 {v(SWA)}, 4, {v(SWA)}")
    a(f"v_lshl_add_u32 {v(MKA)}, {v(MKA)}, 7, {v(SWA)}")
    iota_reg(a, PTA, PMA)
    a(f"v_lshlrev_b32 {v(TWA)}, 2, {v(PTA)}")
    a(f"v_lshl_add_u32 {v(TWA)}, {v(T0)}, 4, {v(TWA)}")
    a(f"v_add_u32 {v(TWA)}, {TBUF}, {v(TWA)}")
    a(f"v_mul_u32_u24 {v(SWA)}, 1536, {v(PTA)}")
    a(f"v_lshl_add_u32 {v(SWA)}, {v(T0)}, 4, {v(SWA)}")
    a(f"v_add_u32 {v(SWA)}, {SBUF + (w >> 1) * 256 + (w & 1) * 8}, {v(SWA)}")
    a(f"v_bfe_u32 {v(TRA)}, v0, 2, 2")
    a(f"v_lshl_add_u32 {v(TRA)}, {v(T1)}, 3, {v(TRA)}")
    a(f"v_lshlrev_b32 {v(TRA)}, 5, {v(TRA)}")
    a(f"v_and_b32 {v(PMA)}, 3, v0")
    a(f"v_lshl_add_u32 {v(TRA)}, {v(PMA)}, 3, {v(TRA)}")
    a(f"v_add_u32 {v(TRA)}, {TBUF}, {v(TRA)}")
    a(f"v_lshrrev_b32 {v(T1)}, 5, v0")
    a(f"v_bfe_u32 {v(SRA)}, v0, 4, 1")
    a(f"v_lshlrev_b32 {v(SRA)}, 9, {v(SRA)}")
    a(f"v_lshl_add_u32 {v(SRA)}, {v(T1)}, 8, {v(SRA)}")
    a(f"v_lshl_add_u32 {v(SRA)}, {v(T0)}, 4, {v(SRA)}")
    a(f"v_add_u32 {v(SRA)}, {SBUF + w * 1536}, {v(SRA)}")
    a(f"v_and_b32 {v(SRM)}, 7, v0")
    a(f"v_lshlrev_b32 {v(SRM)}, 4, {v(SRM)}")
    a(f"v_lshl_add_u32 {v(SRM)}, {v(T1)}, 8, {v(SRM)}")
    a(f"v_add_u32 {v(SRM)}, {SBUF + w * 1536 + 1024}, {v(SRM)}")
    a(f"v_add_u32 {v(T1)}, {2 * w}, {v(T1)}")
    a(f"v_bfe_u32 {v(PTA)}, v0, 3, 2")
    a(f"v_lshlrev_b32 {v(PTA)}, 7, {v(PTA)}")
    a(f"v_lshl_add_u32 {v(PTA)}, {v(T1)}, 4, {v(PTA)}")
    a(f"v_and_b32 {v(T0)}, 7, v0")
    a(f"v_lshl_add_u32 {v(PTA)}, {v(T0)}, 1, {v(PTA)}")
    a(f"v_bfe_u32 {v(PMA)}, v0, 1, 1")
    a(f"v_lshlrev_b32 {v(PMA)}, 7, {v(PMA)}")
    a(f"v_lshl_add_u32 {v(PMA)}, {v(T1)}, 4, {v(PMA)}")
    a(f"v_bfe_u32 {v(T0)}, v0, 2, 1")
    a(f"v_lshl_add_u32 {v(PMA)}, {v(T0)}, 3, {v(PMA)}")
    a(f"v_and_b32 {v(T0)}, 1, v0")
    a(f"v_lshlrev_b32 {v(T0)}, 30, {v(T0)}")
    a(f"v_or_b32 {v(PTA)}, {v(PTA)}, {v(T0)}")
    a(f"v_or_b32 {v(PMA)}, {v(PMA)}, {v(T0)}")
    index_reg(a, IDX, T0)
    a(f"v_mov_b32 {v(T0)}, 0")
    a(f"v_lshlrev_b32 {v(T1)}, 2, v0")
    a(f"ds_write_b32 {v(T1)}, {v(T0)} offset:{TBUF + 7 * 256}")
    a(f"ds_write_b32 {v(T1)}, {v(T0)} offset:{MEMIMG + 7168}")
    a(f"ds_write_b32 {v(T1)}, {v(T0)} offset:{ZERO + 256 * w}")
    a(f"s_mul_i32 {s(sMEM)}, {s(S_SLOW)}, {WS['MEMG'] - WS['MEML']}")
    a(f"s_add_u32 {s(sMEM)}, {s(sMEM)}, {WS['MEML'] + own[0] * 1024}")
    a(f"s_lshl_b32 {s(sP)}, {s(S_LOC)}, 9")
    a(f"s_add_u32 {s(sP)}, {s(sP)}, {WS['PB']}")
    a(f"s_lshr_b32 {s(sPM)}, {s(S_LOC)}, 1")
    a(f"s_lshl_b32 {s(sPM)}, {s(sPM)}, 8")
    a(f"s_and_b32 {s(S_TMP)}, {s(S_LOC)}, 1")
    a(f"s_lshl_b32 {s(S_TMP)}, {s(S_TMP)}, 2")
    a(f"s_add_u32 {s(sPM)}, {s(sPM)}, {s(S_TMP)}")
    a(f"s_add_u32 {s(sPM)}, {s(sPM)}, {WS['PB'] + 8192}")
    a(f"s_mov_b32 {s(S_X)}, {s(S_WS)}")
    a(f"s_or_b32 {s(S_X + 1)}, {s(S_WS + 1)}, 0x80000")
    a(f"s_mov_b32 {s(S_X + 2)}, {(8 - p0) * 128}")
    a(f"s_mov_b32 {s(S_X + 3)}, 0x00020000")
    a(f"s_mov_b32 {s(S_OUT)}, {s(S_WS)}")
    a(f"s_mov_b32 {s(S_OUT + 1)}, {s(S_X + 1)}")
    a(f"s_mov_b32 {s(S_OUT + 2)}, {56 * 16}")
    a(f"s_mov_b32 {s(S_OUT + 3)}, 0x00020000")
    a(f"s_lshl_b32 {s(sY)}, {s(S_LOC)}, 15")
    a(f"s_add_u32 {s(sY)}, {s(sY)}, {WS['YL'] + Y_SEG + w * 8192 + p0 * 1024}")
    a(f"s_mov_b32 {s(sR)}, {WS['YR'] + 128}")
    a(f"s_mov_b32 {s(S_TMP + 7)}, 0x3e800000")
    a(f"s_mov_b32 {s(sX0)}, {WS['XT']}")
    a(f"s_mov_b32 {s(sX1)}, {WS['XT'] + 14336}")
    a(f"s_mov_b32 {s(S_STEP)}, 0")
    a("s_waitcnt lgkmcnt(0)")
    a(f"v_lshrrev_b32 v0, 4, {v(L16)}")
    wait_tasks(a, "LZ", 14, 12)
    milestone(a, cfg, 1, T0)

    T0 = JUNK = 0

    def load_keys(i):
        kt, q = i & 1, i >> 1
        a(f"buffer_load_dwordx4 {v(XK + 16 * kt + 4 * q, 4)}, {v(XKA)}, {WS_SRD}, {s(sX1 if kt else sX0)} offen offset:{q * 1024}")
    a(f"s_mov_b32 {s(S_BELL)}, {WS['BELL']}")
    a(f"s_lshl_b32 {s(sOWN)}, {s(S_LOC)}, 2")
    a(f"s_add_u32 {s(sOWN)}, {s(sOWN)}, {WS['BELL']}")
    a(f"s_mov_b32 {s(sVAL)}, {s(S_TAG)}")
    top = f"S1_STEP{w}"
    a.label(top)
    a(f"buffer_load_dword {v(MK)}, off, {WS_SRD}, {s(sR)} sc1")
    for r in range(32):
        a(f"v_mov_b32 {v(12 + r)}, 0")
    stamp(a, cfg, 0)
    if cfg.get("stamps"):
        a(f"s_memtime {s(S_CLK + 22, 2)}")
    first = a.newlabel("first")
    a(f"s_cmp_eq_u32 {s(S_STEP)}, 0")
    a(f"s_cbranch_scc1 {first}")
    wait_bell(a, cfg, MK + 1, sVAL, 64 + 2 * own[0])
    a.label(first)
    a(f"s_add_u32 {s(sVAL)}, {s(sVAL)}, 1")
    pa = [(j, k) for k in own for j in range(7)]
    poll_deep(a, [f"buffer_load_dwordx4 {v(MA + 4 * own[i], 4)}, {v(L16)}, {WS_SRD}, {s(sMEM)} offen offset:{1024 * i} sc1" for i in range(cfg.get("mpoll", 2))],
              range(MA + 4 * own[0], MA + 4 * own[0] + 4 * cfg.get("mpoll", 2)), T0,
              [lambda k=k: a.dsop(f"ds_write_b128 {v(L16)}, {v(MA + 4 * k, 4)} offset:{MEMIMG + 1024 * k}") for k in share],
              cfg.get("depth1", 2))
    stamp(a, cfg, 1)
    nh = cfg.get("nhead", 3)
    for n_, (j, k) in enumerate(pa[:nh]):
        smf(a, T(j), MA + 4 * k, blk(j, k), IDX)
        if n_ == 0:
            a(f"v_readfirstlane_b32 {s(sRDY)}, {v(MK)}")
    a.wait_ds_all()
    stamp(a, cfg, 5)
    a("s_barrier")
    stamp(a, cfg, 6)
    kg = [cfg.get("kgap0", -10) + cfg.get("kgap", 4) * i for i in range(8)]
    for n_, (j, k) in enumerate(pa[nh:]):
        if n_ < len(others):
            a.dsop(f"ds_read_b128 {v(MA + 4 * others[n_], 4)}, {v(L16)} offset:{MEMIMG + 1024 * others[n_]}", ("ma", others[n_]))
        smf(a, T(j), MA + 4 * k, blk(j, k), IDX)
        if n_ == 0:
            a(f"s_cmp_lt_u32 {s(S_LOC)}, 14")
            a(f"s_cselect_b32 {s(sRDY)}, {s(sRDY)}, 0")
            a(f"s_cmp_eq_u32 {s(sRDY)}, {s(S_TAG)}")
            a(f"s_cselect_b32 {s(S_X + 2)}, {(8 - p0) * 128 if cfg.get('assist', 0) else 0}, 0")
        if n_ - (14 - nh) in kg:
            load_keys(kg.index(n_ - (14 - nh)))
        if 5 <= n_ < 9:
            a.dsop(f"ds_read_b128 {v(MK + 4 * (n_ - 5), 4)}, {v(MKA)} offset:{MEMIMG + 512 * (n_ - 5)}", "mk")

    def post(j):
        return [lambda: a(f"v_permlane32_swap_b32 {v(T(j, 0))}, {v(T(j, 2))}"),
                lambda: a(f"v_permlane32_swap_b32 {v(T(j, 1))}, {v(T(j, 3))}"),
                lambda: (a(f"v_add_f32 {v(T(j, 0))}, {v(T(j, 0))}, {v(T(j, 2))}"),
                         a(f"v_add_f32 {v(T(j, 1))}, {v(T(j, 1))}, {v(T(j, 3))}")),
                lambda: a(f"v_cvt_pk_bf16_f32 {v(T(j, 0))}, {v(T(j, 0))}, {v(T(j, 1))}"),
                lambda: a.dsop(f"ds_write_b32 {v(TWA)}, {v(T(j, 0))} offset:{256 * j}")]

    main, fill = [], {}
    for j in range(7):
        for k in others:
            def mm(j=j, k=k):
                if j == 0:
                    a.wait_ds(("ma", k))
                smf(a, T(j), MA + 4 * k, blk(j, k), IDX)
            main.append(mm)
    for i in range(8):
        if kg[i] >= 0:
            fill[kg[i]] = [lambda i=i: load_keys(i)]
    ag = kg[7] + 4
    fill.setdefault(ag, []).append(lambda: a(f"buffer_load_dword {v(JUNK)}, {v(L16)}, {s(S_X, 4)}, {s(sY)} idxen sc1"))
    after = lambda gap: sum(g > gap for g in kg) + (ag > gap)
    for j in range(6):
        for i, f in enumerate(post(j)):
            fill.setdefault(5 * (j + 1) + 2 + i, []).append(f)
    zgap = 21
    fill[zgap].append(lambda: a(f"s_waitcnt vmcnt({9 - after(zgap)})"))
    for q in range(2):
        fill[zgap].append(lambda q=q: a.dsop(f"ds_read_b128 {v(SC[q], 4)}, {v(L16)} offset:{ZERO}", "z"))
    for q in range(2):
        fill.setdefault(26 + 5 * q, []).append(lambda q=q: a.dsop(f"ds_read_b64_tr_b16 {v(TOP0 + 2 * q, 2)}, {v(TRA)} offset:{128 * q}", "t0"))
    stamp(a, cfg, 7)
    fill.setdefault(4, []).append(lambda: stamp(a, cfg, 8))
    fill.setdefault(24, []).append(lambda: stamp(a, cfg, 9))
    fill.setdefault(34, []).append(lambda: stamp(a, cfg, 10))
    tail = [f for i in sorted(fill) if i >= 35 for f in fill[i]]
    interleave(a, main, {i: f for i, f in fill.items() if i < 35})
    def ring(at):
        if w == 0 and cfg.get("bell", 0) and cfg.get("bell1", 1) == at:
            a(f"v_mov_b32 {v(T(2))}, {s(sVAL)}")
            a(f"buffer_store_dword {v(T(2))}, off, {WS_SRD}, {s(sOWN)}")
    a("s_waitcnt vmcnt(5)")
    ring(0)
    a.wait_ds("t0")
    keys = [XK, XK + 16, MK]
    for t in range(3):
        smf(a, SC[t], TOP0, v(keys[t], 8), IDX, True)
        if t < len(tail):
            tail[t]()
    for f in post(6):
        f()
    for q in range(2):
        a.dsop(f"ds_read_b64_tr_b16 {v(TOP1 + 2 * q, 2)}, {v(TRA)} offset:{1024 + 128 * q}", "t1")
    stamp(a, cfg, 2)
    a(f"s_waitcnt vmcnt({2 if w == 0 and cfg.get('bell', 0) and cfg.get('bell1', 1) == 0 else 1})")
    ring(1)
    a.wait_ds("t1")
    for t in range(3):
        smf(a, SC[t], TOP1, v(keys[t] + 8, 8), IDX, True)
    swaps = lambda x: (a(f"v_permlane32_swap_b32 {v(x)}, {v(x + 2)}"), a(f"v_permlane32_swap_b32 {v(x + 1)}, {v(x + 3)}"))
    adds = lambda x: (a(f"v_add_f32 {v(x)}, {v(x)}, {v(x + 2)}"), a(f"v_add_f32 {v(x + 1)}, {v(x + 1)}, {v(x + 3)}"))
    write = lambda t: a.dsop(f"ds_write_b64 {v(SWA)}, {v(SC[t], 2)} offset:{512 * t}")
    a.nop(cfg.get("scnop", 2))
    if cfg.get("reorder", 1):
        swaps(SC[0]); adds(SC[0]); swaps(SC[1]); write(0); adds(SC[1]); swaps(SC[2]); write(1); adds(SC[2]); write(2)
    else:
        for t in range(3):
            swaps(SC[t]); adds(SC[t]); write(t)
    ring(2)
    a.wait_ds_all()
    a("s_barrier")
    stamp(a, cfg, 3)
    R, Q, LIM = T(3), T(4), T(5)
    a.dsop(f"ds_read_b128 {v(R, 4)}, {v(SRA)}", "r")
    a.dsop(f"ds_read_b128 {v(Q, 4)}, {v(SRM)}", "q")
    a(f"v_mov_b32 {v(LIM)}, 0x42800000")
    a.wait_ds("r")
    a(f"v_pk_add_f32 {v(R, 2)}, {v(R, 2)}, {v(R + 2, 2)}")
    a.wait_ds("q")
    a(f"v_pk_add_f32 {v(Q, 2)}, {v(Q, 2)}, {v(Q + 2, 2)}")
    a.nop(1)
    a(f"v_permlane32_swap_b32 {v(R)}, {v(R + 1)}")
    a(f"v_permlane32_swap_b32 {v(Q)}, {v(Q + 1)}")
    A_, B_, M, M2 = R, Q, R + 2, R + 3
    a(f"v_add_f32 {v(A_)}, {v(R)}, {v(R + 1)}")
    a(f"v_add_f32 {v(B_)}, {v(Q)}, {v(Q + 1)}")

    def reduce32(op, under=()):
        under = list(under)
        for ctl in ("quad_perm:[1,0,3,2]", "quad_perm:[2,3,0,1]", "row_half_mirror", "row_mirror"):
            if under:
                a(under.pop(0))
                a.nop(1)
            else:
                a.nop(2)
            a(f"{op}_dpp {v(M)}, {v(M)}, {v(M)} {ctl} row_mask:0xf bank_mask:0xf")
        a(f"v_mov_b32 {v(M2)}, {v(M)}")
        a.nop(2)
        a(f"v_permlane16_swap_b32 {v(M2)}, {v(M)}")
        a(f"{op} {v(M)}, {v(M)}, {v(M2)}")

    def true_max(da=A_, db=B_):
        a(f"v_max_f32 {v(M)}, {v(R)}, {v(Q)}")
        reduce32("v_max_f32")
        a(f"v_sub_f32 {v(R)}, {v(R)}, {v(M)}")
        a(f"v_sub_f32 {v(Q)}, {v(Q)}, {v(M)}")
        a(f"v_exp_f32 {v(da)}, {v(R)}")
        a(f"v_exp_f32 {v(db)}, {v(Q)}")

    late = []
    if cfg.get("quickmax", 1):
        shifted, ranged = a.newlabel("shift"), a.newlabel("range")
        a(f"v_max_f32 {v(M)}, |{v(A_)}|, |{v(B_)}|")
        a(f"v_exp_f32 {v(R + 1)}, {v(A_)}")
        a(f"v_cmp_nle_f32 vcc, {v(M)}, {v(LIM)}")
        a(f"v_exp_f32 {v(Q + 1)}, {v(B_)}")
        a(f"s_cbranch_vccnz {shifted}")
        a.label(ranged)
        late.append((shifted, ranged))
        A_, B_, NA, NB = R + 1, Q + 1, R, Q
    else:
        true_max()
        a.nop(1)
        NA, NB = R + 1, Q + 1
    a(f"v_fma_f32 {v(M)}, {v(B_)}, {s(S_TMP + 7)}, {v(A_)}")
    reduce32("v_add_f32", [f"v_mov_b32_dpp {v(NA)}, {v(A_)} quad_perm:[1,0,3,2] row_mask:0xf bank_mask:0xf",
                           f"v_mov_b32_dpp {v(NB)}, {v(B_)} quad_perm:[1,0,3,2] row_mask:0xf bank_mask:0xf"])
    a(f"v_rcp_f32 {v(M)}, {v(M)}")
    a(f"s_cmp_lg_u32 {s(S_SLOW)}, 0")
    a(f"v_pk_mul_f32 {v(R, 2)}, {v(R, 2)}, {v(M, 2)} op_sel_hi:[1,0] clamp")
    a(f"v_pk_mul_f32 {v(Q, 2)}, {v(Q, 2)}, {v(M, 2)} op_sel_hi:[1,0] clamp")
    a(f"v_cvt_pk_bf16_f32 {v(A_)}, {v(A_)}, {v(NA)}")
    a(f"v_cvt_pk_bf16_f32 {v(B_)}, {v(B_)}, {v(NB)}")
    local_stores(a, [f"buffer_store_dword {v(A_)}, {v(PTA)}, {WS_SRD}, {s(sP)} offen",
                     f"buffer_store_dword {v(B_)}, {v(PMA)}, {WS_SRD}, {s(sPM)} offen"], scc_set=True)
    stamp(a, cfg, 4)
    a(f"s_add_u32 {s(sR)}, {s(sR)}, 128")
    a(f"s_add_u32 {s(sY)}, {s(sY)}, {Y_SEG}")
    if cfg.get("span") and w == 0:
        for k, st in enumerate((0, 10, 60, 62)):
            skip = a.newlabel("sp")
            a(f"s_cmp_eq_u32 {s(S_STEP)}, {st}")
            a(f"s_cbranch_scc0 {skip}")
            a(f"s_memrealtime {s(S_CLK + 4 * k, 2)}")
            a(f"s_memtime {s(S_CLK + 4 * k + 2, 2)}")
            a("s_waitcnt lgkmcnt(0)")
            a.label(skip)
    if cfg.get("stamps"):
        a("s_waitcnt lgkmcnt(0)")
        a(f"s_lshl_b32 {s(S_TMP)}, {s(S_STEP)}, 6")
        a(f"v_mov_b32 {v(T1D)}, {s(S_TMP)}")
        for k, r in [(k, S_CLK + 2 * k) for k in range(12)] + [(15, S_TO)]:
            if k >= 11 or cfg["stamps"] >> k & 1:
                a(f"v_mov_b32 {v(T1D + 1)}, {s(r)}")
                a(f"ds_write_b32 {v(T1D)}, {v(T1D + 1)} offset:{32768 + 4096 * w + 4 * k}")
    a(f"s_add_u32 {s(sMEM)}, {s(sMEM)}, {MEM_SZ}")
    a(f"s_add_u32 {s(sP)}, {s(sP)}, {PB_SZ}")
    a(f"s_add_u32 {s(sPM)}, {s(sPM)}, {PB_SZ}")
    a(f"s_add_u32 {s(sX0)}, {s(sX0)}, {0 if cfg.get('samex') else XT_SEG}")
    a(f"s_add_u32 {s(sX1)}, {s(sX1)}, {0 if cfg.get('samex') else XT_SEG}")
    a(f"s_add_u32 {s(S_STEP)}, {s(S_STEP)}, 1")
    a(f"s_cmp_lt_u32 {s(S_STEP)}, {NSEG - 1}")
    a(f"s_cbranch_scc1 {top}")
    if cfg.get("span") and w == 0:
        a(f"s_lshl_b32 {s(S_TMP)}, {s(S_LOC)}, 6")
        a(f"s_add_u32 {s(S_TMP)}, {s(S_TMP)}, {WS['DBG']}")
        for k, r in enumerate(list(range(0, 16, 2)) + [30]):
            a(f"v_mov_b32 v16, {s(S_CLK + r)}")
            a(f"buffer_store_dword v16, off, {WS_SRD}, {s(S_TMP)} offset:{4 * k}")
    if cfg.get("stamps"):
        a(f"s_mul_i32 {s(S_TMP)}, {s(S_LOC)}, 0x30000")
        a(f"s_add_u32 {s(S_TMP)}, {s(S_TMP)}, {WS['DBG'] + w * 4096}")
        for i in range(4):
            a(f"ds_read_b128 {v(16, 4)}, {v(L16)} offset:{32768 + 4096 * w + 1024 * i}")
            a("s_waitcnt lgkmcnt(0)")
            a(f"buffer_store_dwordx4 {v(16, 4)}, {v(L16)}, {WS_SRD}, {s(S_TMP)} offen offset:{1024 * i}")
            a("s_waitcnt vmcnt(0)")
    a("s_endpgm")
    for shifted, ranged in late:
        a.label(shifted)
        true_max(R + 1, Q + 1)
        a(f"s_branch {ranged}")


class BRes:
    WL = 49152
    WV = 176

    def __init__(self, a, w, L16, IDX, MA, WT, ACC, ZW):
        self.a, self.w, self.L16, self.IDX, self.MA, self.WT, self.ACC, self.ZW = a, w, L16, IDX, MA, WT, ACC, ZW

    def blk(self, t, k, hi=None):
        return wblock(t * 7 + k, self.WV, hi)

    def lds_off(self, t, k, hi):
        return (t - 6) * 14336 + k * 2048 + hi * 1024

    def load(self, sloc, lbase, hook=None, hook_at=0):
        a, w = self.a, self.w
        a(f"s_mul_i32 {s(S_TMP)}, {s(sloc)}, {BL_CU}")
        a(f"s_add_u32 {s(S_TMP)}, {s(S_TMP)}, {WS['BL'] + w * 114688}")
        a(f"s_add_u32 {s(S_TMP + 1)}, {s(S_TMP)}, {6 * 14336}")
        a(f"s_add_u32 {s(S_TMP + 3)}, {s(S_TMP)}, {4 * 14336}")
        stream_load(a, [wblock(b, self.WV, hi) for b in range(28) for hi in range(2)], self.L16, S_TMP, window=40)
        for i in range(28):
            if i % 8 == 0:
                a("s_waitcnt vmcnt(40)")
                if hook and i == 8 * (hook_at - 1):
                    hook()
            a(f"s_mov_b32 m0, {self.WL + w * 28672 + i * 1024}")
            a(f"s_add_u32 {s(S_TMP + 2)}, {s(S_TMP + 1)}, {i * 1024}")
            a(f"buffer_load_dwordx4 {v(self.L16)}, {WS_SRD}, {s(S_TMP + 2)} offen lds")
        dests = [wblock(b, self.WV, hi) for b in range(28, 42) for hi in range(2)]
        for i in range(0, 28, 4):
            a("s_waitcnt vmcnt(52)")
            stream_load(a, dests[i:i + 4], self.L16, S_TMP + 3)
            a(f"s_add_u32 {s(S_TMP + 3)}, {s(S_TMP + 3)}, 4096")
        if hook and hook_at == 9:
            hook()
        a(f"v_add_u32 {v(lbase)}, {self.WL + w * 28672}, {v(self.L16)}")
        self.lbase = lbase

    def read_block(self, i, order, half=None):
        t, k = 6 + i // 7, order[i % 7]
        for hi in (range(2) if half is None else [half]):
            self.a.dsop(f"ds_read_b128 {v(self.WT + 8 * (i % 3) + 4 * hi, 4)}, {v(self.lbase)} offset:{self.lds_off(t, k, hi)}", ("wt", i))

    def zero_acc(self):
        for r in range(32):
            self.a(f"v_mov_b32 {v(self.ACC + r)}, 0")

    def cvt(self, t, slot):
        d = self.ZW + 8 * (t & 1) + 2 * (t >> 1)
        c = self.ACC + 4 * slot
        return [lambda: self.a(f"v_cvt_pk_bf16_f32 {v(d)}, {v(c)}, {v(c + 1)}"),
                lambda: self.a(f"v_cvt_pk_bf16_f32 {v(d + 1)}, {v(c + 2)}, {v(c + 3)}")]

    def mem_values(self, order, extra):
        a = self.a
        groups = ([0, 1, 2, 6], [3, 4, 5, 7])
        main, fill = [], {k: list(x) for k, x in extra.items()}
        for gi, tiles in enumerate(groups):
            for ki, k in enumerate(order):
                for ti, t in enumerate(tiles):
                    def mm(gi=gi, ki=ki, k=k, ti=ti, t=t):
                        if ti == 0 and gi == 0:
                            a.wait_ds(("ma", k))
                        if t >= 6:
                            a.wait_ds(("wt", gi * 7 + ki))
                            wr = v(self.WT + 8 * ((gi * 7 + ki) % 3), 8)
                        else:
                            wr = self.blk(t, k)
                        smf(a, self.ACC + 4 * (gi * 4 + ti), self.MA + 4 * k, wr, self.IDX)
                    main.append(mm)
                i = gi * 7 + ki
                if i + 3 < 14:
                    for hi in range(2):
                        fill.setdefault(len(main) + hi, []).append(lambda i=i, hi=hi: self.read_block(i + 3, order, hi))
        cv = [f for ti, t in enumerate(groups[0]) for f in self.cvt(t, ti)]
        for f, gap in zip(cv, (30, 31, 34, 35, 38, 39, 42, 43)):
            fill.setdefault(gap, []).append(f)
        interleave(a, main, fill)
        a.nop(3)
        for ti, t in enumerate(groups[1]):
            for f in self.cvt(t, 4 + ti):
                f()


def gen_s2(a, w, cfg):
    if cfg.get("quiet2"):
        cfg = {k: x for k, x in cfg.items() if k != "stamps"}
    L16, LB, PMA, PWA, PRA, MOA, IDX, FLG, T0, T1 = range(1, 11)
    MA, YB, ZW, PA, WT, ACC, O = 16, 44, 76, 92, 104, 128, 160
    MEMIMG, PART = 0, 8192
    sMEM, sP, sPM, sY, sY1, sF, sO, sVAL, sOWN = range(S_T0, S_T0 + 9)
    own = [2 * w, 2 * w + 1] if w < 3 else [6]
    order = own + [k for k in range(7) if k not in own]
    B = BRes(a, w, L16, IDX, MA, WT, ACC, ZW)
    ct_out = w & 1

    a.label(f"S2_W{w}")
    a(f"s_sub_u32 {s(S_LOC)}, {s(S_LOC)}, 16")
    a(f"v_lshlrev_b32 {v(L16)}, 4, v0")
    wait_tasks(a, "B", T0, T1, w)
    B.load(S_LOC, LB)
    a(f"v_and_b32 {v(T0)}, 15, v0")
    a(f"v_lshrrev_b32 {v(T1)}, 5, v0")
    a(f"v_lshlrev_b32 {v(PMA)}, 4, {v(T0)}")
    a(f"v_lshl_add_u32 {v(PMA)}, {v(T1)}, 8, {v(PMA)}")
    iota_reg(a, PWA, T1)
    a(f"v_lshlrev_b32 {v(PWA)}, 7, {v(PWA)}")
    a(f"v_lshl_add_u32 {v(PWA)}, {v(T0)}, 2, {v(PWA)}")
    a(f"v_add_u32 {v(PWA)}, {PART + w * 1024}, {v(PWA)}")
    a(f"v_lshlrev_b32 {v(PRA)}, 3, v0")
    a(f"v_add_u32 {v(PRA)}, {PART + ct_out * 512}, {v(PRA)}")
    a(f"v_lshrrev_b32 {v(T0)}, 3, v0")
    a(f"v_lshlrev_b32 {v(MOA)}, 4, {v(T0)}")
    a(f"v_bfe_u32 {v(T0)}, v0, 2, 1")
    a(f"v_lshl_add_u32 {v(MOA)}, {v(T0)}, 7, {v(MOA)}")
    a(f"v_and_b32 {v(T0)}, 3, v0")
    a(f"v_lshl_add_u32 {v(MOA)}, {v(T0)}, 2, {v(MOA)}")
    index_reg(a, IDX, T0)
    a(f"s_mul_i32 {s(sMEM)}, {s(S_SLOW)}, {WS['MEMG'] - WS['MEML']}")
    a(f"s_add_u32 {s(sMEM)}, {s(sMEM)}, {WS['MEML'] + own[0] * 1024}")
    a(f"s_mov_b32 {s(sP)}, {WS['PB'] + w * 2048}")
    a(f"s_mov_b32 {s(sPM)}, {WS['PB'] + 8192 + w * 512}")
    a(f"s_lshl_b32 {s(sY)}, {s(S_LOC)}, 15")
    a(f"s_add_u32 {s(sY)}, {s(sY)}, {WS['YL'] + w * 8192}")
    a(f"s_add_u32 {s(sY1)}, {s(sY)}, 4096")
    a(f"s_lshl_b32 {s(sF)}, {s(S_LOC)}, 7")
    a(f"s_add_u32 {s(sF)}, {s(sF)}, {WS['YF'] + w * 4}")
    a(f"s_lshl_b32 {s(sO)}, {s(S_LOC)}, 9")
    a(f"s_add_u32 {s(sO)}, {s(sO)}, {WS['MEML' if w < 2 else 'MEMG'] + MEM_SZ + ct_out * 256}")
    a(f"s_mov_b32 {s(S_STEP)}, 0")
    a(f"s_mov_b32 {s(S_BELL)}, {WS['BELL']}")
    a(f"s_lshl_b32 {s(sOWN)}, {s(S_LOC)}, 2")
    a(f"s_add_u32 {s(sOWN)}, {s(sOWN)}, {WS['BELL'] + 256}")
    a(f"s_add_u32 {s(sVAL)}, {s(S_TAG)}, 1")
    flag_load = f"buffer_load_dword {v(FLG)}, off, {WS_SRD}, {s(sF)} sc1"
    a(flag_load)
    B.zero_acc()
    wait_tasks(a, "LZ", T0, 12)
    milestone(a, cfg, 1, T0)
    wait_flag(a, FLG, flag_load)
    milestone(a, cfg, 2, T0)

    top = f"S2_STEP{w}"
    a.label(top)
    a.ds = []
    for i in range(3):
        B.read_block(i, order)
    if cfg.get("zerotop", 1):
        B.zero_acc()
    stamp(a, cfg, 0)
    poll_deep(a, [f"buffer_load_dwordx4 {v(MA + 4 * k, 4)}, {v(L16)}, {WS_SRD}, {s(sMEM)} offen offset:{1024 * i} sc1" for i, k in enumerate(own)],
              range(MA + 4 * own[0], MA + 4 * own[0] + 4 * len(own)), T0,
              [lambda k=k: a.dsop(f"ds_write_b128 {v(L16)}, {v(MA + 4 * k, 4)} offset:{MEMIMG + 1024 * k}") for k in own],
              cfg.get("depth3", 1))
    stamp(a, cfg, 1)
    a(f"s_add_u32 {s(sF)}, {s(sF)}, {YF_SEG}")
    a.wait_ds_all()
    a("s_barrier")
    keep_stamps(a, cfg, 6, 168)
    if w >= 2:
        skip = a.newlabel("done")
        a(f"s_cmp_eq_u32 {s(S_STEP)}, 0")
        a(f"s_cselect_b32 {s(S_TMP)}, 1, {s(S_SLOW)}")
        a(f"s_cmp_lg_u32 {s(S_TMP)}, 0")
        a(f"s_cbranch_scc1 {skip}")
        a(f"s_sub_u32 {s(S_TMP)}, {s(sO)}, {MEM_SZ}")
        a(f"buffer_store_dword {v(O)}, {v(MOA)}, {WS_SRD}, {s(S_TMP)} offen sc1")
        a.label(skip)
    for k in order[len(own):]:
        a.dsop(f"ds_read_b128 {v(MA + 4 * k, 4)}, {v(L16)} offset:{MEMIMG + 1024 * k}", ("ma", k))
    yl = [f"buffer_load_dwordx4 {v(YB + 4 * i, 4)}, {v(L16)}, {WS_SRD}, {s(sY1 if i >= 4 else sY)} offen offset:{(i % 4) * 1024} sc1" for i in range(8)]
    yl = ([flag_load] if cfg.get("noy", 0) < 2 else []) + ([] if cfg.get("noy") else yl)
    extra = {}
    for i, x in enumerate(yl):
        extra.setdefault(i * cfg.get("ygap", 1) - 1, []).append(lambda x=x: a(x))
    B.mem_values(order, extra)
    for r in range(8):
        a(f"v_mov_b32 {v(O + r)}, 0")
    if not cfg.get("zerotop", 1):
        B.zero_acc()
    stamp(a, cfg, 2)
    a("s_waitcnt vmcnt(0)")
    wait_flag(a, FLG, flag_load)
    stamp(a, cfg, 3)
    a(f"v_mov_b32 {v(T1)}, {s(sVAL)}")
    wait_bell(a, cfg, 11, sVAL, 4 * w)
    bell = f"buffer_store_dword {v(T1)}, off, {WS_SRD}, {s(sOWN)}"
    if w == 0 and cfg.get("bell", 0) and cfg.get("bell2", 1) == 0:
        a(bell)
    poll_deep(a, [f"buffer_load_dwordx4 {v(PA, 4)}, {v(L16)}, {WS_SRD}, {s(sP)} offen sc1",
                  f"buffer_load_dwordx4 {v(PA + 4, 4)}, {v(L16)}, {WS_SRD}, {s(sP)} offen offset:1024 sc1",
                  f"buffer_load_dwordx4 {v(PA + 8, 4)}, {v(PMA)}, {WS_SRD}, {s(sPM)} offen sc1"][:cfg.get("npoll", 3)],
              range(PA, PA + 4 * cfg.get("npoll", 3)), T0, (), cfg.get("depth2", 2))
    stamp(a, cfg, 4)
    for ct in range(2):
        for x, z in ((PA, YB), (PA + 4, YB + 16), (PA + 8, ZW)):
            smf(a, O + 4 * ct, x, v(z + 8 * ct, 8), IDX)
            if w == 0 and x == PA and ct == 0 and cfg.get("bell", 0) and cfg.get("bell2", 1) == 1:
                a(bell)
    swaps = lambda x: (a(f"v_permlane32_swap_b32 {v(x)}, {v(x + 2)}"), a(f"v_permlane32_swap_b32 {v(x + 1)}, {v(x + 3)}"))
    adds = lambda x: (a(f"v_add_f32 {v(x)}, {v(x)}, {v(x + 2)}"), a(f"v_add_f32 {v(x + 1)}, {v(x + 1)}, {v(x + 3)}"))
    write = lambda ct: a.dsop(f"ds_write2_b32 {v(PWA)}, {v(O + 4 * ct)}, {v(O + 4 * ct + 1)} offset0:{128 * ct} offset1:{128 * ct + 16}")
    swaps(O); adds(O); write(0); a.nop(2); swaps(O + 4); adds(O + 4); write(1)
    a.wait_ds_all()
    a("s_barrier")
    for wv in range(4):
        a.dsop(f"ds_read_b64 {v(O + 2 * wv, 2)}, {v(PRA)} offset:{1024 * wv}", ("p", wv))
    a.wait_ds(("p", 1))
    a(f"v_pk_add_f32 {v(O, 2)}, {v(O, 2)}, {v(O + 2, 2)}")
    a.wait_ds(("p", 3))
    a(f"v_pk_add_f32 {v(O + 4, 2)}, {v(O + 4, 2)}, {v(O + 6, 2)}")
    a(f"v_pk_add_f32 {v(O, 2)}, {v(O, 2)}, {v(O + 4, 2)}")
    a(f"v_cvt_pk_bf16_f32 {v(O)}, {v(O)}, {v(O + 1)}")
    a(f"v_min_u32 {v(O)}, -2, {v(O)}")
    if w < 2:
        a(f"buffer_store_dword {v(O)}, {v(MOA)}, {WS_SRD}, {s(sO)} offen")
    else:
        skip = a.newlabel("later")
        a(f"s_cmp_eq_u32 {s(S_STEP)}, {NSEG - 2}")
        a(f"s_cselect_b32 {s(S_TMP)}, 1, {s(S_SLOW)}")
        a(f"s_cmp_eq_u32 {s(S_TMP)}, 0")
        a(f"s_cbranch_scc1 {skip}")
        a(f"buffer_store_dword {v(O)}, {v(MOA)}, {WS_SRD}, {s(sO)} offen sc1")
        a.label(skip)
    stamp(a, cfg, 5)
    a(f"s_add_u32 {s(sMEM)}, {s(sMEM)}, {MEM_SZ}")
    a(f"s_add_u32 {s(sO)}, {s(sO)}, {MEM_SZ}")
    a(f"s_add_u32 {s(sVAL)}, {s(sVAL)}, 1")
    a(f"s_add_u32 {s(sP)}, {s(sP)}, {PB_SZ}")
    a(f"s_add_u32 {s(sPM)}, {s(sPM)}, {PB_SZ}")
    if not cfg.get("samey"):
        a(f"s_add_u32 {s(sY)}, {s(sY)}, {Y_SEG}")
        a(f"s_add_u32 {s(sY1)}, {s(sY1)}, {Y_SEG}")
    a(f"s_add_u32 {s(S_STEP)}, {s(S_STEP)}, 1")
    a(f"s_cmp_lt_u32 {s(S_STEP)}, {NSEG - 1}")
    a(f"s_cbranch_scc1 {top}")
    dump_stamps(a, cfg, 6, 168, 4 + w, L16)
    a("s_endpgm")


def gen_wm(a, cfg):
    L128, FLA, T0, JUNK = range(1, 5)
    sM, sA, sB, sF, sU, sR = range(S_T0, S_T0 + 6)
    ahead = cfg.get("wmahead", 2)
    a.label("WM")
    a(f"s_sub_u32 {s(sU)}, {s(S_LOC)}, 30")
    a(f"s_lshl_b32 {s(sU)}, {s(sU)}, 2")
    a(f"s_add_u32 {s(sU)}, {s(sU)}, {s(S_WAVE)}")
    if cfg.get("wmhelp", 0):
        wait_tasks(a, "B", T0, JUNK, None)
        a(f"v_lshlrev_b32 {v(L128)}, 7, v0")
        a(f"s_lshr_b32 {s(sA)}, {s(sU)}, 2")
        a(f"s_mul_i32 {s(sA)}, {s(sA)}, {7 * BL_CU}")
        a(f"s_mul_i32 {s(S_TMP)}, {s(S_WAVE)}, 114688")
        a(f"s_add_u32 {s(sA)}, {s(sA)}, {s(S_TMP)}")
        a(f"s_add_u32 {s(sA)}, {s(sA)}, {WS['BL'] + 6 * 14336 - 8192 * cfg['wmhelp']}")
        for c in range(7):
            for i in range(cfg.get("wmhelp", 0)):
                a(f"s_add_u32 {s(S_TMP)}, {s(sA)}, {c * BL_CU + i * 8192}")
                a(f"buffer_load_dword {v(JUNK)}, {v(L128)}, {WS_SRD}, {s(S_TMP)} offen")
    a(f"s_mov_b32 {s(S_STEP)}, 0")
    a(f"s_cmp_eq_u32 {s(sU)}, 7")
    a("s_cbranch_scc0 WM_LINES")
    a(f"v_min_u32 {v(T0)}, 55, v0")
    a(f"v_and_b32 {v(FLA)}, 3, {v(T0)}")
    a(f"v_lshlrev_b32 {v(FLA)}, 2, {v(FLA)}")
    a(f"v_lshrrev_b32 {v(T0)}, 2, {v(T0)}")
    a(f"v_lshl_add_u32 {v(FLA)}, {v(T0)}, 7, {v(FLA)}")
    a(f"s_mov_b32 {s(sF)}, {WS['YF']}")
    a(f"s_mov_b32 {s(sR)}, {WS['YR']}")
    a.label("WM_Y")
    wait_flag(a, T0, f"buffer_load_dword {v(T0)}, {v(FLA)}, {WS_SRD}, {s(sF)} offen sc1", sleep=8, landed=False)
    a(f"buffer_store_dword {v(T0)}, off, {WS_SRD}, {s(sR)}")
    a(f"s_cmp_lt_u32 {s(S_STEP)}, 8")
    a("s_cbranch_scc0 WM_NOGATE")
    a(f"s_add_u32 {s(S_TMP)}, {s(sR)}, {WS['GATE'] - WS['YR']}")
    a(f"buffer_store_dword {v(T0)}, off, {WS_SRD}, {s(S_TMP)} sc1")
    a.label("WM_NOGATE")
    a(f"s_add_u32 {s(sF)}, {s(sF)}, {YF_SEG}")
    a(f"s_add_u32 {s(sR)}, {s(sR)}, 128")
    a(f"s_add_u32 {s(S_STEP)}, {s(S_STEP)}, 1")
    a(f"s_cmp_lt_u32 {s(S_STEP)}, {NSEG}")
    a("s_cbranch_scc1 WM_Y")
    a("s_endpgm")
    a.label("WM_LINES")
    wait_tasks(a, "LZ", T0, 8)
    a(f"v_lshlrev_b32 {v(L128)}, 7, v0")
    a(f"s_mul_i32 {s(sM)}, {s(S_SLOW)}, {WS['MEMG'] - WS['MEML']}")
    a(f"s_add_u32 {s(sM)}, {s(sM)}, {WS['MEML']}")
    a(f"s_mul_i32 {s(sA)}, {s(sU)}, 7168")
    a(f"s_add_u32 {s(sA)}, {s(sA)}, {WS['XT']}")
    a(f"s_mov_b32 {s(sB)}, {XT_SEG}")
    a(f"s_cmp_lt_u32 {s(sU)}, 4")
    a("s_cbranch_scc1 WM_GO")
    a(f"s_mov_b32 {s(sA)}, {s(sM)}")
    a(f"s_mov_b32 {s(sB)}, {MEM_SZ}")
    a(f"s_cmp_eq_u32 {s(sU)}, 4")
    a("s_cbranch_scc1 WM_GO")
    a(f"s_and_b32 {s(sA)}, {s(sU)}, 1")
    a(f"s_lshl_b32 {s(sA)}, {s(sA)}, 11")
    a(f"s_add_u32 {s(sA)}, {s(sA)}, {WS['PB']}")
    a(f"s_mov_b32 {s(sB)}, {PB_SZ}")
    a.label("WM_GO")
    for i in range(ahead):
        a(f"buffer_load_dword {v(JUNK)}, {v(L128)}, {WS_SRD}, {s(sA)} offen sc1")
        a(f"s_add_u32 {s(sA)}, {s(sA)}, {s(sB)}")
    a.label("WM_STEP")
    a(f"buffer_load_dword {v(T0)}, off, {WS_SRD}, {s(sM)} sc1")
    a("s_waitcnt vmcnt(0)")
    a(f"v_cmp_eq_u32 vcc, -1, {v(T0)}")
    a("s_cbranch_vccz WM_RUN")
    a("s_sleep 4")
    a(f"s_sub_u32 {s(S_TO)}, {s(S_TO)}, 1")
    a("s_cbranch_scc0 WM_STEP")
    a("s_endpgm")
    a.label("WM_RUN")
    a(f"buffer_load_dword {v(JUNK)}, {v(L128)}, {WS_SRD}, {s(sA)} offen sc1")
    a(f"s_add_u32 {s(sA)}, {s(sA)}, {s(sB)}")
    a(f"s_add_u32 {s(sM)}, {s(sM)}, {MEM_SZ}")
    a(f"s_add_u32 {s(S_STEP)}, {s(S_STEP)}, 1")
    a(f"s_cmp_lt_u32 {s(S_STEP)}, {NSEG - ahead}")
    a("s_cbranch_scc1 WM_STEP")
    a("s_endpgm")


def gen_clean(a, cfg):
    a.label("CLEAN")
    wait_tasks(a, "LZ", 1, 2)
    for seg in (cfg.get("clean", 52), 61):
        wait_step(a, 1, seg, sleep=32)
        a("buffer_wbl2 sc1")
        a("s_waitcnt vmcnt(0)")
    a("s_endpgm")
```

```python
from asmlib import v, acc, s, interleave
from layout import *
from roles_rec import *
from roles_pre import srd, f32

MASKED = -1e9 * 1.4426950408889634


def mfma(a, d, x, y, first):
    a(f"v_mfma_f32_16x16x32_bf16 {v(d, 4)}, {x}, {y}, " + ("0" if first else v(d, 4)))


def dma_rows(a, w, l16, soff, lds, pad):
    for i in range(7):
        b = 7 * w + i
        a(f"s_mov_b32 m0, {lds + b * 1024 + (pad if b >= 14 else 0)}")
        a(f"s_add_u32 {s(S_TMP)}, {s(soff)}, {b * 1024}")
        a(f"buffer_load_dwordx4 {v(l16)}, {WS_SRD}, {s(S_TMP)} offen lds")


def first_y(a, cfg, dst):
    if cfg.get("stagger", 0):
        a(f"s_cmp_lt_u32 {s(S_GRP)}, 2")
        a(f"s_cselect_b32 {s(dst)}, 0, 4")
        a(f"s_add_u32 {s(dst)}, {s(dst)}, {s(S_GRP)}")
    else:
        a(f"s_mov_b32 {s(dst)}, {s(S_GRP)}")


def after_lead(a, tmp):
    skip = a.newlabel("lead")
    a(f"s_cmp_eq_u32 {s(S_GRP)}, 0")
    a(f"s_cbranch_scc1 {skip}")
    wait_flag(a, tmp, f"buffer_load_dword {v(tmp)}, off, {WS_SRD}, 0 offset:{WS['ARR'] + 4092} sc1", sleep=8, landed=False)
    a.label(skip)


def gen_ta(a, w, cfg):
    L16, KA, MKA, XWA, XRA, MWA, MRA, PTA, PMA, T0, T1 = range(1, 12)
    TACC, XO, TP, WV = 16, 72, 88, 120
    XPI, XTI, XS, MS = 0, 28672, 58368, 76800
    sXP, sXT, sMEM, sP, sPM = range(S_T0, S_T0 + 5)
    sMASK = S_T0 + 6
    blk = lambda j, ks: wblock(j * 7 + (ks >> 1), WV, ks & 1)
    T = lambda tt, j: TACC + 4 * (7 * tt + j)
    KO, SX, SM, MK, SCO = 16, 32, 44, 52, 68

    a.label(f"TA_W{w}")
    a(f"v_lshlrev_b32 {v(L16)}, 4, v0")
    if cfg.get("tahelp", 0):
        skip = a.newlabel("nohelp")
        a(f"s_cmp_lt_u32 {s(S_LOC)}, 14")
        a(f"s_cbranch_scc0 {skip}")
        wait_tasks(a, "B", T0, T1, w)
        if cfg.get("chain"):
            after_lead(a, T0)
        a(f"v_lshlrev_b32 {v(T0)}, 7, v0")
        a(f"s_mul_i32 {s(S_TMP)}, {s(S_LOC)}, {BL_CU}")
        a(f"s_add_u32 {s(S_TMP)}, {s(S_TMP)}, {WS['BL'] + w * 114688 + 57344}")
        for i in (4, 5, 6, 0, 1, 2, 3):
            a(f"s_add_u32 {s(S_TMP + 1)}, {s(S_TMP)}, {i * 8192}")
            a(f"buffer_load_dword {v(T1)}, {v(T0)}, {WS_SRD}, {s(S_TMP + 1)} offen")
        a.label(skip)
    first_y(a, cfg, S_TMP + 2)
    wait_first_y(a, T0, S_TMP + 2)
    if cfg.get("tagate"):
        wait_tasks(a, "LZ", T0, 12)
        wait_step(a, T0, cfg["tagate"], cfg.get("tastep", 2))
    wait_tasks(a, "A", T0, T1)
    a(f"s_mul_i32 {s(S_TMP)}, {s(S_LOC)}, {AL_HEAD}")
    a(f"s_add_u32 {s(S_TMP)}, {s(S_TMP)}, {WS['AL'] + w * 100352}")
    stream_load(a, [wblock(b, WV, hi) for b in range(49) for hi in range(2)], L16, S_TMP)
    a(f"v_and_b32 {v(T0)}, 15, v0")
    a(f"v_lshrrev_b32 {v(T1)}, 4, v0")
    a(f"v_lshrrev_b32 {v(MKA)}, 5, v0")
    a(f"v_add_u32 {v(MKA)}, {14 * w}, {v(MKA)}")
    a(f"v_lshrrev_b32 {v(KA)}, 2, {v(MKA)}")
    a(f"v_lshlrev_b32 {v(KA)}, 10, {v(KA)}")
    a(f"v_and_b32 {v(XWA)}, 3, {v(MKA)}")
    a(f"v_lshl_add_u32 {v(KA)}, {v(XWA)}, 8, {v(KA)}")
    a(f"v_lshl_add_u32 {v(KA)}, {v(T0)}, 4, {v(KA)}")
    a(f"v_and_b32 {v(XWA)}, 1, {v(T1)}")
    a(f"v_lshl_add_u32 {v(KA)}, {v(XWA)}, 3, {v(KA)}")
    a(f"v_add_u32 {v(KA)}, {XTI}, {v(KA)}")
    a(f"v_lshlrev_b32 {v(MKA)}, 7, {v(MKA)}")
    a(f"v_lshl_add_u32 {v(MKA)}, {v(XWA)}, 3, {v(MKA)}")
    a(f"v_and_b32 {v(XRA)}, 7, v0")
    a(f"v_lshl_add_u32 {v(MKA)}, {v(XRA)}, 4, {v(MKA)}")
    a(f"v_mul_u32_u24 {v(MWA)}, 144, {v(T0)}")
    a(f"v_lshl_add_u32 {v(MRA)}, {v(T1)}, 4, {v(MWA)}")
    a(f"v_lshl_add_u32 {v(MWA)}, {v(XWA)}, 4, {v(MWA)}")
    a(f"v_add_u32 {v(XWA)}, {XS + w * 4608}, {v(MRA)}")
    a(f"v_add_u32 {v(MWA)}, {MS + w * 32}, {v(MWA)}")
    a(f"v_lshrrev_b32 {v(T0)}, 3, v0")
    a(f"v_add_u32 {v(T0)}, {8 * w}, {v(T0)}")
    a(f"v_and_b32 {v(T1)}, 7, v0")
    a(f"v_mul_u32_u24 {v(MRA)}, 144, {v(T0)}")
    a(f"v_lshl_add_u32 {v(XRA)}, {v(T1)}, 4, {v(MRA)}")
    a(f"v_add_u32 {v(XRA)}, {XS}, {v(XRA)}")
    a(f"v_lshl_add_u32 {v(MRA)}, {v(T1)}, 2, {v(MRA)}")
    a(f"v_add_u32 {v(MRA)}, {MS}, {v(MRA)}")
    a(f"v_lshlrev_b32 {v(PTA)}, 2, {v(T1)}")
    a(f"v_sub_u32 {v(PTA)}, {v(T0)}, {v(PTA)}")
    for r in range(4):
        a(f"v_cmp_le_i32 {s(sMASK + 2 * r, 2)}, {r}, {v(PTA)}")
    a(f"v_and_b32 {v(T0)}, 15, {v(T0)}")
    a(f"v_lshlrev_b32 {v(T0)}, 4, {v(T0)}")
    a(f"v_bfe_u32 {v(PMA)}, v0, 1, 1")
    a(f"v_lshl_add_u32 {v(T0)}, {v(PMA)}, 2, {v(T0)}")
    a(f"v_bfe_u32 {v(T1)}, v0, 2, 1")
    a(f"v_lshl_add_u32 {v(PMA)}, {v(T1)}, 8, {v(T0)}")
    a(f"v_lshl_add_u32 {v(PTA)}, {v(T1)}, 9, {v(T0)}")
    a(f"v_and_b32 {v(T1)}, 1, v0")
    a(f"v_lshl_add_u32 {v(PTA)}, {v(T1)}, 8, {v(PTA)}")
    a(f"v_lshlrev_b32 {v(T1)}, 30, {v(T1)}")
    a(f"v_or_b32 {v(PMA)}, {v(PMA)}, {v(T1)}")
    a(f"v_mov_b32 {v(T0)}, 0")
    a(f"v_lshlrev_b32 {v(T1)}, 2, v0")
    a(f"ds_write_b32 {v(T1)}, {v(T0)} offset:{XTI + 28672 + 256 * w}")
    for tt in range(2):
        a(f"v_mov_b32 {v(TP + 16 * tt + 14)}, 0")
        a(f"v_mov_b32 {v(TP + 16 * tt + 15)}, 0")
    a(f"s_mul_i32 {s(sXP)}, {s(S_GRP)}, {XT_SEG}")
    a(f"s_add_u32 {s(sXT)}, {s(sXP)}, {WS['XT']}")
    a(f"s_add_u32 {s(sXP)}, {s(sXP)}, {WS['XP']}")
    a(f"s_mul_i32 {s(sMEM)}, {s(S_GRP)}, {MEM_SZ}")
    a(f"s_add_u32 {s(sMEM)}, {s(sMEM)}, {WS['MEMG']}")
    a(f"s_mul_i32 {s(sP)}, {s(S_GRP)}, {PX_SZ}")
    a(f"s_add_u32 {s(sP)}, {s(sP)}, {WS['PX']}")
    a(f"s_lshr_b32 {s(sPM)}, {s(S_LOC)}, 1")
    a(f"s_lshl_b32 {s(sPM)}, {s(sPM)}, 10")
    a(f"s_and_b32 {s(S_TMP)}, {s(S_LOC)}, 1")
    a(f"s_lshl_b32 {s(S_TMP)}, {s(S_TMP)}, 3")
    a(f"s_add_u32 {s(sPM)}, {s(sPM)}, {s(S_TMP)}")
    a(f"s_add_u32 {s(sPM)}, {s(sPM)}, {s(sP)}")
    a(f"s_add_u32 {s(sPM)}, {s(sPM)}, {32768 + (w >> 1) * 512}")
    a(f"s_lshl_b32 {s(S_TMP)}, {s(S_LOC)}, 11")
    a(f"s_add_u32 {s(sP)}, {s(sP)}, {s(S_TMP)}")
    a(f"s_add_u32 {s(sP)}, {s(sP)}, {(w >> 1) * 1024}")
    a(f"s_mov_b32 {s(S_TMP + 7)}, {f32(MASKED)}")
    a(f"s_mov_b32 {s(S_STEP)}, {s(S_GRP)}")

    wait_tasks(a, "LZ", T0, 12)
    wait_tasks(a, "Z2", T0, 12)

    top = f"TA_SEG{w}"
    a.label(top)
    a.ds = []
    dma_rows(a, w, L16, sXP, XPI, 0)
    dma_rows(a, w, L16, sXT, XTI, 0)
    a("s_waitcnt vmcnt(0) lgkmcnt(0)")
    a("s_barrier")

    def read_x(ks):
        for tt in range(2):
            a.dsop(f"ds_read_b128 {v(XO + 8 * (ks & 1) + 4 * tt, 4)}, {v(L16)} offset:{XPI + tt * 14336 + ks * 1024}", ("x", ks))
    read_x(0)
    for ks in range(14):
        a.wait_ds(("x", ks))
        for n_, (tt, j) in enumerate((tt, j) for j in range(7) for tt in range(2)):
            mfma(a, T(tt, j), blk(j, ks), v(XO + 8 * (ks & 1) + 4 * tt, 4), ks == 0)
            if n_ == 1 and ks + 1 < 14:
                read_x(ks + 1)
    a.nop(2)
    for j in range(7):
        for tt in range(2):
            a(f"v_cvt_pk_bf16_f32 {v(TP + 16 * tt + 2 * j)}, {v(T(tt, j))}, {v(T(tt, j) + 1)}")
            a(f"v_cvt_pk_bf16_f32 {v(TP + 16 * tt + 2 * j + 1)}, {v(T(tt, j) + 2)}, {v(T(tt, j) + 3)}")

    def read_k(p):
        for kt in range(2):
            for q in range(2):
                a.dsop(f"ds_read_b64 {v(KO + 8 * (p & 1) + 4 * kt + 2 * q, 2)}, {v(KA)} offset:{kt * 14336 + p * 1024 + q * 512}", ("k", p))
    read_k(0)
    read_k(1)
    for p in range(4):
        a.wait_ds(("k", p))
        for t, (kt, qt) in enumerate(((0, 0), (0, 1), (1, 1))):
            mfma(a, SX + 4 * t, v(KO + 8 * (p & 1) + 4 * kt, 4), v(TP + 16 * qt + 4 * p, 4), p == 0)
        if p + 2 < 4:
            read_k(p + 2)
    a(f"v_mov_b32 {v(MK + 14)}, 0")
    a(f"v_mov_b32 {v(MK + 15)}, 0")
    a.nop(6)
    for t, (kt, qt) in enumerate(((0, 0), (0, 1), (1, 1))):
        a.dsop(f"ds_write_b128 {v(XWA)}, {v(SX + 4 * t, 4)} offset:{qt * 2304 + kt * 64}")
    a.wait_ds_all()
    a("s_barrier")
    for wv in range(4):
        a.dsop(f"ds_read_b128 {v(KO + 4 * wv, 4)}, {v(XRA)} offset:{wv * 4608}")
    a.wait_ds_all()
    for r in range(4):
        a(f"v_add_f32 {v(KO + r)}, {v(KO + r)}, {v(KO + 4 + r)}")
        a(f"v_add_f32 {v(KO + 8 + r)}, {v(KO + 8 + r)}, {v(KO + 12 + r)}")
        a(f"v_add_f32 {v(KO + r)}, {v(KO + r)}, {v(KO + 8 + r)}")
        a(f"v_mov_b32 {v(SCO + r)}, {s(S_TMP + 7)}")
        a(f"v_cndmask_b32 {v(SCO + r)}, {v(SCO + r)}, {v(KO + r)}, {s(sMASK + 2 * r, 2)}")
    M, E, M1 = KO, KO + 1, KO + 2
    a(f"v_max3_f32 {v(SX)}, {v(SCO)}, {v(SCO + 1)}, {v(SCO + 2)}")
    a(f"v_max_f32 {v(SX)}, {v(SX)}, {v(SCO + 3)}")
    stamp(a, cfg, 0)
    poll_deep(a, [f"buffer_load_dwordx2 {v(MK + 2 * j, 2)}, {v(MKA)}, {WS_SRD}, {s(sMEM)} offen offset:{256 * j} sc1" for j in range(7)],
              range(MK, MK + 14), T0, depth=cfg.get("tdepth", 2), sleep=(8, NSEG - 6))
    stamp(a, cfg, 1)
    for p in range(4):
        for qt in range(2):
            mfma(a, SM + 4 * qt, v(MK + 4 * p, 4), v(TP + 16 * qt + 4 * p, 4), p == 0)
    a.nop(7)
    for qt in range(2):
        a.dsop(f"ds_write_b128 {v(MWA)}, {v(SM + 4 * qt, 4)} offset:{qt * 2304}")
    a.wait_ds_all()
    a("s_barrier")
    a.dsop(f"ds_read2_b32 {v(KO + 4, 2)}, {v(MRA)} offset0:0 offset1:8")
    a.dsop(f"ds_read2_b32 {v(KO + 6, 2)}, {v(MRA)} offset0:16 offset1:24")
    a.wait_ds_all()
    a(f"v_pk_add_f32 {v(KO + 4, 2)}, {v(KO + 4, 2)}, {v(KO + 6, 2)}")
    a(f"v_add_f32 {v(E)}, {v(KO + 4)}, {v(KO + 5)}")
    a(f"v_max_f32 {v(M)}, {v(SX)}, {v(E)}")

    def reduce8(op):
        for ctl in ("quad_perm:[1,0,3,2]", "quad_perm:[2,3,0,1]", "row_half_mirror"):
            a.nop(2)
            a(f"{op}_dpp {v(M)}, {v(M)}, {v(M)} {ctl} row_mask:0xf bank_mask:0xf")
    reduce8("v_max_f32")
    for x in (E, SCO, SCO + 1, SCO + 2, SCO + 3):
        a(f"v_sub_f32 {v(x)}, {v(x)}, {v(M)}")
    for x in (E, SCO, SCO + 1, SCO + 2, SCO + 3):
        a(f"v_exp_f32 {v(x)}, {v(x)}")
    a(f"v_add_f32 {v(M)}, {v(E)}, {v(SCO)}")
    a(f"v_add_f32 {v(M1)}, {v(SCO + 1)}, {v(SCO + 2)}")
    a(f"v_add_f32 {v(M)}, {v(M)}, {v(SCO + 3)}")
    a(f"v_add_f32 {v(M)}, {v(M)}, {v(M1)}")
    a(f"v_mov_b32_dpp {v(M1)}, {v(E)} quad_perm:[1,0,3,2] row_mask:0xf bank_mask:0xf")
    reduce8("v_add_f32")
    a(f"v_rcp_f32 {v(M)}, {v(M)}")
    a(f"s_cmp_lg_u32 {s(S_SLOW)}, 0")
    for x in (SCO, SCO + 1, SCO + 2, SCO + 3, E, M1):
        a(f"v_mul_f32 {v(x)}, {v(x)}, {v(M)} clamp")
    a(f"v_cvt_pk_bf16_f32 {v(SCO)}, {v(SCO)}, {v(SCO + 1)}")
    a(f"v_cvt_pk_bf16_f32 {v(SCO + 2)}, {v(SCO + 2)}, {v(SCO + 3)}")
    a(f"v_cvt_pk_bf16_f32 {v(E)}, {v(E)}, {v(M1)}")
    local_stores(a, [f"buffer_store_dword {v(SCO)}, {v(PTA)}, {WS_SRD}, {s(sP)} offen",
                     f"buffer_store_dword {v(SCO + 2)}, {v(PTA)}, {WS_SRD}, {s(sP)} offen offset:8",
                     f"buffer_store_dword {v(E)}, {v(PMA)}, {WS_SRD}, {s(sPM)} offen"], scc_set=True)
    stamp(a, cfg, 2)
    flush_stamps(a, cfg, 3, 8 + w, T0)
    for r, step in ((sXP, XT_SEG), (sXT, XT_SEG), (sMEM, MEM_SZ), (sP, PX_SZ), (sPM, PX_SZ), (S_STEP, 1)):
        a(f"s_add_u32 {s(r)}, {s(r)}, {step * NCLONE}")
    a(f"s_cmp_lt_u32 {s(S_STEP)}, {NSEG}")
    a(f"s_cbranch_scc1 {top}")
    a("s_endpgm")


def gen_tb(a, w, cfg):
    L16, LB, XA, PMA, PW0, PW1, PRA, XRA, HA, IDX, T0, T1 = range(1, 13)
    XR = 14
    MA, YB, ZW, WT, ACC = 16, 44, 76, 92, 116
    XPI, PART, MEMIMG = 0, 28800, 28800
    sXP, sYO, sF, sYS, sY, sMEM, sP, sPM, sXR, sH, sFR = range(S_T0, S_T0 + 11)
    own = [2 * w, 2 * w + 1] if w < 3 else [6]
    order = own + [k for k in range(7) if k not in own]
    B = BRes(a, w, L16, IDX, MA, WT, ACC, ZW)
    PXQ = [MA + 4 * i for i in range(7)] + [WT + 4 * i for i in range(5)]

    a.label(f"TB_W{w}")
    srd(a, S_X, 0, 2048 * 896)
    a(f"s_sub_u32 {s(S_LOC)}, {s(S_LOC)}, 16")
    a(f"v_lshlrev_b32 {v(L16)}, 4, v0")
    wait_tasks(a, "L", T0, T1)
    first_y(a, cfg, sYS)
    a(f"s_mul_i32 {s(sXP)}, {s(sYS)}, {XT_SEG}")
    a(f"s_add_u32 {s(sXP)}, {s(sXP)}, {WS['XP']}")
    dma_rows(a, w, L16, sXP, XPI, 32)
    wait_tasks(a, "B", T0, T1, w)
    if cfg.get("stagger", 0):
        skip = a.newlabel("early")
        a(f"s_cmp_lt_u32 {s(S_GRP)}, 2")
        a(f"s_cbranch_scc1 {skip}")
        wait_first_y(a, T0, seg=0)
        a.label(skip)
    if cfg.get("chain"):
        after_lead(a, T0)

        def half():
            if w == 0:
                skip = a.newlabel("quiet")
                a(f"s_cmp_eq_u32 {s(S_LOC)}, 0")
                a(f"s_cbranch_scc0 {skip}")
                a(f"v_mov_b32 {v(T0)}, {s(S_TAG)}")
                a(f"s_lshl_b32 {s(S_TMP + 2)}, {s(S_GRP)}, 2")
                a(f"buffer_store_dword {v(T0)}, off, {WS_SRD}, {s(S_TMP + 2)} offset:{WS['ARR'] + 4092} sc1")
                a.label(skip)
        B.load(S_LOC, LB, half, cfg["chain"])
    else:
        B.load(S_LOC, LB)
    a(f"v_and_b32 {v(T0)}, 15, v0")
    a(f"v_lshrrev_b32 {v(T1)}, 4, v0")
    a(f"v_bfe_u32 {v(XA)}, v0, 3, 1")
    a(f"v_mul_u32_u24 {v(XA)}, {14336 + 32}, {v(XA)}")
    a(f"v_lshl_add_u32 {v(XA)}, {v(T1)}, 8, {v(XA)}")
    a(f"v_bfe_u32 {v(PMA)}, v0, 2, 1")
    a(f"v_lshl_add_u32 {v(XA)}, {v(PMA)}, 6, {v(XA)}")
    a(f"v_bfe_u32 {v(PMA)}, v0, 1, 1")
    a(f"v_lshl_add_u32 {v(XA)}, {v(PMA)}, 7, {v(XA)}")
    a(f"v_and_b32 {v(PMA)}, 1, v0")
    a(f"v_lshl_add_u32 {v(XA)}, {v(PMA)}, 4, {v(XA)}")
    a(f"v_and_b32 {v(PMA)}, 31, v0")
    a(f"v_lshlrev_b32 {v(PMA)}, 4, {v(PMA)}")
    a(f"v_mul_u32_u24 {v(PW0)}, 576, {v(T1)}")
    a(f"v_lshl_add_u32 {v(PW0)}, {v(T0)}, 2, {v(PW0)}")
    a(f"v_add_u32 {v(PW0)}, {PART + w * 4608}, {v(PW0)}")
    a(f"v_add_u32 {v(PW1)}, 2304, {v(PW0)}")
    a(f"v_lshrrev_b32 {v(T0)}, 3, v0")
    a(f"v_add_u32 {v(T0)}, {8 * w}, {v(T0)}")
    a(f"v_and_b32 {v(T1)}, 7, v0")
    a(f"v_mul_u32_u24 {v(PRA)}, 144, {v(T0)}")
    a(f"v_lshl_add_u32 {v(PRA)}, {v(T1)}, 4, {v(PRA)}")
    a(f"v_add_u32 {v(PRA)}, {PART}, {v(PRA)}")
    a(f"v_mul_u32_u24 {v(XRA)}, 896, {v(T0)}")
    a(f"v_lshl_add_u32 {v(XRA)}, {v(T1)}, 3, {v(XRA)}")
    a(f"v_and_b32 {v(HA)}, 15, {v(T0)}")
    a(f"v_lshlrev_b32 {v(HA)}, 4, {v(HA)}")
    a(f"v_lshrrev_b32 {v(T0)}, 1, {v(T1)}")
    a(f"v_lshl_add_u32 {v(HA)}, {v(T0)}, 8, {v(HA)}")
    a(f"v_and_b32 {v(T0)}, 1, {v(T1)}")
    a(f"v_lshl_add_u32 {v(HA)}, {v(T0)}, 3, {v(HA)}")
    index_reg(a, IDX, T0)
    a(f"s_mul_i32 {s(sXR)}, {s(S_GRP)}, {XT_SEG}")
    a(f"s_lshl_b32 {s(S_TMP)}, {s(S_LOC)}, 10")
    a(f"s_add_u32 {s(sH)}, {s(sXR)}, {s(S_TMP)}")
    a(f"s_add_u32 {s(sH)}, {s(sH)}, {WS['HT'] + (w >> 1) * 14336}")
    a(f"s_lshl_b32 {s(S_TMP)}, {s(S_LOC)}, 6")
    a(f"s_add_u32 {s(sXR)}, {s(sXR)}, {s(S_TMP)}")
    a(f"s_lshl_b32 {s(S_TMP)}, {s(S_LOC)}, 15")
    a(f"s_add_u32 {s(S_TMP)}, {s(S_TMP)}, {WS['YL'] + w * 8192}")
    a(f"s_mul_i32 {s(sY)}, {s(S_GRP)}, {Y_SEG}")
    a(f"s_add_u32 {s(sY)}, {s(sY)}, {s(S_TMP)}")
    a(f"s_mul_i32 {s(sYO)}, {s(sYS)}, {Y_SEG}")
    a(f"s_add_u32 {s(sYO)}, {s(sYO)}, {s(S_TMP)}")
    a(f"s_lshl_b32 {s(S_TMP)}, {s(S_LOC)}, 7")
    a(f"s_add_u32 {s(S_TMP)}, {s(S_TMP)}, {WS['YF'] + 4 * w}")
    a(f"s_mul_i32 {s(sF)}, {s(sYS)}, {YF_SEG}")
    a(f"s_add_u32 {s(sF)}, {s(sF)}, {s(S_TMP)}")
    a(f"s_mul_i32 {s(sFR)}, {s(S_GRP)}, {YF_SEG}")
    a(f"s_add_u32 {s(sFR)}, {s(sFR)}, {s(S_TMP)}")
    a(f"s_mul_i32 {s(sMEM)}, {s(S_GRP)}, {MEM_SZ}")
    a(f"s_add_u32 {s(sMEM)}, {s(sMEM)}, {WS['MEMG'] + own[0] * 1024}")
    a(f"s_mul_i32 {s(sP)}, {s(S_GRP)}, {PX_SZ}")
    a(f"s_add_u32 {s(sPM)}, {s(sP)}, {WS['PX'] + 32768 + w * 2048}")
    a(f"s_add_u32 {s(sP)}, {s(sP)}, {WS['PX'] + w * 8192}")
    a(f"s_mov_b32 {s(S_STEP)}, {s(S_GRP)}")
    a("s_waitcnt vmcnt(56) lgkmcnt(0)")
    a(f"s_branch TB_Y{w}")

    top, pv = f"TB_TOP{w}", f"TB_PV{w}"
    a.label(top)
    a(f"s_cmp_lt_u32 {s(sYS)}, {NSEG}")
    a(f"s_cbranch_scc0 {pv}")
    a.ds = []
    dma_rows(a, w, L16, sXP, XPI, 32)
    a("s_waitcnt vmcnt(0)")
    a.label(f"TB_Y{w}")
    a("s_barrier")
    for ah in range(2):
        def read_op(ks):
            for ab in range(2):
                a.dsop(f"ds_read_b128 {v(MA + 8 * (ks % 3) + 4 * ab, 4)}, {v(XA)} offset:{ks * 1024 + 32 * ab}", ("x", ks))
            if ah:
                for ct in range(2):
                    a.dsop(f"ds_read_b128 {v(WT + 8 * (ks % 3) + 4 * ct, 4)}, {v(LB)} offset:{B.lds_off(6 + ct, ks >> 1, ks & 1)}", ("x", ks))
        if ah:
            a("s_waitcnt vmcnt(4)")
        read_op(0)
        read_op(1)
        for ks in range(14):
            a.wait_ds(("x", ks))
            for n_, (t, ab) in enumerate((t, ab) for t in range(4) for ab in range(2)):
                tile = 4 * ah + t
                wr = B.blk(tile, ks >> 1, ks & 1) if tile < 6 else v(WT + 8 * (ks % 3) + 4 * (tile - 6), 4)
                mfma(a, ACC + 8 * t + 4 * ab, v(MA + 8 * (ks % 3) + 4 * ab, 4), wr, ks == 0)
                if n_ == 1 and ks + 2 < 14:
                    read_op(ks + 2)
        a.nop(2)
        if ah:
            a(f"s_add_u32 {s(S_TMP)}, {s(sYO)}, 4096")
        for t in range(4):
            o = YB + 16 * ah + 4 * t
            for i in range(4):
                a(f"v_cvt_pk_bf16_f32 {v(o + i)}, {v(ACC + 8 * t + 2 * i)}, {v(ACC + 8 * t + 2 * i + 1)}")
            a(f"buffer_store_dwordx4 {v(o, 4)}, {v(L16)}, {WS_SRD}, {s(S_TMP if ah else sYO)} offen offset:{(t & 1) * 2048 + (t >> 1) * 1024} sc1")
    a(f"v_mov_b32 {v(T0)}, {s(S_TAG)}")
    a("s_waitcnt vmcnt(0)")
    a(f"buffer_store_dword {v(T0)}, off, {WS_SRD}, {s(sF)} sc1")
    if cfg.get("stamps"):
        skip = a.newlabel("ms")
        a(f"s_cmp_lt_u32 {s(sYS)}, {NCLONE}")
        a(f"s_cbranch_scc0 {skip}")
        milestone(a, cfg, 2, T1)
        a.label(skip)
    a(f"s_cmp_lt_u32 {s(sYS)}, {4 if cfg.get('stagger', 0) else 0}")
    a(f"s_cselect_b32 {s(S_TMP + 1)}, 2, {NCLONE}")
    for r, step in ((sXP, XT_SEG), (sYO, Y_SEG), (sF, YF_SEG), (sYS, 1)):
        a(f"s_mul_i32 {s(S_TMP)}, {s(S_TMP + 1)}, {step}")
        a(f"s_add_u32 {s(r)}, {s(r)}, {s(S_TMP)}")
    a(f"s_cmp_lt_u32 {s(sYS)}, {cfg.get('yahead', 3) * NCLONE}")
    a(f"s_cbranch_scc0 TB_PV0{w}")
    a("s_barrier")
    a(f"s_branch {top}")
    a.label(f"TB_PV0{w}")
    a(f"s_cmp_lt_u32 {s(S_STEP)}, {NCLONE}")
    a(f"s_cbranch_scc0 {pv}")
    wait_tasks(a, "LZ", T0, XR)
    wait_tasks(a, "Z2", T0, XR)

    a.label(pv)
    a.ds = []
    a("s_barrier")
    wait_flag(a, T0, f"buffer_load_dword {v(T0)}, off, {WS_SRD}, {s(sFR)} sc1", landed=False)
    a(f"s_add_u32 {s(S_TMP)}, {s(sY)}, 4096")
    for i in range(8):
        a(f"buffer_load_dwordx4 {v(YB + 4 * i, 4)}, {v(L16)}, {WS_SRD}, {s(S_TMP if i >= 4 else sY)} offen offset:{(i % 4) * 1024} sc1")
    a(f"buffer_load_dwordx2 {v(XR, 2)}, {v(XRA)}, {s(S_X, 4)}, {s(sXR)} offen")
    for i in range(3):
        B.read_block(i, order)
    B.zero_acc()
    stamp(a, cfg, 0)
    poll(a, [f"buffer_load_dwordx4 {v(MA + 4 * k, 4)}, {v(L16)}, {WS_SRD}, {s(sMEM)} offen offset:{1024 * i} sc1" for i, k in enumerate(own)],
         range(MA + 4 * own[0], MA + 4 * own[0] + 4 * len(own)), T0, cfg.get('psleep', 0))
    stamp(a, cfg, 1)
    for k in own:
        a.dsop(f"ds_write_b128 {v(L16)}, {v(MA + 4 * k, 4)} offset:{MEMIMG + 1024 * k}")
    a.wait_ds_all()
    a("s_barrier")
    for k in order[len(own):]:
        a.dsop(f"ds_read_b128 {v(MA + 4 * k, 4)}, {v(L16)} offset:{MEMIMG + 1024 * k}", ("ma", k))
    B.mem_values(order, {})
    a("s_barrier")
    a(f"s_add_u32 {s(S_TMP)}, {s(sP)}, 4096")
    loads = [f"buffer_load_dwordx4 {v(PXQ[i], 4)}, {v(L16)}, {WS_SRD}, {s(S_TMP if i >= 4 else sP)} offen offset:{(i % 4) * 1024} sc1" for i in range(8)]
    loads += [f"buffer_load_dwordx4 {v(PXQ[8 + i], 4)}, {v(PMA)}, {WS_SRD}, {s(sPM)} offen offset:{i * 512} sc1" for i in range(4)]
    stamp(a, cfg, 2)
    poll(a, loads, [q + r for q in PXQ for r in range(4)], T0)
    stamp(a, cfg, 3)
    O = lambda qt, ct: ACC + 8 * qt + 4 * ct
    for hl in range(4):
        for qt in range(2):
            for ct in range(2):
                mfma(a, O(qt, ct), v(PXQ[2 * hl + qt], 4), v(YB + 16 * (hl >> 1) + 8 * ct + 4 * (hl & 1), 4), hl == 0)
    for hp in range(2):
        for qt in range(2):
            for ct in range(2):
                mfma(a, O(qt, ct), v(PXQ[8 + 2 * hp + qt], 4), v(ZW + 8 * ct + 4 * hp, 4), False)
    a.nop(7)
    for qt in range(2):
        for r in range(4):
            a.dsop(f"ds_write2_b32 {v(PW1 if qt else PW0)}, {v(O(qt, 0) + r)}, {v(O(qt, 1) + r)} offset0:{36 * r} offset1:{36 * r + 16}")
    a.wait_ds_all()
    a("s_barrier")
    for wv in range(4):
        a.dsop(f"ds_read_b128 {v(ACC + 4 * wv, 4)}, {v(PRA)} offset:{wv * 4608}")
    a(f"v_lshlrev_b32 {v(ACC + 16)}, 16, {v(XR)}")
    a(f"v_and_b32 {v(ACC + 17)}, 0xffff0000, {v(XR)}")
    a(f"v_lshlrev_b32 {v(ACC + 18)}, 16, {v(XR + 1)}")
    a(f"v_and_b32 {v(ACC + 19)}, 0xffff0000, {v(XR + 1)}")
    a.wait_ds_all()
    for i in (0, 2):
        a(f"v_pk_add_f32 {v(ACC + i, 2)}, {v(ACC + i, 2)}, {v(ACC + 4 + i, 2)}")
        a(f"v_pk_add_f32 {v(ACC + 8 + i, 2)}, {v(ACC + 8 + i, 2)}, {v(ACC + 12 + i, 2)}")
        a(f"v_pk_add_f32 {v(ACC + i, 2)}, {v(ACC + i, 2)}, {v(ACC + 8 + i, 2)}")
        a(f"v_cvt_pk_bf16_f32 {v(ACC + i + 1)}, {v(ACC + i)}, {v(ACC + i + 1)}")
        a(f"v_lshlrev_b32 {v(ACC + i)}, 16, {v(ACC + i + 1)}")
        a(f"v_and_b32 {v(ACC + i + 1)}, 0xffff0000, {v(ACC + i + 1)}")
        a(f"v_pk_add_f32 {v(ACC + i, 2)}, {v(ACC + i, 2)}, {v(ACC + 16 + i, 2)}")
        a(f"v_cvt_pk_bf16_f32 {v(ACC + 20 + i // 2)}, {v(ACC + i)}, {v(ACC + i + 1)}")
        a(f"v_min_u32 {v(ACC + 20 + i // 2)}, -2, {v(ACC + 20 + i // 2)}")
    a(f"buffer_store_dwordx2 {v(ACC + 20, 2)}, {v(HA)}, {WS_SRD}, {s(sH)} offen sc1")
    stamp(a, cfg, 4)
    flush_stamps(a, cfg, 5, 12 + w, T0)
    for r, step in ((sY, Y_SEG), (sFR, YF_SEG), (sMEM, MEM_SZ), (sP, PX_SZ), (sPM, PX_SZ), (sXR, XT_SEG), (sH, XT_SEG), (S_STEP, 1)):
        a(f"s_add_u32 {s(r)}, {s(r)}, {step * NCLONE}")
    a(f"s_cmp_lt_u32 {s(S_STEP)}, {NSEG}")
    a(f"s_cbranch_scc1 {top}")
    a("s_endpgm")
```

```python
import sys
from asmlib import Asm, v, s
from layout import *
from roles_rec import *

NAME = "sequential_preLN__memory_aug_recurrent_mem_tr__dense_activation_gelu__prompt"
HEADER = open("cdna_kernels/" + NAME + ".s.ref").read().split("; Override launch")[0]
LDS_MAIN = 163840
LDS_MAIL = 49136
from roles_pre import S_WORD
S_DBG = 84


def descriptor(name, vgpr, accum):
    return f""".section .rodata,"a"
.p2align 6
.amdhsa_kernel {name}
  .amdhsa_next_free_vgpr {vgpr}
  .amdhsa_next_free_sgpr 102
  .amdhsa_accum_offset {accum}
  .amdhsa_group_segment_fixed_size 0
  .amdhsa_kernarg_size 120
  .amdhsa_user_sgpr_count 2
  .amdhsa_user_sgpr_kernarg_segment_ptr 1
  .amdhsa_system_sgpr_workgroup_id_x 1
  .amdhsa_float_denorm_mode_32 3
.end_amdhsa_kernel
"""


def gen_main(a, cfg):
    name = NAME + "_kernel"
    a.raw(f".globl {name}\n.p2align 8\n.type {name},@function")
    a.label(name)
    a("s_cmp_ge_u32 s2, 256")
    a("s_cbranch_scc0 MAIN_GO")
    a("s_endpgm")
    a.label("MAIN_GO")
    if cfg.get("stamps") or cfg.get("span"):
        a(f"s_memrealtime {s(S_CLK + 30, 2)}")
    a(f"s_load_dwordx2 {s(S_WS, 2)}, s[0:1], 112")
    a(f"s_load_dwordx2 {s(S_DBG, 2)}, s[0:1], 104")
    a("v_lshrrev_b32 v1, 6, v0")
    a("v_and_b32 v0, 63, v0")
    a(f"v_readfirstlane_b32 {s(S_WAVE)}, v1")
    a(f"s_mov_b32 {s(S_WS + 2)}, {WS_BYTES}")
    a(f"s_mov_b32 {s(S_WS + 3)}, 0x00020000")
    a(f"s_mov_b32 {s(S_DBG + 2)}, 256")
    a(f"s_mov_b32 {s(S_DBG + 3)}, 0x00020000")
    a(f"s_mov_b32 {s(S_TO)}, 0x200000")
    if cfg.get("codewarm", 1):
        a("s_getpc_b64 s[90:91]")
        a.label("MAIN_PC")
        a(f"s_lshr_b32 {s(S_TMP)}, s2, 3")
        a(f"s_lshl_b32 {s(S_TMP)}, {s(S_TMP)}, 2")
        a(f"s_add_u32 {s(S_TMP)}, {s(S_TMP)}, {s(S_WAVE)}")
        a(f"s_and_b32 {s(S_TMP)}, {s(S_TMP)}, 31")
        a(f"s_lshl_b32 {s(S_TMP)}, {s(S_TMP)}, 13")
        a(f"v_lshl_add_u32 v2, v0, 7, {s(S_TMP)}")
        a("v_min_u32 v2, CODE_END-MAIN_PC-4, v2")
        a("global_load_dword v6, v2, s[90:91]")
    a(f"s_getreg_b32 {s(S_GRP)}, hwreg(HW_REG_XCC_ID, 0, 3)")
    a(f"s_cmp_lg_u32 {s(S_WAVE)}, 0")
    a("s_cbranch_scc1 MAIN_TAGGED")
    a(f"s_and_b32 {s(S_TMP)}, s2, 7")
    a(f"s_lshl_b32 {s(S_TMP)}, {s(S_TMP)}, 2")
    a(f"s_or_b32 {s(S_TMP + 1)}, {s(S_GRP)}, 8")
    a(f"s_lshl_b32 {s(S_TMP)}, {s(S_TMP + 1)}, {s(S_TMP)}")
    a(f"v_mov_b32 v1, {s(S_TMP)}")
    a(f"s_lshr_b32 {s(S_TMP)}, s2, 3")
    a(f"s_lshl_b32 {s(S_TMP)}, {s(S_TMP)}, 2")
    a("s_waitcnt lgkmcnt(0)")
    a("s_mov_b64 exec, 1")
    a(f"buffer_atomic_or v1, off, {s(S_DBG, 4)}, {s(S_TMP)} offset:128")
    a("s_mov_b64 exec, -1")
    a("s_cmp_lg_u32 s2, 0")
    a("s_cbranch_scc1 MAIN_TAGGED")
    a(f"s_memrealtime {s(S_TMP, 2)}")
    a("s_waitcnt lgkmcnt(0)")
    a(f"s_bitset1_b32 {s(S_TMP)}, 0")
    a(f"v_mov_b32 v2, {s(S_TMP)}")
    a(f"buffer_store_dword v2, off, {s(S_DBG, 4)}, 0 sc1")
    a.label("MAIN_TAGGED")
    if "P" in cfg["roles"]:
        from roles_pre import gen_pre
        gen_pre(a, cfg)
    a.label("PRE_DONE")
    a(f"v_mov_b32 v4, {LDS_MAIL}")
    a("s_waitcnt lgkmcnt(0)")
    a(f"s_cmp_lg_u32 {s(S_WAVE)}, 0")
    a("s_cbranch_scc1 MAIN_DRAIN")
    a(f"s_mov_b32 {s(S_SLOW)}, 2")
    a(f"s_mov_b32 {s(S_LOC)}, 0")
    a(f"s_mov_b32 {s(S_TAG)}, 0")
    a("v_lshrrev_b32 v2, 1, v0")
    a("v_lshlrev_b32 v2, 2, v2")
    a("v_and_b32 v5, 1, v0")
    a("v_lshlrev_b32 v5, 4, v5")
    a.label("MAIN_CENSUS")
    a(f"buffer_load_dword v1, off, {s(S_DBG, 4)}, 0 sc1")
    a(f"buffer_load_dword v3, v2, {s(S_DBG, 4)}, 0 offen offset:128 sc1")
    a("s_waitcnt vmcnt(0)")
    a(f"v_readfirstlane_b32 {s(S_TAG)}, v1")
    a("v_lshrrev_b32 v3, v5, v3")
    a("v_and_b32 v1, 0x8888, v3")
    a("v_cmp_ne_u32 vcc, 0x8888, v1")
    a(f"s_cmp_eq_u32 {s(S_TAG)}, 0")
    a("s_cselect_b64 s[94:95], -1, vcc")
    a("s_cmp_eq_u64 s[94:95], 0")
    a("s_cbranch_scc1 MAIN_ALL")
    a("s_sleep 2")
    a(f"s_sub_u32 {s(S_TO)}, {s(S_TO)}, 1")
    a("s_cbranch_scc0 MAIN_CENSUS")
    a("s_branch MAIN_DECIDED")
    a.label("MAIN_ALL")
    for i in range(4):
        a(f"v_bfe_u32 v{8 + i}, v3, {4 * i}, 3")
    a("v_lshlrev_b32 v3, 2, v0")
    for i in range(4):
        a(f"v_cmp_eq_u32 {s(S_TMP + 2, 2)}, {s(S_GRP)}, v{8 + i}")
        a("v_cmp_gt_u32 vcc, s2, v3")
        a("v_add_u32 v3, 1, v3")
        a(f"s_and_b64 vcc, vcc, {s(S_TMP + 2, 2)}")
        a(f"s_bcnt1_i32_b64 {s(S_TMP + 1)}, vcc")
        a(f"s_add_u32 {s(S_LOC)}, {s(S_LOC)}, {s(S_TMP + 1)}")
    a(f"s_mov_b32 {s(S_SLOW)}, 0")
    for x in range(7):
        a(f"s_mov_b32 {s(S_TMP)}, 0")
        for i in range(4):
            a(f"v_cmp_eq_u32 vcc, {x}, v{8 + i}")
            a(f"s_bcnt1_i32_b64 {s(S_TMP + 1)}, vcc")
            a(f"s_add_u32 {s(S_TMP)}, {s(S_TMP)}, {s(S_TMP + 1)}")
        a(f"s_cmp_eq_u32 {s(S_TMP)}, 32")
        a(f"s_cselect_b32 {s(S_SLOW)}, {s(S_SLOW)}, 1")
    a.label("MAIN_DECIDED")
    if cfg.get("force_slow"):
        a(f"s_max_u32 {s(S_SLOW)}, {s(S_SLOW)}, 1")
    a(f"v_mov_b32 v8, {s(S_LOC)}")
    a(f"v_mov_b32 v9, {s(S_SLOW)}")
    a(f"v_mov_b32 v10, {s(S_TAG)}")
    a.label("MAIN_DRAIN")
    a("s_waitcnt vmcnt(0)")
    a("s_barrier")
    if cfg.get("stamps"):
        a(f"s_memrealtime {s(S_CLK + 26, 2)}")
    a(f"s_cmp_lg_u32 {s(S_WAVE)}, 0")
    a("s_cbranch_scc1 MAIN_MAIL")
    a(f"buffer_store_dword v10, off, {WS_SRD}, {s(S_WORD)} offset:{WS['ARR']} sc1")
    a("ds_write_b128 v4, v[8:11]")
    a("s_waitcnt lgkmcnt(0)")
    a.label("MAIN_MAIL")
    a("s_barrier")
    a("ds_read_b128 v[8:11], v4")
    a("s_waitcnt lgkmcnt(0)")
    a(f"v_readfirstlane_b32 {s(S_LOC)}, v8")
    a(f"v_readfirstlane_b32 {s(S_SLOW)}, v9")
    a(f"v_readfirstlane_b32 {s(S_TAG)}, v10")
    a("s_barrier")
    a("s_nop 3")
    a(f"s_cmp_lt_u32 {s(S_SLOW)}, 2")
    a("s_cbranch_scc1 MAIN_ALIVE")
    a("s_endpgm")
    a.label("MAIN_ALIVE")
    if cfg.get("stamps"):
        a(f"s_memrealtime {s(S_CLK + 24, 2)}")
        a("s_lshl_b32 s90, s2, 5")
        a(f"s_add_u32 s90, s90, {WS['DBG'] + 0x20000}")
        a("s_waitcnt lgkmcnt(0)")
        for i, r in enumerate((30, 26, 24, 18, 22, 20, 50, 52)):
            a(f"v_mov_b32 v2, {s(S_CLK + r)}")
            a(f"buffer_store_dword v2, off, {WS_SRD}, s90 offset:{4 * i}")
    a(f"s_and_b32 {s(S_TMP)}, s2, 7")
    a(f"s_lshr_b32 {s(S_TMP + 1)}, s2, 3")
    a(f"s_cmp_lg_u32 {s(S_SLOW)}, 0")
    a(f"s_cselect_b32 {s(S_GRP)}, {s(S_TMP)}, {s(S_GRP)}")
    a(f"s_cselect_b32 {s(S_LOC)}, {s(S_TMP + 1)}, {s(S_LOC)}")

    milestone(a, cfg, 0, 2)

    def per_wave(stem):
        for w in range(3):
            a(f"s_cmp_eq_u32 {s(S_WAVE)}, {w}")
            a(f"s_cbranch_scc1 {stem}_W{w}")
        a(f"s_branch {stem}_W3")

    roles = cfg["roles"]
    a(f"s_cmp_eq_u32 {s(S_GRP)}, 0")
    a("s_cbranch_scc0 MAIN_NOTREC")
    a(f"s_cmp_lt_u32 {s(S_LOC)}, 16")
    a("s_cbranch_scc0 MAIN_NOTS1")
    per_wave("S1")
    a.label("MAIN_NOTS1")
    a(f"s_cmp_lt_u32 {s(S_LOC)}, 30")
    a("s_cbranch_scc0 WM")
    per_wave("S2")
    a.label("MAIN_NOTREC")
    if "T" in roles:
        a(f"s_cmp_le_u32 {s(S_GRP)}, {NCLONE}")
        a("s_cbranch_scc0 MAIN_NOTTOK")
        a(f"s_sub_u32 {s(S_GRP)}, {s(S_GRP)}, 1")
        a(f"s_cmp_lt_u32 {s(S_LOC)}, 16")
        a("s_cbranch_scc0 MAIN_NOTTA")
        per_wave("TA")
        a.label("MAIN_NOTTA")
        a(f"s_cmp_lt_u32 {s(S_LOC)}, 30")
        a("s_cbranch_scc0 MAIN_IDLE")
        per_wave("TB")
        a.label("MAIN_NOTTOK")
    if "F" in roles:
        a(f"s_cmp_le_u32 {s(S_GRP)}, {NCLONE}")
        a("s_cbranch_scc1 MAIN_IDLE")
        a(f"s_sub_u32 {s(S_GRP)}, {s(S_GRP)}, {NCLONE + 1}")
        from roles_ffn import gen_reset
        gen_reset(a, cfg)
        a(f"s_cmp_lt_u32 {s(S_LOC)}, 14")
        a("s_cbranch_scc0 MAIN_NOTF1")
        per_wave("F1")
        a.label("MAIN_NOTF1")
        a(f"s_cmp_lt_u32 {s(S_LOC)}, 28")
        a("s_cbranch_scc0 MAIN_IDLE")
        per_wave("F2")
    a.label("MAIN_IDLE")
    if cfg.get("clean", 52):
        a(f"s_cmp_eq_u32 {s(S_LOC)}, 31")
        a("s_cbranch_scc0 MAIN_END")
        a(f"s_cmp_eq_u32 {s(S_WAVE)}, 0")
        a("s_cbranch_scc1 CLEAN")
    a.label("MAIN_END")
    a("s_endpgm")
    if cfg.get("clean", 52):
        gen_clean(a, cfg)
    a.abort = "CODE_END"
    gen_wm(a, cfg)
    for w in range(4):
        gen_s1(a, w, cfg)
    for w in range(4):
        gen_s2(a, w, cfg)
    if "T" in roles:
        from roles_tok import gen_ta, gen_tb
        for w in range(4):
            gen_ta(a, w, cfg)
        for w in range(4):
            gen_tb(a, w, cfg)
    if "F" in roles:
        from roles_ffn import gen_f1, gen_f2
        for w in range(4):
            gen_f1(a, w, cfg)
        for w in range(4):
            gen_f2(a, w, cfg)
    a.label("CODE_END")
    a("s_endpgm")
    return descriptor(name, 512, 256)


def generate(cfg):
    a = Asm()
    launches = []
    desc = ""
    a.raw('.amdgcn_target "amdgcn-amd-amdhsa--gfx950"\n.text')
    desc += gen_main(a, cfg)
    launches.append(f"; @launch grid=(256,1,1) block=(256,1,1) lds={LDS_MAIN}")
    return HEADER + "\n".join(launches) + "\n" + a.text() + desc


if __name__ == "__main__":
    out = sys.argv[1]
    cfg = {"roles": sys.argv[2] if len(sys.argv) > 2 else "PTF",
           "pretouch": 0, "tagate": 1, "tastep": 1, "rgate": 1, "yahead": 4, "fgate": 5}
    for opt in sys.argv[3:]:
        k, _, val = opt.partition("=")
        cfg[k] = int(val) if val else 1
    open(out, "w").write(generate(cfg))
    import subprocess
    r = subprocess.run(["clang", "-x", "assembler", "-target", "amdgcn-amd-amdhsa", "-mcpu=gfx950", "-c", out, "-o", "gen_check.o"], capture_output=True, text=True)
    if r.returncode:
        print(r.stderr[:1500])
        sys.exit(1)
```

```python
from asmlib import Asm, v, acc, s
from layout import *
from roles_rec import *
from roles_pre import srd, f32, row_sum4, ln_scalars, ln_apply
from roles_tok import mfma

GELU_C1 = -2.0 * 1.4426950408889634 * 0.7978845608028654
GELU_C2 = GELU_C1 * 0.044715


def unpack(a, dst, src, n):
    for i in range(n):
        a(f"v_lshlrev_b32 {v(dst + 2 * i)}, 16, {v(src + i)}")
        a(f"v_and_b32 {v(dst + 2 * i + 1)}, 0xffff0000, {v(src + i)}")


NTILE = 2 * NSEG


def gen_f1(a, w, cfg):
    L16, DA, TRA, SA, T0, T1, MEAN, M2, TM = range(1, 10)
    BIAS, CSUM, PK, F, XO, ACC, ST, ONES, SW = 16, 24, 32, 48, 80, 96, 104, 112, 14
    HN, STAT, STAGE = 0, 14336, 32768
    sH, sO, sF, sC1, sC2 = range(S_T0, S_T0 + 5)
    sM1, sM2 = S_T0 + 6, S_T0 + 8
    ks0, nb = (0, 4, 8, 11)[w], (4, 4, 3, 3)[w]
    W = lambda ab, ks: acc(8 * ks + 4 * ab, 4)

    a.label(f"F1_W{w}")
    srd(a, S_X, 64, 448 * 3584)
    srd(a, S_AUX, 72, 3584)
    a(f"v_lshlrev_b32 {v(L16)}, 4, v0")
    a(f"v_lshrrev_b32 {v(T0)}, 2, v0")
    a(f"v_mul_u32_u24 {v(DA)}, 3584, {v(T0)}")
    a(f"v_and_b32 {v(T1)}, 3, v0")
    a(f"v_lshl_add_u32 {v(DA)}, {v(T1)}, 4, {v(DA)}")
    a(f"v_lshrrev_b32 {v(TRA)}, 4, v0")
    a(f"v_lshlrev_b32 {v(SA)}, 4, {v(TRA)}")
    a(f"v_lshlrev_b32 {v(TRA)}, 3, {v(TRA)}")
    a(f"v_and_b32 {v(T0)}, 3, {v(T0)}")
    a(f"v_add_u32 {v(TRA)}, {v(TRA)}, {v(T0)}")
    a(f"v_lshlrev_b32 {v(TRA)}, 6, {v(TRA)}")
    a(f"v_lshl_add_u32 {v(TRA)}, {v(T1)}, 4, {v(TRA)}")
    a(f"v_add_u32 {v(TRA)}, {STAGE + w * 28672}, {v(TRA)}")
    a(f"s_lshl_b32 {s(S_TMP)}, {s(S_LOC)}, 8")
    a(f"s_add_u32 {s(S_TMP)}, {s(S_TMP)}, {64 * w}")
    a("s_waitcnt lgkmcnt(0)")
    a(f"buffer_load_dwordx4 {v(PK, 4)}, {v(SA)}, {s(S_AUX, 4)}, {s(S_TMP)} offen")
    for i in range(28):
        a(f"s_mov_b32 m0, {STAGE + w * 28672 + i * 1024}")
        a(f"s_add_u32 {s(S_TMP + 1)}, {s(S_TMP)}, {i * 16 * 3584}")
        a(f"buffer_load_dwordx4 {v(DA)}, {s(S_X, 4)}, {s(S_TMP + 1)} offen lds")
    a(f"v_and_b32 {v(SA)}, 15, v0")
    a(f"v_lshlrev_b32 {v(SA)}, 5, {v(SA)}")
    a(f"v_add_u32 {v(SA)}, {STAT}, {v(SA)}")
    a(f"v_bfe_u32 {v(T0)}, v0, 2, 2")
    a(f"v_lshrrev_b32 {v(T1)}, 4, v0")
    a(f"v_cmp_eq_u32 vcc, {v(T0)}, {v(T1)}")
    a(f"v_add_u32 {v(T0)}, {8 * w}, {v(SA)}")
    a(f"v_lshlrev_b32 {v(SW)}, 3, v0")
    a(f"v_add_u32 {v(SW)}, {STAT + 512}, {v(SW)}")
    a(f"v_cndmask_b32 {v(SW)}, {v(SW)}, {v(T0)}, vcc")
    a(f"v_and_b32 {v(T0)}, 1, v0")
    a(f"v_cmp_ne_u32 {s(sM1, 2)}, 0, {v(T0)}")
    a(f"v_and_b32 {v(T0)}, 2, v0")
    a(f"v_cmp_ne_u32 {s(sM2, 2)}, 0, {v(T0)}")
    a(f"s_mul_i32 {s(sH)}, {s(S_GRP)}, 14336")
    a(f"s_add_u32 {s(sH)}, {s(sH)}, {WS['HT'] + ks0 * 1024}")
    a(f"s_mul_i32 {s(sO)}, {s(S_GRP)}, 57344")
    a(f"s_lshl_b32 {s(S_TMP + 1)}, {s(S_LOC)}, 12")
    a(f"s_add_u32 {s(sO)}, {s(sO)}, {s(S_TMP + 1)}")
    a(f"s_add_u32 {s(sO)}, {s(sO)}, {WS['H1T'] + w * 1024}")
    a(f"s_mul_i32 {s(sF)}, {s(S_GRP)}, 224")
    a(f"s_lshl_b32 {s(S_TMP + 1)}, {s(S_LOC)}, 4")
    a(f"s_add_u32 {s(sF)}, {s(sF)}, {s(S_TMP + 1)}")
    a(f"s_add_u32 {s(sF)}, {s(sF)}, {WS['HF'] + 4 * w}")
    a(f"s_mov_b32 {s(sC1)}, {f32(GELU_C1)}")
    a(f"s_mov_b32 {s(sC2)}, {f32(GELU_C2)}")
    a(f"s_mov_b32 {s(S_STEP)}, {s(S_GRP)}")
    a("s_waitcnt vmcnt(0)")
    unpack(a, BIAS, PK, 4)
    for r in range(4):
        a(f"v_mov_b32 {v(ONES + r)}, 0x3f803f80")
    for ks in range(14):
        for ab in range(2):
            for q in range(2):
                a(f"ds_read_b64_tr_b16 {acc(8 * ks + 4 * ab + 2 * q, 2)}, {v(TRA)} offset:{ks * 2048 + q * 256 + ab * 8}")
        if ks % 3 == 2:
            a("s_waitcnt lgkmcnt(0)")
    a("s_waitcnt lgkmcnt(0)")
    for ks in range(14):
        for ab in range(2):
            mfma(a, CSUM + 4 * ab, W(ab, ks), v(ONES, 4), ks == 0)
    wait_tasks(a, "Z2", T0, 12)

    top = f"F1_JOB{w}"
    a.label(top)
    a.ds = []
    a("s_barrier")
    stamp(a, cfg, 0)
    poll_deep(a, [f"buffer_load_dwordx4 {v(PK + 4 * i, 4)}, {v(L16)}, {WS_SRD}, {s(sH)} offen offset:{i * 1024} sc1" for i in range(nb)],
              range(PK, PK + 4 * nb), T0, depth=cfg.get("fdepth", 2), sleep=(cfg.get("fsleep", 8), NTILE - 8) if cfg.get("fsleep", 8) else None)
    stamp(a, cfg, 1)
    for i in range(nb):
        mfma(a, F, v(PK + 4 * i, 4), v(PK + 4 * i, 4), i == 0)
        a.dsop(f"ds_write_b128 {v(L16)}, {v(PK + 4 * i, 4)} offset:{HN + (ks0 + i) * 1024}")
    for i in range(nb):
        mfma(a, F + 4, v(ONES, 4), v(PK + 4 * i, 4), i == 0)
    a(f"v_cndmask_b32 {v(F)}, {v(F)}, {v(F + 1)}, {s(sM1, 2)}")
    a(f"v_cndmask_b32 {v(F + 2)}, {v(F + 2)}, {v(F + 3)}, {s(sM1, 2)}")
    a.nop(6)
    a(f"v_cndmask_b32 {v(F + 5)}, {v(F)}, {v(F + 2)}, {s(sM2, 2)}")
    a.dsop(f"ds_write_b64 {v(SW)}, {v(F + 4, 2)}")
    a.wait_ds_all()
    a("s_barrier")
    stamp(a, cfg, 2)
    side = Asm()
    side(f"v_add_f32 {v(MEAN)}, {v(ST)}, {v(ST + 2)}")
    side(f"v_add_f32 {v(M2)}, {v(ST + 1)}, {v(ST + 3)}")
    side(f"v_add_f32 {v(TM)}, {v(ST + 4)}, {v(ST + 6)}")
    side(f"v_add_f32 {v(TM + 1)}, {v(ST + 5)}, {v(ST + 7)}")
    side(f"v_add_f32 {v(MEAN)}, {v(MEAN)}, {v(TM)}")
    side(f"v_add_f32 {v(M2)}, {v(M2)}, {v(TM + 1)}")
    side(f"v_mul_f32 {v(MEAN)}, {f32(1 / 448)}, {v(MEAN)}")
    side(f"v_mul_f32 {v(M2)}, {f32(1 / 448)}, {v(M2)}")
    side(f"v_fma_f32 {v(M2)}, -{v(MEAN)}, {v(MEAN)}, {v(M2)}")
    side(f"v_max_f32 {v(M2)}, 0, {v(M2)}")
    ln_scalars(side, MEAN, M2)
    side(f"v_sub_f32 {v(T1)}, 0, {v(MEAN)}")
    side(f"v_mov_b32 {v(T0)}, {s(sC1)}")
    side = list(side.lines)

    def read_x(ks):
        a.dsop(f"ds_read_b128 {v(XO + 4 * (ks % 4), 4)}, {v(L16)} offset:{HN + ks * 1024}", ("x", ks))
    for ks in range(3):
        read_x(ks)
    a.dsop(f"ds_read_b128 {v(ST, 4)}, {v(SA)}", "st")
    a.dsop(f"ds_read_b128 {v(ST + 4, 4)}, {v(SA)} offset:16", "st")
    for ks in range(14):
        a.wait_ds(("x", ks))
        for ab in range(2):
            mfma(a, ACC + 4 * ab, W(ab, ks), v(XO + 4 * (ks % 4), 4), ks == 0)
            if ab == 0 and ks + 3 < 14:
                read_x(ks + 3)
            if ks >= 3:
                a.wait_ds("st")
                for x in side[:2]:
                    a(x)
                side = side[2:]
    assert not side
    stamp(a, cfg, 3)
    a.nop(7)
    U, E = ACC, F
    for i in range(0, 8, 2):
        a(f"v_pk_fma_f32 {v(U + i, 2)}, {v(CSUM + i, 2)}, {v(T1, 2)}, {v(U + i, 2)} op_sel_hi:[1,0,1]")
    for i in range(0, 8, 2):
        a(f"v_pk_fma_f32 {v(U + i, 2)}, {v(U + i, 2)}, {v(M2, 2)}, {v(BIAS + i, 2)} op_sel_hi:[1,0,1]")
    for i in range(0, 8, 2):
        a(f"v_pk_mul_f32 {v(E + i, 2)}, {v(U + i, 2)}, {v(U + i, 2)}")
    for i in range(8):
        a(f"v_fma_f32 {v(E + i)}, {v(E + i)}, {s(sC2)}, {v(T0)}")
    for i in range(0, 8, 2):
        a(f"v_pk_mul_f32 {v(E + i, 2)}, {v(E + i, 2)}, {v(U + i, 2)}")
    for i in range(8):
        a(f"v_exp_f32 {v(E + i)}, {v(E + i)}")
    for i in range(8):
        a(f"v_add_f32 {v(E + i)}, 1.0, {v(E + i)}")
    for i in range(8):
        a(f"v_rcp_f32 {v(E + i)}, {v(E + i)}")
    for i in range(0, 8, 2):
        a(f"v_pk_mul_f32 {v(U + i, 2)}, {v(U + i, 2)}, {v(E + i, 2)}")
    a("s_waitcnt vmcnt(0)")
    for i in range(4):
        a(f"v_cvt_pk_bf16_f32 {v(PK + i)}, {v(U + 2 * i)}, {v(U + 2 * i + 1)}")
    local_stores(a, [f"buffer_store_dwordx4 {v(PK, 4)}, {v(L16)}, {WS_SRD}, {s(sO)} offen"])
    a(f"v_mov_b32 {v(T0)}, {s(S_TAG)}")
    a("s_waitcnt vmcnt(0)")
    local_stores(a, [f"buffer_store_dword {v(T0)}, off, {WS_SRD}, {s(sF)}"])
    stamp(a, cfg, 4)
    job_stamps(a, cfg, 5, 16 + w, T0)
    for r, step in ((sH, 14336), (sO, 57344), (sF, 224), (S_STEP, 1)):
        a(f"s_add_u32 {s(r)}, {s(r)}, {step * NFFN}")
    a(f"s_cmp_lt_u32 {s(S_STEP)}, {NTILE}")
    a(f"s_cbranch_scc1 {top}")
    a("s_endpgm")


def job_stamps(a, cfg, n, slot, tmp):
    if cfg.get("stamps"):
        a(f"s_mov_b32 s96, {s(S_STEP)}")
        a(f"s_lshr_b32 {s(S_STEP)}, {s(S_STEP)}, 1")
        flush_stamps(a, cfg, n, slot, tmp)
        a(f"s_mov_b32 {s(S_STEP)}, s96")


def gen_f2(a, w, cfg):
    L16, DA, TRA, FA, PWA, PRA, HA, OA, T0, T1 = range(1, 11)
    HR, BIAS, RES, XO, ACC = 11, 12, 14, 16, 72
    PART, STAGE = 0, 16384
    sH1, sF, sH, sO, sT = range(S_T0, S_T0 + 5)
    TA = 80
    W = lambda ct, ks: acc(8 * ks + 4 * ct, 4)

    a.label(f"F2_W{w}")
    srd(a, S_X, 80, 1792 * 896)
    srd(a, S_AUX, 88, 896)
    srd(a, S_OUT, 96, 2048 * 896)
    a(f"s_sub_u32 {s(S_LOC)}, {s(S_LOC)}, 14")
    a(f"v_lshlrev_b32 {v(L16)}, 4, v0")
    a(f"v_lshrrev_b32 {v(T0)}, 2, v0")
    a(f"v_mul_u32_u24 {v(DA)}, 896, {v(T0)}")
    a(f"v_and_b32 {v(T1)}, 3, v0")
    a(f"v_lshl_add_u32 {v(DA)}, {v(T1)}, 4, {v(DA)}")
    a(f"v_lshrrev_b32 {v(TRA)}, 4, v0")
    a(f"v_lshlrev_b32 {v(TRA)}, 3, {v(TRA)}")
    a(f"v_and_b32 {v(T0)}, 3, {v(T0)}")
    a(f"v_add_u32 {v(TRA)}, {v(TRA)}, {v(T0)}")
    a(f"v_lshlrev_b32 {v(TRA)}, 6, {v(TRA)}")
    a(f"v_lshl_add_u32 {v(TRA)}, {v(T1)}, 3, {v(TRA)}")
    a(f"v_add_u32 {v(TRA)}, {STAGE + w * 28672}, {v(TRA)}")
    a(f"v_min_u32 {v(FA)}, 13, v0")
    a(f"v_lshlrev_b32 {v(FA)}, 2, {v(FA)}")
    a(f"v_and_b32 {v(T0)}, 15, v0")
    a(f"v_lshrrev_b32 {v(T1)}, 4, v0")
    a(f"v_mul_u32_u24 {v(PWA)}, 144, {v(T0)}")
    a(f"v_lshl_add_u32 {v(PWA)}, {v(T1)}, 4, {v(PWA)}")
    a(f"v_add_u32 {v(PWA)}, {PART + w * 2304}, {v(PWA)}")
    a(f"v_add_u32 {v(T1)}, {4 * w}, {v(T1)}")
    a(f"v_mul_u32_u24 {v(PRA)}, 144, {v(T1)}")
    a(f"v_lshl_add_u32 {v(PRA)}, {v(T0)}, 3, {v(PRA)}")
    a(f"v_mul_u32_u24 {v(OA)}, 896, {v(T1)}")
    a(f"v_lshl_add_u32 {v(OA)}, {v(T0)}, 2, {v(OA)}")
    a(f"v_lshlrev_b32 {v(HA)}, 4, {v(T1)}")
    a(f"v_lshrrev_b32 {v(T1)}, 2, {v(T0)}")
    a(f"v_lshl_add_u32 {v(HA)}, {v(T1)}, 8, {v(HA)}")
    a(f"v_and_b32 {v(T1)}, 3, {v(T0)}")
    a(f"v_lshl_add_u32 {v(HA)}, {v(T1)}, 2, {v(HA)}")
    a(f"v_lshlrev_b32 {v(T0)}, 2, {v(T0)}")
    a(f"s_lshl_b32 {s(S_TMP)}, {s(S_LOC)}, 6")
    a("s_waitcnt lgkmcnt(0)")
    a(f"buffer_load_dword {v(HR)}, {v(T0)}, {s(S_AUX, 4)}, {s(S_TMP)} offen")
    a(f"s_add_u32 {s(S_TMP)}, {s(S_TMP)}, {448 * w * 896}")
    for i in range(28):
        a(f"s_mov_b32 m0, {STAGE + w * 28672 + i * 1024}")
        a(f"s_add_u32 {s(S_TMP + 1)}, {s(S_TMP)}, {i * 16 * 896}")
        a(f"buffer_load_dwordx4 {v(DA)}, {s(S_X, 4)}, {s(S_TMP + 1)} offen lds")
    a("s_waitcnt vmcnt(0)")
    for ks in range(14):
        for ct in range(2):
            for q in range(2):
                a(f"ds_read_b64_tr_b16 {acc(8 * ks + 4 * ct + 2 * q, 2)}, {v(TRA)} offset:{ks * 2048 + q * 256 + ct * 32}")
        if ks % 3 == 2:
            a("s_waitcnt lgkmcnt(0)")
    a("s_waitcnt lgkmcnt(0)")
    unpack(a, BIAS, HR, 1)
    a(f"s_mul_i32 {s(sH1)}, {s(S_GRP)}, 57344")
    a(f"s_add_u32 {s(sH1)}, {s(sH1)}, {WS['H1T'] + w * 14336}")
    a(f"s_mul_i32 {s(sF)}, {s(S_GRP)}, 224")
    a(f"s_add_u32 {s(sF)}, {s(sF)}, {WS['HF'] + w * 56}")
    a(f"s_mul_i32 {s(sO)}, {s(S_GRP)}, 14336")
    a(f"s_lshl_b32 {s(S_TMP)}, {s(S_LOC)}, 10")
    a(f"s_add_u32 {s(sH)}, {s(sO)}, {s(S_TMP)}")
    a(f"s_add_u32 {s(sH)}, {s(sH)}, {WS['HT']}")
    a(f"s_lshl_b32 {s(S_TMP)}, {s(S_LOC)}, 6")
    a(f"s_add_u32 {s(sO)}, {s(sO)}, {s(S_TMP)}")
    a(f"s_mov_b32 {s(S_STEP)}, {s(S_GRP)}")
    a(f"s_lshl_b32 {s(sT)}, {s(S_LOC)}, 10")
    a(f"s_add_u32 {s(sT)}, {s(sT)}, {57344 * NFFN * cfg.get('h1ahead', 2)}")
    a(f"v_and_b32 {v(TA)}, 7, v0")
    a(f"v_lshlrev_b32 {v(TA)}, 7, {v(TA)}")
    wait_tasks(a, "Z2", T0, RES)

    top = f"F2_JOB{w}"
    a.label(top)
    a.ds, a.vm = [], []
    a("s_barrier")
    stamp(a, cfg, 0)
    spin = a.newlabel("job")
    a.label(spin)
    a(f"buffer_load_dword {v(HR)}, {v(HA)}, {WS_SRD}, {s(sH)} offen sc1")
    a(f"buffer_load_dword {v(T0)}, {v(FA)}, {WS_SRD}, {s(sF)} offen sc1")
    a(f"s_sub_u32 {s(S_TO)}, {s(S_TO)}, 1")
    a(f"s_cbranch_scc1 {a.abort}")
    a("s_waitcnt vmcnt(0)")
    a(f"v_cmp_eq_u32 {s(S_TMP, 2)}, -1, {v(HR)}")
    a(f"v_cmp_ne_u32 vcc, {s(S_TAG)}, {v(T0)}")
    a(f"s_or_b64 vcc, vcc, {s(S_TMP, 2)}")
    a(f"s_cbranch_scc1 {spin}")
    stamp(a, cfg, 1)
    a(f"s_mov_b32 {s(S_TMP)}, {s(sH1)}")
    for ks in range(14):
        if ks and ks % 4 == 0:
            a(f"s_add_u32 {s(S_TMP)}, {s(S_TMP)}, 4096")
        a.vmop(f"buffer_load_dwordx4 {v(XO + 4 * ks, 4)}, {v(L16)}, {WS_SRD}, {s(S_TMP)} offen offset:{(ks % 4) * 1024} sc1", ks)
    unpack(a, RES, HR, 1)
    for ks in range(14):
        a.wait_vm(ks)
        for ct in range(2):
            mfma(a, ACC + 4 * ct, W(ct, ks), v(XO + 4 * ks, 4), ks == 0)
    a.nop(7)
    for ct in range(2):
        a.dsop(f"ds_write_b128 {v(PWA)}, {v(ACC + 4 * ct, 4)} offset:{64 * ct}")
    a.wait_ds_all()
    a("s_barrier")
    for wv in range(4):
        a.dsop(f"ds_read_b64 {v(ACC + 2 * wv, 2)}, {v(PRA)} offset:{PART + wv * 2304}")
    a.wait_ds_all()
    a(f"v_pk_add_f32 {v(ACC, 2)}, {v(ACC, 2)}, {v(ACC + 2, 2)}")
    a(f"v_pk_add_f32 {v(ACC + 4, 2)}, {v(ACC + 4, 2)}, {v(ACC + 6, 2)}")
    a(f"v_pk_add_f32 {v(ACC, 2)}, {v(ACC, 2)}, {v(BIAS, 2)}")
    a(f"v_pk_add_f32 {v(ACC, 2)}, {v(ACC, 2)}, {v(ACC + 4, 2)}")
    a(f"v_cvt_pk_bf16_f32 {v(ACC + 1)}, {v(ACC)}, {v(ACC + 1)}")
    a(f"v_lshlrev_b32 {v(ACC)}, 16, {v(ACC + 1)}")
    a(f"v_and_b32 {v(ACC + 1)}, 0xffff0000, {v(ACC + 1)}")
    a(f"v_pk_add_f32 {v(ACC, 2)}, {v(ACC, 2)}, {v(RES, 2)}")
    a(f"v_cvt_pk_bf16_f32 {v(ACC)}, {v(ACC)}, {v(ACC + 1)}")
    a(f"buffer_store_dword {v(ACC)}, {v(OA)}, {s(S_OUT, 4)}, {s(sO)} offen")
    stamp(a, cfg, 2)
    if cfg.get("h1touch", 1):
        a(f"s_add_u32 {s(S_TMP)}, {s(sH1)}, {s(sT)}")
        a(f"buffer_load_dword {v(T1)}, {v(TA)}, {WS_SRD}, {s(S_TMP)} offen sc1")
    job_stamps(a, cfg, 3, 20 + w, T0)
    for r, step in ((sH1, 57344), (sF, 224), (sH, 14336), (sO, 14336), (S_STEP, 1)):
        a(f"s_add_u32 {s(r)}, {s(r)}, {step * NFFN}")
    a(f"s_cmp_lt_u32 {s(S_STEP)}, {NTILE}")
    a(f"s_cbranch_scc1 {top}")
    a("s_endpgm")


def gen_reset(a, cfg):
    L16, T0, T1, P0, P1 = 1, 2, 3, 8, 12
    nw = NFFN * 128
    srd(a, S_AUX, 8, MEM_SZ)
    a(f"v_lshlrev_b32 {v(L16)}, 4, v0")
    a(f"s_lshl_b32 {s(S_TMP + 4)}, {s(S_GRP)}, 5")
    a(f"s_add_u32 {s(S_TMP + 4)}, {s(S_TMP + 4)}, {s(S_LOC)}")
    a(f"s_lshl_b32 {s(S_TMP)}, {s(S_TMP + 4)}, 2")
    a(f"s_add_u32 {s(S_TMP)}, {s(S_TMP)}, {s(S_WAVE)}")
    for r in range(4):
        a(f"v_mov_b32 {v(P0 + r)}, -1")
    a(f"v_and_b32 {v(T0)}, 7, v0")
    a(f"v_mul_u32_u24 {v(T0)}, 896, {v(T0)}")
    a(f"v_lshrrev_b32 {v(T1)}, 3, v0")
    a(f"v_lshl_add_u32 {v(T0)}, {v(T1)}, 4, {v(T0)}")
    a(f"s_mov_b32 {s(S_WS + 2)}, {POISON_END}")
    a(f"s_lshl_b32 {s(S_TMP + 2)}, {s(S_TMP)}, 10")
    a(f"s_add_u32 {s(S_TMP + 2)}, {s(S_TMP + 2)}, {POISON_BEGIN}")
    a("s_waitcnt lgkmcnt(0)")
    gch = (WS['MEMG'] - WS['MEML']) // 1024
    a(f"v_mov_b32 {v(T1)}, {s(S_TAG)}")
    a(f"s_lshr_b32 {s(S_TMP + 5)}, {s(S_TMP + 4)}, 3")
    a(f"s_lshl_b32 {s(S_TMP + 5)}, {s(S_TMP + 5)}, 7")
    a(f"s_and_b32 {s(S_TMP + 4)}, {s(S_TMP + 4)}, 7")
    a(f"s_lshl_b32 {s(S_TMP + 4)}, {s(S_TMP + 4)}, 2")
    a(f"s_add_u32 {s(S_TMP + 4)}, {s(S_TMP + 4)}, {s(S_TMP + 5)}")
    a(f"s_add_u32 {s(S_TMP + 4)}, {s(S_TMP + 4)}, {WS['ARR'] + 4096}")

    def announce(at):
        skip = a.newlabel("mute")
        a("s_waitcnt vmcnt(0)")
        a("s_barrier")
        a(f"s_cmp_lg_u32 {s(S_WAVE)}, 0")
        a(f"s_cbranch_scc1 {skip}")
        a(f"buffer_store_dword {v(T1)}, off, {WS_SRD}, {s(S_TMP + 4)} offset:{at} sc1")
        a.label(skip)
    early = -(-(WS['PX'] - POISON_BEGIN) // (nw * 1024))
    for i in range(-(-(POISON_END - POISON_BEGIN) // (nw * 1024))):
        if i == early:
            announce(512)
            wait_first_y(a, T0, seg=7 if cfg.get('stagger', 0) else NCLONE - 1)
            if cfg.get("rgate"):
                wait_tasks(a, "LZ", T0, 4)
                wait_step(a, T0, cfg["rgate"])
        first = [c for c in (0, gch) if c // nw == i]
        src = P0
        if first:
            assert (first[0] + 6) // nw == i
            skip = a.newlabel("nomem")
            src = P1 + 4 * i
            for r in range(4):
                a(f"v_mov_b32 {v(src + r)}, -1")
            a(f"s_sub_u32 {s(S_TMP + 1)}, {s(S_TMP)}, {first[0] % nw}")
            a(f"s_cmp_lt_u32 {s(S_TMP + 1)}, 7")
            a(f"s_cbranch_scc0 {skip}")
            a(f"s_lshl_b32 {s(S_TMP + 1)}, {s(S_TMP + 1)}, 7")
            a(f"buffer_load_dwordx4 {v(src, 4)}, {v(T0)}, {s(S_AUX, 4)}, {s(S_TMP + 1)} offen")
            a("s_waitcnt vmcnt(0)")
            for r in range(4):
                a(f"v_min_u32 {v(src + r)}, -2, {v(src + r)}")
            a.label(skip)
        a(f"buffer_store_dwordx4 {v(src, 4)}, {v(L16)}, {WS_SRD}, {s(S_TMP + 2)} offen sc1")
        a(f"s_add_u32 {s(S_TMP + 2)}, {s(S_TMP + 2)}, {nw * 1024}")
    a(f"s_mov_b32 {s(S_WS + 2)}, {WS_BYTES}")
    announce(2048)
    if cfg.get("fgate"):
        wait_tasks(a, "LZ", T0, 4)
        wait_step(a, T0, cfg["fgate"], 1)
```

```python
from asmlib import v, acc, s
from layout import *
from roles_rec import S_TAG, S_WS, S_X, S_OUT, S_AUX, S_WAVE, S_T0, S_TMP, WS_SRD

W_BYTES = 448 * 4096 * 2
SCALE = 0.0625 * 1.4426950408889634


def f32(x):
    import struct
    return hex(struct.unpack("<I", struct.pack("<f", x))[0])


def srd(a, base, arg, nbytes):
    a(f"s_load_dwordx2 {s(base, 2)}, s[0:1], {arg}")
    a(f"s_mov_b32 {s(base + 2)}, {nbytes}")
    a(f"s_mov_b32 {s(base + 3)}, 0x00020000")


def row_sum4(a, x, tmp):
    for op in ("v_permlane32_swap_b32", "v_permlane16_swap_b32"):
        a(f"v_mov_b32 {v(tmp)}, {v(x)}")
        a.nop(2)
        a(f"{op} {v(tmp)}, {v(x)}")
        a(f"v_add_f32 {v(x)}, {v(x)}, {v(tmp)}")


def round_bf16(a, x):
    a(f"v_cvt_pk_bf16_f32 {v(x)}, {v(x)}, {v(x)}")
    a(f"v_and_b32 {v(x)}, 0xffff0000, {v(x)}")


def ln_scalars(a, mean, var):
    round_bf16(a, mean)
    round_bf16(a, var)
    a(f"v_add_f32 {v(var)}, {f32(1e-5)}, {v(var)}")
    round_bf16(a, var)
    a(f"v_sqrt_f32 {v(var)}, {v(var)}")
    a.nop(1)
    round_bf16(a, var)
    a(f"v_rcp_f32 {v(var)}, {v(var)}")
    a.nop(1)


def ln_apply(a, dst, lo, hi, mean, inv):
    a(f"v_sub_f32 {v(lo)}, {v(lo)}, {v(mean)}")
    a(f"v_sub_f32 {v(hi)}, {v(hi)}, {v(mean)}")
    a(f"v_cvt_pk_bf16_f32 {v(hi)}, {v(lo)}, {v(hi)}")
    a(f"v_lshlrev_b32 {v(lo)}, 16, {v(hi)}")
    a(f"v_and_b32 {v(hi)}, 0xffff0000, {v(hi)}")
    a(f"v_mul_f32 {v(lo)}, {v(lo)}, {v(inv)}")
    a(f"v_mul_f32 {v(hi)}, {v(hi)}, {v(inv)}")
    a(f"v_cvt_pk_bf16_f32 {v(dst)}, {v(lo)}, {v(hi)}")


def stampreg(a, cfg, r):
    if cfg.get("stamps"):
        a(f"s_memrealtime s[{r}:{r + 1}]")


sH, sK, sL, sR, sO, sSC, sLB = range(S_T0, S_T0 + 7)
S_WORD = S_T0 + 7
L16, T0, T1, T2 = 1, 2, 3, 4
RA, DA, DL = 8, 12, 20
LEFT, RING = 0, 32768


def read_addresses(a):
    a(f"v_and_b32 {v(T0)}, 15, v0")
    a(f"v_lshrrev_b32 {v(T1)}, 4, v0")
    for q in range(4):
        a(f"v_add_u32 {v(T2)}, {4 * q}, {v(T1)}")
        a(f"v_xor_b32 {v(T2)}, {v(T2)}, {v(T0)}")
        a(f"v_lshlrev_b32 {v(T2)}, 4, {v(T2)}")
        a(f"v_lshl_add_u32 {v(RA + q)}, {v(T0)}, 9, {v(T2)}")


def stage_left(a, nt, natural, cfg={}):
    a(f"v_lshrrev_b32 {v(T1)}, 5, v0")
    a(f"v_and_b32 {v(T2)}, 31, v0")
    for i in range(8):
        m = 2 * i
        a(f"v_add_u32 {v(T0)}, {m}, {v(T1)}")
        a(f"v_xor_b32 {v(DA + i)}, {v(T2)}, {v(T0)}")
        a(f"v_lshlrev_b32 {v(DA + i)}, 4, {v(DA + i)}")
        a(f"v_add_u32 {v(DL + i)}, {16 * (m >> 3) + 4 * ((m >> 2) & 1) + 8 * ((m >> 1) & 1)}, {v(T1)}")
        a(f"v_lshl_add_u32 {v(DL + i)}, {v(DL + i)}, 13, {v(DA + i)}")
        if natural:
            a(f"v_lshl_add_u32 {v(DA + i)}, {v(T0)}, 13, {v(DA + i)}")
    a(f"s_lshl_b32 {s(sL)}, {s(sK)}, 19")
    a(f"s_lshl_b32 {s(S_TMP)}, {s(sH)}, 9")
    a(f"s_add_u32 {s(sL)}, {s(sL)}, {s(S_TMP)}")
    a(f"s_lshr_b32 {s(S_TMP)}, {s(S_WAVE)}, 1")
    a(f"s_lshl_b32 {s(S_TMP)}, {s(S_TMP)}, 18")
    a(f"s_add_u32 {s(sL)}, {s(sL)}, {s(S_TMP)}")
    a(f"s_and_b32 {s(S_TMP)}, {s(S_WAVE)}, 1")
    a(f"s_lshl_b32 {s(S_TMP)}, {s(S_TMP)}, 14")
    a(f"s_add_u32 {s(sL)}, {s(sL)}, {s(S_TMP)}")
    a(f"s_lshl_b32 {s(sLB)}, {s(S_WAVE)}, 13")
    a("s_waitcnt lgkmcnt(0)")
    stampreg(a, cfg, 98)
    for i in range(8):
        a(f"s_add_u32 m0, {s(sLB)}, {LEFT + i * 1024}")
        a.nop(1)
        a.vmop(f"buffer_load_dwordx4 {v(DL + i)}, {s(S_X, 4)}, {s(sL)} offen{nt} lds", "l")


def read_left(a, cfg, tiles, lop):
    stampreg(a, cfg, 100)
    a.wait_vm("l")
    a("s_barrier")
    stampreg(a, cfg, 66)
    for ks in range(8):
        for t in range(tiles):
            a.dsop(f"ds_read_b128 {lop(t, ks)}, {v(RA + (ks & 3))} offset:{LEFT + t * 8192 + (ks >> 2) * 256}", ("l", ks))
        if ks % 2:
            a.wait_ds(("l", ks - 1))


def finish(a, c0, out, scale, soff, off):
    for ab in range(2):
        c = c0 + 4 * ab
        if scale:
            for r in range(4):
                a(f"v_mul_f32 {v(c + r)}, {s(sSC)}, {v(c + r)}")
        a(f"v_cvt_pk_bf16_f32 {v(out + 2 * ab)}, {v(c)}, {v(c + 1)}")
        a(f"v_cvt_pk_bf16_f32 {v(out + 2 * ab + 1)}, {v(c + 2)}, {v(c + 3)}")
    a.vmop(f"buffer_store_dwordx4 {v(out, 4)}, {v(L16)}, {WS_SRD}, {s(soff)} offen offset:{off} sc1")


def gen_atask(a, cfg):
    nt = " nt" if cfg.get("prent", 0) else ""
    ACC, OUT, BO, RB = 32, 64, 80, 144
    LOP = lambda t, ks: acc(4 * (ks * 4 + t), 4)
    a.label("ATASK")
    a.vm, a.ds = [], []
    srd(a, S_X, 16, W_BYTES)
    srd(a, S_OUT, 24, W_BYTES)
    stage_left(a, nt, True, cfg)
    a(f"s_mul_i32 {s(sR)}, {s(S_WAVE)}, {112 * 8192}")
    a(f"s_lshl_b32 {s(S_TMP)}, {s(sH)}, 9")
    a(f"s_add_u32 {s(sR)}, {s(sR)}, {s(S_TMP)}")
    a(f"s_lshl_b32 {s(sLB)}, {s(S_WAVE)}, 15")
    a(f"s_add_u32 {s(sLB)}, {s(sLB)}, {RING}")

    def stage(j, i):
        a(f"s_add_u32 m0, {s(sLB)}, {(j % 4) * 8192 + i * 1024}")
        a.nop(1)
        a.vmop(f"buffer_load_dwordx4 {v(DA + i)}, {s(S_OUT, 4)}, {s(sR)} offen{nt} lds", ("r", j))
        if i == 7:
            a(f"s_add_u32 {s(sR)}, {s(sR)}, {16 * 8192}")
    lead = cfg.get("leada", 3)
    for j in range(lead):
        for i in range(8):
            stage(j, i)
    if cfg.get("pretouch", 1):
        a(f"v_lshrrev_b32 {v(T0)}, 2, v0")
        a(f"v_lshlrev_b32 {v(T0)}, 13, {v(T0)}")
        a(f"v_and_b32 {v(T2)}, 3, v0")
        a(f"v_lshl_add_u32 {v(T0)}, {v(T2)}, 7, {v(T0)}")
        for j in range(3):
            a(f"s_add_u32 {s(S_TMP)}, {s(sR)}, {j * 16 * 8192}")
            a.vmop(f"buffer_load_dword v7, {v(T0)}, {s(S_OUT, 4)}, {s(S_TMP)} offen{nt}")
    read_addresses(a)
    for q in range(4):
        a(f"v_add_u32 {v(RB + q)}, {s(sLB)}, {v(RA + q)}")
    a(f"s_mul_i32 {s(sO)}, {s(sH)}, {AL_HEAD}")
    a(f"s_mul_i32 {s(S_TMP)}, {s(S_WAVE)}, 100352")
    a(f"s_add_u32 {s(sO)}, {s(sO)}, {s(S_TMP)}")
    a(f"s_lshl_b32 {s(S_TMP)}, {s(sK)}, 11")
    a(f"s_add_u32 {s(sO)}, {s(sO)}, {s(S_TMP)}")
    a(f"s_add_u32 {s(sO)}, {s(sO)}, {WS['AL']}")
    a(f"s_mov_b32 {s(sSC)}, {f32(SCALE)}")
    read_left(a, cfg, 4, LOP)

    def read_right(j, ks):
        if ks == 0:
            a.wait_vm(("r", j))
        a.dsop(f"ds_read_b128 {v(BO + 32 * (j & 1) + 4 * ks, 4)}, {v(RB + (ks & 3))} offset:{(j % 4) * 8192 + (ks >> 2) * 256}", ("b", j, ks))

    def finish_tile(j):
        for hi in range(2):
            finish(a, ACC + 16 * (j & 1) + 8 * hi, OUT + 8 * (j & 1) + 4 * hi, True, sO, 1024 * hi)
        a(f"s_add_u32 {s(sO)}, {s(sO)}, 14336")
    for ks in range(8):
        read_right(0, ks)
    for j in range(7):
        A0 = ACC + 16 * (j & 1)
        for ks in range(8):
            a.wait_ds(("l", ks))
            a.wait_ds(("b", j, ks))
            for t in range(4):
                a(f"v_mfma_f32_16x16x32_bf16 {v(A0 + 4 * t, 4)}, {LOP(t, ks)}, {v(BO + 32 * (j & 1) + 4 * ks, 4)}, " + (v(A0 + 4 * t, 4) if ks else "0"))
                if t == 0 and j + lead < 7:
                    stage(j + lead, ks)
                if t == 2 and j + 1 < 7:
                    read_right(j + 1, ks)
            if ks == 0 and j == 4:
                stampreg(a, cfg, 70)
            if ks == 0 and j:
                finish_tile(j - 1)
    stampreg(a, cfg, 68)
    a.nop(8)
    finish_tile(6)
    a("s_branch PRE_DONE")


def gen_pre(a, cfg):
    nt = " nt" if cfg.get("prent", 0) else ""
    TRA, ACC, BT, OUT = 216, 32, 144, 160
    LOP = lambda t, ks: acc(4 * (ks * 4 + t), 4)
    a(f"v_lshlrev_b32 {v(L16)}, 4, v0")
    a(f"s_and_b32 {s(sH)}, s2, 7")
    a(f"s_lshr_b32 {s(sK)}, s2, 3")
    a(f"s_cmp_lt_u32 {s(sK)}, 28")
    a("s_cbranch_scc0 PRE_LN")
    a(f"s_cmp_lt_u32 {s(sK)}, 14")
    a(f"s_cselect_b32 {s(sSC)}, 0, 14")
    a(f"s_sub_u32 {s(sK)}, {s(sK)}, {s(sSC)}")
    a(f"s_lshl_b32 {s(sH)}, {s(sH)}, 1")
    a(f"s_cmp_ge_u32 {s(sK)}, 7")
    a(f"s_cselect_b32 {s(S_TMP)}, 1, 0")
    a(f"s_add_u32 {s(sH)}, {s(sH)}, {s(S_TMP)}")
    a(f"s_mul_i32 {s(S_TMP)}, {s(S_TMP)}, 7")
    a(f"s_sub_u32 {s(sK)}, {s(sK)}, {s(S_TMP)}")
    a(f"s_lshl_b32 {s(S_WORD)}, {s(sH)}, 5")
    a(f"s_add_u32 {s(S_WORD)}, {s(S_WORD)}, {s(sK)}")
    a(f"s_lshl_b32 {s(S_WORD)}, {s(S_WORD)}, 2")
    a(f"s_cmp_eq_u32 {s(sSC)}, 0")
    a("s_cbranch_scc1 ATASK")
    a(f"s_add_u32 {s(S_WORD)}, {s(S_WORD)}, 2048")
    srd(a, S_X, 32, W_BYTES)
    srd(a, S_OUT, 40, W_BYTES)
    a.vm, a.ds = [], []
    stage_left(a, nt, False, cfg)
    a(f"s_mov_b32 {s(S_TMP)}, {-(-(1 << 32) // 56)}")
    a(f"s_mul_i32 {s(S_TMP + 1)}, {s(S_WAVE)}, 448")
    for i in range(7):
        a(f"v_add_u32 {v(T0)}, {s(S_TMP + 1)}, v0")
        a(f"s_add_u32 {s(S_TMP + 1)}, {s(S_TMP + 1)}, 64")
        a(f"v_mul_hi_u32 {v(DA + i)}, {v(T0)}, {s(S_TMP)}")
        a(f"v_mul_u32_u24 {v(T2)}, 56, {v(DA + i)}")
        a(f"v_sub_u32 {v(T0)}, {v(T0)}, {v(T2)}")
        a(f"v_and_b32 {v(T2)}, 2, {v(DA + i)}")
        a(f"v_xor_b32 {v(T0)}, {v(T0)}, {v(T2)}")
        a(f"v_bfe_u32 {v(T2)}, {v(DA + i)}, 3, 1")
        a(f"v_lshlrev_b32 {v(T2)}, 2, {v(T2)}")
        a(f"v_xor_b32 {v(T0)}, {v(T0)}, {v(T2)}")
        a(f"v_mul_u32_u24 {v(DA + i)}, 896, {v(DA + i)}")
        a(f"v_lshl_add_u32 {v(DA + i)}, {v(T0)}, 4, {v(DA + i)}")
    a(f"s_mul_i32 {s(sLB)}, {s(S_WAVE)}, 7168")
    slot = lambda ks: LEFT if ks == 4 else RING + (ks % 5) * 28672
    a(f"s_mul_i32 {s(sR)}, {s(sH)}, 229376")

    def stage(ks, i):
        a(f"s_add_u32 m0, {s(sLB)}, {slot(ks) + i * 1024}")
        a.nop(1)
        a.vmop(f"buffer_load_dwordx4 {v(DA + i)}, {s(S_OUT, 4)}, {s(sR)} offen{nt} lds", ("r", ks))
        if i == 6:
            a(f"s_add_u32 {s(sR)}, {s(sR)}, {32 * 896}")
    lead = cfg.get("leadb", 2)
    cut = 8 - lead
    for ks in range(lead):
        for i in range(7):
            stage(ks, i)
    if cfg.get("pretouch", 1):
        a(f"v_lshlrev_b32 {v(T0)}, 7, v0")
        a(f"s_mul_i32 {s(S_TMP)}, {s(S_WAVE)}, 28672")
        a(f"s_add_u32 {s(S_TMP)}, {s(S_TMP)}, {s(sR)}")
        for j in range(4):
            a.vmop(f"buffer_load_dword v7, {v(T0)}, {s(S_OUT, 4)}, {s(S_TMP)} offen{nt}")
            a(f"s_add_u32 {s(S_TMP)}, {s(S_TMP)}, 7168")
    read_addresses(a)
    a(f"v_bfe_u32 {v(T0)}, v0, 2, 2")
    a(f"v_lshl_add_u32 {v(T0)}, {v(T1)}, 3, {v(T0)}")
    a(f"v_mul_u32_u24 {v(DL)}, 896, {v(T0)}")
    a(f"v_and_b32 {v(T0)}, 3, v0")
    a(f"v_lshl_add_u32 {v(DL)}, {v(T0)}, 3, {v(DL)}")
    a(f"v_bfe_u32 {v(T0)}, v0, 3, 2")
    for jj in range(4):
        a(f"s_mul_i32 {s(S_TMP)}, {s(S_WAVE)}, 7")
        a(f"s_add_u32 {s(S_TMP)}, {s(S_TMP)}, {jj}")
        a(f"v_xor_b32 {v(T2)}, {s(S_TMP)}, {v(T0)}")
        a(f"v_lshl_add_u32 {v(T2)}, {v(T2)}, 5, {v(DL)}")
        a(f"v_mov_b32 {v(TRA + jj)}, {v(T2)}")
        a(f"v_add_u32 {v(TRA + 4 + jj)}, {RING + 57344}, {v(T2)}")
    a(f"s_lshr_b32 {s(sO)}, {s(sH)}, 2")
    a(f"s_mul_i32 {s(sO)}, {s(sO)}, 114688")
    a(f"s_and_b32 {s(S_TMP)}, {s(sH)}, 3")
    a(f"s_mul_i32 {s(S_TMP)}, {s(S_TMP)}, 28672")
    a(f"s_add_u32 {s(sO)}, {s(sO)}, {s(S_TMP)}")
    a(f"s_lshl_b32 {s(S_TMP)}, {s(sK)}, 11")
    a(f"s_add_u32 {s(sO)}, {s(sO)}, {s(S_TMP)}")
    a(f"s_add_u32 {s(sO)}, {s(sO)}, {WS['BL']}")
    read_left(a, cfg, 4, LOP)
    seq = [(ks, j) for ks in range(cut) for j in range(7)] + [(ks, j) for j in range(7) for ks in range(cut, 8)]

    def read_right(i):
        ks, j = seq[i]
        far = int(slot(ks) >= RING + 57344)
        for q in range(2):
            a.dsop(f"ds_read_b64_tr_b16 {v(BT + 4 * (i % 4) + 2 * q, 2)}, {v(TRA + 4 * far + (j & 3))} "
                   f"offset:{slot(ks) - far * (RING + 57344) + (j >> 2) * 128 + 3584 * q}", ("b", i))

    def finish_tile(j):
        a(f"s_mul_i32 {s(S_TMP)}, {s(S_WAVE)}, 7")
        a(f"s_add_u32 {s(S_TMP)}, {s(S_TMP)}, {j}")
        a(f"s_lshr_b32 {s(S_TMP + 1)}, {s(S_TMP)}, 1")
        a(f"s_mul_i32 {s(S_TMP + 1)}, {s(S_TMP + 1)}, {BL_CU}")
        a(f"s_and_b32 {s(S_TMP)}, {s(S_TMP)}, 1")
        a(f"s_mul_i32 {s(S_TMP)}, {s(S_TMP)}, 14336")
        a(f"s_add_u32 {s(S_TMP)}, {s(S_TMP)}, {s(S_TMP + 1)}")
        a(f"s_add_u32 {s(S_TMP)}, {s(S_TMP)}, {s(sO)}")
        for hi in range(2):
            finish(a, ACC + 16 * j + 8 * hi, OUT + 8 * j + 4 * hi, False, S_TMP, 1024 * hi)
    issued = 0
    for i, (ks, j) in enumerate(seq):
        if j == 0 and ks <= cut:
            a.wait_vm(("r", ks if ks < cut else 7))
            a.wait_ds_all()
            a("s_barrier")
            if ks == 4:
                stampreg(a, cfg, 70)
        limit = 7 * (ks + 1) if ks < cut else len(seq)
        while issued < min(i + 3, limit):
            read_right(issued)
            issued += 1
        a.wait_ds(("l", ks))
        a.wait_ds(("b", i))
        for t in range(4):
            c = v(ACC + 16 * j + 4 * t, 4)
            a(f"v_mfma_f32_16x16x32_bf16 {c}, {LOP(t, ks)}, {v(BT + 4 * (i % 4), 4)}, " + (c if ks else "0"))
            if t == 0 and issued < min(i + 4, limit):
                read_right(issued)
                issued += 1
            if t == 2 and ks < cut:
                stage(ks + lead, j)
        if ks == cut and j:
            finish_tile(j - 1)
    stampreg(a, cfg, 68)
    a.nop(1)
    finish_tile(6)
    a("s_branch PRE_DONE")
    gen_atask(a, cfg)

    a.label("PRE_LN")
    a(f"s_sub_u32 {s(S_WORD)}, {s(sK)}, 28")
    a(f"s_lshl_b32 {s(S_WORD)}, {s(S_WORD)}, 5")
    a(f"s_add_u32 {s(S_WORD)}, {s(S_WORD)}, {s(sH)}")
    a(f"s_lshl_b32 {s(S_WORD)}, {s(S_WORD)}, 2")
    a(f"s_add_u32 {s(S_WORD)}, {s(S_WORD)}, 4096")
    srd(a, S_X, 0, 2048 * 896)
    a.vm = []
    LA, PK, F, SUM, VAR, TM = 5, 16, 80, 8, 9, 10
    a(f"s_lshl_b32 {s(sH)}, {s(sH)}, 2")
    a(f"s_add_u32 {s(sH)}, {s(sH)}, {s(sK)}")
    a(f"s_sub_u32 {s(sH)}, {s(sH)}, 28")
    a(f"s_lshl_b32 {s(sH)}, {s(sH)}, 2")
    a(f"s_add_u32 {s(sH)}, {s(sH)}, {s(S_WAVE)}")
    a(f"s_mul_i32 {s(sL)}, {s(sH)}, 14336")
    a(f"v_and_b32 {v(LA)}, 15, v0")
    a(f"v_mul_u32_u24 {v(LA)}, 896, {v(LA)}")
    a(f"v_lshrrev_b32 {v(T1)}, 4, v0")
    a(f"v_lshl_add_u32 {v(LA)}, {v(T1)}, 4, {v(LA)}")
    a("s_waitcnt lgkmcnt(0)")
    for ks in range(14):
        a.vmop(f"buffer_load_dwordx4 {v(PK + 4 * ks, 4)}, {v(LA)}, {s(S_X, 4)}, {s(sL)} offen offset:{ks * 64}", ks)
    a(f"v_mov_b32 {v(SUM)}, 0")
    a(f"v_mov_b32 {v(VAR)}, 0")
    for i in range(56):
        a.wait_vm(i // 4)
        a(f"v_lshlrev_b32 {v(F + 2 * i)}, 16, {v(PK + i)}")
        a(f"v_and_b32 {v(F + 2 * i + 1)}, 0xffff0000, {v(PK + i)}")
        a(f"v_add_f32 {v(SUM)}, {v(SUM)}, {v(F + 2 * i)}")
        a(f"v_add_f32 {v(VAR)}, {v(VAR)}, {v(F + 2 * i + 1)}")
    a(f"v_add_f32 {v(SUM)}, {v(SUM)}, {v(VAR)}")
    row_sum4(a, SUM, TM)
    a(f"v_mul_f32 {v(SUM)}, {f32(1 / 448)}, {v(SUM)}")
    a(f"v_mov_b32 {v(VAR)}, 0")
    a(f"v_mov_b32 {v(T0)}, 0")
    for i in range(56):
        a(f"v_sub_f32 {v(TM)}, {v(F + 2 * i)}, {v(SUM)}")
        a(f"v_sub_f32 {v(TM + 1)}, {v(F + 2 * i + 1)}, {v(SUM)}")
        a(f"v_fmac_f32 {v(VAR)}, {v(TM)}, {v(TM)}")
        a(f"v_fmac_f32 {v(T0)}, {v(TM + 1)}, {v(TM + 1)}")
    a(f"v_add_f32 {v(VAR)}, {v(VAR)}, {v(T0)}")
    row_sum4(a, VAR, TM)
    a(f"v_mul_f32 {v(VAR)}, {f32(1 / 448)}, {v(VAR)}")
    ln_scalars(a, SUM, VAR)
    a(f"s_add_u32 {s(sR)}, {s(sL)}, {WS['XT']}")
    a(f"s_add_u32 {s(sO)}, {s(sL)}, {WS['XP']}")
    for ks in range(14):
        p = PK + 4 * ks
        for i in range(4):
            ln_apply(a, p + i, F + 8 * ks + 2 * i, F + 8 * ks + 2 * i + 1, SUM, VAR)
        if ks and ks % 4 == 0:
            a(f"s_add_u32 {s(sR)}, {s(sR)}, 4096")
            a(f"s_add_u32 {s(sO)}, {s(sO)}, 4096")
        a(f"buffer_store_dwordx4 {v(p, 4)}, {v(L16)}, {WS_SRD}, {s(sR)} offen offset:{(ks % 4) * 1024} sc1")
        q = F + 8 * ks
        for i, src in enumerate((0, 2, 1, 3)):
            a(f"v_mov_b32 {v(q + i)}, {v(p + src)}")
        a.nop(1)
        a(f"v_permlane16_swap_b32 {v(q)}, {v(q + 1)}")
        a(f"v_permlane16_swap_b32 {v(q + 2)}, {v(q + 3)}")
        a(f"buffer_store_dwordx4 {v(q, 4)}, {v(L16)}, {WS_SRD}, {s(sO)} offen offset:{(ks % 4) * 1024} sc1")
```

```python
from asmlib import Asm, v, acc, s, interleave
from layout import *

S_WS = 4
S_X = 8
S_OUT = 12
S_AUX = 16
S_WAVE = 20
S_GRP = 21
S_LOC = 22
S_SLOW = 23
S_TO = 24
S_STEP = 25
S_T0 = 26
S_TMP = 40
S_BELL = 89
S_TAG = 88
S_CLK = 48

IOTA = [0, 2, 1, 3]
WS_SRD = s(S_WS, 4)


def wblock(b, vbase, hi=None):
    n = 8 if hi is None else 4
    o = 0 if hi is None else 4 * hi
    return acc(8 * b + o, n) if b < 32 else v(vbase + 8 * (b - 32) + o, n)


def smf(a, d, x, w, idx, upper=False):
    a(f"v_smfmac_f32_16x16x64_bf16 {v(d, 4)}, {v(x, 4)}, {w}, {v(idx)}" + (" abid:1" if upper else ""))


def stream_load(a, dests, vaddr, soff, window=48):
    for i, d in enumerate(dests):
        if i and i % 4 == 0:
            a(f"s_add_u32 {s(soff)}, {s(soff)}, 4096")
        if i >= window and (i - window) % 8 == 0:
            a(f"s_waitcnt vmcnt({window - 8})")
        a(f"buffer_load_dwordx4 {d}, {v(vaddr)}, {WS_SRD}, {s(soff)} offen offset:{(i % 4) * 1024}")


def any_poison(a, regs, tmp):
    regs = list(regs)
    a(f"v_max3_u32 {v(tmp)}, {v(regs[0])}, {v(regs[1])}, {v(regs[2])}")
    rest = regs[3:]
    while len(rest) >= 2:
        a(f"v_max3_u32 {v(tmp)}, {v(tmp)}, {v(rest[0])}, {v(rest[1])}")
        rest = rest[2:]
    if rest:
        a(f"v_max_u32 {v(tmp)}, {v(tmp)}, {v(rest[0])}")
    a(f"v_cmp_eq_u32 vcc, -1, {v(tmp)}")


def poll(a, loads, regs, tmp, sleep=0):
    top, done = a.newlabel("poll"), a.newlabel("got")
    a.label(top)
    for l in loads:
        a(l)
    a("s_waitcnt vmcnt(0)")
    any_poison(a, regs, tmp)
    a(f"s_cbranch_vccz {done}")
    if sleep:
        a(f"s_cmp_ge_u32 {s(S_STEP)}, {NSEG - 6}")
        a(f"s_cbranch_scc1 {top}x")
        a(f"s_sleep {sleep}")
        a.label(top + "x")
    a(f"s_sub_u32 {s(S_TO)}, {s(S_TO)}, 1")
    a(f"s_cbranch_scc0 {top}")
    a("s_endpgm")
    a.label(done)


def poll_deep(a, loads, regs, tmp, under=(), depth=2, sleep=None, inside=False, spacer=None):
    spin = a.newlabel("spin")
    for i in range(depth - 1):
        for l in loads:
            a(l)
        if spacer:
            spacer(i)
    a.label(spin)
    for l in loads:
        a(l)
    a(f"s_sub_u32 {s(S_TO)}, {s(S_TO)}, 1")
    a(f"s_cbranch_scc1 {a.abort}")
    if sleep:
        a(f"s_cmp_ge_u32 {s(S_STEP)}, {sleep[1]}")
        a(f"s_cbranch_scc1 {spin}x")
        a(f"s_sleep {sleep[0]}")
        a.label(spin + "x")
    a(f"s_waitcnt vmcnt({len(loads) * (depth - 1)})")
    any_poison(a, regs, tmp)
    if inside:
        for f in under:
            f()
    a(f"s_cbranch_vccnz {spin}")
    if not inside:
        for f in under:
            f()


def wait_flag(a, reg, load, sleep=2, landed=True):
    top, first, done = a.newlabel("flag"), a.newlabel("first"), a.newlabel("set")
    if not landed:
        a(f"s_branch {first}")
    a.label(top)
    a(f"v_cmp_ne_u32 vcc, {s(S_TAG)}, {v(reg)}")
    a(f"s_cbranch_vccz {done}")
    if sleep:
        a(f"s_sleep {sleep}")
    a.label(first)
    a(load)
    a("s_waitcnt vmcnt(0)")
    a(f"s_sub_u32 {s(S_TO)}, {s(S_TO)}, 1")
    a(f"s_cbranch_scc0 {top}")
    a("s_endpgm")
    a.label(done)


def wait_tasks(a, kind, t0, t1, w=0):
    if kind == "A":
        a(f"v_min_u32 {v(t0)}, 6, v0")
        a(f"v_lshlrev_b32 {v(t0)}, 2, {v(t0)}")
        a(f"s_lshl_b32 {s(S_TMP)}, {s(S_LOC)}, 7")
    elif kind == "B":
        a(f"v_and_b32 {v(t0)}, 7, v0")
        a(f"v_min_u32 {v(t0)}, 6, {v(t0)}")
        a(f"v_lshlrev_b32 {v(t0)}, 2, {v(t0)}")
        a(f"v_bfe_u32 {v(t1)}, v0, 3, 2")
        a(f"v_lshl_add_u32 {v(t0)}, {v(t1)}, 7, {v(t0)}")
        if w is None:
            a(f"s_lshl_b32 {s(S_TMP)}, {s(S_WAVE)}, 9")
            a(f"s_add_u32 {s(S_TMP)}, {s(S_TMP)}, 2048")
        else:
            a(f"s_mov_b32 {s(S_TMP)}, {2048 + 512 * w}")
    elif kind == "L":
        a(f"v_and_b32 {v(t0)}, 7, v0")
        a(f"v_lshlrev_b32 {v(t0)}, 2, {v(t0)}")
        a(f"v_bfe_u32 {v(t1)}, v0, 3, 2")
        a(f"v_lshl_add_u32 {v(t0)}, {v(t1)}, 7, {v(t0)}")
        a(f"s_mov_b32 {s(S_TMP)}, 4096")
    else:
        a(f"v_min_u32 {v(t1)}, {63 if kind == 'LZ' else 47}, v0")
        a(f"v_and_b32 {v(t0)}, 3, {v(t1)}")
        a(f"v_lshlrev_b32 {v(t0)}, 3, {v(t0)}")
        a(f"v_lshrrev_b32 {v(t1)}, 2, {v(t1)}")
        a(f"v_lshl_add_u32 {v(t0)}, {v(t1)}, 7, {v(t0)}")
        a(f"s_mov_b32 {s(S_TMP + 3)}, {WS['ARR'] + (4096 if kind == 'LZ' else 6144)}")
        top, done = a.newlabel("lz"), a.newlabel("lzok")
        a.label(top)
        a(f"buffer_load_dwordx2 {v(t1, 2)}, {v(t0)}, {WS_SRD}, {s(S_TMP + 3)} offen sc1")
        a("s_waitcnt vmcnt(0)")
        a(f"v_cmp_ne_u32 vcc, {s(S_TAG)}, {v(t1)}")
        a(f"v_cmp_ne_u32 {s(S_TMP, 2)}, {s(S_TAG)}, {v(t1 + 1)}")
        a(f"s_or_b64 vcc, vcc, {s(S_TMP, 2)}")
        a(f"s_cbranch_vccz {done}")
        a("s_sleep 8")
        a(f"s_sub_u32 {s(S_TO)}, {s(S_TO)}, 1")
        a(f"s_cbranch_scc0 {top}")
        a("s_endpgm")
        a.label(done)
        return
    wait_flag(a, t1, f"buffer_load_dword {v(t1)}, {v(t0)}, {WS_SRD}, {s(S_TMP)} offen offset:{WS['ARR']} sc1", sleep=4, landed=False)


def wait_bell(a, cfg, tmp, sval, word, depth=2):
    if not cfg.get("bell", 0):
        return
    spin, done = a.newlabel("bell"), a.newlabel("rung")
    load = f"buffer_load_dword {v(tmp)}, off, {WS_SRD}, {s(S_BELL)} offset:{4 * word} sc1"
    a(f"s_cmp_lg_u32 {s(S_SLOW)}, 0")
    a(f"s_cbranch_scc1 {done}")
    for _ in range(depth - 1):
        a(load)
    a.label(spin)
    a(load)
    a(f"s_waitcnt vmcnt({depth - 1})")
    a(f"v_cmp_ne_u32 vcc, {s(sval)}, {v(tmp)}")
    a(f"s_cbranch_vccz {done}")
    a(f"s_sub_u32 {s(S_TO)}, {s(S_TO)}, 1")
    a(f"s_cbranch_scc0 {spin}")
    a("s_endpgm")
    a.label(done)


def wait_step(a, tmp, first, per_group=0, sleep=16):
    top, done = a.newlabel("stp"), a.newlabel("stpok")
    a(f"s_mul_i32 {s(S_TMP)}, {s(S_GRP)}, {per_group * MEM_SZ}")
    a(f"s_add_u32 {s(S_TMP)}, {s(S_TMP)}, {WS['MEMG'] + first * MEM_SZ}")
    a.label(top)
    a(f"buffer_load_dword {v(tmp)}, off, {WS_SRD}, {s(S_TMP)} sc1")
    a("s_waitcnt vmcnt(0)")
    a(f"v_cmp_eq_u32 vcc, -1, {v(tmp)}")
    a(f"s_cbranch_vccz {done}")
    a(f"s_sleep {sleep}")
    a(f"s_sub_u32 {s(S_TO)}, {s(S_TO)}, 1")
    a(f"s_cbranch_scc0 {top}")
    a("s_endpgm")
    a.label(done)


def wait_first_y(a, tmp, seg_reg=None, seg=0):
    if seg_reg is not None:
        a(f"s_lshl_b32 {s(S_TMP)}, {s(seg_reg)}, 7")
        a(f"s_add_u32 {s(S_TMP)}, {s(S_TMP)}, {WS['GATE']}")
    else:
        a(f"s_mov_b32 {s(S_TMP)}, {WS['GATE'] + 128 * seg}")
    wait_flag(a, tmp, f"buffer_load_dword {v(tmp)}, off, {WS_SRD}, {s(S_TMP)} sc1", sleep=16, landed=False)


def local_stores(a, stores, scc_set=False):
    slow, done = a.newlabel("wt"), a.newlabel("st")
    if not scc_set:
        a(f"s_cmp_lg_u32 {s(S_SLOW)}, 0")
    a(f"s_cbranch_scc1 {slow}")
    for st in stores:
        a(st)
    a(f"s_branch {done}")
    a.label(slow)
    for st in stores:
        a(st + " sc1")
    a.label(done)


def index_reg(a, reg, tmp):
    a(f"v_and_b32 {v(tmp)}, 8, v0")
    a(f"v_cmp_eq_u32 vcc, 0, {v(tmp)}")
    a(f"v_mov_b32 {v(tmp)}, 0x88884444")
    a(f"v_mov_b32 {v(reg)}, 0xddddeeee")
    a(f"v_cndmask_b32 {v(reg)}, {v(reg)}, {v(tmp)}, vcc")


def iota_reg(a, reg, tmp):
    a(f"v_bfe_u32 {v(reg)}, v0, 5, 1")
    a(f"v_bfe_u32 {v(tmp)}, v0, 4, 1")
    a(f"v_lshl_add_u32 {v(reg)}, {v(tmp)}, 1, {v(reg)}")


def stamp(a, cfg, k):
    if cfg.get("stamps", 0) >> k & 1:
        a(f"{'s_memrealtime' if cfg.get('rt') else 's_memtime'} {s(S_CLK + 2 * k, 2)}")


def flush_stamps(a, cfg, n, slot, tmp):
    if not cfg.get("stamps"):
        return
    skip = a.newlabel("nostamp")
    if cfg.get("lastonly"):
        a(f"s_cmp_lt_u32 {s(S_STEP)}, 63")
        a(f"s_cbranch_scc1 {skip}")
    a("s_waitcnt lgkmcnt(0)")
    a.ds = []
    a(f"s_lshl_b32 {s(S_TMP)}, {s(S_STEP)}, 6")
    a(f"s_add_u32 {s(S_TMP)}, {s(S_TMP)}, {WS['DBG'] + slot * 4096}")
    a(f"s_mul_i32 {s(S_TMP + 1)}, {s(S_LOC)}, 0x30000")
    a(f"s_add_u32 {s(S_TMP)}, {s(S_TMP)}, {s(S_TMP + 1)}")
    for k in range(n):
        a(f"v_mov_b32 {v(tmp)}, {s(S_CLK + 2 * k)}")
        a(f"buffer_store_dword {v(tmp)}, off, {WS_SRD}, {s(S_TMP)} offset:{4 * k}")
    a(f"v_mov_b32 {v(tmp)}, {s(S_TO)}")
    a(f"buffer_store_dword {v(tmp)}, off, {WS_SRD}, {s(S_TMP)} offset:60")
    a(f"s_add_u32 {s(S_TMP + 1)}, {s(S_STEP)}, -1")
    a(f"s_cmp_lt_u32 {s(S_TMP + 1)}, {cfg.get('last_step', 61)}")
    a(f"s_cbranch_scc1 {skip}")
    a(f"s_memrealtime {s(S_CLK + 28, 2)}")
    a("s_waitcnt lgkmcnt(0)")
    a(f"v_mov_b32 {v(tmp)}, {s(S_CLK + 28)}")
    a(f"buffer_store_dword {v(tmp)}, off, {WS_SRD}, {s(S_TMP)} offset:56")
    a(f"v_mov_b32 {v(tmp)}, {s(S_CLK + 30)}")
    a(f"buffer_store_dword {v(tmp)}, off, {WS_SRD}, {s(S_TMP)} offset:52")
    a.label(skip)


def milestone(a, cfg, k, tmp):
    if not cfg.get("stamps"):
        return
    a("s_memrealtime s[92:93]")
    a("s_lshl_b32 s90, s2, 2")
    a(f"s_add_u32 s90, s90, {s(S_WAVE)}")
    a("s_lshl_b32 s90, s90, 5")
    a(f"s_add_u32 s90, s90, {WS['DBG'] + 0x28000}")
    a("s_waitcnt lgkmcnt(0)")
    a(f"v_mov_b32 {v(tmp)}, s92")
    a(f"buffer_store_dword {v(tmp)}, off, {WS_SRD}, s90 offset:{4 * k}")
    if k == 0:
        a(f"s_lshl_b32 s91, {s(S_GRP)}, 8")
        a(f"s_add_u32 s91, s91, {s(S_LOC)}")
        a(f"v_mov_b32 {v(tmp)}, s91")
        a(f"buffer_store_dword {v(tmp)}, off, {WS_SRD}, s90 offset:28")


def keep_stamps(a, cfg, n, base):
    if cfg.get("stamps"):
        a(f"s_mov_b32 m0, {s(S_STEP)}")
        for k in range(n):
            a(f"v_writelane_b32 {v(base + k)}, {s(S_CLK + 2 * k)}, m0")


def dump_stamps(a, cfg, n, base, slot, lane16):
    if not cfg.get("stamps"):
        return
    a(f"v_lshlrev_b32 {v(lane16)}, 2, {v(lane16)}")
    a(f"s_mul_i32 {s(S_TMP)}, {s(S_LOC)}, 0x30000")
    a(f"s_add_u32 {s(S_TMP)}, {s(S_TMP)}, {WS['DBG'] + slot * 4096}")
    for k in range(n):
        a(f"buffer_store_dword {v(base + k)}, {v(lane16)}, {WS_SRD}, {s(S_TMP)} offen offset:{4 * k}")


def gen_s1(a, w, cfg):
    if "stamps1" in cfg:
        cfg = dict(cfg, stamps=cfg["stamps1"])
    L16, XKA, MKA, TWA, TRA, SWA, SRA, SRM, PTA, PMA, IDX, T0, T1 = range(1, 14)
    TACC, MA, MK, XK, WV = 16, 44, 72, 88, 120
    MEMIMG, TBUF, SBUF, ZERO = 0, 8192 + 2048 * w, 16384, 24576
    sMEM, sP, sPM, sX0, sX1, sY, sR, sRDY, sVAL, sOWN = range(S_T0, S_T0 + 10)
    sRARE = S_T0 + 10
    p0 = cfg.get('ypieces', 0)
    blk = lambda j, k: wblock(j * 7 + k, WV)
    own = [2 * w, 2 * w + 1] if w < 3 else [5, 6]
    share = own if w < 3 else [6]
    others = [k for k in range(7) if k not in own]
    T = lambda j, r=0: TACC + 4 * j + r
    TOP0, TOP1 = T(0), T(1)
    T1D = T(6)
    SC = [MA + 4 * own[0], MA + 4 * own[1], 12]

    a.label(f"S1_W{w}")
    a(f"v_lshlrev_b32 {v(L16)}, 4, v0")
    wait_tasks(a, "A", T0, T1)
    a(f"s_mul_i32 {s(S_TMP)}, {s(S_LOC)}, {AL_HEAD}")
    a(f"s_add_u32 {s(S_TMP)}, {s(S_TMP)}, {WS['AL'] + w * 100352}")
    stream_load(a, [wblock(b, WV, hi) for b in range(49) for hi in range(2)], L16, S_TMP)
    a(f"v_and_b32 {v(T0)}, 15, v0")
    a(f"v_lshrrev_b32 {v(T1)}, 4, v0")
    a(f"v_add_u32 {v(MKA)}, {14 * w}, {v(T1)}")
    a(f"v_lshrrev_b32 {v(XKA)}, 2, {v(MKA)}")
    a(f"v_lshlrev_b32 {v(XKA)}, 10, {v(XKA)}")
    a(f"v_and_b32 {v(SWA)}, 3, {v(MKA)}")
    a(f"v_lshl_add_u32 {v(SWA)}, {v(SWA)}, 4, {v(T0)}")
    a(f"v_lshl_add_u32 {v(XKA)}, {v(SWA)}, 4, {v(XKA)}")
    a(f"v_and_b32 {v(SWA)}, 7, v0")
    a(f"v_lshlrev_b32 {v(SWA)}, 4, {v(SWA)}")
    a(f"v_lshl_add_u32 {v(MKA)}, {v(MKA)}, 7, {v(SWA)}")
    iota_reg(a, PTA, PMA)
    a(f"v_lshlrev_b32 {v(TWA)}, 2, {v(PTA)}")
    a(f"v_lshl_add_u32 {v(TWA)}, {v(T0)}, 4, {v(TWA)}")
    a(f"v_add_u32 {v(TWA)}, {TBUF}, {v(TWA)}")
    a(f"v_mul_u32_u24 {v(SWA)}, 1536, {v(PTA)}")
    a(f"v_lshl_add_u32 {v(SWA)}, {v(T0)}, 4, {v(SWA)}")
    a(f"v_add_u32 {v(SWA)}, {SBUF + (w >> 1) * 256 + (w & 1) * 8}, {v(SWA)}")
    a(f"v_bfe_u32 {v(TRA)}, v0, 2, 2")
    a(f"v_lshl_add_u32 {v(TRA)}, {v(T1)}, 3, {v(TRA)}")
    a(f"v_lshlrev_b32 {v(TRA)}, 5, {v(TRA)}")
    a(f"v_and_b32 {v(PMA)}, 3, v0")
    a(f"v_lshl_add_u32 {v(TRA)}, {v(PMA)}, 3, {v(TRA)}")
    a(f"v_add_u32 {v(TRA)}, {TBUF}, {v(TRA)}")
    a(f"v_lshrrev_b32 {v(T1)}, 5, v0")
    a(f"v_bfe_u32 {v(SRA)}, v0, 4, 1")
    a(f"v_lshlrev_b32 {v(SRA)}, 9, {v(SRA)}")
    a(f"v_lshl_add_u32 {v(SRA)}, {v(T1)}, 8, {v(SRA)}")
    a(f"v_lshl_add_u32 {v(SRA)}, {v(T0)}, 4, {v(SRA)}")
    a(f"v_add_u32 {v(SRA)}, {SBUF + w * 1536}, {v(SRA)}")
    a(f"v_and_b32 {v(SRM)}, 7, v0")
    a(f"v_lshlrev_b32 {v(SRM)}, 4, {v(SRM)}")
    a(f"v_lshl_add_u32 {v(SRM)}, {v(T1)}, 8, {v(SRM)}")
    a(f"v_add_u32 {v(SRM)}, {SBUF + w * 1536 + 1024}, {v(SRM)}")
    a(f"v_add_u32 {v(T1)}, {2 * w}, {v(T1)}")
    a(f"v_bfe_u32 {v(PTA)}, v0, 3, 2")
    a(f"v_lshlrev_b32 {v(PTA)}, 7, {v(PTA)}")
    a(f"v_lshl_add_u32 {v(PTA)}, {v(T1)}, 4, {v(PTA)}")
    a(f"v_and_b32 {v(T0)}, 7, v0")
    a(f"v_lshl_add_u32 {v(PTA)}, {v(T0)}, 1, {v(PTA)}")
    a(f"v_bfe_u32 {v(PMA)}, v0, 1, 1")
    a(f"v_lshlrev_b32 {v(PMA)}, 7, {v(PMA)}")
    a(f"v_lshl_add_u32 {v(PMA)}, {v(T1)}, 4, {v(PMA)}")
    a(f"v_bfe_u32 {v(T0)}, v0, 2, 1")
    a(f"v_lshl_add_u32 {v(PMA)}, {v(T0)}, 3, {v(PMA)}")
    a(f"v_and_b32 {v(T0)}, 1, v0")
    a(f"v_lshlrev_b32 {v(T0)}, 30, {v(T0)}")
    a(f"v_or_b32 {v(PTA)}, {v(PTA)}, {v(T0)}")
    a(f"v_or_b32 {v(PMA)}, {v(PMA)}, {v(T0)}")
    index_reg(a, IDX, T0)
    a(f"v_mov_b32 {v(T0)}, 0")
    a(f"v_lshlrev_b32 {v(T1)}, 2, v0")
    a(f"ds_write_b32 {v(T1)}, {v(T0)} offset:{TBUF + 7 * 256}")
    a(f"ds_write_b32 {v(T1)}, {v(T0)} offset:{MEMIMG + 7168}")
    a(f"ds_write_b32 {v(T1)}, {v(T0)} offset:{ZERO + 256 * w}")
    a(f"s_mul_i32 {s(sMEM)}, {s(S_SLOW)}, {WS['MEMG'] - WS['MEML']}")
    a(f"s_add_u32 {s(sMEM)}, {s(sMEM)}, {WS['MEML'] + own[0] * 1024}")
    a(f"s_lshl_b32 {s(sP)}, {s(S_LOC)}, 9")
    a(f"s_add_u32 {s(sP)}, {s(sP)}, {WS['PB']}")
    a(f"s_lshr_b32 {s(sPM)}, {s(S_LOC)}, 1")
    a(f"s_lshl_b32 {s(sPM)}, {s(sPM)}, 8")
    a(f"s_and_b32 {s(S_TMP)}, {s(S_LOC)}, 1")
    a(f"s_lshl_b32 {s(S_TMP)}, {s(S_TMP)}, 2")
    a(f"s_add_u32 {s(sPM)}, {s(sPM)}, {s(S_TMP)}")
    a(f"s_add_u32 {s(sPM)}, {s(sPM)}, {WS['PB'] + 8192}")
    a(f"s_mov_b32 {s(S_X)}, {s(S_WS)}")
    a(f"s_or_b32 {s(S_X + 1)}, {s(S_WS + 1)}, 0x80000")
    a(f"s_mov_b32 {s(S_X + 2)}, {(8 - p0) * 128}")
    a(f"s_mov_b32 {s(S_X + 3)}, 0x00020000")
    a(f"s_mov_b32 {s(S_OUT)}, {s(S_WS)}")
    a(f"s_mov_b32 {s(S_OUT + 1)}, {s(S_X + 1)}")
    a(f"s_mov_b32 {s(S_OUT + 2)}, {56 * 16}")
    a(f"s_mov_b32 {s(S_OUT + 3)}, 0x00020000")
    a(f"s_lshl_b32 {s(sY)}, {s(S_LOC)}, 15")
    a(f"s_add_u32 {s(sY)}, {s(sY)}, {WS['YL'] + Y_SEG + w * 8192 + p0 * 1024}")
    a(f"s_mov_b32 {s(sR)}, {WS['YR'] + 128}")
    a(f"s_mov_b32 {s(sRARE)}, {s(S_SLOW)}")
    a(f"s_mov_b32 {s(sRARE + 1)}, 0")
    a(f"s_mov_b32 {s(S_TMP + 7)}, 0x3e800000")
    a(f"s_mov_b32 {s(sX0)}, {WS['XT']}")
    a(f"s_mov_b32 {s(sX1)}, {WS['XT'] + 14336}")
    a(f"s_mov_b32 {s(S_STEP)}, 0")
    a("s_waitcnt lgkmcnt(0)")
    a(f"v_lshrrev_b32 v0, 4, {v(L16)}")
    wait_tasks(a, "LZ", 14, 12)
    milestone(a, cfg, 1, T0)

    T0 = JUNK = 0

    def load_keys(i):
        kt, q = i & 1, i >> 1
        a(f"buffer_load_dwordx4 {v(XK + 16 * kt + 4 * q, 4)}, {v(XKA)}, {WS_SRD}, {s(sX1 if kt else sX0)} offen offset:{q * 1024}")
    a(f"s_mov_b32 {s(S_BELL)}, {WS['BELL']}")
    a(f"s_lshl_b32 {s(sOWN)}, {s(S_LOC)}, 2")
    a(f"s_add_u32 {s(sOWN)}, {s(sOWN)}, {WS['BELL']}")
    a(f"s_mov_b32 {s(sVAL)}, {s(S_TAG)}")
    top = f"S1_STEP{w}"
    a.label(top)
    a(f"buffer_load_dword {v(MK)}, off, {WS_SRD}, {s(sR)} sc1")
    d1 = cfg.get("depth1", 2)
    spread = cfg.get("spread1", 32) if d1 > 1 else 0
    for r in range(max(0, 32 - spread)):
        a(f"v_mov_b32 {v(12 + r)}, 0")

    def spacer(i):
        n = spread // (d1 - 1)
        for r in range(32 - spread + i * n, 32 - spread + (i + 1) * n if i < d1 - 2 else 32):
            a(f"v_mov_b32 {v(12 + max(r, 0))}, 0")
    stamp(a, cfg, 0)
    if cfg.get("stamps") and cfg.get("rt"):
        a(f"s_memtime {s(S_CLK + 22, 2)}")
    first = a.newlabel("first")
    a(f"s_cmp_eq_u32 {s(S_STEP)}, 0")
    a(f"s_cbranch_scc1 {first}")
    wait_bell(a, cfg, MK + 1, sVAL, 64 + 2 * own[0])
    a.label(first)
    a(f"s_add_u32 {s(sVAL)}, {s(sVAL)}, 1")
    if cfg.get("drain1", 1):
        a("s_waitcnt vmcnt(0)")
    a.nop(w * cfg.get("wave1", 0))
    pa = [(j, k) for k in own for j in range(7)]
    poll_deep(a, [f"buffer_load_dwordx4 {v(MA + 4 * own[i], 4)}, {v(L16)}, {WS_SRD}, {s(sMEM)} offen offset:{1024 * i} sc1" for i in range(cfg.get("mpoll", 2))],
              range(MA + 4 * own[0], MA + 4 * own[0] + 4 * cfg.get("mpoll", 2)), T0,
              [lambda k=k: a.dsop(f"ds_write_b128 {v(L16)}, {v(MA + 4 * k, 4)} offset:{MEMIMG + 1024 * k}") for k in share],
              d1, inside=cfg.get("inside", 1), spacer=spacer)
    stamp(a, cfg, 1)
    nh = cfg.get("nhead", 3)
    for n_, (j, k) in enumerate(pa[:nh]):
        smf(a, T(j), MA + 4 * k, blk(j, k), IDX)
        if n_ == 0:
            a(f"v_readfirstlane_b32 {s(sRDY)}, {v(MK)}")
    a.wait_ds_all()
    stamp(a, cfg, 5)
    a("s_barrier")
    stamp(a, cfg, 6)
    kg = [cfg.get("kgap0", -10) + cfg.get("kgap", 4) * i for i in range(8)]
    for n_, (j, k) in enumerate(pa[nh:]):
        if n_ < len(others):
            a.dsop(f"ds_read_b128 {v(MA + 4 * others[n_], 4)}, {v(L16)} offset:{MEMIMG + 1024 * others[n_]}", ("ma", others[n_]))
        smf(a, T(j), MA + 4 * k, blk(j, k), IDX)
        if n_ == 0:
            a(f"s_cmp_lt_u32 {s(S_LOC)}, 14")
            a(f"s_cselect_b32 {s(sRDY)}, {s(sRDY)}, 0")
            a(f"s_cmp_eq_u32 {s(sRDY)}, {s(S_TAG)}")
            a(f"s_cselect_b32 {s(S_X + 2)}, {(8 - p0) * 128 if cfg.get('assist', 0) else 0}, 0")
        if n_ - (14 - nh) in kg:
            load_keys(kg.index(n_ - (14 - nh)))
        if 5 <= n_ < 9:
            a.dsop(f"ds_read_b128 {v(MK + 4 * (n_ - 5), 4)}, {v(MKA)} offset:{MEMIMG + 512 * (n_ - 5)}", "mk")

    def post(j):
        return [lambda: a(f"v_permlane32_swap_b32 {v(T(j, 0))}, {v(T(j, 2))}"),
                lambda: a(f"v_permlane32_swap_b32 {v(T(j, 1))}, {v(T(j, 3))}"),
                lambda: (a(f"v_add_f32 {v(T(j, 0))}, {v(T(j, 0))}, {v(T(j, 2))}"),
                         a(f"v_add_f32 {v(T(j, 1))}, {v(T(j, 1))}, {v(T(j, 3))}")),
                lambda: a(f"v_cvt_pk_bf16_f32 {v(T(j, 0))}, {v(T(j, 0))}, {v(T(j, 1))}"),
                lambda: a.dsop(f"ds_write_b32 {v(TWA)}, {v(T(j, 0))} offset:{256 * j}")]

    main, fill = [], {}
    for j in range(7):
        for k in others:
            def mm(j=j, k=k):
                if j == 0:
                    a.wait_ds(("ma", k))
                smf(a, T(j), MA + 4 * k, blk(j, k), IDX)
            main.append(mm)
    for i in range(8):
        if kg[i] >= 0:
            fill[kg[i]] = [lambda i=i: load_keys(i)]
    ag = kg[7] + 4
    fill.setdefault(ag, []).append(lambda: a(f"buffer_load_dword {v(JUNK)}, {v(L16)}, {s(S_X, 4)}, {s(sY)} idxen sc1"))
    after = lambda gap: sum(g > gap for g in kg) + (ag > gap)
    for j in range(6):
        for i, f in enumerate(post(j)):
            fill.setdefault(5 * (j + 1) + 2 + i, []).append(f)
    zgap = 21
    fill[zgap].append(lambda: a(f"s_waitcnt vmcnt({9 - after(zgap)})"))
    for q in range(2):
        fill[zgap].append(lambda q=q: a.dsop(f"ds_read_b128 {v(SC[q], 4)}, {v(L16)} offset:{ZERO}", "z"))
    for q in range(2):
        fill.setdefault(26 + 5 * q, []).append(lambda q=q: a.dsop(f"ds_read_b64_tr_b16 {v(TOP0 + 2 * q, 2)}, {v(TRA)} offset:{128 * q}", "t0"))
    stamp(a, cfg, 7)
    fill.setdefault(4, []).append(lambda: stamp(a, cfg, 8))
    fill.setdefault(24, []).append(lambda: stamp(a, cfg, 9))
    fill.setdefault(34, []).append(lambda: stamp(a, cfg, 10))
    tail = [f for i in sorted(fill) if i >= 35 for f in fill[i]]
    interleave(a, main, {i: f for i, f in fill.items() if i < 35})
    def ring(at):
        if w == 0 and cfg.get("bell", 0) and cfg.get("bell1", 1) == at:
            a(f"v_mov_b32 {v(T(2))}, {s(sVAL)}")
            a(f"buffer_store_dword {v(T(2))}, off, {WS_SRD}, {s(sOWN)}")
    a("s_waitcnt vmcnt(5)")
    ring(0)
    a.wait_ds("t0")
    keys = [XK, XK + 16, MK]
    for t in range(3):
        smf(a, SC[t], TOP0, v(keys[t], 8), IDX, True)
        if t < len(tail):
            tail[t]()
    for f in post(6):
        f()
    for q in range(2):
        a.dsop(f"ds_read_b64_tr_b16 {v(TOP1 + 2 * q, 2)}, {v(TRA)} offset:{1024 + 128 * q}", "t1")
    stamp(a, cfg, 2)
    a(f"s_waitcnt vmcnt({2 if w == 0 and cfg.get('bell', 0) and cfg.get('bell1', 1) == 0 else 1})")
    ring(1)
    a.wait_ds("t1")
    for t in range(3):
        smf(a, SC[t], TOP1, v(keys[t] + 8, 8), IDX, True)
    swaps = lambda x: (a(f"v_permlane32_swap_b32 {v(x)}, {v(x + 2)}"), a(f"v_permlane32_swap_b32 {v(x + 1)}, {v(x + 3)}"))
    adds = lambda x: (a(f"v_add_f32 {v(x)}, {v(x)}, {v(x + 2)}"), a(f"v_add_f32 {v(x + 1)}, {v(x + 1)}, {v(x + 3)}"))
    write = lambda t: a.dsop(f"ds_write_b64 {v(SWA)}, {v(SC[t], 2)} offset:{512 * t}")
    a.nop(cfg.get("scnop", 2))
    if cfg.get("reorder", 1):
        swaps(SC[0]); adds(SC[0]); swaps(SC[1]); write(0); adds(SC[1]); swaps(SC[2]); write(1); adds(SC[2]); write(2)
    else:
        for t in range(3):
            swaps(SC[t]); adds(SC[t]); write(t)
    ring(2)
    a.wait_ds_all()
    a("s_barrier")
    stamp(a, cfg, 3)
    R, Q, LIM = T(3), T(4), T(2)
    a.dsop(f"ds_read_b128 {v(R, 4)}, {v(SRA)}", "r")
    a.dsop(f"ds_read_b128 {v(Q, 4)}, {v(SRM)}", "q")
    a(f"v_mov_b32 {v(LIM)}, 0x42800000")
    a.wait_ds("r")
    a(f"v_pk_add_f32 {v(R, 2)}, {v(R, 2)}, {v(R + 2, 2)}")
    a.wait_ds("q")
    a(f"v_pk_add_f32 {v(Q, 2)}, {v(Q, 2)}, {v(Q + 2, 2)}")
    a.nop(1)
    a(f"v_permlane32_swap_b32 {v(R)}, {v(R + 1)}")
    a(f"v_permlane32_swap_b32 {v(Q)}, {v(Q + 1)}")
    A_, B_, M, M2 = R, Q, R + 2, R + 3
    a(f"v_add_f32 {v(A_)}, {v(R)}, {v(R + 1)}")
    a(f"v_add_f32 {v(B_)}, {v(Q)}, {v(Q + 1)}")

    def reduce32(op, under=()):
        under = list(under)
        for ctl in ("quad_perm:[1,0,3,2]", "quad_perm:[2,3,0,1]", "row_half_mirror", "row_mirror"):
            if under:
                a(under.pop(0))
                a.nop(1)
            else:
                a.nop(2)
            a(f"{op}_dpp {v(M)}, {v(M)}, {v(M)} {ctl} row_mask:0xf bank_mask:0xf")
        a(f"v_mov_b32 {v(M2)}, {v(M)}")
        a.nop(2)
        a(f"v_permlane16_swap_b32 {v(M2)}, {v(M)}")
        a(f"{op} {v(M)}, {v(M)}, {v(M2)}")

    EA, EB = T(5), T(6)

    def normalise(shift):
        if shift:
            a(f"v_max_f32 {v(M)}, {v(R)}, {v(Q)}")
            reduce32("v_max_f32")
            a(f"v_sub_f32 {v(R)}, {v(R)}, {v(M)}")
            a(f"v_sub_f32 {v(Q)}, {v(Q)}, {v(M)}")
        a(f"v_exp_f32 {v(EA + 1)}, {v(R)}")
        a(f"v_exp_f32 {v(EB + 1)}, {v(Q)}")
        if shift:
            a.nop(1)
        else:
            a(f"v_max_f32 {v(Q + 1)}, |{v(R)}|, |{v(Q)}|")
        a(f"v_fma_f32 {v(M)}, {v(EB + 1)}, {s(S_TMP + 7)}, {v(EA + 1)}")
        under = [f"v_mov_b32_dpp {v(x)}, {v(x + 1)} quad_perm:[1,0,3,2] row_mask:0xf bank_mask:0xf" for x in (EA, EB)]
        if not shift:
            under.append(f"v_cmp_nle_f32 vcc, {v(Q + 1)}, {v(LIM)}")
        reduce32("v_add_f32", under)
        a(f"v_rcp_f32 {v(M)}, {v(M)}")
        if shift:
            a(f"s_cmp_lg_u32 {s(S_SLOW)}, 0")
        else:
            a(f"s_or_b64 vcc, vcc, {s(sRARE, 2)}")
        for x in (EA, EB):
            a(f"v_pk_mul_f32 {v(x, 2)}, {v(x, 2)}, {v(M, 2)} op_sel_hi:[1,0] clamp")
        for x in (EA, EB):
            a(f"v_cvt_pk_bf16_f32 {v(x)}, {v(x + 1)}, {v(x)}")
    stores = [f"buffer_store_dword {v(EA)}, {v(PTA)}, {WS_SRD}, {s(sP)} offen",
              f"buffer_store_dword {v(EB)}, {v(PMA)}, {WS_SRD}, {s(sPM)} offen"]
    rare, back = a.newlabel("rare"), a.newlabel("back")
    if cfg.get("quickmax", 1):
        normalise(False)
        a(f"s_cbranch_scc1 {rare}")
        for st in stores:
            a(st)
    else:
        normalise(True)
        local_stores(a, stores, scc_set=True)
    a.label(back)
    stamp(a, cfg, 4)
    a(f"s_add_u32 {s(sR)}, {s(sR)}, 128")
    a(f"s_add_u32 {s(sY)}, {s(sY)}, {Y_SEG}")
    if cfg.get("span") and w == 0:
        for k, st in enumerate((0, 10, 60, 62)):
            skip = a.newlabel("sp")
            a(f"s_cmp_eq_u32 {s(S_STEP)}, {st}")
            a(f"s_cbranch_scc0 {skip}")
            a(f"s_memrealtime {s(S_CLK + 4 * k, 2)}")
            a(f"s_memtime {s(S_CLK + 4 * k + 2, 2)}")
            a("s_waitcnt lgkmcnt(0)")
            a.label(skip)
    if cfg.get("stamps"):
        a("s_waitcnt lgkmcnt(0)")
        a(f"s_lshl_b32 {s(S_TMP)}, {s(S_STEP)}, 6")
        a(f"v_mov_b32 {v(T1D)}, {s(S_TMP)}")
        for k, r in [(k, S_CLK + 2 * k) for k in range(12)] + [(15, S_TO)]:
            if k >= 11 or cfg["stamps"] >> k & 1:
                a(f"v_mov_b32 {v(T1D + 1)}, {s(r)}")
                a(f"ds_write_b32 {v(T1D)}, {v(T1D + 1)} offset:{32768 + 4096 * w + 4 * k}")
    a(f"s_add_u32 {s(sMEM)}, {s(sMEM)}, {MEM_SZ}")
    a(f"s_add_u32 {s(sP)}, {s(sP)}, {PB_SZ}")
    a(f"s_add_u32 {s(sPM)}, {s(sPM)}, {PB_SZ}")
    a(f"s_add_u32 {s(sX0)}, {s(sX0)}, {0 if cfg.get('samex') else XT_SEG}")
    a(f"s_add_u32 {s(sX1)}, {s(sX1)}, {0 if cfg.get('samex') else XT_SEG}")
    a(f"s_add_u32 {s(S_STEP)}, {s(S_STEP)}, 1")
    a(f"s_cmp_lt_u32 {s(S_STEP)}, {NSEG - 1}")
    a(f"s_cbranch_scc1 {top}")
    if cfg.get("span") and w == 0:
        a(f"s_lshl_b32 {s(S_TMP)}, {s(S_LOC)}, 6")
        a(f"s_add_u32 {s(S_TMP)}, {s(S_TMP)}, {WS['DBG']}")
        for k, r in enumerate(list(range(0, 16, 2)) + [30]):
            a(f"v_mov_b32 v16, {s(S_CLK + r)}")
            a(f"buffer_store_dword v16, off, {WS_SRD}, {s(S_TMP)} offset:{4 * k}")
    if cfg.get("stamps"):
        a(f"s_mul_i32 {s(S_TMP)}, {s(S_LOC)}, 0x30000")
        a(f"s_add_u32 {s(S_TMP)}, {s(S_TMP)}, {WS['DBG'] + w * 4096}")
        for i in range(4):
            a(f"ds_read_b128 {v(16, 4)}, {v(L16)} offset:{32768 + 4096 * w + 1024 * i}")
            a("s_waitcnt lgkmcnt(0)")
            a(f"buffer_store_dwordx4 {v(16, 4)}, {v(L16)}, {WS_SRD}, {s(S_TMP)} offen offset:{1024 * i}")
            a("s_waitcnt vmcnt(0)")
    a("s_endpgm")
    a.label(rare)
    normalise(True)
    local_stores(a, stores, scc_set=True)
    a(f"s_branch {back}")


class BRes:
    WL = 49152
    WV = 176

    def __init__(self, a, w, L16, IDX, MA, WT, ACC, ZW):
        self.a, self.w, self.L16, self.IDX, self.MA, self.WT, self.ACC, self.ZW = a, w, L16, IDX, MA, WT, ACC, ZW

    def blk(self, t, k, hi=None):
        return wblock(t * 7 + k, self.WV, hi)

    def lds_off(self, t, k, hi):
        return (t - 6) * 14336 + k * 2048 + hi * 1024

    def load(self, sloc, lbase, hook=None, hook_at=0):
        a, w = self.a, self.w
        a(f"s_mul_i32 {s(S_TMP)}, {s(sloc)}, {BL_CU}")
        a(f"s_add_u32 {s(S_TMP)}, {s(S_TMP)}, {WS['BL'] + w * 114688}")
        a(f"s_add_u32 {s(S_TMP + 1)}, {s(S_TMP)}, {6 * 14336}")
        a(f"s_add_u32 {s(S_TMP + 3)}, {s(S_TMP)}, {4 * 14336}")
        stream_load(a, [wblock(b, self.WV, hi) for b in range(28) for hi in range(2)], self.L16, S_TMP, window=40)
        for i in range(28):
            if i % 8 == 0:
                a("s_waitcnt vmcnt(40)")
                if hook and i == 8 * (hook_at - 1):
                    hook()
            a(f"s_mov_b32 m0, {self.WL + w * 28672 + i * 1024}")
            a(f"s_add_u32 {s(S_TMP + 2)}, {s(S_TMP + 1)}, {i * 1024}")
            a(f"buffer_load_dwordx4 {v(self.L16)}, {WS_SRD}, {s(S_TMP + 2)} offen lds")
        dests = [wblock(b, self.WV, hi) for b in range(28, 42) for hi in range(2)]
        for i in range(0, 28, 4):
            a("s_waitcnt vmcnt(52)")
            stream_load(a, dests[i:i + 4], self.L16, S_TMP + 3)
            a(f"s_add_u32 {s(S_TMP + 3)}, {s(S_TMP + 3)}, 4096")
        if hook and hook_at == 9:
            hook()
        a(f"v_add_u32 {v(lbase)}, {self.WL + w * 28672}, {v(self.L16)}")
        self.lbase = lbase

    def read_block(self, i, order, half=None):
        t, k = 6 + i // 7, order[i % 7]
        for hi in (range(2) if half is None else [half]):
            self.a.dsop(f"ds_read_b128 {v(self.WT + 8 * (i % 3) + 4 * hi, 4)}, {v(self.lbase)} offset:{self.lds_off(t, k, hi)}", ("wt", i))

    def zero_acc(self):
        for r in range(32):
            self.a(f"v_mov_b32 {v(self.ACC + r)}, 0")

    def cvt(self, t, slot):
        d = self.ZW + 8 * (t & 1) + 2 * (t >> 1)
        c = self.ACC + 4 * slot
        return [lambda: self.a(f"v_cvt_pk_bf16_f32 {v(d)}, {v(c)}, {v(c + 1)}"),
                lambda: self.a(f"v_cvt_pk_bf16_f32 {v(d + 1)}, {v(c + 2)}, {v(c + 3)}")]

    def mem_values(self, order, extra):
        a = self.a
        groups = ([0, 1, 2, 6], [3, 4, 5, 7])
        main, fill = [], {k: list(x) for k, x in extra.items()}
        for gi, tiles in enumerate(groups):
            for ki, k in enumerate(order):
                for ti, t in enumerate(tiles):
                    def mm(gi=gi, ki=ki, k=k, ti=ti, t=t):
                        if ti == 0 and gi == 0:
                            a.wait_ds(("ma", k))
                        if t >= 6:
                            a.wait_ds(("wt", gi * 7 + ki))
                            wr = v(self.WT + 8 * ((gi * 7 + ki) % 3), 8)
                        else:
                            wr = self.blk(t, k)
                        smf(a, self.ACC + 4 * (gi * 4 + ti), self.MA + 4 * k, wr, self.IDX)
                    main.append(mm)
                i = gi * 7 + ki
                if i + 3 < 14:
                    for hi in range(2):
                        fill.setdefault(len(main) + hi, []).append(lambda i=i, hi=hi: self.read_block(i + 3, order, hi))
        cv = [f for ti, t in enumerate(groups[0]) for f in self.cvt(t, ti)]
        for f, gap in zip(cv, (30, 31, 34, 35, 38, 39, 42, 43)):
            fill.setdefault(gap, []).append(f)
        interleave(a, main, fill)
        a.nop(3)
        for ti, t in enumerate(groups[1]):
            for f in self.cvt(t, 4 + ti):
                f()


def gen_s2(a, w, cfg):
    if cfg.get("quiet2"):
        cfg = {k: x for k, x in cfg.items() if k != "stamps"}
    L16, LB, PMA, PWA, PRA, MOA, IDX, FLG, T0, T1 = range(1, 11)
    MA, YB, ZW, PA, WT, ACC, O = 16, 44, 76, 92, 104, 128, 160
    MEMIMG, PART = 0, 8192
    sMEM, sP, sPM, sY, sY1, sF, sO, sVAL, sOWN = range(S_T0, S_T0 + 9)
    own = [2 * w, 2 * w + 1] if w < 3 else [6]
    order = own + [k for k in range(7) if k not in own]
    B = BRes(a, w, L16, IDX, MA, WT, ACC, ZW)
    ct_out = w & 1

    a.label(f"S2_W{w}")
    a(f"s_sub_u32 {s(S_LOC)}, {s(S_LOC)}, 16")
    a(f"v_lshlrev_b32 {v(L16)}, 4, v0")
    wait_tasks(a, "B", T0, T1, w)
    B.load(S_LOC, LB)
    a(f"v_and_b32 {v(T0)}, 15, v0")
    a(f"v_lshrrev_b32 {v(T1)}, 5, v0")
    a(f"v_lshlrev_b32 {v(PMA)}, 4, {v(T0)}")
    a(f"v_lshl_add_u32 {v(PMA)}, {v(T1)}, 8, {v(PMA)}")
    iota_reg(a, PWA, T1)
    a(f"v_lshlrev_b32 {v(PWA)}, 7, {v(PWA)}")
    a(f"v_lshl_add_u32 {v(PWA)}, {v(T0)}, 2, {v(PWA)}")
    a(f"v_add_u32 {v(PWA)}, {PART + w * 1024}, {v(PWA)}")
    a(f"v_lshlrev_b32 {v(PRA)}, 3, v0")
    a(f"v_add_u32 {v(PRA)}, {PART + ct_out * 512}, {v(PRA)}")
    a(f"v_lshrrev_b32 {v(T0)}, 3, v0")
    a(f"v_lshlrev_b32 {v(MOA)}, 4, {v(T0)}")
    a(f"v_bfe_u32 {v(T0)}, v0, 2, 1")
    a(f"v_lshl_add_u32 {v(MOA)}, {v(T0)}, 7, {v(MOA)}")
    a(f"v_and_b32 {v(T0)}, 3, v0")
    a(f"v_lshl_add_u32 {v(MOA)}, {v(T0)}, 2, {v(MOA)}")
    index_reg(a, IDX, T0)
    a(f"s_mul_i32 {s(sMEM)}, {s(S_SLOW)}, {WS['MEMG'] - WS['MEML']}")
    a(f"s_add_u32 {s(sMEM)}, {s(sMEM)}, {WS['MEML'] + own[0] * 1024}")
    a(f"s_mov_b32 {s(sP)}, {WS['PB'] + w * 2048}")
    a(f"s_mov_b32 {s(sPM)}, {WS['PB'] + 8192 + w * 512}")
    a(f"s_lshl_b32 {s(sY)}, {s(S_LOC)}, 15")
    a(f"s_add_u32 {s(sY)}, {s(sY)}, {WS['YL'] + w * 8192}")
    a(f"s_add_u32 {s(sY1)}, {s(sY)}, 4096")
    a(f"s_lshl_b32 {s(sF)}, {s(S_LOC)}, 7")
    a(f"s_add_u32 {s(sF)}, {s(sF)}, {WS['YF'] + w * 4}")
    a(f"s_lshl_b32 {s(sO)}, {s(S_LOC)}, 9")
    a(f"s_add_u32 {s(sO)}, {s(sO)}, {WS['MEML' if w < 2 else 'MEMG'] + MEM_SZ + ct_out * 256}")
    a(f"s_mov_b32 {s(S_STEP)}, 0")
    a(f"s_mov_b32 {s(S_BELL)}, {WS['BELL']}")
    a(f"s_lshl_b32 {s(sOWN)}, {s(S_LOC)}, 2")
    a(f"s_add_u32 {s(sOWN)}, {s(sOWN)}, {WS['BELL'] + 256}")
    a(f"s_add_u32 {s(sVAL)}, {s(S_TAG)}, 1")
    flag_load = f"buffer_load_dword {v(FLG)}, off, {WS_SRD}, {s(sF)} sc1"
    a(flag_load)
    B.zero_acc()
    wait_tasks(a, "LZ", T0, 12)
    milestone(a, cfg, 1, T0)
    wait_flag(a, FLG, flag_load)
    milestone(a, cfg, 2, T0)

    top = f"S2_STEP{w}"
    a.label(top)
    a.ds = []
    for i in range(3):
        B.read_block(i, order)
    if cfg.get("zerotop", 1) == 1:
        B.zero_acc()
    if cfg.get("backoff"):
        a(f"s_sleep {cfg['backoff']}")
    stamp(a, cfg, 0)
    poll_deep(a, [f"buffer_load_dwordx4 {v(MA + 4 * k, 4)}, {v(L16)}, {WS_SRD}, {s(sMEM)} offen offset:{1024 * i} sc1" for i, k in enumerate(own)],
              range(MA + 4 * own[0], MA + 4 * own[0] + 4 * len(own)), T0,
              [lambda k=k: a.dsop(f"ds_write_b128 {v(L16)}, {v(MA + 4 * k, 4)} offset:{MEMIMG + 1024 * k}") for k in own],
              cfg.get("depth3", 1))
    stamp(a, cfg, 1)
    a(f"s_add_u32 {s(sF)}, {s(sF)}, {YF_SEG}")
    a.wait_ds_all()
    a("s_barrier")
    keep_stamps(a, cfg, 6, 168)
    if w >= 2:
        skip = a.newlabel("done")
        a(f"s_cmp_eq_u32 {s(S_STEP)}, 0")
        a(f"s_cselect_b32 {s(S_TMP)}, 1, {s(S_SLOW)}")
        a(f"s_cmp_lg_u32 {s(S_TMP)}, 0")
        a(f"s_cbranch_scc1 {skip}")
        a(f"s_sub_u32 {s(S_TMP)}, {s(sO)}, {MEM_SZ}")
        a(f"buffer_store_dword {v(O)}, {v(MOA)}, {WS_SRD}, {s(S_TMP)} offen sc1")
        a.label(skip)
    for k in order[len(own):]:
        a.dsop(f"ds_read_b128 {v(MA + 4 * k, 4)}, {v(L16)} offset:{MEMIMG + 1024 * k}", ("ma", k))
    yl = [f"buffer_load_dwordx4 {v(YB + 4 * i, 4)}, {v(L16)}, {WS_SRD}, {s(sY1 if i >= 4 else sY)} offen offset:{(i % 4) * 1024} sc1" for i in range(8)]
    yl = ([flag_load] if cfg.get("noy", 0) < 2 else []) + ([] if cfg.get("noy") else yl)
    extra = {}
    for i, x in enumerate(yl):
        extra.setdefault(i * cfg.get("ygap", 4) - 1, []).append(lambda x=x: a(x))
    B.mem_values(order, extra)
    for r in range(8):
        a(f"v_mov_b32 {v(O + r)}, 0")
    if not cfg.get("zerotop", 1):
        B.zero_acc()
    stamp(a, cfg, 2)
    a("s_waitcnt vmcnt(0)")
    wait_flag(a, FLG, flag_load)
    stamp(a, cfg, 3)
    a(f"v_mov_b32 {v(T1)}, {s(sVAL)}")
    wait_bell(a, cfg, 11, sVAL, 4 * w)
    bell = f"buffer_store_dword {v(T1)}, off, {WS_SRD}, {s(sOWN)}"
    if w == 0 and cfg.get("bell", 0) and cfg.get("bell2", 1) == 0:
        a(bell)
    a.nop(w * cfg.get("wave2", 0))
    poll_deep(a, [f"buffer_load_dwordx4 {v(PA, 4)}, {v(L16)}, {WS_SRD}, {s(sP)} offen sc1",
                  f"buffer_load_dwordx4 {v(PA + 4, 4)}, {v(L16)}, {WS_SRD}, {s(sP)} offen offset:1024 sc1",
                  f"buffer_load_dwordx4 {v(PA + 8, 4)}, {v(PMA)}, {WS_SRD}, {s(sPM)} offen sc1"][:cfg.get("npoll", 3)],
              range(PA, PA + 4 * cfg.get("npoll", 3)), T0, (), cfg.get("depth2", 2), spacer=lambda i: B.zero_acc() if cfg.get("zerotop", 1) == 2 else a.nop(cfg.get("spread2", 30)))
    stamp(a, cfg, 4)
    for ct in range(2):
        for x, z in ((PA, YB), (PA + 4, YB + 16), (PA + 8, ZW)):
            smf(a, O + 4 * ct, x, v(z + 8 * ct, 8), IDX)
            if w == 0 and x == PA and ct == 0 and cfg.get("bell", 0) and cfg.get("bell2", 1) == 1:
                a(bell)
    swaps = lambda x: (a(f"v_permlane32_swap_b32 {v(x)}, {v(x + 2)}"), a(f"v_permlane32_swap_b32 {v(x + 1)}, {v(x + 3)}"))
    adds = lambda x: (a(f"v_add_f32 {v(x)}, {v(x)}, {v(x + 2)}"), a(f"v_add_f32 {v(x + 1)}, {v(x + 1)}, {v(x + 3)}"))
    write = lambda ct: a.dsop(f"ds_write2_b32 {v(PWA)}, {v(O + 4 * ct)}, {v(O + 4 * ct + 1)} offset0:{128 * ct} offset1:{128 * ct + 16}")
    swaps(O); adds(O); write(0); a.nop(2); swaps(O + 4); adds(O + 4); write(1)
    a.wait_ds_all()
    a("s_barrier")
    for wv in range(4):
        a.dsop(f"ds_read_b64 {v(O + 2 * wv, 2)}, {v(PRA)} offset:{1024 * wv}", ("p", wv))
    a.wait_ds(("p", 1))
    a(f"v_pk_add_f32 {v(O, 2)}, {v(O, 2)}, {v(O + 2, 2)}")
    a.wait_ds(("p", 3))
    a(f"v_pk_add_f32 {v(O + 4, 2)}, {v(O + 4, 2)}, {v(O + 6, 2)}")
    a(f"v_pk_add_f32 {v(O, 2)}, {v(O, 2)}, {v(O + 4, 2)}")
    a(f"v_cvt_pk_bf16_f32 {v(O)}, {v(O)}, {v(O + 1)}")
    a(f"v_min_u32 {v(O)}, -2, {v(O)}")
    if w < 2:
        a(f"buffer_store_dword {v(O)}, {v(MOA)}, {WS_SRD}, {s(sO)} offen")
    else:
        skip = a.newlabel("later")
        a(f"s_cmp_eq_u32 {s(S_STEP)}, {NSEG - 2}")
        a(f"s_cselect_b32 {s(S_TMP)}, 1, {s(S_SLOW)}")
        a(f"s_cmp_eq_u32 {s(S_TMP)}, 0")
        a(f"s_cbranch_scc1 {skip}")
        a(f"buffer_store_dword {v(O)}, {v(MOA)}, {WS_SRD}, {s(sO)} offen sc1")
        a.label(skip)
    stamp(a, cfg, 5)
    a(f"s_add_u32 {s(sMEM)}, {s(sMEM)}, {MEM_SZ}")
    a(f"s_add_u32 {s(sO)}, {s(sO)}, {MEM_SZ}")
    a(f"s_add_u32 {s(sVAL)}, {s(sVAL)}, 1")
    a(f"s_add_u32 {s(sP)}, {s(sP)}, {PB_SZ}")
    a(f"s_add_u32 {s(sPM)}, {s(sPM)}, {PB_SZ}")
    if not cfg.get("samey"):
        a(f"s_add_u32 {s(sY)}, {s(sY)}, {Y_SEG}")
        a(f"s_add_u32 {s(sY1)}, {s(sY1)}, {Y_SEG}")
    a(f"s_add_u32 {s(S_STEP)}, {s(S_STEP)}, 1")
    a(f"s_cmp_lt_u32 {s(S_STEP)}, {NSEG - 1}")
    a(f"s_cbranch_scc1 {top}")
    dump_stamps(a, cfg, 6, 168, 4 + w, L16)
    a("s_endpgm")


def gen_wm(a, cfg):
    L128, FLA, T0, JUNK = range(1, 5)
    sM, sA, sB, sF, sU, sR = range(S_T0, S_T0 + 6)
    ahead = cfg.get("wmahead", 2)
    a.label("WM")
    a(f"s_sub_u32 {s(sU)}, {s(S_LOC)}, 30")
    a(f"s_lshl_b32 {s(sU)}, {s(sU)}, 2")
    a(f"s_add_u32 {s(sU)}, {s(sU)}, {s(S_WAVE)}")
    if cfg.get("wmhelp", 0):
        wait_tasks(a, "B", T0, JUNK, None)
        a(f"v_lshlrev_b32 {v(L128)}, 7, v0")
        a(f"s_lshr_b32 {s(sA)}, {s(sU)}, 2")
        a(f"s_mul_i32 {s(sA)}, {s(sA)}, {7 * BL_CU}")
        a(f"s_mul_i32 {s(S_TMP)}, {s(S_WAVE)}, 114688")
        a(f"s_add_u32 {s(sA)}, {s(sA)}, {s(S_TMP)}")
        a(f"s_add_u32 {s(sA)}, {s(sA)}, {WS['BL'] + 6 * 14336 - 8192 * cfg['wmhelp']}")
        for c in range(7):
            for i in range(cfg.get("wmhelp", 0)):
                a(f"s_add_u32 {s(S_TMP)}, {s(sA)}, {c * BL_CU + i * 8192}")
                a(f"buffer_load_dword {v(JUNK)}, {v(L128)}, {WS_SRD}, {s(S_TMP)} offen")
    a(f"s_mov_b32 {s(S_STEP)}, 0")
    a(f"s_cmp_eq_u32 {s(sU)}, 7")
    a("s_cbranch_scc0 WM_LINES")
    a(f"v_min_u32 {v(T0)}, 55, v0")
    a(f"v_and_b32 {v(FLA)}, 3, {v(T0)}")
    a(f"v_lshlrev_b32 {v(FLA)}, 2, {v(FLA)}")
    a(f"v_lshrrev_b32 {v(T0)}, 2, {v(T0)}")
    a(f"v_lshl_add_u32 {v(FLA)}, {v(T0)}, 7, {v(FLA)}")
    a(f"s_mov_b32 {s(sF)}, {WS['YF']}")
    a(f"s_mov_b32 {s(sR)}, {WS['YR']}")
    a.label("WM_Y")
    wait_flag(a, T0, f"buffer_load_dword {v(T0)}, {v(FLA)}, {WS_SRD}, {s(sF)} offen sc1", sleep=8, landed=False)
    a(f"buffer_store_dword {v(T0)}, off, {WS_SRD}, {s(sR)}")
    a(f"s_cmp_lt_u32 {s(S_STEP)}, 8")
    a("s_cbranch_scc0 WM_NOGATE")
    a(f"s_add_u32 {s(S_TMP)}, {s(sR)}, {WS['GATE'] - WS['YR']}")
    a(f"buffer_store_dword {v(T0)}, off, {WS_SRD}, {s(S_TMP)} sc1")
    a.label("WM_NOGATE")
    a(f"s_add_u32 {s(sF)}, {s(sF)}, {YF_SEG}")
    a(f"s_add_u32 {s(sR)}, {s(sR)}, 128")
    a(f"s_add_u32 {s(S_STEP)}, {s(S_STEP)}, 1")
    a(f"s_cmp_lt_u32 {s(S_STEP)}, {NSEG}")
    a("s_cbranch_scc1 WM_Y")
    a("s_endpgm")
    a.label("WM_LINES")
    wait_tasks(a, "LZ", T0, 8)
    a(f"v_lshlrev_b32 {v(L128)}, 7, v0")
    a(f"s_mul_i32 {s(sM)}, {s(S_SLOW)}, {WS['MEMG'] - WS['MEML']}")
    a(f"s_add_u32 {s(sM)}, {s(sM)}, {WS['MEML']}")
    a(f"s_mul_i32 {s(sA)}, {s(sU)}, 7168")
    a(f"s_add_u32 {s(sA)}, {s(sA)}, {WS['XT']}")
    a(f"s_mov_b32 {s(sB)}, {XT_SEG}")
    a(f"s_cmp_lt_u32 {s(sU)}, 4")
    a("s_cbranch_scc1 WM_GO")
    a(f"s_mov_b32 {s(sA)}, {s(sM)}")
    a(f"s_mov_b32 {s(sB)}, {MEM_SZ}")
    a(f"s_cmp_eq_u32 {s(sU)}, 4")
    a("s_cbranch_scc1 WM_GO")
    a(f"s_and_b32 {s(sA)}, {s(sU)}, 1")
    a(f"s_lshl_b32 {s(sA)}, {s(sA)}, 11")
    a(f"s_add_u32 {s(sA)}, {s(sA)}, {WS['PB']}")
    a(f"s_mov_b32 {s(sB)}, {PB_SZ}")
    a.label("WM_GO")
    for i in range(ahead):
        a(f"buffer_load_dword {v(JUNK)}, {v(L128)}, {WS_SRD}, {s(sA)} offen sc1")
        a(f"s_add_u32 {s(sA)}, {s(sA)}, {s(sB)}")
    a.label("WM_STEP")
    a(f"buffer_load_dword {v(T0)}, off, {WS_SRD}, {s(sM)} sc1")
    a("s_waitcnt vmcnt(0)")
    a(f"v_cmp_eq_u32 vcc, -1, {v(T0)}")
    a("s_cbranch_vccz WM_RUN")
    a("s_sleep 4")
    a(f"s_sub_u32 {s(S_TO)}, {s(S_TO)}, 1")
    a("s_cbranch_scc0 WM_STEP")
    a("s_endpgm")
    a.label("WM_RUN")
    a(f"buffer_load_dword {v(JUNK)}, {v(L128)}, {WS_SRD}, {s(sA)} offen sc1")
    a(f"s_add_u32 {s(sA)}, {s(sA)}, {s(sB)}")
    a(f"s_add_u32 {s(sM)}, {s(sM)}, {MEM_SZ}")
    a(f"s_add_u32 {s(S_STEP)}, {s(S_STEP)}, 1")
    a(f"s_cmp_lt_u32 {s(S_STEP)}, {NSEG - ahead}")
    a("s_cbranch_scc1 WM_STEP")
    a("s_endpgm")


def gen_clean(a, cfg):
    a.label("CLEAN")
    wait_tasks(a, "LZ", 1, 2)
    for seg in (cfg.get("clean", 52), 61):
        wait_step(a, 1, seg, sleep=32)
        a("buffer_wbl2 sc1")
        a("s_waitcnt vmcnt(0)")
    a("s_endpgm")
```

```python
from asmlib import Asm, v, acc, s, interleave
from layout import *

S_WS = 4
S_X = 8
S_OUT = 12
S_AUX = 16
S_WAVE = 20
S_GRP = 21
S_LOC = 22
S_SLOW = 23
S_TO = 24
S_STEP = 25
S_T0 = 26
S_TMP = 40
S_BELL = 89
S_TAG = 88
S_CLK = 48

IOTA = [0, 2, 1, 3]
WS_SRD = s(S_WS, 4)


def wblock(b, vbase, hi=None):
    n = 8 if hi is None else 4
    o = 0 if hi is None else 4 * hi
    return acc(8 * b + o, n) if b < 32 else v(vbase + 8 * (b - 32) + o, n)


def smf(a, d, x, w, idx, upper=False):
    a(f"v_smfmac_f32_16x16x64_bf16 {v(d, 4)}, {v(x, 4)}, {w}, {v(idx)}" + (" abid:1" if upper else ""))


def stream_load(a, dests, vaddr, soff, window=48):
    for i, d in enumerate(dests):
        if i and i % 4 == 0:
            a(f"s_add_u32 {s(soff)}, {s(soff)}, 4096")
        if i >= window and (i - window) % 8 == 0:
            a(f"s_waitcnt vmcnt({window - 8})")
        a(f"buffer_load_dwordx4 {d}, {v(vaddr)}, {WS_SRD}, {s(soff)} offen offset:{(i % 4) * 1024}")


def any_poison(a, regs, tmp):
    regs = list(regs)
    a(f"v_max3_u32 {v(tmp)}, {v(regs[0])}, {v(regs[1])}, {v(regs[2])}")
    rest = regs[3:]
    while len(rest) >= 2:
        a(f"v_max3_u32 {v(tmp)}, {v(tmp)}, {v(rest[0])}, {v(rest[1])}")
        rest = rest[2:]
    if rest:
        a(f"v_max_u32 {v(tmp)}, {v(tmp)}, {v(rest[0])}")
    a(f"v_cmp_eq_u32 vcc, -1, {v(tmp)}")


def poll(a, loads, regs, tmp, sleep=0):
    top, done = a.newlabel("poll"), a.newlabel("got")
    a.label(top)
    for l in loads:
        a(l)
    a("s_waitcnt vmcnt(0)")
    any_poison(a, regs, tmp)
    a(f"s_cbranch_vccz {done}")
    if sleep:
        a(f"s_cmp_ge_u32 {s(S_STEP)}, {NSEG - 6}")
        a(f"s_cbranch_scc1 {top}x")
        a(f"s_sleep {sleep}")
        a.label(top + "x")
    a(f"s_sub_u32 {s(S_TO)}, {s(S_TO)}, 1")
    a(f"s_cbranch_scc0 {top}")
    a("s_endpgm")
    a.label(done)


def poll_deep(a, loads, regs, tmp, under=(), depth=2, sleep=None, inside=False, spacer=None):
    spin = a.newlabel("spin")
    for i in range(depth - 1):
        for l in loads:
            a(l)
        if spacer:
            spacer(i)
    a.label(spin)
    for l in loads:
        a(l)
    a(f"s_sub_u32 {s(S_TO)}, {s(S_TO)}, 1")
    a(f"s_cbranch_scc1 {a.abort}")
    if sleep:
        a(f"s_cmp_ge_u32 {s(S_STEP)}, {sleep[1]}")
        a(f"s_cbranch_scc1 {spin}x")
        a(f"s_sleep {sleep[0]}")
        a.label(spin + "x")
    a(f"s_waitcnt vmcnt({len(loads) * (depth - 1)})")
    any_poison(a, regs, tmp)
    if inside:
        for f in under:
            f()
    a(f"s_cbranch_vccnz {spin}")
    if not inside:
        for f in under:
            f()


def wait_flag(a, reg, load, sleep=2, landed=True):
    top, first, done = a.newlabel("flag"), a.newlabel("first"), a.newlabel("set")
    if not landed:
        a(f"s_branch {first}")
    a.label(top)
    a(f"v_cmp_ne_u32 vcc, {s(S_TAG)}, {v(reg)}")
    a(f"s_cbranch_vccz {done}")
    if sleep:
        a(f"s_sleep {sleep}")
    a.label(first)
    a(load)
    a("s_waitcnt vmcnt(0)")
    a(f"s_sub_u32 {s(S_TO)}, {s(S_TO)}, 1")
    a(f"s_cbranch_scc0 {top}")
    a("s_endpgm")
    a.label(done)


def wait_tasks(a, kind, t0, t1, w=0):
    if kind == "A":
        a(f"v_min_u32 {v(t0)}, 6, v0")
        a(f"v_lshlrev_b32 {v(t0)}, 2, {v(t0)}")
        a(f"s_lshl_b32 {s(S_TMP)}, {s(S_LOC)}, 7")
    elif kind == "B":
        a(f"v_and_b32 {v(t0)}, 7, v0")
        a(f"v_min_u32 {v(t0)}, 6, {v(t0)}")
        a(f"v_lshlrev_b32 {v(t0)}, 2, {v(t0)}")
        a(f"v_bfe_u32 {v(t1)}, v0, 3, 2")
        a(f"v_lshl_add_u32 {v(t0)}, {v(t1)}, 7, {v(t0)}")
        if w is None:
            a(f"s_lshl_b32 {s(S_TMP)}, {s(S_WAVE)}, 9")
            a(f"s_add_u32 {s(S_TMP)}, {s(S_TMP)}, 2048")
        else:
            a(f"s_mov_b32 {s(S_TMP)}, {2048 + 512 * w}")
    elif kind == "L":
        a(f"v_and_b32 {v(t0)}, 7, v0")
        a(f"v_lshlrev_b32 {v(t0)}, 2, {v(t0)}")
        a(f"v_bfe_u32 {v(t1)}, v0, 3, 2")
        a(f"v_lshl_add_u32 {v(t0)}, {v(t1)}, 7, {v(t0)}")
        a(f"s_mov_b32 {s(S_TMP)}, 4096")
    else:
        a(f"v_min_u32 {v(t1)}, {63 if kind == 'LZ' else 47}, v0")
        a(f"v_and_b32 {v(t0)}, 3, {v(t1)}")
        a(f"v_lshlrev_b32 {v(t0)}, 3, {v(t0)}")
        a(f"v_lshrrev_b32 {v(t1)}, 2, {v(t1)}")
        a(f"v_lshl_add_u32 {v(t0)}, {v(t1)}, 7, {v(t0)}")
        a(f"s_mov_b32 {s(S_TMP + 3)}, {WS['ARR'] + (4096 if kind == 'LZ' else 6144)}")
        top, done = a.newlabel("lz"), a.newlabel("lzok")
        a.label(top)
        a(f"buffer_load_dwordx2 {v(t1, 2)}, {v(t0)}, {WS_SRD}, {s(S_TMP + 3)} offen sc1")
        a("s_waitcnt vmcnt(0)")
        a(f"v_cmp_ne_u32 vcc, {s(S_TAG)}, {v(t1)}")
        a(f"v_cmp_ne_u32 {s(S_TMP, 2)}, {s(S_TAG)}, {v(t1 + 1)}")
        a(f"s_or_b64 vcc, vcc, {s(S_TMP, 2)}")
        a(f"s_cbranch_vccz {done}")
        a("s_sleep 8")
        a(f"s_sub_u32 {s(S_TO)}, {s(S_TO)}, 1")
        a(f"s_cbranch_scc0 {top}")
        a("s_endpgm")
        a.label(done)
        return
    wait_flag(a, t1, f"buffer_load_dword {v(t1)}, {v(t0)}, {WS_SRD}, {s(S_TMP)} offen offset:{WS['ARR']} sc1", sleep=4, landed=False)


def wait_bell(a, cfg, tmp, sval, word, depth=2):
    if not cfg.get("bell", 0):
        return
    spin, done = a.newlabel("bell"), a.newlabel("rung")
    load = f"buffer_load_dword {v(tmp)}, off, {WS_SRD}, {s(S_BELL)} offset:{4 * word} sc1"
    a(f"s_cmp_lg_u32 {s(S_SLOW)}, 0")
    a(f"s_cbranch_scc1 {done}")
    for _ in range(depth - 1):
        a(load)
    a.label(spin)
    a(load)
    a(f"s_waitcnt vmcnt({depth - 1})")
    a(f"v_cmp_ne_u32 vcc, {s(sval)}, {v(tmp)}")
    a(f"s_cbranch_vccz {done}")
    a(f"s_sub_u32 {s(S_TO)}, {s(S_TO)}, 1")
    a(f"s_cbranch_scc0 {spin}")
    a("s_endpgm")
    a.label(done)


def wait_step(a, tmp, first, per_group=0, sleep=16):
    top, done = a.newlabel("stp"), a.newlabel("stpok")
    a(f"s_mul_i32 {s(S_TMP)}, {s(S_GRP)}, {per_group * MEM_SZ}")
    a(f"s_add_u32 {s(S_TMP)}, {s(S_TMP)}, {WS['MEMG'] + first * MEM_SZ}")
    a.label(top)
    a(f"buffer_load_dword {v(tmp)}, off, {WS_SRD}, {s(S_TMP)} sc1")
    a("s_waitcnt vmcnt(0)")
    a(f"v_cmp_eq_u32 vcc, -1, {v(tmp)}")
    a(f"s_cbranch_vccz {done}")
    a(f"s_sleep {sleep}")
    a(f"s_sub_u32 {s(S_TO)}, {s(S_TO)}, 1")
    a(f"s_cbranch_scc0 {top}")
    a("s_endpgm")
    a.label(done)


def wait_first_y(a, tmp, seg_reg=None, seg=0):
    if seg_reg is not None:
        a(f"s_lshl_b32 {s(S_TMP)}, {s(seg_reg)}, 7")
        a(f"s_add_u32 {s(S_TMP)}, {s(S_TMP)}, {WS['GATE']}")
    else:
        a(f"s_mov_b32 {s(S_TMP)}, {WS['GATE'] + 128 * seg}")
    wait_flag(a, tmp, f"buffer_load_dword {v(tmp)}, off, {WS_SRD}, {s(S_TMP)} sc1", sleep=16, landed=False)


def local_stores(a, stores, scc_set=False):
    slow, done = a.newlabel("wt"), a.newlabel("st")
    if not scc_set:
        a(f"s_cmp_lg_u32 {s(S_SLOW)}, 0")
    a(f"s_cbranch_scc1 {slow}")
    for st in stores:
        a(st)
    a(f"s_branch {done}")
    a.label(slow)
    for st in stores:
        a(st + " sc1")
    a.label(done)


def index_reg(a, reg, tmp):
    a(f"v_and_b32 {v(tmp)}, 8, v0")
    a(f"v_cmp_eq_u32 vcc, 0, {v(tmp)}")
    a(f"v_mov_b32 {v(tmp)}, 0x88884444")
    a(f"v_mov_b32 {v(reg)}, 0xddddeeee")
    a(f"v_cndmask_b32 {v(reg)}, {v(reg)}, {v(tmp)}, vcc")


def iota_reg(a, reg, tmp):
    a(f"v_bfe_u32 {v(reg)}, v0, 5, 1")
    a(f"v_bfe_u32 {v(tmp)}, v0, 4, 1")
    a(f"v_lshl_add_u32 {v(reg)}, {v(tmp)}, 1, {v(reg)}")


def stamp(a, cfg, k):
    if cfg.get("stamps", 0) >> k & 1:
        a(f"{'s_memrealtime' if cfg.get('rt') else 's_memtime'} {s(S_CLK + 2 * k, 2)}")


def flush_stamps(a, cfg, n, slot, tmp):
    if not cfg.get("stamps"):
        return
    skip = a.newlabel("nostamp")
    if cfg.get("lastonly"):
        a(f"s_cmp_lt_u32 {s(S_STEP)}, 63")
        a(f"s_cbranch_scc1 {skip}")
    a("s_waitcnt lgkmcnt(0)")
    a.ds = []
    a(f"s_lshl_b32 {s(S_TMP)}, {s(S_STEP)}, 6")
    a(f"s_add_u32 {s(S_TMP)}, {s(S_TMP)}, {WS['DBG'] + slot * 4096}")
    a(f"s_mul_i32 {s(S_TMP + 1)}, {s(S_LOC)}, 0x30000")
    a(f"s_add_u32 {s(S_TMP)}, {s(S_TMP)}, {s(S_TMP + 1)}")
    for k in range(n):
        a(f"v_mov_b32 {v(tmp)}, {s(S_CLK + 2 * k)}")
        a(f"buffer_store_dword {v(tmp)}, off, {WS_SRD}, {s(S_TMP)} offset:{4 * k}")
    a(f"v_mov_b32 {v(tmp)}, {s(S_TO)}")
    a(f"buffer_store_dword {v(tmp)}, off, {WS_SRD}, {s(S_TMP)} offset:60")
    a(f"s_add_u32 {s(S_TMP + 1)}, {s(S_STEP)}, -1")
    a(f"s_cmp_lt_u32 {s(S_TMP + 1)}, {cfg.get('last_step', 61)}")
    a(f"s_cbranch_scc1 {skip}")
    a(f"s_memrealtime {s(S_CLK + 28, 2)}")
    a("s_waitcnt lgkmcnt(0)")
    a(f"v_mov_b32 {v(tmp)}, {s(S_CLK + 28)}")
    a(f"buffer_store_dword {v(tmp)}, off, {WS_SRD}, {s(S_TMP)} offset:56")
    a(f"v_mov_b32 {v(tmp)}, {s(S_CLK + 30)}")
    a(f"buffer_store_dword {v(tmp)}, off, {WS_SRD}, {s(S_TMP)} offset:52")
    a.label(skip)


def milestone(a, cfg, k, tmp):
    if not cfg.get("stamps"):
        return
    a("s_memrealtime s[92:93]")
    a("s_lshl_b32 s90, s2, 2")
    a(f"s_add_u32 s90, s90, {s(S_WAVE)}")
    a("s_lshl_b32 s90, s90, 5")
    a(f"s_add_u32 s90, s90, {WS['DBG'] + 0x28000}")
    a("s_waitcnt lgkmcnt(0)")
    a(f"v_mov_b32 {v(tmp)}, s92")
    a(f"buffer_store_dword {v(tmp)}, off, {WS_SRD}, s90 offset:{4 * k}")
    if k == 0:
        a(f"s_lshl_b32 s91, {s(S_GRP)}, 8")
        a(f"s_add_u32 s91, s91, {s(S_LOC)}")
        a(f"v_mov_b32 {v(tmp)}, s91")
        a(f"buffer_store_dword {v(tmp)}, off, {WS_SRD}, s90 offset:28")


def keep_stamps(a, cfg, n, base):
    if cfg.get("stamps"):
        a(f"s_mov_b32 m0, {s(S_STEP)}")
        for k in range(n):
            a(f"v_writelane_b32 {v(base + k)}, {s(S_CLK + 2 * k)}, m0")


def dump_stamps(a, cfg, n, base, slot, lane16):
    if not cfg.get("stamps"):
        return
    a(f"v_lshlrev_b32 {v(lane16)}, 2, {v(lane16)}")
    a(f"s_mul_i32 {s(S_TMP)}, {s(S_LOC)}, 0x30000")
    a(f"s_add_u32 {s(S_TMP)}, {s(S_TMP)}, {WS['DBG'] + slot * 4096}")
    for k in range(n):
        a(f"buffer_store_dword {v(base + k)}, {v(lane16)}, {WS_SRD}, {s(S_TMP)} offen offset:{4 * k}")


def gen_s1(a, w, cfg):
    if "stamps1" in cfg:
        cfg = dict(cfg, stamps=cfg["stamps1"])
    L16, KA, TWA, TRA, SWA, SRA, PA, IDX, T0, T1 = range(1, 11)
    SC, TACC, MA, KEY, WV = 12, 16, 44, 72, 120
    MEMIMG, TBUF, SBUF = 0, 8192, 16384
    sMEM, sP, sX0, sX1 = range(S_T0, S_T0 + 4)
    sRARE, sLO, sSPAN, sEVEN = S_T0 + 4, S_T0 + 6, S_T0 + 7, S_T0 + 8
    blk = lambda j, k: wblock(j * 7 + k, WV)
    own = [2 * w, 2 * w + 1] if w < 3 else [5, 6]
    share = own if w < 3 else [6]
    others = [k for k in range(7) if k not in own]
    T = lambda j, r=0: TACC + 4 * j + r
    K = lambda j: KEY + 8 * j if j < 6 else MA + 4 * own[0]

    a.label(f"S1_W{w}")
    a(f"v_lshlrev_b32 {v(L16)}, 4, v0")
    wait_tasks(a, "A", T0, T1)
    a(f"s_mul_i32 {s(S_TMP)}, {s(S_LOC)}, {AL_HEAD}")
    a(f"s_add_u32 {s(S_TMP)}, {s(S_TMP)}, {WS['AL'] + w * 100352}")
    stream_load(a, [wblock(b, WV, hi) for b in range(49) for hi in range(2)], L16, S_TMP)
    a(f"v_and_b32 {v(T0)}, 15, v0")
    a(f"v_lshrrev_b32 {v(T1)}, 5, v0")
    a(f"v_mul_u32_u24 {v(KA)}, 14, {v(T1)}")
    a(f"v_bfe_u32 {v(T1)}, v0, 4, 1")
    a(f"v_add_u32 {v(KA)}, {v(KA)}, {v(T1)}")
    if w < 2:
        a(f"v_lshlrev_b32 {v(KA)}, 8, {v(KA)}")
        a(f"v_lshl_add_u32 {v(KA)}, {v(T0)}, 4, {v(KA)}")
    else:
        a(f"v_and_b32 {v(T1)}, 7, v0")
        a(f"v_lshlrev_b32 {v(T1)}, 4, {v(T1)}")
        a(f"v_lshl_add_u32 {v(KA)}, {v(KA)}, 7, {v(T1)}")
    iota_reg(a, PA, T1)
    a(f"v_lshlrev_b32 {v(TWA)}, 2, {v(PA)}")
    a(f"v_lshl_add_u32 {v(TWA)}, {v(T0)}, 4, {v(TWA)}")
    a(f"v_add_u32 {v(TWA)}, {TBUF + 256 * w}, {v(TWA)}")
    a(f"v_lshrrev_b32 {v(T1)}, 4, v0")
    a(f"v_bfe_u32 {v(TRA)}, v0, 2, 2")
    a(f"v_lshl_add_u32 {v(TRA)}, {v(T1)}, 3, {v(TRA)}")
    a(f"v_lshlrev_b32 {v(TRA)}, 5, {v(TRA)}")
    a(f"v_and_b32 {v(SWA)}, 3, v0")
    a(f"v_lshl_add_u32 {v(TRA)}, {v(SWA)}, 3, {v(TRA)}")
    a(f"v_add_u32 {v(TRA)}, {TBUF}, {v(TRA)}")
    a(f"v_lshlrev_b32 {v(SRA)}, 5, {v(T1)}")
    a(f"v_add_u32 {v(SRA)}, {SBUF}, {v(SRA)}")
    a(f"v_cmp_eq_u32 vcc, 0, {v(T0)}")
    a(f"v_add_u32 {v(T1)}, {4 * w}, {v(SRA)}")
    a(f"v_lshlrev_b32 {v(SWA)}, 2, v0")
    a(f"v_add_u32 {v(SWA)}, {SBUF + 128}, {v(SWA)}")
    a(f"v_cndmask_b32 {v(SWA)}, {v(SWA)}, {v(T1)}, vcc")
    a(f"v_and_b32 {v(T1)}, 1, v0")
    a(f"v_cmp_eq_u32 {s(sEVEN, 2)}, 0, {v(T1)}")
    a(f"v_lshl_add_u32 {v(SRA)}, {v(T1)}, 4, {v(SRA)}")
    a(f"v_lshlrev_b32 {v(PA)}, 5, {v(PA)}")
    a(f"v_lshl_add_u32 {v(PA)}, {v(T1)}, 4, {v(PA)}")
    if w < 2:
        a(f"v_bfe_u32 {v(T1)}, v0, 3, 1")
        a(f"v_lshl_add_u32 {v(PA)}, {v(T1)}, 7, {v(PA)}")
        a(f"v_and_b32 {v(T1)}, 6, v0")
        a(f"v_lshl_add_u32 {v(PA)}, {v(T1)}, 1, {v(PA)}")
    else:
        a(f"v_bfe_u32 {v(T1)}, v0, 1, 1")
        a(f"v_lshl_add_u32 {v(PA)}, {v(T1)}, 7, {v(PA)}")
        a(f"v_bfe_u32 {v(T1)}, v0, 2, 1")
        a(f"v_lshl_add_u32 {v(PA)}, {v(T1)}, 3, {v(PA)}")
        a(f"v_bfe_u32 {v(T1)}, v0, 3, 1")
        a(f"v_lshlrev_b32 {v(T1)}, 30, {v(T1)}")
        a(f"v_or_b32 {v(PA)}, {v(PA)}, {v(T1)}")
    index_reg(a, IDX, T0)
    a(f"s_mul_i32 {s(sMEM)}, {s(S_SLOW)}, {WS['MEMG'] - WS['MEML']}")
    a(f"s_add_u32 {s(sMEM)}, {s(sMEM)}, {WS['MEML'] + own[0] * 1024}")
    if w < 2:
        a(f"s_lshl_b32 {s(sP)}, {s(S_LOC)}, 9")
        a(f"s_add_u32 {s(sP)}, {s(sP)}, {WS['PB'] + 256 * w}")
    else:
        a(f"s_lshr_b32 {s(sP)}, {s(S_LOC)}, 1")
        a(f"s_lshl_b32 {s(sP)}, {s(sP)}, 8")
        a(f"s_and_b32 {s(S_TMP)}, {s(S_LOC)}, 1")
        a(f"s_lshl_b32 {s(S_TMP)}, {s(S_TMP)}, 2")
        a(f"s_add_u32 {s(sP)}, {s(sP)}, {s(S_TMP)}")
        a(f"s_add_u32 {s(sP)}, {s(sP)}, {WS['PB'] + 8192}")
    a(f"s_mov_b32 {s(sRARE)}, {s(S_SLOW) if cfg.get('quickmax', 1) else 1}")
    a(f"s_mov_b32 {s(sRARE + 1)}, 0")
    a(f"s_mov_b32 {s(sLO)}, {(127 - 60) << 23}")
    a(f"s_mov_b32 {s(sSPAN)}, {160 << 23 if cfg.get('quickmax', 1) else 0}")
    a(f"s_mov_b32 {s(sX0)}, {WS['XT'] + 14336 * (w & 1)}")
    a(f"s_add_u32 {s(sX1)}, {s(sX0)}, 7168")
    a(f"s_mov_b32 {s(S_STEP)}, 0")
    wait_tasks(a, "LZ", 14, 12)
    milestone(a, cfg, 1, T0)

    top = f"S1_STEP{w}"
    a.label(top)
    a.ds = []
    d1 = cfg.get("depth1", 2)
    spread = cfg.get("spread1", 32) if d1 > 1 else 0
    for r in range(max(0, 32 - spread)):
        a(f"v_mov_b32 {v(12 + r)}, 0")

    def spacer(i):
        n = spread // (d1 - 1)
        for r in range(32 - spread + i * n, 32 - spread + (i + 1) * n if i < d1 - 2 else 32):
            a(f"v_mov_b32 {v(12 + max(r, 0))}, 0")
    stamp(a, cfg, 0)
    if cfg.get("stamps") and cfg.get("rt"):
        a(f"s_memtime {s(S_CLK + 22, 2)}")
    a("s_waitcnt vmcnt(0)")
    pa = [(j, k) for k in own for j in range(7)]
    poll_deep(a, [f"buffer_load_dwordx4 {v(MA + 4 * own[i], 4)}, {v(L16)}, {WS_SRD}, {s(sMEM)} offen offset:{1024 * i} sc1" for i in range(2)],
              range(MA + 4 * own[0], MA + 4 * own[0] + 8), T0,
              [lambda k=k: a.dsop(f"ds_write_b128 {v(L16)}, {v(MA + 4 * k, 4)} offset:{MEMIMG + 1024 * k}") for k in share],
              d1, inside=True, spacer=spacer)
    stamp(a, cfg, 1)
    nh = cfg.get("nhead", 3)
    for j, k in pa[:nh]:
        smf(a, T(j), MA + 4 * k, blk(j, k), IDX)
    a.wait_ds_all()
    stamp(a, cfg, 5)
    a("s_barrier")
    stamp(a, cfg, 6)

    def fetch_key(i):
        j, hi = i >> 1, i & 1
        if i == 12:
            a(f"s_waitcnt vmcnt({12 if w < 2 else 0})")
        if w < 2:
            a(f"buffer_load_dwordx4 {v(K(j) + 4 * hi, 4)}, {v(KA)}, {WS_SRD}, {s(sX1 if hi else sX0)} offen offset:{512 * j}")
        else:
            a.dsop(f"ds_read_b128 {v(K(j) + 4 * hi, 4)}, {v(KA)} offset:{MEMIMG + 256 * j + 3584 * hi}", ("key", j))
    k0 = cfg.get("kgap0", -10 if w < 2 else -6)
    kg = [k0 + cfg.get("kgap", 2) * i for i in range(14)] if w < 3 else []
    for n_, (j, k) in enumerate(pa[nh:]):
        if n_ < len(others):
            a.dsop(f"ds_read_b128 {v(MA + 4 * others[n_], 4)}, {v(L16)} offset:{MEMIMG + 1024 * others[n_]}", ("ma", others[n_]))
        smf(a, T(j), MA + 4 * k, blk(j, k), IDX)
        if n_ - (14 - nh) in kg:
            fetch_key(kg.index(n_ - (14 - nh)))

    def post(j):
        return [lambda: a(f"v_permlane32_swap_b32 {v(T(j, 0))}, {v(T(j, 2))}"),
                lambda: a(f"v_permlane32_swap_b32 {v(T(j, 1))}, {v(T(j, 3))}"),
                lambda: (a(f"v_add_f32 {v(T(j, 0))}, {v(T(j, 0))}, {v(T(j, 2))}"),
                         a(f"v_add_f32 {v(T(j, 1))}, {v(T(j, 1))}, {v(T(j, 3))}")),
                lambda: a(f"v_cvt_pk_bf16_f32 {v(T(j, 0))}, {v(T(j, 0))}, {v(T(j, 1))}"),
                lambda: a.dsop(f"ds_write_b32 {v(TWA)}, {v(T(j, 0))} offset:{1024 * j}", ("tw", j))]

    def read_t(j):
        if w < 3:
            for q in range(2):
                a.dsop(f"ds_read_b64_tr_b16 {v(T(j) + 2 * q, 2)}, {v(TRA)} offset:{1024 * j + 128 * q}", ("t", j))

    def score(j):
        a.wait_ds(("key", j))
        a.wait_ds(("t", j))
        smf(a, SC, T(j), v(K(j), 8), IDX, True)

    main, fill = [], {}
    for j in range(7):
        for k in others:
            def mm(j=j, k=k):
                if j == 0:
                    a.wait_ds(("ma", k))
                smf(a, T(j), MA + 4 * k, blk(j, k), IDX)
            main.append(mm)
    for i, g in enumerate(kg):
        if g >= 0:
            fill[g] = [lambda i=i: fetch_key(i)]
    mid = cfg.get("mid", 30)
    fill.setdefault(mid, []).extend([lambda: a.wait_ds(("tw", 3)), lambda: a("s_barrier")])
    for j in range(4):
        fill.setdefault(mid + j, []).append(lambda j=j: read_t(j))
    for j in range(6):
        for i, f in enumerate(post(j)):
            fill.setdefault(5 * (j + 1) + 2 + i, []).append(f)
    stamp(a, cfg, 7)
    tail = [f for i in sorted(fill) if i >= 35 for f in fill[i]] + post(6)
    interleave(a, main, {i: f for i, f in fill.items() if i < 35})
    if w < 2:
        a("s_waitcnt vmcnt(6)")
    for j in range(4):
        if w < 3:
            score(j)
        elif j == 2:
            a.nop(6)
        tail.pop(0)()
    for f in tail:
        f()
    stamp(a, cfg, 2)
    a.wait_ds_all()
    a("s_barrier")
    for j in range(4, 7):
        read_t(j)
    if w < 2:
        a("s_waitcnt vmcnt(0)")
    A_, B_, EA, EB, E, M, R = SC, SC + 1, T(0), T(0) + 1, T(0) + 2, T(1), T(2)
    steps = ("quad_perm:[1,0,3,2]", "quad_perm:[2,3,0,1]", "row_half_mirror", "row_mirror")[:3 if w == 2 else 4]
    pick = lambda d, even, odd: f"v_cndmask_b32 {v(d)}, {v(odd)}, {v(even)}, {s(sEVEN, 2)}"

    def across(op, x0, x1, under=()):
        under = [None] + list(under)
        for i, ctl in enumerate(steps):
            a(under[i]) if i < len(under) and under[i] else a.nop(1)
            for x, y in ((M, x0), (M + 1, x1)):
                y = x if i else y
                a(f"{op}_dpp {v(x)}, {v(y)}, {v(y)} {ctl} row_mask:0xf bank_mask:0xf")

    def exchange(area, under=()):
        if w < 3:
            a.dsop(f"ds_write2_b32 {v(SWA)}, {v(M)}, {v(M + 1)} offset0:{area} offset1:{area + 4}")
            for x in under:
                a(x)
        a.wait_ds_all()
        a("s_barrier")
        a.dsop(f"ds_read_b128 {v(R, 4)}, {v(SRA)} offset:{4 * area}")
        a.wait_ds_all()

    def sums(area):
        if w < 3:
            a(f"v_exp_f32 {v(EA)}, {v(A_)}")
            a(f"v_exp_f32 {v(EB)}, {v(B_)}")
            across("v_add_f32", EA, EB, [pick(M + 2, EB, EA), f"v_mov_b32_dpp {v(M + 3)}, {v(M + 2)} quad_perm:[1,0,3,2] row_mask:0xf bank_mask:0xf"])
        exchange(area, [pick(E, EA, M + 3), pick(E + 1, M + 3, EB)])
        a(f"v_add_f32 {v(M)}, {v(R)}, {v(R + 1)}")
        a(f"v_add_f32 {v(M)}, {v(M)}, {v(R + 2)}")

    def scale(between):
        if w < 3:
            a(f"v_rcp_f32 {v(R)}, {v(M)}")
        between()
        if w < 3:
            a(f"v_pk_mul_f32 {v(E, 2)}, {v(E, 2)}, {v(R, 2)} op_sel_hi:[1,0] clamp")
            a(f"v_cvt_pk_bf16_f32 {v(E)}, {v(E)}, {v(E + 1)}")
    stores = [f"buffer_store_dword {v(E)}, {v(PA)}, {WS_SRD}, {s(sP)} offen"] if w < 3 else []

    if w < 3:
        for j in range(4, 7):
            score(j)
        a.nop(8)
        a(f"v_permlane32_swap_b32 {v(SC)}, {v(SC + 2)}")
        a(f"v_permlane32_swap_b32 {v(SC + 1)}, {v(SC + 3)}")
        a(f"v_add_f32 {v(A_)}, {v(SC)}, {v(SC + 2)}")
        a(f"v_add_f32 {v(B_)}, {v(SC + 1)}, {v(SC + 3)}")
    stamp(a, cfg, 3)
    sums(0)

    def check():
        a(f"v_subrev_u32 {v(M)}, {s(sLO)}, {v(M)}")
        a(f"v_cmp_le_u32 vcc, {s(sSPAN)}, {v(M)}")
    scale(check)
    rare, back = a.newlabel("rare"), a.newlabel("back")
    a(f"s_or_b64 {s(S_TMP, 2)}, vcc, {s(sRARE, 2)}")
    a(f"s_cbranch_scc1 {rare}")
    for st in stores:
        a(st)
    a.label(back)
    stamp(a, cfg, 4)
    if cfg.get("span") and w == 0:
        for k, st in enumerate((0, 10, 60, 62)):
            skip = a.newlabel("sp")
            a(f"s_cmp_eq_u32 {s(S_STEP)}, {st}")
            a(f"s_cbranch_scc0 {skip}")
            a(f"s_memrealtime {s(S_CLK + 4 * k, 2)}")
            a(f"s_memtime {s(S_CLK + 4 * k + 2, 2)}")
            a("s_waitcnt lgkmcnt(0)")
            a.label(skip)
    if cfg.get("stamps"):
        a("s_waitcnt lgkmcnt(0)")
        a(f"s_lshl_b32 {s(S_TMP)}, {s(S_STEP)}, 6")
        a(f"v_mov_b32 {v(T(6))}, {s(S_TMP)}")
        for k, r in [(k, S_CLK + 2 * k) for k in range(12)] + [(15, S_TO)]:
            if k >= 11 or cfg["stamps"] >> k & 1:
                a(f"v_mov_b32 {v(T(6) + 1)}, {s(r)}")
                a(f"ds_write_b32 {v(T(6))}, {v(T(6) + 1)} offset:{32768 + 4096 * w + 4 * k}")
    for r, step in ((sMEM, MEM_SZ), (sP, PB_SZ), (sX0, XT_SEG), (sX1, XT_SEG), (S_STEP, 1)):
        a(f"s_add_u32 {s(r)}, {s(r)}, {step}")
    a(f"s_cmp_lt_u32 {s(S_STEP)}, {NSEG - 1}")
    a(f"s_cbranch_scc1 {top}")
    if cfg.get("span") and w == 0:
        a(f"s_lshl_b32 {s(S_TMP)}, {s(S_LOC)}, 6")
        a(f"s_add_u32 {s(S_TMP)}, {s(S_TMP)}, {WS['DBG']}")
        for k, r in enumerate(list(range(0, 16, 2)) + [30]):
            a(f"v_mov_b32 v16, {s(S_CLK + r)}")
            a(f"buffer_store_dword v16, off, {WS_SRD}, {s(S_TMP)} offset:{4 * k}")
    if cfg.get("stamps"):
        a(f"s_mul_i32 {s(S_TMP)}, {s(S_LOC)}, 0x30000")
        a(f"s_add_u32 {s(S_TMP)}, {s(S_TMP)}, {WS['DBG'] + w * 4096}")
        for i in range(4):
            a(f"ds_read_b128 {v(16, 4)}, {v(L16)} offset:{32768 + 4096 * w + 1024 * i}")
            a("s_waitcnt lgkmcnt(0)")
            a(f"buffer_store_dwordx4 {v(16, 4)}, {v(L16)}, {WS_SRD}, {s(S_TMP)} offen offset:{1024 * i}")
            a("s_waitcnt vmcnt(0)")
    a("s_endpgm")

    a.label(rare)
    ready = a.newlabel("ready")
    a(f"s_cbranch_vccz {ready}")
    if w < 3:
        across("v_max_f32", A_, B_)
    exchange(112)
    if w < 3:
        a(f"v_max3_f32 {v(M)}, {v(R)}, {v(R + 1)}, {v(R + 2)}")
        a.nop(2)
        a(f"v_mov_b32_dpp {v(M + 1)}, {v(M)} quad_perm:[1,0,3,2] row_mask:0xf bank_mask:0xf")
        a(pick(M + 2, M, M + 1))
        a(pick(M + 3, M + 1, M))
        a(f"v_sub_f32 {v(A_)}, {v(A_)}, {v(M + 2)}")
        a(f"v_sub_f32 {v(B_)}, {v(B_)}, {v(M + 3)}")
    sums(224)
    scale(lambda: a.nop(1))
    a.label(ready)
    if stores:
        local_stores(a, stores)
    a(f"s_branch {back}")


class BRes:
    WL = 49152
    WV = 176

    def __init__(self, a, w, L16, IDX, MA, WT, ACC, ZW):
        self.a, self.w, self.L16, self.IDX, self.MA, self.WT, self.ACC, self.ZW = a, w, L16, IDX, MA, WT, ACC, ZW

    def blk(self, t, k, hi=None):
        return wblock(t * 7 + k, self.WV, hi)

    def lds_off(self, t, k, hi):
        return (t - 6) * 14336 + k * 2048 + hi * 1024

    def load(self, sloc, lbase, hook=None, hook_at=0):
        a, w = self.a, self.w
        a(f"s_mul_i32 {s(S_TMP)}, {s(sloc)}, {BL_CU}")
        a(f"s_add_u32 {s(S_TMP)}, {s(S_TMP)}, {WS['BL'] + w * 114688}")
        a(f"s_add_u32 {s(S_TMP + 1)}, {s(S_TMP)}, {6 * 14336}")
        a(f"s_add_u32 {s(S_TMP + 3)}, {s(S_TMP)}, {4 * 14336}")
        stream_load(a, [wblock(b, self.WV, hi) for b in range(28) for hi in range(2)], self.L16, S_TMP, window=40)
        for i in range(28):
            if i % 8 == 0:
                a("s_waitcnt vmcnt(40)")
                if hook and i == 8 * (hook_at - 1):
                    hook()
            a(f"s_mov_b32 m0, {self.WL + w * 28672 + i * 1024}")
            a(f"s_add_u32 {s(S_TMP + 2)}, {s(S_TMP + 1)}, {i * 1024}")
            a(f"buffer_load_dwordx4 {v(self.L16)}, {WS_SRD}, {s(S_TMP + 2)} offen lds")
        dests = [wblock(b, self.WV, hi) for b in range(28, 42) for hi in range(2)]
        for i in range(0, 28, 4):
            a("s_waitcnt vmcnt(52)")
            stream_load(a, dests[i:i + 4], self.L16, S_TMP + 3)
            a(f"s_add_u32 {s(S_TMP + 3)}, {s(S_TMP + 3)}, 4096")
        if hook and hook_at == 9:
            hook()
        a(f"v_add_u32 {v(lbase)}, {self.WL + w * 28672}, {v(self.L16)}")
        self.lbase = lbase

    def read_block(self, i, order, half=None):
        t, k = 6 + i // 7, order[i % 7]
        for hi in (range(2) if half is None else [half]):
            self.a.dsop(f"ds_read_b128 {v(self.WT + 8 * (i % 3) + 4 * hi, 4)}, {v(self.lbase)} offset:{self.lds_off(t, k, hi)}", ("wt", i))

    def zero_acc(self):
        for r in range(32):
            self.a(f"v_mov_b32 {v(self.ACC + r)}, 0")

    def cvt(self, t, slot):
        d = self.ZW + 8 * (t & 1) + 2 * (t >> 1)
        c = self.ACC + 4 * slot
        return [lambda: self.a(f"v_cvt_pk_bf16_f32 {v(d)}, {v(c)}, {v(c + 1)}"),
                lambda: self.a(f"v_cvt_pk_bf16_f32 {v(d + 1)}, {v(c + 2)}, {v(c + 3)}")]

    def mem_values(self, order, extra):
        a = self.a
        groups = ([0, 1, 2, 6], [3, 4, 5, 7])
        main, fill = [], {k: list(x) for k, x in extra.items()}
        for gi, tiles in enumerate(groups):
            for ki, k in enumerate(order):
                for ti, t in enumerate(tiles):
                    def mm(gi=gi, ki=ki, k=k, ti=ti, t=t):
                        if ti == 0 and gi == 0:
                            a.wait_ds(("ma", k))
                        if t >= 6:
                            a.wait_ds(("wt", gi * 7 + ki))
                            wr = v(self.WT + 8 * ((gi * 7 + ki) % 3), 8)
                        else:
                            wr = self.blk(t, k)
                        smf(a, self.ACC + 4 * (gi * 4 + ti), self.MA + 4 * k, wr, self.IDX)
                    main.append(mm)
                i = gi * 7 + ki
                if i + 3 < 14:
                    for hi in range(2):
                        fill.setdefault(len(main) + hi, []).append(lambda i=i, hi=hi: self.read_block(i + 3, order, hi))
        cv = [f for ti, t in enumerate(groups[0]) for f in self.cvt(t, ti)]
        for f, gap in zip(cv, (30, 31, 34, 35, 38, 39, 42, 43)):
            fill.setdefault(gap, []).append(f)
        interleave(a, main, fill)
        a.nop(3)
        for ti, t in enumerate(groups[1]):
            for f in self.cvt(t, 4 + ti):
                f()


def gen_s2(a, w, cfg):
    if cfg.get("quiet2"):
        cfg = {k: x for k, x in cfg.items() if k != "stamps"}
    L16, LB, PMA, PWA, PRA, MOA, IDX, FLG, T0, T1 = range(1, 11)
    MA, YB, ZW, PA, WT, ACC, O = 16, 44, 76, 92, 104, 128, 160
    MEMIMG, PART = 0, 8192
    sMEM, sP, sPM, sY, sY1, sF, sO, sVAL, sOWN = range(S_T0, S_T0 + 9)
    own = [2 * w, 2 * w + 1] if w < 3 else [6]
    order = own + [k for k in range(7) if k not in own]
    B = BRes(a, w, L16, IDX, MA, WT, ACC, ZW)
    ct_out = w & 1

    a.label(f"S2_W{w}")
    a(f"s_sub_u32 {s(S_LOC)}, {s(S_LOC)}, 16")
    a(f"v_lshlrev_b32 {v(L16)}, 4, v0")
    wait_tasks(a, "B", T0, T1, w)
    B.load(S_LOC, LB)
    a(f"v_and_b32 {v(T0)}, 15, v0")
    a(f"v_lshrrev_b32 {v(T1)}, 5, v0")
    a(f"v_lshlrev_b32 {v(PMA)}, 4, {v(T0)}")
    a(f"v_lshl_add_u32 {v(PMA)}, {v(T1)}, 8, {v(PMA)}")
    iota_reg(a, PWA, T1)
    a(f"v_lshlrev_b32 {v(PWA)}, 7, {v(PWA)}")
    a(f"v_lshl_add_u32 {v(PWA)}, {v(T0)}, 2, {v(PWA)}")
    a(f"v_add_u32 {v(PWA)}, {PART + w * 1024}, {v(PWA)}")
    a(f"v_lshlrev_b32 {v(PRA)}, 3, v0")
    a(f"v_add_u32 {v(PRA)}, {PART + ct_out * 512}, {v(PRA)}")
    a(f"v_lshrrev_b32 {v(T0)}, 3, v0")
    a(f"v_lshlrev_b32 {v(MOA)}, 4, {v(T0)}")
    a(f"v_bfe_u32 {v(T0)}, v0, 2, 1")
    a(f"v_lshl_add_u32 {v(MOA)}, {v(T0)}, 7, {v(MOA)}")
    a(f"v_and_b32 {v(T0)}, 3, v0")
    a(f"v_lshl_add_u32 {v(MOA)}, {v(T0)}, 2, {v(MOA)}")
    index_reg(a, IDX, T0)
    a(f"s_mul_i32 {s(sMEM)}, {s(S_SLOW)}, {WS['MEMG'] - WS['MEML']}")
    a(f"s_add_u32 {s(sMEM)}, {s(sMEM)}, {WS['MEML'] + own[0] * 1024}")
    a(f"s_mov_b32 {s(sP)}, {WS['PB'] + w * 2048}")
    a(f"s_mov_b32 {s(sPM)}, {WS['PB'] + 8192 + w * 512}")
    a(f"s_lshl_b32 {s(sY)}, {s(S_LOC)}, 15")
    a(f"s_add_u32 {s(sY)}, {s(sY)}, {WS['YL'] + w * 8192}")
    a(f"s_add_u32 {s(sY1)}, {s(sY)}, 4096")
    a(f"s_lshl_b32 {s(sF)}, {s(S_LOC)}, 7")
    a(f"s_add_u32 {s(sF)}, {s(sF)}, {WS['YF'] + w * 4}")
    a(f"s_lshl_b32 {s(sO)}, {s(S_LOC)}, 9")
    a(f"s_add_u32 {s(sO)}, {s(sO)}, {WS['MEML' if w < 2 else 'MEMG'] + MEM_SZ + ct_out * 256}")
    a(f"s_mov_b32 {s(S_STEP)}, 0")
    a(f"s_mov_b32 {s(S_BELL)}, {WS['BELL']}")
    a(f"s_lshl_b32 {s(sOWN)}, {s(S_LOC)}, 2")
    a(f"s_add_u32 {s(sOWN)}, {s(sOWN)}, {WS['BELL'] + 256}")
    a(f"s_add_u32 {s(sVAL)}, {s(S_TAG)}, 1")
    flag_load = f"buffer_load_dword {v(FLG)}, off, {WS_SRD}, {s(sF)} sc1"
    a(flag_load)
    B.zero_acc()
    wait_tasks(a, "LZ", T0, 12)
    milestone(a, cfg, 1, T0)
    wait_flag(a, FLG, flag_load)
    milestone(a, cfg, 2, T0)

    top = f"S2_STEP{w}"
    a.label(top)
    a.ds = []
    for i in range(3):
        B.read_block(i, order)
    if cfg.get("zerotop", 1) == 1:
        B.zero_acc()
    if cfg.get("backoff"):
        a(f"s_sleep {cfg['backoff']}")
    stamp(a, cfg, 0)
    poll_deep(a, [f"buffer_load_dwordx4 {v(MA + 4 * k, 4)}, {v(L16)}, {WS_SRD}, {s(sMEM)} offen offset:{1024 * i} sc1" for i, k in enumerate(own)],
              range(MA + 4 * own[0], MA + 4 * own[0] + 4 * len(own)), T0,
              [lambda k=k: a.dsop(f"ds_write_b128 {v(L16)}, {v(MA + 4 * k, 4)} offset:{MEMIMG + 1024 * k}") for k in own],
              cfg.get("depth3", 1))
    stamp(a, cfg, 1)
    a(f"s_add_u32 {s(sF)}, {s(sF)}, {YF_SEG}")
    a.wait_ds_all()
    a("s_barrier")
    keep_stamps(a, cfg, 6, 168)
    if w >= 2:
        skip = a.newlabel("done")
        a(f"s_cmp_eq_u32 {s(S_STEP)}, 0")
        a(f"s_cselect_b32 {s(S_TMP)}, 1, {s(S_SLOW)}")
        a(f"s_cmp_lg_u32 {s(S_TMP)}, 0")
        a(f"s_cbranch_scc1 {skip}")
        a(f"s_sub_u32 {s(S_TMP)}, {s(sO)}, {MEM_SZ}")
        a(f"buffer_store_dword {v(O)}, {v(MOA)}, {WS_SRD}, {s(S_TMP)} offen sc1")
        a.label(skip)
    for k in order[len(own):]:
        a.dsop(f"ds_read_b128 {v(MA + 4 * k, 4)}, {v(L16)} offset:{MEMIMG + 1024 * k}", ("ma", k))
    yl = [f"buffer_load_dwordx4 {v(YB + 4 * i, 4)}, {v(L16)}, {WS_SRD}, {s(sY1 if i >= 4 else sY)} offen offset:{(i % 4) * 1024} sc1" for i in range(8)]
    yl = ([flag_load] if cfg.get("noy", 0) < 2 else []) + ([] if cfg.get("noy") else yl)
    extra = {}
    for i, x in enumerate(yl):
        extra.setdefault(i * cfg.get("ygap", 4) - 1, []).append(lambda x=x: a(x))
    B.mem_values(order, extra)
    for r in range(8):
        a(f"v_mov_b32 {v(O + r)}, 0")
    if not cfg.get("zerotop", 1):
        B.zero_acc()
    stamp(a, cfg, 2)
    a("s_waitcnt vmcnt(0)")
    wait_flag(a, FLG, flag_load)
    stamp(a, cfg, 3)
    if cfg.get("bell", 0):
        a(f"v_mov_b32 {v(T1)}, {s(sVAL)}")
    wait_bell(a, cfg, 11, sVAL, 4 * w)
    bell = f"buffer_store_dword {v(T1)}, off, {WS_SRD}, {s(sOWN)}"
    if w == 0 and cfg.get("bell", 0) and cfg.get("bell2", 1) == 0:
        a(bell)
    a.nop(w * cfg.get("wave2", 0))
    poll_deep(a, [f"buffer_load_dwordx4 {v(PA, 4)}, {v(L16)}, {WS_SRD}, {s(sP)} offen sc1",
                  f"buffer_load_dwordx4 {v(PA + 4, 4)}, {v(L16)}, {WS_SRD}, {s(sP)} offen offset:1024 sc1",
                  f"buffer_load_dwordx4 {v(PA + 8, 4)}, {v(PMA)}, {WS_SRD}, {s(sPM)} offen sc1"][:cfg.get("npoll", 3)],
              range(PA, PA + 4 * cfg.get("npoll", 3)), T0, (), cfg.get("depth2", 2), spacer=lambda i: B.zero_acc() if cfg.get("zerotop", 1) == 2 else a.nop(cfg.get("spread2", 30)))
    stamp(a, cfg, 4)
    for ct in range(2):
        for x, z in ((PA, YB), (PA + 4, YB + 16), (PA + 8, ZW)):
            smf(a, O + 4 * ct, x, v(z + 8 * ct, 8), IDX)
            if w == 0 and x == PA and ct == 0 and cfg.get("bell", 0) and cfg.get("bell2", 1) == 1:
                a(bell)
    swaps = lambda x: (a(f"v_permlane32_swap_b32 {v(x)}, {v(x + 2)}"), a(f"v_permlane32_swap_b32 {v(x + 1)}, {v(x + 3)}"))
    adds = lambda x: (a(f"v_add_f32 {v(x)}, {v(x)}, {v(x + 2)}"), a(f"v_add_f32 {v(x + 1)}, {v(x + 1)}, {v(x + 3)}"))
    write = lambda ct: a.dsop(f"ds_write2_b32 {v(PWA)}, {v(O + 4 * ct)}, {v(O + 4 * ct + 1)} offset0:{128 * ct} offset1:{128 * ct + 16}")
    swaps(O); adds(O); write(0); a.nop(2); swaps(O + 4); adds(O + 4); write(1)
    a.wait_ds_all()
    a("s_barrier")
    for wv in range(4):
        a.dsop(f"ds_read_b64 {v(O + 2 * wv, 2)}, {v(PRA)} offset:{1024 * wv}", ("p", wv))
    a.wait_ds(("p", 1))
    a(f"v_pk_add_f32 {v(O, 2)}, {v(O, 2)}, {v(O + 2, 2)}")
    a.wait_ds(("p", 3))
    a(f"v_pk_add_f32 {v(O + 4, 2)}, {v(O + 4, 2)}, {v(O + 6, 2)}")
    a(f"v_pk_add_f32 {v(O, 2)}, {v(O, 2)}, {v(O + 4, 2)}")
    a(f"v_cvt_pk_bf16_f32 {v(O)}, {v(O)}, {v(O + 1)}")
    a(f"v_min_u32 {v(O)}, -2, {v(O)}")
    if w < 2:
        a(f"buffer_store_dword {v(O)}, {v(MOA)}, {WS_SRD}, {s(sO)} offen")
    else:
        skip = a.newlabel("later")
        a(f"s_cmp_eq_u32 {s(S_STEP)}, {NSEG - 2}")
        a(f"s_cselect_b32 {s(S_TMP)}, 1, {s(S_SLOW)}")
        a(f"s_cmp_eq_u32 {s(S_TMP)}, 0")
        a(f"s_cbranch_scc1 {skip}")
        a(f"buffer_store_dword {v(O)}, {v(MOA)}, {WS_SRD}, {s(sO)} offen sc1")
        a.label(skip)
    stamp(a, cfg, 5)
    a(f"s_add_u32 {s(sMEM)}, {s(sMEM)}, {MEM_SZ}")
    a(f"s_add_u32 {s(sO)}, {s(sO)}, {MEM_SZ}")
    a(f"s_add_u32 {s(sVAL)}, {s(sVAL)}, 1")
    a(f"s_add_u32 {s(sP)}, {s(sP)}, {PB_SZ}")
    a(f"s_add_u32 {s(sPM)}, {s(sPM)}, {PB_SZ}")
    if not cfg.get("samey"):
        a(f"s_add_u32 {s(sY)}, {s(sY)}, {Y_SEG}")
        a(f"s_add_u32 {s(sY1)}, {s(sY1)}, {Y_SEG}")
    a(f"s_add_u32 {s(S_STEP)}, {s(S_STEP)}, 1")
    a(f"s_cmp_lt_u32 {s(S_STEP)}, {NSEG - 1}")
    a(f"s_cbranch_scc1 {top}")
    dump_stamps(a, cfg, 6, 168, 4 + w, L16)
    a("s_endpgm")


def gen_wm(a, cfg):
    L128, FLA, T0, JUNK, RDY = range(1, 6)
    sM, sA, sB, sF, sU, sR = range(S_T0, S_T0 + 6)
    ahead = cfg.get("wmahead", 2)
    a.label("WM")
    a(f"s_sub_u32 {s(sU)}, {s(S_LOC)}, 30")
    a(f"s_lshl_b32 {s(sU)}, {s(sU)}, 2")
    a(f"s_add_u32 {s(sU)}, {s(sU)}, {s(S_WAVE)}")
    if cfg.get("wmhelp", 0):
        wait_tasks(a, "B", T0, JUNK, None)
        a(f"v_lshlrev_b32 {v(L128)}, 7, v0")
        a(f"s_lshr_b32 {s(sA)}, {s(sU)}, 2")
        a(f"s_mul_i32 {s(sA)}, {s(sA)}, {7 * BL_CU}")
        a(f"s_mul_i32 {s(S_TMP)}, {s(S_WAVE)}, 114688")
        a(f"s_add_u32 {s(sA)}, {s(sA)}, {s(S_TMP)}")
        a(f"s_add_u32 {s(sA)}, {s(sA)}, {WS['BL'] + 6 * 14336 - 8192 * cfg['wmhelp']}")
        for c in range(7):
            for i in range(cfg.get("wmhelp", 0)):
                a(f"s_add_u32 {s(S_TMP)}, {s(sA)}, {c * BL_CU + i * 8192}")
                a(f"buffer_load_dword {v(JUNK)}, {v(L128)}, {WS_SRD}, {s(S_TMP)} offen")
    a(f"s_mov_b32 {s(S_STEP)}, 0")
    a(f"s_cmp_eq_u32 {s(sU)}, 7")
    a("s_cbranch_scc0 WM_LINES")
    a(f"v_min_u32 {v(T0)}, 55, v0")
    a(f"v_and_b32 {v(FLA)}, 3, {v(T0)}")
    a(f"v_lshlrev_b32 {v(FLA)}, 2, {v(FLA)}")
    a(f"v_lshrrev_b32 {v(T0)}, 2, {v(T0)}")
    a(f"v_lshl_add_u32 {v(FLA)}, {v(T0)}, 7, {v(FLA)}")
    a(f"s_mov_b32 {s(sF)}, {WS['YF']}")
    a(f"s_mov_b32 {s(sR)}, {WS['YR']}")
    a.label("WM_Y")
    wait_flag(a, T0, f"buffer_load_dword {v(T0)}, {v(FLA)}, {WS_SRD}, {s(sF)} offen sc1", sleep=8, landed=False)
    a(f"buffer_store_dword {v(T0)}, off, {WS_SRD}, {s(sR)}")
    a(f"s_cmp_lt_u32 {s(S_STEP)}, 8")
    a("s_cbranch_scc0 WM_NOGATE")
    a(f"s_add_u32 {s(S_TMP)}, {s(sR)}, {WS['GATE'] - WS['YR']}")
    a(f"buffer_store_dword {v(T0)}, off, {WS_SRD}, {s(S_TMP)} sc1")
    a.label("WM_NOGATE")
    a(f"s_add_u32 {s(sF)}, {s(sF)}, {YF_SEG}")
    a(f"s_add_u32 {s(sR)}, {s(sR)}, 128")
    a(f"s_add_u32 {s(S_STEP)}, {s(S_STEP)}, 1")
    a(f"s_cmp_lt_u32 {s(S_STEP)}, {NSEG}")
    a("s_cbranch_scc1 WM_Y")
    a("s_endpgm")
    a.label("WM_LINES")
    wait_tasks(a, "LZ", T0, 8)
    a(f"v_lshlrev_b32 {v(L128)}, 7, v0")
    a(f"s_mul_i32 {s(sM)}, {s(S_SLOW)}, {WS['MEMG'] - WS['MEML']}")
    a(f"s_add_u32 {s(sM)}, {s(sM)}, {WS['MEML']}")
    a(f"s_mul_i32 {s(sA)}, {s(sU)}, 7168")
    a(f"s_add_u32 {s(sA)}, {s(sA)}, {WS['XT']}")
    a(f"s_mov_b32 {s(sB)}, {XT_SEG}")
    a(f"s_cmp_lt_u32 {s(sU)}, 4")
    a("s_cbranch_scc1 WM_GO")
    a(f"s_mov_b32 {s(sA)}, {s(sM)}")
    a(f"s_mov_b32 {s(sB)}, {MEM_SZ}")
    a(f"s_cmp_eq_u32 {s(sU)}, 4")
    a("s_cbranch_scc1 WM_GO")
    a(f"s_and_b32 {s(sA)}, {s(sU)}, 1")
    a(f"s_lshl_b32 {s(sA)}, {s(sA)}, 11")
    a(f"s_add_u32 {s(sA)}, {s(sA)}, {WS['PB']}")
    a(f"s_mov_b32 {s(sB)}, {PB_SZ}")
    a.label("WM_GO")
    for i in range(ahead):
        a(f"buffer_load_dword {v(JUNK)}, {v(L128)}, {WS_SRD}, {s(sA)} offen sc1")
        a(f"s_add_u32 {s(sA)}, {s(sA)}, {s(sB)}")
    pieces = cfg.get("ypieces", 2)
    a(f"v_and_b32 {v(T0)}, 7, v0")
    a(f"v_lshlrev_b32 {v(FLA)}, 7, {v(T0)}")
    a(f"v_lshrrev_b32 {v(T0)}, 3, v0")
    a(f"v_lshl_add_u32 {v(FLA)}, {v(T0)}, 13, {v(FLA)}")
    a(f"s_lshl_b32 {s(sF)}, {s(sU)}, 16")
    a(f"s_add_u32 {s(sF)}, {s(sF)}, {WS['YL'] + Y_SEG + 4096}")
    a(f"s_mov_b32 {s(sR)}, {WS['YR'] + 128}")
    a.label("WM_STEP")
    a(f"buffer_load_dword {v(T0)}, off, {WS_SRD}, {s(sM)} sc1")
    a(f"buffer_load_dword {v(RDY)}, off, {WS_SRD}, {s(sR)} sc1")
    a("s_waitcnt vmcnt(0)")
    a(f"v_cmp_eq_u32 vcc, -1, {v(T0)}")
    a("s_cbranch_vccz WM_RUN")
    a("s_sleep 4")
    a(f"s_sub_u32 {s(S_TO)}, {s(S_TO)}, 1")
    a("s_cbranch_scc0 WM_STEP")
    a("s_endpgm")
    a.label("WM_RUN")
    a(f"buffer_load_dword {v(JUNK)}, {v(L128)}, {WS_SRD}, {s(sA)} offen sc1")
    a(f"v_cmp_ne_u32 vcc, {s(S_TAG)}, {v(RDY)}")
    a("s_cbranch_vccnz WM_NOY")
    for i in range(4 - pieces, 4):
        a(f"buffer_load_dword {v(JUNK)}, {v(FLA)}, {WS_SRD}, {s(sF)} offen offset:{i * 1024} sc1")
    a.label("WM_NOY")
    a(f"s_add_u32 {s(sF)}, {s(sF)}, {Y_SEG}")
    a(f"s_add_u32 {s(sR)}, {s(sR)}, 128")
    a(f"s_add_u32 {s(sA)}, {s(sA)}, {s(sB)}")
    a(f"s_add_u32 {s(sM)}, {s(sM)}, {MEM_SZ}")
    a(f"s_add_u32 {s(S_STEP)}, {s(S_STEP)}, 1")
    a(f"s_cmp_lt_u32 {s(S_STEP)}, {NSEG - ahead}")
    a("s_cbranch_scc1 WM_STEP")
    a("s_endpgm")


def gen_clean(a, cfg):
    a.label("CLEAN")
    wait_tasks(a, "LZ", 1, 2)
    for seg in (cfg.get("clean", 52), 61):
        wait_step(a, 1, seg, sleep=32)
        a("buffer_wbl2 sc1")
        a("s_waitcnt vmcnt(0)")
    a("s_endpgm")
```
